```python
import torch

def _softmax(x, axis=-1):
    return torch.softmax(x, dim=axis)
def _gelu(x):
    return torch.nn.functional.gelu(x, approximate="tanh")
def _silu(x):
    return torch.nn.functional.silu(x)
def _sigmoid(x):
    return torch.sigmoid(x)
def _layernorm(x, axis=-1, eps=1e-5):
    m = x.mean(dim=axis, keepdim=True)
    v = x.var(dim=axis, keepdim=True, unbiased=False)
    return (x - m) / torch.sqrt(v + eps)
def _scatter_add(tgt, idx, src, axis=0):
    return tgt.clone().index_add_(axis, idx, src)
def _segment_sum(src, seg, n):
    out = torch.zeros((n,) + src.shape[1:], dtype=src.dtype)
    return out.index_add_(0, seg, src)
def _pad(x, pw):
    flat = tuple(v for pair in reversed(pw) for v in pair)
    return torch.nn.functional.pad(x, flat)

kernel_name = 'parallel_sum__spectral_gfnet__dense_activation_gelu__prompt'

def setup_inputs():

    _w = (lambda a: (lambda t: t.to(torch.bfloat16) if t.is_floating_point() else t)(torch.as_tensor(a)))
    def _A_setup():
        B, S, D = 1, 2048, 640
        Df = D // 2 + 1
        return {
            "x": _w((lambda *s: torch.randn(*s, dtype=torch.bfloat16) * 0.05)(B, S, D)),
            "w_r": _w((lambda *s: torch.randn(*s, dtype=torch.bfloat16) * 0.8)(S, Df) * 0.02),
            "w_i": _w((lambda *s: torch.randn(*s, dtype=torch.bfloat16) * 0.8)(S, Df) * 0.02),
        }
    _A_in = _A_setup()

    def _B_setup():
        B, S, D, F = 1, 2048, 640, 1728
        return {
            "x": _w((lambda *s: torch.randn(*s, dtype=torch.bfloat16) * 0.05)(B, S, D)),
            "w1": _w((lambda *s: torch.randn(*s, dtype=torch.bfloat16) * 0.4)(D, F) * (D ** -0.5)),
            "b1": _w((lambda *s: torch.randn(*s, dtype=torch.bfloat16) * 12.8)(F) * 0.01),
            "w2": _w((lambda *s: torch.randn(*s, dtype=torch.bfloat16) * 0.2)(F, D) * (F ** -0.5)),
            "b2": _w((lambda *s: torch.randn(*s, dtype=torch.bfloat16) * 1.6)(D) * 0.01),
        }
    _B_in = _B_setup()

    return {
        "A_x": _A_in["x"],
        "A_w_r": _A_in["w_r"],
        "A_w_i": _A_in["w_i"],
        "B_x": _B_in["x"],
        "B_w1": _B_in["w1"],
        "B_b1": _B_in["b1"],
        "B_w2": _B_in["w2"],
        "B_b2": _B_in["b2"],
    }

def reference(A_x, A_w_r, A_w_i, B_x, B_w1, B_b1, B_w2, B_b2):
    def _A_ref(x, w_r, w_i):
        B, S, D = x.shape
        X = (lambda x, axes=(-2,-1): torch.fft.rfft2(x.float(), dim=axes))(x, axes=(-2, -1))
        W = w_r + 1j * w_i
        X = X * W
        y = (lambda x, s, axes=(-2,-1): torch.fft.irfft2(x, s=s, dim=axes).to(torch.bfloat16))(X, (S, D), axes=(-2, -1))
        return y

    def _B_ref(x, w1, b1, w2, b2):
        h = torch.einsum("bsd,df->bsf", x, w1) + b1
        h = _gelu(h)
        return torch.einsum("bsf,fd->bsd", h, w2) + b2

    x = A_x
    xn = _layernorm(x, axis=-1)
    return x + _A_ref(xn, A_w_r, A_w_i) + _B_ref(xn, B_w1, B_b1, B_w2, B_b2)
```

```python
import re
NAME = "parallel_sum__spectral_gfnet__dense_activation_gelu__prompt"

def v(i, n=1): return f"v{i}" if n == 1 else f"v[{i}:{i+n-1}]"
def a(i, n=1): return f"a{i}" if n == 1 else f"a[{i}:{i+n-1}]"
def s(i, n=1): return f"s{i}" if n == 1 else f"s[{i}:{i+n-1}]"

_REG = re.compile(r"^(-?)(?:abs\()?([vas])(?:(\d+)|\[(\d+):(\d+)\])\)?$")
def regs_of(op):
    op = op.strip()
    if op in ("vcc", "vcc_lo", "vcc_hi"): return {("s", "vcc")}
    if op in ("exec", "exec_lo", "exec_hi"): return {("s", "exec")}
    if op == "m0": return {("s", "m0")}
    m = _REG.match(op)
    if not m: return set()
    k = m.group(2)
    if m.group(3) is not None: return {(k, int(m.group(3)))}
    return {(k, i) for i in range(int(m.group(4)), int(m.group(5)) + 1)}

TRANS = ("v_exp_f32", "v_log_f32", "v_rcp_f32", "v_rsq_f32", "v_sqrt_f32", "v_sin_f32", "v_cos_f32")
class Ins:
    def __init__(self, text):
        self.text = text
        t = text.split(";")[0].strip()
        self.label = t[:-1] if t.endswith(":") else None
        self.mn = ""; self.w = set(); self.r = set(); self.kind = "other"
        self.passes = 0; self.srcC = set(); self.srcAB = set(); self.states = 1; self.target = None
        self.lds_dma = False; self.wide_store = set()
        if self.label is not None or not t or t.startswith("."):
            self.kind = "label" if self.label is not None else "none"; self.states = 0; return
        p = t.split(None, 1); mn = p[0]; self.mn = mn
        rest = p[1] if len(p) > 1 else ""
        ops = [o.strip() for o in rest.split(",")]
        if ops:
            last = ops[-1].split()
            mods = " ".join(last[1:]) if last else ""
            ops[-1] = last[0] if last else ""
        clean = []
        for o in [o.strip() for o in rest.split(",")]:
            q = o.split()
            if not q: break
            clean.append(q[0])
            if len(q) > 1: break
        ops = clean
        self.ops = ops
        R = lambda i: regs_of(ops[i]) if i < len(ops) else set()
        if mn.startswith("v_mfma"):
            self.kind = "mfma"; self.passes = 8 if "32x32x16" in mn else 4
            self.w = R(0); self.srcAB = R(1) | R(2); self.srcC = R(3); self.r = self.srcAB | self.srcC
        elif mn.startswith("v_"):
            self.kind = "valu"
            self.w = R(0); self.r = set().union(*[R(i) for i in range(1, len(ops))]) if len(ops) > 1 else set()
            if mn.startswith(("v_fmac", "v_dot2c", "v_pk_fmac")) or "_dpp" in mn or "_sdwa" in mn or mn.startswith("v_writelane"): self.r |= R(0)
            if mn.startswith("v_permlane") and "swap" in mn: self.w = R(0) | R(1); self.r = R(0) | R(1)
            if mn.startswith(("v_add_co", "v_sub_co", "v_addc_co", "v_subb_co")): self.w |= R(1); self.r -= (R(1) - (R(4) if len(ops) > 4 else set()))
            if mn.startswith("v_cndmask") and len(ops) == 3: self.r |= {("s", "vcc")}
        elif mn.startswith("ds_"):
            self.kind = "ds"
            if "read" in mn or "permute" in mn or "swizzle" in mn:
                self.w = R(0); self.r = set().union(*[R(i) for i in range(1, len(ops))])
                if "d16" in mn: self.r |= R(0)
            else:
                self.r = set().union(*[R(i) for i in range(len(ops))])
        elif mn.startswith(("buffer_", "global_")):
            self.kind = "vmem"
            words = rest.replace(",", " ").split()
            if mn in ("buffer_inv", "buffer_wbl2"): pass
            elif "lds" in words or "_lds_" in mn:
                self.lds_dma = True; self.r = set().union(*[R(i) for i in range(len(ops))]) | {("s", "m0")}
            elif "load" in mn:
                self.w = R(0); self.r = set().union(*[R(i) for i in range(1, len(ops))])
                if "d16" in mn: self.r |= R(0)
            elif "atomic" in mn and "sc0" in words:
                self.w = R(0); self.r = set().union(*[R(i) for i in range(len(ops))])
            else:
                self.r = set().union(*[R(i) for i in range(len(ops))])
                if "x4" in mn or "x3" in mn:
                    self.wide_store = R(0) if mn.startswith("buffer") else R(1)
        elif mn.startswith("s_"):
            self.kind = "salu"
            if mn == "s_nop": self.states = int(ops[0], 0) + 1
            elif mn.startswith(("s_cbranch", "s_branch")): self.kind = "branch"; self.target = ops[0]
            elif mn.startswith(("s_load", "s_buffer_load", "s_memtime", "s_memrealtime")): self.kind = "smem"; self.w = R(0); self.r = set().union(*[R(i) for i in range(1, len(ops))]) if len(ops) > 1 else set()
            elif mn.startswith(("s_cmp", "s_waitcnt", "s_barrier", "s_endpgm", "s_sleep", "s_setprio")): self.r = set().union(*[R(i) for i in range(len(ops))]) if ops else set()
            else:
                self.w = R(0); self.r = set().union(*[R(i) for i in range(1, len(ops))]) if len(ops) > 1 else set()
                if "saveexec" in mn: self.w |= {("s", "exec")}

def need(p, c):
    n = 0
    vw = {x for x in p.w if x[0] in "va"}; sw = {x for x in p.w if x[0] == "s"}
    if p.kind == "valu":
        dot = p.mn.startswith("v_dot")
        if c.kind == "mfma" and vw & c.r: n = max(n, 3 if dot else 2)
        if dot and (vw & (c.r | c.w)):
            if c.mn == p.mn:
                ab = regs_of(c.ops[1]) | regs_of(c.ops[2])
                if vw & ab: n = max(n, 3)
            else: n = max(n, 3)
        if p.mn.startswith(TRANS) and c.kind in ("valu",) and vw & c.r and not c.mn.startswith(TRANS): n = max(n, 1)
        if p.mn.startswith(TRANS) and c.kind in ("ds", "vmem") and vw & c.r: n = max(n, 1)
        if c.kind == "valu" and vw & c.r:
            if c.mn.startswith(("v_readfirstlane", "v_readlane")): n = max(n, 1)
            if c.mn.startswith("v_permlane") or "_dpp" in c.mn: n = max(n, 2)
            if "_sdwa" in p.mn or "op_sel" in p.text and not p.mn.startswith("v_pk"): n = max(n, 1)
        if sw & c.r:
            if c.kind == "vmem": n = max(n, 5)
            elif c.kind == "valu": n = max(n, 4 if c.mn.startswith(("v_readlane", "v_writelane")) else 2)
            elif c.kind in ("salu", "branch", "smem"): n = max(n, 2)
        if ("s", "vcc") in sw and c.kind == "branch" and "vcc" in c.mn: n = max(n, 5)
    if p.kind == "mfma":
        big = p.passes == 8
        if c.kind == "mfma":
            if p.w & c.srcAB: n = max(n, 12 if big else 8)
            if p.w & c.srcC and not (p.w == c.srcC and p.passes == c.passes): n = max(n, 10 if big else 6)
            if p.w & c.w and not (p.w & c.srcC): n = max(n, 10 if big else 6)
        elif c.kind in ("valu", "ds", "vmem"):
            if p.w & (c.r | c.w): n = max(n, 12 if big else 8)
            if p.srcC & c.w: n = max(n, 7 if big else 3)
    if p.kind == "salu" and ("s", "m0") in p.w and c.kind == "vmem" and c.lds_dma: n = max(n, 1)
    if p.kind == "vmem" and p.wide_store & c.w: n = max(n, 2)
    if p.kind == "ds" and p.mn.startswith(("ds_write_b128", "ds_write_b96")) and (p.r & c.w) and c.kind == "valu": n = max(n, 2)
    return n

class Asm:
    def __init__(self, auto=True):
        self.ins = []
        self.nlabel = 0
        self.auto = auto
        self.lg = []
        self.vm = []
        self.ntok = 0
        self.prot = set()
    def label(self, p="L"):
        Asm._n = getattr(Asm, "_n", 0) + 1
        return f"{p}_{Asm._n}"
    def raw(self, t): self.ins.append(Ins(t))
    def _wait(self, vm=None, lg=None):
        parts = []
        if vm is not None:
            assert vm <= 63
            parts.append(f"vmcnt({vm})"); self.vm = self.vm[len(self.vm) - vm:] if vm < len(self.vm) and vm > 0 else ([] if vm == 0 else self.vm)
        if lg is not None:
            lg = min(lg, 15)
            parts.append(f"lgkmcnt({lg})"); self.lg = self.lg[len(self.lg) - lg:] if lg < len(self.lg) and lg > 0 else ([] if lg == 0 else self.lg)
        self.raw("s_waitcnt " + " ".join(parts))
    def wait(self, vm=None, lg=None): self._wait(vm, lg)
    def wait_tok(self, tok):
        for i, (_, t) in enumerate(self.vm):
            if t == tok:
                self._wait(vm=min(63, len(self.vm) - 1 - i)); return
    def one(self, l):
        I = Ins(l)
        bad = {r for k, r in I.w if k == 's'} & self.prot
        assert not bad, f'write to protected sgpr {bad}: {l}'
        tok = None
        if self.auto and I.kind not in ("label", "none"):
            if I.mn == "s_waitcnt":
                m = re.search(r"vmcnt\((\d+)\)", l); n = re.search(r"lgkmcnt\((\d+)\)", l)
                self._wait(int(m.group(1)) if m else None, int(n.group(1)) if n else None); return
            touch = I.r | I.w
            nl = None; nv = None
            for i, d in enumerate(self.lg):
                if d & touch: nl = len(self.lg) - 1 - i
            for i, (d, _) in enumerate(self.vm):
                if d & touch: nv = len(self.vm) - 1 - i
            if nl is not None or nv is not None:
                self._wait(None if nv is None else min(nv, 63), nl)
            if I.kind == "ds": self.lg.append(set(I.w))
            if I.kind == "smem": self.lg.append(set(I.w) | {("smem", 0)})
            if I.kind == "vmem":
                self.ntok += 1; tok = self.ntok; self.vm.append((set(I.w), tok))
        self.ins.append(I)
        return tok
    def __call__(self, text):
        tok = None
        for l in text.split("\n"):
            l = l.strip()
            if l and not l.startswith(";"): tok = self.one(l)
        return tok
    def state(self): return ([frozenset(x) for x in self.lg], [frozenset(d) for d, _ in self.vm])
    def _fix_linear(self):
        out = []
        for I in self.ins:
            if I.kind not in ("label", "none"):
                dist = 0; req = 0
                for P in reversed(out):
                    if dist >= 14: break
                    if P.kind in ("label", "none"): continue
                    n = need(P, I) - dist
                    req = max(req, n)
                    dist += P.states
                    if P.mn == "s_branch" or P.mn == "s_endpgm": break
                while req > 0:
                    k = min(req, 16); out.append(Ins(f"s_nop {k-1}")); req -= k
            out.append(I)
        self.ins = out
    def _fix_branches(self):
        changed = True
        while changed:
            changed = False
            lab = {I.label: i for i, I in enumerate(self.ins) if I.kind == "label"}
            for bi, B in enumerate(self.ins):
                if B.kind != "branch" or B.target not in lab: continue
                before = [P for P in self.ins[max(0, bi - 30):bi + 1] if P.kind not in ("label", "none")]
                after = [C for C in self.ins[lab[B.target]:lab[B.target] + 30] if C.kind not in ("label", "none")]
                req = 0; da = 0
                for C in after:
                    if da >= 14: break
                    dist = da
                    for P in reversed(before):
                        if dist >= 14: break
                        req = max(req, need(P, C) - dist); dist += P.states
                    da += C.states
                if req > 0:
                    self.ins.insert(bi, Ins(f"s_nop {req-1}")); changed = True; break
    def text(self):
        if self.auto:
            self._fix_linear(); self._fix_branches()
        return "\n".join(("" if I.kind == "label" else "    ") + I.text for I in self.ins) + "\n"

def kernel_text(label, body, vgpr, accum_offset=None, sgpr=102):
    if accum_offset is None: accum_offset = min(256, (vgpr + 3) // 4 * 4)
    code = f""".text
.globl {label}
.p2align 8
.type {label},@function
{label}:
{body}    s_endpgm
"""
    desc = f""".section .rodata,"a"
.p2align 6
.amdhsa_kernel {label}
  .amdhsa_next_free_vgpr {vgpr}
  .amdhsa_next_free_sgpr {sgpr}
  .amdhsa_accum_offset {accum_offset}
  .amdhsa_group_segment_fixed_size 0
  .amdhsa_kernarg_size 88
  .amdhsa_user_sgpr_count 2
  .amdhsa_user_sgpr_kernarg_segment_ptr 1
  .amdhsa_system_sgpr_workgroup_id_x 1
.end_amdhsa_kernel
"""
    return code, desc

def file_text(kernels, header=""):
    hdr = []
    for k in kernels:
        hdr.append(f"; @launch kernel={k['label']} grid=({k['grid']},1,1) block=({k['block']},1,1) lds={k['lds']}")
    out = "\n".join(hdr) + "\n" + header + '.amdgcn_target "amdgcn-amd-amdhsa--gfx950"\n'
    seen = set(); descs = ""
    for k in kernels:
        if k['label'] in seen: continue
        seen.add(k['label'])
        c, d = kernel_text(k['label'], k['body'], k['vgpr'], k.get('accum_offset'), k.get('sgpr', 102))
        out += c; descs += d
    return out + descs
```

```python
import struct, math, sys
from asmlib import *

def fbits(x): return "0x%08x" % struct.unpack("<I", struct.pack("<f", x))[0]

H_OFF = 0;            H_SZ = 32*54*4096
W2P_OFF = 8 << 20;    W2P_SZ = 8*54*5120
V_OFF = 12 << 20;     V_SZ = 32*20*64*64
U_OFF = 16 << 20;     U_SZ = V_SZ
STAMP_OFF = 64 << 20
ST = "sc1"

K0 = -2.0*math.sqrt(2.0/math.pi)*math.log2(math.e)
K1c = K0*0.044715

def srd(A, d, lo, nbytes, add=0):
    if add:
        A(f"s_add_u32 s{d}, s{lo}, {add}\ns_addc_u32 s{d+1}, s{lo+1}, 0")
    else:
        A(f"s_mov_b32 s{d}, s{lo}\ns_mov_b32 s{d+1}, s{lo+1}")
    A(f"s_mov_b32 s{d+2}, {nbytes}\ns_mov_b32 s{d+3}, 0x20000")

def bf16_round(A, dst, src):
    A(f"v_cvt_pk_bf16_f32 v{dst}, v{src}, v{src}\nv_lshlrev_b32 v{dst}, 16, v{dst}")

def allreduce_g(A, r, tmp):
    A(f"v_mov_b32 v{tmp}, v{r}\nv_permlane16_swap_b32 v{r}, v{tmp}\nv_add_f32 v{r}, v{r}, v{tmp}")
    A(f"v_mov_b32 v{tmp}, v{r}\nv_permlane32_swap_b32 v{r}, v{tmp}\nv_add_f32 v{r}, v{r}, v{tmp}")

def row_stats(A, sm, sq, t0, t1):
    allreduce_g(A, sm, t0); allreduce_g(A, sq, t0)
    A(f"v_mul_f32 v{sm}, {fbits(1/640)}, v{sm}")
    A(f"v_mul_f32 v{sq}, {fbits(1/640)}, v{sq}")
    A(f"v_fma_f32 v{sq}, -v{sm}, v{sm}, v{sq}")
    A(f"v_max_f32 v{sq}, 0, v{sq}")
    bf16_round(A, sq, sq)
    A(f"v_add_f32 v{sq}, {fbits(1e-5)}, v{sq}")
    bf16_round(A, sq, sq)
    A(f"v_sqrt_f32 v{sq}, v{sq}")
    bf16_round(A, sq, sq)
    bf16_round(A, sm, sm)

class Stamp:
    def __init__(self, on, slot): self.on = on; self.slot = slot; self.n = 0
    def start(self, A):
        if self.on: A("s_memtime s[90:91]\ns_memrealtime s[92:93]")
    def mark(self, A):
        if self.on:
            A(f"s_memtime s[{80+2*self.n}:{81+2*self.n}]"); A.lg.pop(); self.n += 1; assert self.n <= 5
    def end(self, A, wave_s, ws_lo):
        if not self.on: return
        A("s_waitcnt vmcnt(0)")
        A("s_memtime s[94:95]\ns_memrealtime s[96:97]\ns_waitcnt lgkmcnt(0)")
        A("s_sub_u32 s94, s94, s90")
        for i in range(5): A(f"s_sub_u32 s{80+2*i}, s{80+2*i}, s90")
        A("v_mov_b32 v0, s94\nv_mov_b32 v1, s92\nv_mov_b32 v2, s96\nv_mov_b32 v3, s80")
        A("v_mov_b32 v4, s82\nv_mov_b32 v5, s84\nv_mov_b32 v6, s86\nv_mov_b32 v7, s88")
        srd(A, 76, ws_lo, 0x10000000)
        A(f"s_lshl_b32 s98, s2, 3\ns_add_u32 s98, s98, s{wave_s}\ns_lshl_b32 s98, s98, 5\ns_add_u32 s98, s98, {STAMP_OFF + self.slot*131072}")
        A("v_mov_b32 v8, 0\ns_mov_b64 exec, 1")
        A("buffer_store_dwordx4 v[0:3], v8, s[76:79], s98 offen\nbuffer_store_dwordx4 v[4:7], v8, s[76:79], s98 offen offset:16")

def gen_k1(stamps=False):
    A = Asm(); T = Stamp(stamps, 0)
    END = "K1_END"; DFT = "K1_DFT"
    sX, sW1, sB1, sW2, sWS = 4, 8, 10, 12, 14
    rX, rW1, rH, rB1 = 16, 20, 24, 28
    sW, sR, sJ, sC0, sS2 = 32, 33, 34, 35, 36
    A(f"s_cmp_ge_u32 s2, 256\ns_cbranch_scc1 {END}")
    T.start(A)
    A(f"""
    s_load_dwordx2 s[{sX}:{sX+1}], s[0:1], 0
    s_load_dwordx4 s[{sW1}:{sW1+3}], s[0:1], 32
    s_load_dwordx2 s[{sW2}:{sW2+1}], s[0:1], 48
    s_load_dwordx2 s[{sWS}:{sWS+1}], s[0:1], 80
    v_lshrrev_b32 v1, 6, v0
    v_and_b32 v0, 63, v0
    v_readfirstlane_b32 s{sW}, v1
    s_and_b32 s40, s2, 7
    s_lshr_b32 s41, s2, 3
    s_lshr_b32 s42, s40, 1
    s_and_b32 s43, s40, 1
    s_lshr_b32 s44, s41, 3
    s_and_b32 s45, s41, 7
    s_lshl_b32 s{sR}, s42, 2
    s_add_u32 s{sR}, s{sR}, s44
    s_lshl_b32 s{sS2}, s{sR}, 2
    s_add_u32 s{sS2}, s{sS2}, s{sW}
    s_mul_i32 s46, s44, 5
    s_add_u32 s46, s46, 1
    s_lshr_b32 s46, s46, 1
    s_add_u32 s{sC0}, s46, s45
    s_cmp_ge_u32 s{sC0}, 10
    s_cselect_b32 s46, 10, 0
    s_sub_u32 s{sC0}, s{sC0}, s46
    """)
    A(f"""
    v_and_b32 v1, 15, v0
    v_lshrrev_b32 v2, 4, v0
    v_lshrrev_b32 v3, 3, v0
    v_mul_u32_u24 v3, 81920, v3
    v_and_b32 v4, 7, v0
    v_xor_b32 v4, v4, v2
    v_lshl_add_u32 v4, v4, 4, v3
    v_xor_b32 v5, 64, v4
    v_add_u32 v5, {655360-1024}, v5
    v_add_u32 v6, {2*(655360-1024)}, v4
    v_add_u32 v7, {2*(655360-1024)}, v5
    v_lshrrev_b32 v3, 1, v1
    v_xor_b32 v3, v3, v2
    v_lshlrev_b32 v3, 4, v3
    v_lshl_add_u32 v8, v1, 7, v3
    s_waitcnt lgkmcnt(0)
    """)
    srd(A, rX, sX, 2048*1280)
    A(f"s_add_u32 s46, s43, 5\ns_cmp_ge_u32 s45, s46\ns_cbranch_scc1 {DFT}")

    SLOT = 36864; C1X = 4*SLOT
    srd(A, rW1, sW1, 640*3456); srd(A, rH, sWS, H_SZ, H_OFF); srd(A, rB1, sB1, 1728*2)
    sCol = 37; sXo = 38; sWo = 39; sCh = 47; sIt = 48; sSlotI = 49; sSlotR = 50; sM = 51
    A(f"""
    s_mul_i32 s{sJ}, s43, 5
    s_add_u32 s{sJ}, s{sJ}, s45
    s_mul_i32 s{sCol}, s{sJ}, 160
    s_min_u32 s{sCol}, s{sCol}, 1568
    """)
    A(f"s_mul_i32 s46, s{sW}, 320\ns_mov_b32 s52, {(1<<32)//20+1}")
    for i in range(5):
        A(f"""
        v_add_u32 v14, s46, v0
        v_add_u32 v14, {64*i}, v14
        v_mul_hi_u32 v15, v14, s52
        v_mul_u32_u24 v16, 20, v15
        v_sub_u32 v16, v14, v16
        v_lshrrev_b32 v17, 2, v15
        v_and_b32 v17, 2, v17
        v_xor_b32 v16, v16, v17
        v_mul_u32_u24 v15, 3456, v15
        v_lshl_add_u32 v{9+i}, v16, 4, v15
        """)
        if 0 < i < 4: A(f"v_subrev_u32 v{9+i}, {1024*i}, v{9+i}")
    def dma_chunk():
        A(f"""
        s_lshl_b32 s{sXo}, s{sCh}, 7
        s_mul_i32 s{sWo}, s{sS2}, 1280
        s_add_u32 s{sXo}, s{sXo}, s{sWo}
        s_mul_i32 s{sWo}, s{sCh}, {64*3456}
        s_lshl_b32 s{sM}, s{sCol}, 1
        s_add_u32 s{sWo}, s{sWo}, s{sM}
        s_lshl_b32 s{sM}, s{sW}, 12
        s_add_u32 m0, s{sM}, s{sSlotI}
        """)
        for i in range(4): A(f"buffer_load_dwordx4 v{4+i}, s[{rX}:{rX+3}], s{sXo} offen offset:{1024*i} lds")
        A(f"s_mul_i32 s{sM}, s{sW}, 5120\ns_add_u32 s{sM}, s{sM}, s{sSlotI}\ns_add_u32 m0, s{sM}, 16384")
        for i in range(4): A(f"buffer_load_dwordx4 v{9+i}, s[{rW1}:{rW1+3}], s{sWo} offen offset:{1024*i} lds")
        A(f"s_add_u32 m0, s{sM}, {16384+4096}")
        A(f"buffer_load_dwordx4 v13, s[{rW1}:{rW1+3}], s{sWo} offen lds")
        A(f"""
        s_add_u32 s{sCh}, s{sCh}, 1
        s_cmp_eq_u32 s{sCh}, 10
        s_cselect_b32 s{sCh}, 0, s{sCh}
        s_add_u32 s{sSlotI}, s{sSlotI}, {SLOT}
        s_cmp_eq_u32 s{sSlotI}, {4*SLOT}
        s_cselect_b32 s{sSlotI}, 0, s{sSlotI}
        """)
    ACC = 32; AF = 112; XF = 192; AUG = 208
    C1A = 248
    vXA0, vXA1, vWE, vWO = 14, 15, 16, 17
    vXB, vWB = 18, 19
    SM0, SQ0, SM1, SQ1 = 20, 21, 22, 23
    ONES = 24
    A(f"""
    v_lshlrev_b32 v25, 1, v1
    v_lshl_add_u32 v25, v2, 28, v25
    s_lshl_b32 s46, s{sCol}, 1
    """)
    for ft in range(10): A(f"buffer_load_ushort v{AUG+4*ft+1}, v25, s[{rB1}:{rB1+3}], s46 offen offset:{32*ft}")
    A(f"s_mov_b32 s{sCh}, s{sC0}\ns_mov_b32 s{sSlotI}, 0\ns_mov_b32 s{sSlotR}, 0")
    for _ in range(3): dma_chunk()
    A(f"""
    s_lshl_b32 s46, s{sW}, 12
    v_add_u32 v{vXB}, s46, v8
    v_lshrrev_b32 v26, 2, v1
    v_lshl_add_u32 v26, v2, 3, v26
    v_mul_u32_u24 v26, 320, v26
    v_and_b32 v27, 3, v1
    v_lshl_add_u32 v26, v27, 3, v26
    v_add_u32 v{vWB}, 16384, v26
    v_and_b32 v27, 1, v2
    v_lshlrev_b32 v27, 5, v27
    v_mov_b32 v{ONES}, 0x3f803f80
    """)
    for i in range(80): A(f"v_mov_b32 v{ACC+i}, 0")
    for r in (SM0, SQ0, SM1, SQ1): A(f"v_mov_b32 v{r}, 0")
    for i in range(5): A(f"v_mov_b32 v{C1A+i}, 0")
    for ft in range(10): A(f"v_mov_b32 v{AUG+4*ft+2}, 0\nv_mov_b32 v{AUG+4*ft+3}, 0")
    A(f"s_mov_b32 s{sIt}, 0")
    LOOP = "K1_MLOOP"
    A.vm = []
    A(f"{LOOP}:")
    L1, L2, L3 = A.label(), A.label(), A.label()
    A(f"s_cmp_ge_u32 s{sIt}, 8\ns_cbranch_scc1 {L1}\ns_waitcnt vmcnt(18)\ns_branch {L3}\n{L1}:")
    A(f"s_cmp_eq_u32 s{sIt}, 8\ns_cbranch_scc0 {L2}\ns_waitcnt vmcnt(9)\ns_branch {L3}\n{L2}:\ns_waitcnt vmcnt(0)\n{L3}:")
    A("s_barrier")
    L4 = A.label()
    A(f"s_cmp_ge_u32 s{sIt}, 7\ns_cbranch_scc1 {L4}")
    dma_chunk()
    A(f"{L4}:")
    A.vm = []
    A(f"""
    v_add_u32 v{vXA0}, s{sSlotR}, v{vXB}
    v_xor_b32 v{vXA1}, 64, v{vXA0}
    v_add_u32 v{vWO}, s{sSlotR}, v{vWB}
    v_add_u32 v{vWE}, v{vWO}, v27
    v_sub_u32 v{vWO}, v{vWO}, v27
    """)
    for t in range(2):
        for mt in range(2): A(f"ds_read_b128 {v(XF+8*t+4*mt,4)}, v{vXA0+t} offset:{2048*mt}")
        for ft in range(10):
            for jh in range(2):
                A(f"ds_read_b64_tr_b16 {v(AF+40*t+4*ft+2*jh,2)}, v{vWE if ft%2==0 else vWO} offset:{t*10240+jh*1280+ft*32}")
    for t in range(2):
        for ft in range(10):
            for mt in range(2):
                c = ACC + (ft*2+mt)*4
                A(f"v_mfma_f32_16x16x32_bf16 {v(c,4)}, {v(AF+40*t+4*ft,4)}, {v(XF+8*t+4*mt,4)}, {v(c,4)}")
    for t in range(2):
        for i in range(4):
            for mt in range(2):
                r = XF+8*t+4*mt+i
                A(f"v_dot2c_f32_bf16 v{SM0+2*mt}, v{r}, v{ONES}\nv_dot2c_f32_bf16 v{SQ0+2*mt}, v{r}, v{r}")
    LC = A.label()
    for w in range(4):
        Ln = A.label()
        A(f"s_cmp_eq_u32 s{sW}, {w}\ns_cbranch_scc0 {Ln}")
        t, hf = w & 1, w >> 1
        for i in range(4):
            for q in range(5): A(f"v_dot2c_f32_bf16 v{C1A+q}, v{AF+40*t+4*(5*hf+q)+i}, v{ONES}")
        A(f"s_branch {LC}\n{Ln}:")
    A(f"{LC}:")
    A(f"""
    s_add_u32 s{sSlotR}, s{sSlotR}, {SLOT}
    s_cmp_eq_u32 s{sSlotR}, {4*SLOT}
    s_cselect_b32 s{sSlotR}, 0, s{sSlotR}
    s_add_u32 s{sIt}, s{sIt}, 1
    s_cmp_lt_u32 s{sIt}, 10
    s_cbranch_scc1 {LOOP}
    """)
    T.mark(A)
    A(f"""
    s_lshr_b32 s46, s{sW}, 1
    s_mul_i32 s46, s46, {5*512}
    s_and_b32 s52, s{sW}, 1
    s_lshl_b32 s52, s52, 2
    s_add_u32 s46, s46, s52
    s_add_u32 s46, s46, {C1X}
    v_lshlrev_b32 v28, 3, v0
    v_add_u32 v29, s46, v28
    v_add_u32 v28, {C1X}, v28
    """)
    for q in range(5): A(f"ds_write_b32 v29, v{C1A+q} offset:{512*q}")
    row_stats(A, SM0, SQ0, 30, 31); row_stats(A, SM1, SQ1, 30, 31)
    A("s_waitcnt lgkmcnt(0)\ns_barrier")
    for ft in range(10): A(f"ds_read_b64 {v(AF+2*ft,2)}, v28 offset:{512*ft}")
    for mt in range(2):
        b = XF+4*mt
        A(f"v_cvt_pk_bf16_f32 v{b}, -v{SM0+2*mt}, -v{SM0+2*mt}\nv_lshrrev_b32 v{b+1}, 16, v{SQ0+2*mt}\nv_mov_b32 v{b+2}, 0\nv_mov_b32 v{b+3}, 0")
    for ft in range(10):
        A(f"v_add_f32 v30, v{AF+2*ft}, v{AF+2*ft+1}")
        bf16_round(A, 31, 30)
        A(f"v_sub_f32 v31, v30, v31\nv_cvt_pk_bf16_f32 v{AUG+4*ft}, v30, v31")
    for ft in range(10):
        for mt in range(2):
            c = ACC + (ft*2+mt)*4
            A(f"v_mfma_f32_16x16x32_bf16 {v(c,4)}, {v(AUG+4*ft,4)}, {v(XF+4*mt,4)}, {v(c,4)}")
    KA, KB, SD = 140, 144, 148
    for mt in range(2):
        A(f"""
        v_rcp_f32 v30, v{SQ0+2*mt}
        v_mov_b32 v{SD+2*mt}, v{SQ0+2*mt}
        v_mul_f32 v{KB+2*mt}, {fbits(K0)}, v30
        v_mul_f32 v31, v30, v30
        v_mul_f32 v31, v31, v30
        v_mul_f32 v{KA+2*mt}, {fbits(K1c)}, v31
        """)
    A(f"""
    s_lshr_b32 s46, s{sS2}, 1
    s_mul_i32 s46, s46, 54
    s_lshr_b32 s52, s{sCol}, 5
    s_add_u32 s46, s46, s52
    s_lshl_b32 s46, s46, 2
    s_and_b32 s52, s{sS2}, 1
    s_lshl_b32 s52, s52, 1
    s_add_u32 s46, s46, s52
    s_lshl_b32 s46, s46, 10
    v_lshlrev_b32 v28, 4, v0
    """)
    TMP = 152
    for q in range(5):
        for mt in range(2):
            o = TMP + 16 + 4*((q*2+mt) % 4)
            tm = TMP + 8*((q*2+mt) % 2)
            prs = [ACC + ((2*q+h)*2+mt)*4 + 2*p for h in range(2) for p in range(2)]
            for i, c in enumerate(prs): A(f"v_pk_mul_f32 {v(tm+2*i,2)}, {v(c,2)}, {v(c,2)}")
            for i, c in enumerate(prs): A(f"v_pk_fma_f32 {v(tm+2*i,2)}, {v(tm+2*i,2)}, {v(KA+2*mt,2)}, {v(KB+2*mt,2)} op_sel_hi:[1,0,0]")
            for i, c in enumerate(prs): A(f"v_pk_mul_f32 {v(tm+2*i,2)}, {v(tm+2*i,2)}, {v(c,2)}")
            for i in range(8): A(f"v_exp_f32 v{tm+i}, v{tm+i}")
            for i, c in enumerate(prs): A(f"v_pk_fma_f32 {v(tm+2*i,2)}, {v(tm+2*i,2)}, {v(SD+2*mt,2)}, {v(SD+2*mt,2)} op_sel_hi:[1,0,0]")
            for i in range(8): A(f"v_rcp_f32 v{tm+i}, v{tm+i}")
            for i, c in enumerate(prs): A(f"v_pk_mul_f32 {v(tm+2*i,2)}, {v(tm+2*i,2)}, {v(c,2)}")
            for i in range(4): A(f"v_cvt_pk_bf16_f32 v{o+i}, v{tm+2*i}, v{tm+2*i+1}")
            A(f"buffer_store_dwordx4 {v(o,4)}, v28, s[{rH}:{rH+3}], s46 offen offset:{1024*mt} {ST}")
        A("s_add_u32 s46, s46, 4096")
    T.end(A, sW, sWS)
    A("s_endpgm")

    A.lg = []; A.vm = []; T.n = 0
    A(f"{DFT}:")
    rV, rW2, rW2P = 20, 24, 28
    sC = 34; sKT = 37; sXo = 38; sCh = 47; sIt = 48; sSlotI = 49; sSlotR = 50; sM = 51; sG = 53
    srd(A, rV, sWS, V_SZ, V_OFF); srd(A, rW2, sW2, 1728*1280); srd(A, rW2P, sWS, W2P_SZ, W2P_OFF)
    PS = 32768
    FX = 4*PS
    A(f"""
    s_lshl_b32 s46, s43, 1
    s_add_u32 s{sC}, s45, s46
    s_sub_u32 s{sC}, s{sC}, 5
    s_lshl_b32 s{sKT}, s{sC}, 2
    s_add_u32 s{sKT}, s{sKT}, s{sW}
    s_cmp_ge_u32 s{sC0}, 5
    s_cselect_b32 s46, 5, 0
    s_sub_u32 s{sCh}, s{sC0}, s46
    s_mov_b32 s{sG}, s{sCh}
    s_mov_b32 s{sSlotI}, 0
    s_mov_b32 s{sSlotR}, 0
    """)
    def dma_pair():
        A(f"""
        s_lshl_b32 s{sXo}, s{sCh}, 7
        s_mul_i32 s{sM}, s{sS2}, 1280
        s_add_u32 s{sXo}, s{sXo}, s{sM}
        s_lshl_b32 s{sM}, s{sW}, 12
        s_add_u32 s{sM}, s{sM}, s{sSlotI}
        s_mov_b32 m0, s{sM}
        """)
        for i in range(4): A(f"buffer_load_dwordx4 v{4+i}, s[{rX}:{rX+3}], s{sXo} offen offset:{1024*i} lds")
        A(f"s_add_u32 m0, s{sM}, 16384\ns_add_u32 s{sXo}, s{sXo}, 640")
        for i in range(4): A(f"buffer_load_dwordx4 v{4+i}, s[{rX}:{rX+3}], s{sXo} offen offset:{1024*i} lds")
        A(f"""
        s_add_u32 s{sCh}, s{sCh}, 1
        s_cmp_eq_u32 s{sCh}, 5
        s_cselect_b32 s{sCh}, 0, s{sCh}
        s_add_u32 s{sSlotI}, s{sSlotI}, {PS}
        s_cmp_eq_u32 s{sSlotI}, {4*PS}
        s_cselect_b32 s{sSlotI}, 0, s{sSlotI}
        """)
    for _ in range(3): dma_pair()
    A.vm = []
    ACC = 32
    XF = 160
    BF = 224
    TA = 240
    vKF, vG8, vSIG = 9, 10, 11
    vXA = 12
    vXB = 24
    SM0, SQ0, SM1, SQ1 = 20, 21, 22, 23
    ONES = 28
    A(f"""
    s_lshl_b32 s46, s{sKT}, 4
    s_add_u32 s46, s46, 1
    v_add_u32 v29, s46, v1
    v_cvt_f32_u32 v{vKF}, v29
    v_mul_f32 v{vKF}, {fbits(1/640)}, v{vKF}
    v_lshlrev_b32 v29, 31, v29
    v_or_b32 v{vSIG}, 1.0, v29
    v_lshlrev_b32 v29, 3, v2
    v_cvt_f32_u32 v{vG8}, v29
    v_add_f32 v{vG8}, 0.5, v{vG8}
    v_mov_b32 v{ONES}, 0x3f803f80
    """)
    for gq in range(4):
        A(f"s_xor_b32 s46, s{sW}, {gq}\ns_lshl_b32 s46, s46, 12\nv_add_u32 v{vXB+gq}, s46, v8")
    for i in range(128): A(f"v_mov_b32 v{ACC+i}, 0")
    for r in (SM0, SQ0, SM1, SQ1): A(f"v_mov_b32 v{r}, 0")
    A(f"s_mov_b32 s{sIt}, 0")
    LOOP = "K1_DLOOP"
    A(f"{LOOP}:")
    A(f"""
    s_lshl_b32 s46, s{sG}, 6
    v_cvt_f32_u32 v29, s46
    v_add_f32 v29, v29, v{vG8}
    v_mul_f32 v29, v29, v{vKF}
    """)
    for t in range(2):
        for j in range(8):
            if t == 0 and j == 0: A(f"v_mov_b32 v{TA+j}, v29")
            else: A(f"v_fmamk_f32 v{TA+j}, v{vKF}, {fbits(32.0*t+j)}, v29")
        for j in range(8): A(f"v_sin_f32 v{TA+8+j}, -v{TA+j}\nv_cos_f32 v{TA+j}, v{TA+j}")
        for p in range(4):
            A(f"v_cvt_pk_bf16_f32 v{BF+8*t+p}, v{TA+2*p}, v{TA+2*p+1}\nv_cvt_pk_bf16_f32 v{BF+8*t+4+p}, v{TA+8+2*p}, v{TA+8+2*p+1}")
    L1, L2, L3 = A.label(), A.label(), A.label()
    A(f"s_cmp_ge_u32 s{sIt}, 3\ns_cbranch_scc1 {L1}\ns_waitcnt vmcnt(16)\ns_branch {L3}\n{L1}:")
    A(f"s_cmp_eq_u32 s{sIt}, 3\ns_cbranch_scc0 {L2}\ns_waitcnt vmcnt(8)\ns_branch {L3}\n{L2}:\ns_waitcnt vmcnt(0)\n{L3}:")
    A("s_barrier")
    L4 = A.label()
    A(f"s_cmp_ge_u32 s{sIt}, 2\ns_cbranch_scc1 {L4}")
    dma_pair()
    A(f"{L4}:")
    A.vm = []
    for gq in range(4): A(f"v_add_u32 v{vXA+2*gq}, s{sSlotR}, v{vXB+gq}\nv_xor_b32 v{vXA+2*gq+1}, 64, v{vXA+2*gq}")
    batches = [(h, t) for h in range(2) for t in range(2)]
    def rd(bi):
        h, t = batches[bi]
        for m in range(8): A(f"ds_read_b128 {v(XF+32*(bi%2)+4*m,4)}, v{vXA+2*(m//2)+t} offset:{h*16384+2048*(m%2)}")
    rd(0)
    for bi, (h, t) in enumerate(batches):
        if bi + 1 < 4: rd(bi + 1)
        xb = XF + 32*(bi % 2)
        for m in range(8):
            for rho in range(2):
                c = ACC + ((h*8+m)*2+rho)*4
                A(f"v_mfma_f32_16x16x32_bf16 {v(c,4)}, {v(xb+4*m,4)}, {v(BF+8*t+4*rho,4)}, {v(c,4)}")
        for i in range(4):
            for mt in range(2):
                r = xb+4*mt+i
                A(f"v_dot2c_f32_bf16 v{SM0+2*mt}, v{r}, v{ONES}\nv_dot2c_f32_bf16 v{SQ0+2*mt}, v{r}, v{r}")
    A(f"""
    s_add_u32 s{sG}, s{sG}, 1
    s_cmp_eq_u32 s{sG}, 5
    s_cselect_b32 s{sG}, 0, s{sG}
    s_add_u32 s{sSlotR}, s{sSlotR}, {PS}
    s_cmp_eq_u32 s{sSlotR}, {4*PS}
    s_cselect_b32 s{sSlotR}, 0, s{sSlotR}
    s_add_u32 s{sIt}, s{sIt}, 1
    s_cmp_lt_u32 s{sIt}, 5
    s_cbranch_scc1 {LOOP}
    """)
    T.mark(A)
    sE = 54
    NOREP1 = A.label(); NOREP2 = A.label()
    A(f"s_mul_i32 s{sE}, s{sR}, 5\ns_add_u32 s{sE}, s{sE}, s{sC}")
    A(f"s_cmp_ge_u32 s{sE}, 54\ns_cbranch_scc1 {NOREP1}")
    A(f"s_mul_i32 s46, s{sW}, 640\ns_mov_b32 s52, {(1<<32)//80+1}\ns_mul_i32 s55, s{sE}, 40960\ns_mul_i32 s56, s{sW}, 10240\ns_add_u32 s56, s56, {PS}")
    for i in range(10):
        A(f"""
        v_add_u32 v{TA}, s46, v0
        v_add_u32 v{TA}, {64*i}, v{TA}
        v_mul_hi_u32 v{TA+1}, v{TA}, s52
        v_and_b32 v{TA+1}, 7, v{TA+1}
        v_lshlrev_b32 v{TA+1}, 1, v{TA+1}
        v_xor_b32 v{TA}, v{TA}, v{TA+1}
        v_lshlrev_b32 v{TA}, 4, v{TA}
        s_add_u32 m0, s56, {1024*i}
        buffer_load_dwordx4 v{TA}, s[{rW2}:{rW2+3}], s55 offen lds
        """)
    A(f"{NOREP1}:")
    A.vm = []
    row_stats(A, SM0, SQ0, 29, 30); row_stats(A, SM1, SQ1, 29, 30)
    A(f"v_rcp_f32 v{SQ0}, v{SQ0}\nv_rcp_f32 v{SQ1}, v{SQ1}")
    A(f"v_mul_f32 v{SQ0}, {fbits(2.0/(2048*640))}, v{SQ0}\nv_mul_f32 v{SQ1}, {fbits(2.0/(2048*640))}, v{SQ1}")
    RX = FX + 16384
    A(f"""
    s_lshl_b32 s46, s{sW}, 7
    s_add_u32 s46, s46, {RX}
    v_lshl_add_u32 v29, v1, 2, s46
    v_lshl_add_u32 v30, v2, 4, s46
    ds_write_b32 v29, v{SQ0}
    ds_write_b32 v29, v{SQ1} offset:64
    s_waitcnt lgkmcnt(0)
    ds_read_b128 v[{BF}:{BF+3}], v30
    ds_read_b128 v[{BF+4}:{BF+7}], v30 offset:64
    """)
    A(f"""
    v_lshlrev_b32 v29, 8, v2
    v_add_u32 v29, s{sS2}, v29
    v_cvt_f32_u32 v29, v29
    s_lshl_b32 s46, s{sW}, 12
    s_add_u32 s46, s46, {FX}
    v_lshl_add_u32 v31, v0, 4, s46
    """)
    for ut in range(2):
        A(f"v_add_u32 v30, {16*ut}, v1\nv_cvt_f32_u32 v30, v30\nv_mul_f32 v30, {fbits(1/2048)}, v30\nv_mul_f32 v{BF+8}, v30, v29")
        for j in range(8):
            cst = 64.0*(16*(j>>2) + (j&3))
            if j == 0: A(f"v_mov_b32 v{TA+j}, v{BF+8}")
            else: A(f"v_fmamk_f32 v{TA+j}, v30, {fbits(cst)}, v{BF+8}")
        for j in range(8): A(f"v_sin_f32 v{TA+8+j}, v{TA+j}\nv_cos_f32 v{TA+j}, v{TA+j}")
        for j in range(8): A(f"v_mul_f32 v{TA+j}, v{TA+j}, v{BF+j}\nv_mul_f32 v{TA+8+j}, v{TA+8+j}, v{BF+j}")
        o = XF + 8*ut
        for p in range(4): A(f"v_cvt_pk_bf16_f32 v{o+p}, v{TA+2*p}, v{TA+2*p+1}\nv_cvt_pk_bf16_f32 v{o+4+p}, v{TA+8+2*p}, v{TA+8+2*p+1}")
        A(f"ds_write_b128 v31, {v(o,4)} offset:{2048*ut}\nds_write_b128 v31, {v(o+4,4)} offset:{2048*ut+1024}")
    for i in range(64): A(f"v_fmac_f32 v{ACC+i}, v{vSIG}, v{ACC+64+i}")
    TF = ACC + 64
    for gq in range(4):
        for rho in range(2):
            for jh in range(2):
                c = ACC + ((2*gq+jh)*2+rho)*4
                for p in range(2):
                    A(f"v_cvt_pk_bf16_f32 v{TF+12*gq+4*rho+2*jh+p}, v{c+2*p}, v{c+2*p+1}")
                    if rho == 0: A(f"v_cvt_pk_bf16_f32 v{TF+12*gq+8+2*jh+p}, -v{c+2*p}, -v{c+2*p+1}")
    A("s_waitcnt vmcnt(0) lgkmcnt(0)\ns_barrier")
    for gq in range(4):
        A(f"s_xor_b32 s46, s{sW}, {gq}\ns_lshl_b32 s46, s46, 12\ns_add_u32 s46, s46, {FX}\nv_lshl_add_u32 v29, v0, 4, s46")
        for q in range(4): A(f"ds_read_b128 {v(XF+16*gq+4*q,4)}, v29 offset:{1024*q}")
    for gq in range(4):
        for ut in range(2):
            Cf, Sf = XF+16*gq+8*ut, XF+16*gq+8*ut+4
            re, im, nre = TF+12*gq, TF+12*gq+4, TF+12*gq+8
            dre, dim = ACC+(gq*2+ut)*8, ACC+(gq*2+ut)*8+4
            A(f"v_mfma_f32_16x16x32_bf16 {v(dre,4)}, {v(re,4)}, {v(Cf,4)}, 0")
            A(f"v_mfma_f32_16x16x32_bf16 {v(dim,4)}, {v(im,4)}, {v(Cf,4)}, 0")
            A(f"v_mfma_f32_16x16x32_bf16 {v(dre,4)}, {v(im,4)}, {v(Sf,4)}, {v(dre,4)}")
            A(f"v_mfma_f32_16x16x32_bf16 {v(dim,4)}, {v(nre,4)}, {v(Sf,4)}, {v(dim,4)}")
    A(f"s_lshl_b32 s57, s{sW}, 13\ns_add_u32 s57, s57, {3*PS}\nv_and_b32 v30, 7, v1")
    for gq in range(4):
        A(f"""
        s_xor_b32 s46, s{sW}, {gq}
        s_lshl_b32 s46, s46, 2
        v_add_u32 v29, s46, v2
        v_xor_b32 v29, v29, v30
        v_lshlrev_b32 v29, 4, v29
        v_lshl_add_u32 v29, v1, 8, v29
        v_add_u32 v29, s57, v29
        """)
        for ut in range(2):
            d = ACC+(gq*2+ut)*8; o = TA + 4*((gq*2+ut) % 4)
            for p in range(4): A(f"v_cvt_pk_bf16_f32 v{o+p}, v{d+2*p}, v{d+2*p+1}")
            A(f"ds_write_b128 v29, {v(o,4)} offset:{4096*ut}")
    A(f"""
    v_xor_b32 v29, v1, v2
    v_lshlrev_b32 v29, 4, v29
    v_lshl_add_u32 v29, v2, 8, v29
    v_add_u32 v29, s57, v29
    v_xor_b32 v30, 64, v29
    v_mul_u32_u24 v31, {20*4096}, v2
    v_lshl_add_u32 v31, v1, 4, v31
    s_lshl_b32 s46, s{sKT}, 12
    s_lshl_b32 s52, s{sR}, 8
    s_add_u32 s46, s46, s52
    s_waitcnt lgkmcnt(0)
    """)
    for n in range(8): A(f"ds_read_b128 {v(XF+4*n,4)}, v{29 + (n&1)} offset:{1024*n}")
    for n in range(8):
        A(f"buffer_store_dwordx4 {v(XF+4*n,4)}, v31, s[{rV}:{rV+3}], s46 offen {ST}\ns_add_u32 s46, s46, {4*20*4096}")
    A(f"s_cmp_ge_u32 s{sE}, 54\ns_cbranch_scc1 {NOREP2}")
    A(f"""
    v_lshrrev_b32 v29, 2, v1
    v_lshl_add_u32 v29, v2, 2, v29
    v_and_b32 v30, 7, v29
    v_lshlrev_b32 v30, 5, v30
    v_mul_u32_u24 v29, 1280, v29
    v_and_b32 v31, 3, v1
    v_lshl_add_u32 v29, v31, 3, v29
    v_add_u32 v29, {PS}, v29
    s_mul_i32 s46, s{sW}, 320
    v_lshlrev_b32 v12, 4, v0
    s_mul_i32 s52, s{sW}, {2*54*5120}
    s_mul_i32 s55, s{sE}, 5120
    s_add_u32 s52, s52, s55
    """)
    for q in range(10):
        A(f"s_add_u32 s55, s46, {32*q}\nv_xor_b32 v31, s55, v30\nv_add_u32 v31, v31, v29")
        for jh in range(2): A(f"ds_read_b64_tr_b16 {v(ACC+4*q+2*jh,2)}, v31 offset:{jh*16*1280}")
    for q in range(10):
        A(f"s_add_u32 s55, s52, {(q//5)*54*5120 + (q%5)*1024}")
        A(f"buffer_store_dwordx4 {v(ACC+4*q,4)}, v12, s[{rW2P}:{rW2P+3}], s55 offen {ST}")
    A(f"{NOREP2}:")
    T.end(A, sW, sWS)
    A(f"{END}:")
    return dict(label="k1_kernel", body=A.text(), vgpr=256, grid=256, block=256, lds=160*1024)


def gen_k2(stamps=False):
    A = Asm(); T = Stamp(stamps, 1)
    END = "K2_END"
    sWR, sWI, sWS = 4, 6, 14
    rV, rU, rWR, rWI = 16, 20, 24, 28
    sW, sU1, sKT = 32, 33, 34
    A(f"s_cmp_ge_u32 s2, 160\ns_cbranch_scc1 {END}")
    T.start(A)
    A(f"""
    s_load_dwordx2 s[{sWR}:{sWR+1}], s[0:1], 8
    s_load_dwordx2 s[{sWI}:{sWI+1}], s[0:1], 16
    s_load_dwordx2 s[{sWS}:{sWS+1}], s[0:1], 80
    v_lshrrev_b32 v1, 6, v0
    v_and_b32 v0, 63, v0
    v_readfirstlane_b32 s{sW}, v1
    s_and_b32 s40, s2, 7
    s_lshr_b32 s41, s2, 3
    s_mul_i32 s40, s40, 20
    s_add_u32 s40, s40, s41
    s_mul_i32 s{sU1}, s40, 52429
    s_lshr_b32 s{sU1}, s{sU1}, 18
    s_mul_i32 s41, s{sU1}, 5
    s_sub_u32 s41, s40, s41
    s_lshl_b32 s{sKT}, s41, 2
    s_add_u32 s{sKT}, s{sKT}, s{sW}
    v_and_b32 v1, 15, v0
    v_lshrrev_b32 v2, 4, v0
    v_lshlrev_b32 v3, 4, v0
    s_waitcnt lgkmcnt(0)
    """)
    srd(A, rV, sWS, V_SZ, V_OFF); srd(A, rU, sWS, U_SZ, U_OFF); srd(A, rWR, sWR, 2048*642); srd(A, rWI, sWI, 2048*642)
    CF, SF = 16, 48; WR, WI = 80, 96; XA = 112; VF = 144; TA = 168; YF = 184
    A(f"""
    s_mul_i32 s40, s{sU1}, 20
    s_add_u32 s40, s40, s{sKT}
    s_lshl_b32 s40, s40, 12
    s_lshl_b32 s42, s{sW}, 12
    s_mov_b32 m0, s42
    """)
    for i in range(4): tokV = A(f"buffer_load_dwordx4 v3, s[{rV}:{rV+3}], s40 offen offset:{1024*i} lds")
    for i in range(32): A(f"v_mov_b32 v{WR+i}, 0")
    A(f"""
    v_mul_u32_u24 v4, 82176, v2
    v_lshl_add_u32 v4, v1, 1, v4
    s_mul_i32 s40, s{sU1}, 321
    s_lshl_b32 s41, s{sKT}, 4
    s_add_u32 s40, s40, s41
    s_add_u32 s40, s40, 1
    s_lshl_b32 s40, s40, 1
    """)
    for mt in range(4):
        for r in range(4):
            A(f"s_add_u32 s41, s40, {(16*mt+r)*20544}")
            A(f"buffer_load_short_d16_hi v{WR+4*mt+r}, v4, s[{rWR}:{rWR+3}], s41 offen")
            A(f"buffer_load_short_d16_hi v{WI+4*mt+r}, v4, s[{rWI}:{rWI+3}], s41 offen")
    A(f"v_lshlrev_b32 v5, 2, v2\nv_cvt_f32_u32 v5, v5")
    for mt in range(4):
        A(f"v_add_u32 v6, {16*mt}, v1\nv_cvt_f32_u32 v6, v6\nv_mul_f32 v6, {fbits(1/64)}, v6\nv_mul_f32 v7, v6, v5")
        for t in range(2):
            for j in range(8):
                cst = 32.0*t + 16*(j>>2) + (j&3)
                if cst == 0: A(f"v_mov_b32 v{TA+j}, v7")
                else: A(f"v_fmamk_f32 v{TA+j}, v6, {fbits(cst)}, v7")
            for j in range(8): A(f"v_sin_f32 v{TA+8+j}, v{TA+j}\nv_cos_f32 v{TA+j}, v{TA+j}")
            for p in range(4):
                A(f"v_cvt_pk_bf16_f32 v{CF+(mt*2+t)*4+p}, v{TA+2*p}, v{TA+2*p+1}\nv_cvt_pk_bf16_f32 v{SF+(mt*2+t)*4+p}, v{TA+8+2*p}, v{TA+8+2*p+1}")
    T.mark(A)
    A(f"""
    v_lshrrev_b32 v5, 2, v1
    v_lshl_add_u32 v5, v2, 2, v5
    v_lshlrev_b32 v5, 6, v5
    v_and_b32 v6, 3, v1
    v_lshl_add_u32 v5, v6, 4, v5
    v_add_u32 v5, s42, v5
    """)
    A.wait_tok(tokV)
    for t in range(2):
        for rho in range(2):
            for jh in range(2): A(f"ds_read_b64_tr_b16 {v(VF+12*t+4*rho+2*jh,2)}, v5 offset:{2048*t+1024*jh+8*rho}")
    for t in range(2):
        for p in range(4): A(f"v_xor_b32 v{VF+12*t+8+p}, 0x80008000, v{VF+12*t+p}")
    for t in range(2):
        for mt in range(4):
            re, im = XA+8*mt, XA+8*mt+4
            C, S = CF+(mt*2+t)*4, SF+(mt*2+t)*4
            A(f"v_mfma_f32_16x16x32_bf16 {v(re,4)}, {v(C,4)}, {v(VF+12*t,4)}, {v(re,4) if t else 0}")
            A(f"v_mfma_f32_16x16x32_bf16 {v(im,4)}, {v(C,4)}, {v(VF+12*t+4,4)}, {v(im,4) if t else 0}")
            A(f"v_mfma_f32_16x16x32_bf16 {v(re,4)}, {v(S,4)}, {v(VF+12*t+4,4)}, {v(re,4)}")
            A(f"v_mfma_f32_16x16x32_bf16 {v(im,4)}, {v(S,4)}, {v(VF+12*t+8,4)}, {v(im,4)}")
    A("s_waitcnt vmcnt(0)")
    L = A.label()
    A(f"s_cmp_lg_u32 s{sKT}, 19\ns_cbranch_scc1 {L}")
    A("v_cmp_eq_u32 vcc, 15, v1\nv_cndmask_b32 v6, 1.0, 0.5, vcc")
    for i in range(32): A(f"v_mul_f32 v{WR+i}, v{WR+i}, v6")
    A(f"{L}:")
    for mt in range(4):
        for r in range(4):
            xr, xi, wr, wi = XA+8*mt+r, XA+8*mt+4+r, WR+4*mt+r, WI+4*mt+r
            A(f"v_mul_f32 v{TA+r}, v{xr}, v{wr}\nv_mul_f32 v{TA+4+r}, v{xr}, v{wi}")
            A(f"v_fma_f32 v{TA+r}, -v{xi}, v{wi}, v{TA+r}\nv_fmac_f32 v{TA+4+r}, v{xi}, v{wr}")
        t, jh = mt >> 1, mt & 1
        for p in range(2):
            A(f"v_cvt_pk_bf16_f32 v{YF+12*t+2*jh+p}, v{TA+2*p}, v{TA+2*p+1}")
            A(f"v_cvt_pk_bf16_f32 v{YF+12*t+4+2*jh+p}, v{TA+4+2*p}, v{TA+4+2*p+1}")
            A(f"v_cvt_pk_bf16_f32 v{YF+12*t+8+2*jh+p}, -v{TA+4+2*p}, -v{TA+4+2*p+1}")
    for t in range(2):
        for nt in range(4):
            re, im = XA+8*nt, XA+8*nt+4
            C, S = CF+(nt*2+t)*4, SF+(nt*2+t)*4
            A(f"v_mfma_f32_16x16x32_bf16 {v(re,4)}, {v(YF+12*t,4)}, {v(C,4)}, {v(re,4) if t else 0}")
            A(f"v_mfma_f32_16x16x32_bf16 {v(im,4)}, {v(YF+12*t+4,4)}, {v(C,4)}, {v(im,4) if t else 0}")
            A(f"v_mfma_f32_16x16x32_bf16 {v(re,4)}, {v(YF+12*t+8,4)}, {v(S,4)}, {v(re,4)}")
            A(f"v_mfma_f32_16x16x32_bf16 {v(im,4)}, {v(YF+12*t,4)}, {v(S,4)}, {v(im,4)}")
    A(f"""
    v_lshrrev_b32 v5, 1, v1
    v_and_b32 v5, 3, v5
    v_xor_b32 v5, v5, v2
    v_lshlrev_b32 v5, 4, v5
    v_lshl_add_u32 v5, v1, 6, v5
    v_add_u32 v5, s42, v5
    v_lshrrev_b32 v6, 3, v0
    v_and_b32 v7, 3, v6
    v_lshlrev_b32 v7, 4, v7
    v_xor_b32 v7, v7, v3
    v_add_u32 v7, s42, v7
    v_mul_u32_u24 v6, 81920, v6
    v_and_b32 v8, 7, v0
    v_lshl_add_u32 v6, v8, 4, v6
    s_lshl_b32 s40, s{sKT}, 12
    s_lshl_b32 s41, s{sU1}, 7
    s_add_u32 s40, s40, s41
    """)
    for nt in range(4):
        d = XA+8*nt
        for p in range(4): A(f"v_cvt_pk_bf16_f32 v{TA+4*nt+p}, v{d+2*p}, v{d+2*p+1}")
        A(f"ds_write_b128 v5, {v(TA+4*nt,4)} offset:{1024*nt}")
    A("s_waitcnt lgkmcnt(0)")
    for q in range(4): A(f"ds_read_b128 {v(VF+4*q,4)}, v7 offset:{1024*q}")
    for q in range(4):
        A(f"buffer_store_dwordx4 {v(VF+4*q,4)}, v6, s[{rU}:{rU+3}], s40 offen {ST}\ns_add_u32 s40, s40, {8*81920}")
    T.end(A, sW, sWS)
    A(f"{END}:")
    return dict(label="k2_kernel", body=A.text(), vgpr=208, grid=160, block=256, lds=16384)

def gen_k3(stamps=False):
    A = Asm(); T = Stamp(stamps, 2)
    END = "K3_END"
    sX, sB2, sOUT, sWS = 4, 8, 10, 14
    rH, rW, rU, rX, rO, rB2 = 16, 20, 24, 28, 56, 60
    sW, sRB, sCB = 32, 33, 34
    A(f"s_cmp_ge_u32 s2, 256\ns_cbranch_scc1 {END}")
    T.start(A)
    A(f"""
    s_load_dwordx2 s[{sX}:{sX+1}], s[0:1], 0
    s_load_dwordx2 s[{sB2}:{sB2+1}], s[0:1], 56
    s_load_dwordx2 s[{sOUT}:{sOUT+1}], s[0:1], 64
    s_load_dwordx2 s[{sWS}:{sWS+1}], s[0:1], 80
    v_mov_b32 v9, v0
    v_lshrrev_b32 v1, 6, v0
    v_and_b32 v0, 63, v0
    v_readfirstlane_b32 s{sW}, v1
    s_and_b32 s40, s2, 7
    s_lshr_b32 s41, s2, 3
    s_lshr_b32 s42, s41, 3
    s_lshl_b32 s{sRB}, s40, 2
    s_add_u32 s{sRB}, s{sRB}, s42
    s_and_b32 s{sCB}, s41, 7
    v_and_b32 v1, 15, v0
    v_lshrrev_b32 v2, 4, v0
    v_lshlrev_b32 v3, 4, v0
    v_add_u32 v4, 4096, v3
    s_mul_i32 s43, s{sW}, 14
    s_cmp_eq_u32 s{sW}, 3
    s_cselect_b32 s43, 41, s43
    s_cmp_ge_u32 s{sW}, 2
    s_cselect_b32 s44, 13, 14
    s_lshl_b32 s45, s{sCB}, 1
    s_mul_i32 s42, s42, 3
    s_add_u32 s45, s45, s42
    s_cmp_ge_u32 s45, 14
    s_cselect_b32 s42, 14, 0
    s_sub_u32 s45, s45, s42
    s_waitcnt lgkmcnt(0)
    """)
    A(f"""
    s_mul_i32 s46, s{sRB}, 54
    s_add_u32 s46, s46, s43
    s_lshl_b32 s46, s46, 12
    s_add_u32 s46, s46, {H_OFF}
    s_add_u32 s{rH}, s{sWS}, s46
    s_addc_u32 s{rH+1}, s{sWS+1}, 0
    s_lshl_b32 s{rH+2}, s44, 12
    s_mov_b32 s{rH+3}, 0x20000
    s_mul_i32 s46, s{sCB}, 54
    s_add_u32 s46, s46, s43
    s_mul_i32 s46, s46, 5120
    s_add_u32 s46, s46, {W2P_OFF}
    s_add_u32 s{rW}, s{sWS}, s46
    s_addc_u32 s{rW+1}, s{sWS+1}, 0
    s_mul_i32 s{rW+2}, s44, 5120
    s_mov_b32 s{rW+3}, 0x20000
    """)
    srd(A, rU, sWS, U_SZ, U_OFF); srd(A, rX, sX, 2048*1280); srd(A, rO, sOUT, 2048*1280); srd(A, rB2, sB2, 1280)
    RS = 336; REG = 64*RS
    DEPTH = 4; STG = 40
    XR = 184; BR = 194; OFFR = 204
    sHo, sWo, sStep = 47, 48, 49
    A(f"s_mov_b32 s{sStep}, s45")
    def issue(slot):
        b = STG + 36*slot
        A(f"s_lshl_b32 s{sHo}, s{sStep}, 12\ns_mul_i32 s{sWo}, s{sStep}, 5120")
        for i in range(4): A(f"buffer_load_dwordx4 {v(b+4*i,4)}, v3, s[{rH}:{rH+3}], s{sHo} offen offset:{1024*i}")
        for i in range(4): A(f"buffer_load_dwordx4 {v(b+16+4*i,4)}, v3, s[{rW}:{rW+3}], s{sWo} offen offset:{1024*i}")
        A(f"buffer_load_dwordx4 {v(b+32,4)}, v4, s[{rW}:{rW+3}], s{sWo} offen")
        A(f"s_add_u32 s{sStep}, s{sStep}, 1\ns_cmp_eq_u32 s{sStep}, 14\ns_cselect_b32 s{sStep}, 0, s{sStep}")
    for d in range(DEPTH-1): issue(d)
    for i in range(80): A(f"v_accvgpr_write_b32 a{i}, 0")
    sL = 50
    A(f"s_mul_i32 s{sL}, s{sW}, {REG}")
    for st in range(14):
        if st + DEPTH - 1 < 14: issue((st + DEPTH - 1) % DEPTH)
        if st == 11:
            A(f"s_mul_i32 s46, s{sRB}, 20\ns_mul_i32 s51, s{sW}, 5\ns_add_u32 s46, s46, s51\ns_lshl_b32 s46, s46, 12")
            for i in range(5):
                A(f"s_add_u32 m0, s{sL}, {4096*i}")
                for q in range(4): tokU = A(f"buffer_load_dwordx4 v3, s[{rU}:{rU+3}], s46 offen offset:{1024*q} lds")
                A("s_add_u32 s46, s46, 4096")
        b = STG + 36*(st % DEPTH)
        for nt in range(5):
            for mt in range(4):
                c = (nt*4+mt)*4
                A(f"v_mfma_f32_16x16x32_bf16 {a(c,4)}, {v(b+16+4*nt,4)}, {v(b+4*mt,4)}, {a(c,4)}")
    T.mark(A)
    A(f"s_mov_b32 s52, {(1<<32)//20+1}\ns_mul_i32 s53, s{sCB}, 160\ns_mul_i32 s54, s{sRB}, 2560\ns_add_u32 s54, s54, s53")
    for q in range(5):
        A(f"""
        v_add_u32 v10, {256*q}, v9
        v_mul_hi_u32 v11, v10, s52
        v_mul_u32_u24 v12, 20, v11
        v_sub_u32 v12, v10, v12
        v_mul_u32_u24 v13, {RS}, v11
        v_lshl_add_u32 v{OFFR+5+q}, v12, 4, v13
        v_and_b32 v13, 31, v11
        v_mul_u32_u24 v13, 81920, v13
        v_lshrrev_b32 v11, 5, v11
        v_mul_u32_u24 v11, 1280, v11
        v_lshlrev_b32 v12, 3, v12
        v_add3_u32 v{OFFR+q}, v13, v11, v12
        buffer_load_dwordx2 {v(XR+2*q,2)}, v{OFFR+q}, s[{rX}:{rX+3}], s54 offen
        buffer_load_dwordx2 {v(BR+2*q,2)}, v12, s[{rB2}:{rB2+3}], s53 offen
        """)
    FP = 40; UF = 72; ZA = 96; ZF = 128; FI = 144; TA = 164; DF = 216; KF = 222
    A("v_lshlrev_b32 v5, 3, v2\nv_cvt_f32_u32 v5, v5")
    for p in range(2):
        for st in range(2):
            A(f"s_lshl_b32 s46, s{sRB}, 1\ns_add_u32 s46, s46, {p + 1024*st}")
            A(f"v_lshl_add_u32 v6, v1, 6, s46\nv_cvt_f32_u32 v6, v6\nv_mul_f32 v6, {fbits(1/2048)}, v6\nv_mul_f32 v7, v6, v5")
            for j in range(8):
                if j == 0: A(f"v_mov_b32 v{TA+j}, v7")
                else: A(f"v_fmamk_f32 v{TA+j}, v6, {fbits(float(j))}, v7")
            for j in range(8): A(f"v_sin_f32 v{TA+8+j}, v{TA+j}\nv_cos_f32 v{TA+j}, v{TA+j}")
            o = FP + (p*2+st)*8
            for q in range(4): A(f"v_cvt_pk_bf16_f32 v{o+q}, v{TA+2*q}, v{TA+2*q+1}\nv_cvt_pk_bf16_f32 v{o+4+q}, v{TA+8+2*q}, v{TA+8+2*q+1}")
    A(f"s_mul_i32 s46, s{sCB}, 80\ns_cmp_ge_u32 s{sCB}, 4\ns_cselect_b32 s51, 640, 0\ns_sub_i32 s46, s46, s51")
    for nt in range(5):
        A(f"v_add_u32 v6, s46, v1\nv_add_u32 v6, {16*nt}, v6\nv_cvt_f32_i32 v6, v6\nv_add_f32 v6, 0.5, v6\nv_mul_f32 v{DF+nt}, {fbits(1/640)}, v6")
    A(f"""
    v_lshrrev_b32 v5, 2, v1
    v_lshl_add_u32 v5, v2, 3, v5
    v_lshlrev_b32 v5, 7, v5
    v_and_b32 v6, 3, v1
    v_lshl_add_u32 v5, v6, 4, v5
    v_add_u32 v5, s{sL}, v5
    s_mul_i32 s46, s{sW}, 80
    s_add_u32 s46, s46, 1
    v_lshl_add_u32 v6, v2, 2, s46
    v_cvt_f32_u32 v8, v6
    """)
    A.wait_tok(tokU)
    for i in range(5):
        for p in range(2):
            for rho in range(2):
                for jh in range(2): A(f"ds_read_b64_tr_b16 {v(UF+12*p+4*rho+2*jh,2)}, v5 offset:{4096*i+512*jh+64*p+8*rho}")
        for r in range(4): A(f"v_add_f32 v{KF+r}, {fbits(16.0*i+r)}, v8")
        for p in range(2):
            for q in range(4): A(f"v_xor_b32 v{UF+12*p+8+q}, 0x80008000, v{UF+12*p+4+q}")
        for p in range(2):
            for st in range(2):
                C, S = FP+(p*2+st)*8, FP+(p*2+st)*8+4
                re, im = ZA+(p*2+st)*8, ZA+(p*2+st)*8+4
                A(f"v_mfma_f32_16x16x32_bf16 {v(re,4)}, {v(UF+12*p,4)}, {v(C,4)}, 0")
                A(f"v_mfma_f32_16x16x32_bf16 {v(im,4)}, {v(UF+12*p+4,4)}, {v(C,4)}, 0")
                A(f"v_mfma_f32_16x16x32_bf16 {v(re,4)}, {v(UF+12*p+8,4)}, {v(S,4)}, {v(re,4)}")
                A(f"v_mfma_f32_16x16x32_bf16 {v(im,4)}, {v(UF+12*p,4)}, {v(S,4)}, {v(im,4)}")
        for nt in range(5):
            for r in range(4): A(f"v_mul_f32 v{TA+r}, v{DF+nt}, v{KF+r}")
            for r in range(4): A(f"v_sin_f32 v{TA+4+r}, -v{TA+r}\nv_cos_f32 v{TA+r}, v{TA+r}")
            for r in range(4): A(f"v_cvt_pk_bf16_f32 v{FI+4*nt+r}, v{TA+r}, v{TA+4+r}")
        for mt in range(4):
            for r in range(4): A(f"v_cvt_pk_bf16_f32 v{ZF+4*mt+r}, v{ZA+8*mt+r}, v{ZA+8*mt+4+r}")
        for nt in range(5):
            for mt in range(4):
                c = (nt*4+mt)*4
                A(f"v_mfma_f32_16x16x32_bf16 {a(c,4)}, {v(FI+4*nt,4)}, {v(ZF+4*mt,4)}, {a(c,4)}")
    T.mark(A)
    A(f"v_mul_u32_u24 v5, {RS}, v1\nv_lshl_add_u32 v5, v2, 4, v5\nv_add_u32 v5, s{sL}, v5")
    for nt in range(5):
        for mt in range(4): A(f"ds_write_b128 v5, {a((nt*4+mt)*4,4)} offset:{mt*16*RS+nt*64}")
    A("s_waitcnt lgkmcnt(0)\ns_barrier")
    P = 40
    for q in range(5):
        for w in range(4): A(f"ds_read_b128 {v(P+16*q+4*w,4)}, v{OFFR+5+q} offset:{w*REG}")
    for q in range(5):
        b = P+16*q
        A(f"v_pk_add_f32 {v(b,2)}, {v(b,2)}, {v(b+4,2)}\nv_pk_add_f32 {v(b+2,2)}, {v(b+2,2)}, {v(b+6,2)}")
        A(f"v_pk_add_f32 {v(b+8,2)}, {v(b+8,2)}, {v(b+12,2)}\nv_pk_add_f32 {v(b+10,2)}, {v(b+10,2)}, {v(b+14,2)}")
        A(f"v_pk_add_f32 {v(b,2)}, {v(b,2)}, {v(b+8,2)}\nv_pk_add_f32 {v(b+2,2)}, {v(b+2,2)}, {v(b+10,2)}")
        for src in (XR, BR):
            A(f"v_lshlrev_b32 v{b+4}, 16, v{src+2*q}\nv_and_b32 v{b+5}, 0xffff0000, v{src+2*q}")
            A(f"v_lshlrev_b32 v{b+6}, 16, v{src+2*q+1}\nv_and_b32 v{b+7}, 0xffff0000, v{src+2*q+1}")
            A(f"v_pk_add_f32 {v(b,2)}, {v(b,2)}, {v(b+4,2)}\nv_pk_add_f32 {v(b+2,2)}, {v(b+2,2)}, {v(b+6,2)}")
        A(f"v_cvt_pk_bf16_f32 v{b+8}, v{b}, v{b+1}\nv_cvt_pk_bf16_f32 v{b+9}, v{b+2}, v{b+3}")
        A(f"buffer_store_dwordx2 {v(b+8,2)}, v{OFFR+q}, s[{rO}:{rO+3}], s54 offen {ST}")
    T.end(A, sW, sWS)
    A(f"{END}:")
    return dict(label="k3_kernel", body=A.text(), vgpr=228+80, accum_offset=228, grid=256, block=256, lds=4*REG)

def gen_empty(i):
    return dict(label=f"e{i}_kernel", body="    s_nop 0\n", vgpr=8, grid=256, block=256, lds=0)

if __name__ == "__main__":
    st = "stamps" in sys.argv
    ks = [gen_k1(st), gen_k2(st), gen_k3(st)]
    for i in range(sum(1 for x in sys.argv if x == "empty")): ks.append(gen_empty(i))
    open(sys.argv[1], "w").write(file_text(ks))
```

```python
import struct, math, sys
from asmlib import *

def fbits(x): return "0x%08x" % struct.unpack("<I", struct.pack("<f", x))[0]

H_OFF = 0;            H_SZ = 32*54*4096
W2P_OFF = 8 << 20;    W2P_SZ = 8*54*5120
V_OFF = 12 << 20;     V_SZ = 32*20*64*64
U_OFF = 16 << 20;     U_SZ = V_SZ
FLG_OFF = 20 << 20;   FLG_SZ = 40*256
STAMP_OFF = 64 << 20
ST = "sc1"
OPT = set()

K0 = -2.0*math.sqrt(2.0/math.pi)*math.log2(math.e)
K1c = K0*0.044715
MF = "v_mfma_f32_16x16x32_bf16"

def mfma(d, x, y, c=None):
    return f"{MF} {v(d,4)}, {v(x,4)}, {v(y,4)}, {v(d,4) if c is None else c}"

def srd(A, d, lo, nbytes, add=0):
    if add: A(f"s_add_u32 s{d}, s{lo}, {add}\ns_addc_u32 s{d+1}, s{lo+1}, 0")
    else: A(f"s_mov_b32 s{d}, s{lo}\ns_mov_b32 s{d+1}, s{lo+1}")
    A(f"s_mov_b32 s{d+2}, {nbytes}\ns_mov_b32 s{d+3}, 0x20000")

def bf16_round(A, dst, src):
    A(f"v_cvt_pk_bf16_f32 v{dst}, v{src}, v{src}\nv_lshlrev_b32 v{dst}, 16, v{dst}")

def weave(A, main, fill, per=None, start=0):
    fill = list(fill); n = len(main) - start; done = 0
    for i, m in enumerate(main):
        A(m)
        if i < start: continue
        want = min(len(fill), int(math.ceil((i - start + 1) * per))) if per else (len(fill) * (i - start + 1) + n - 1) // n
        while done < want: A(fill[done]); done += 1
    while done < len(fill): A(fill[done]); done += 1

def stats_from_mfma(A, SUM, GR, vN, vG, t0, t1):
    A(f"v_cndmask_b32 v{GR}, v{GR}, v{GR+1}, s[60:61]\nv_cndmask_b32 v{GR+2}, v{GR+2}, v{GR+3}, s[60:61]")
    A(f"v_cndmask_b32 v{GR}, v{GR}, v{GR+2}, s[62:63]")
    A(f"ds_bpermute_b32 v{GR}, v{vG}, v{GR}")
    A(f"v_mul_f32 v{SUM}, {fbits(1/640)}, v{SUM}")
    A(f"v_mul_f32 v{t0}, v{SUM}, v{SUM}")
    A(f"v_fma_f32 v{GR}, v{GR}, s66, -v{t0}")
    A(f"v_max_f32 v{GR}, 0, v{GR}")
    bf16_round(A, GR, GR)
    A(f"v_add_f32 v{GR}, {fbits(1e-5)}, v{GR}")
    bf16_round(A, GR, GR)
    A(f"v_sqrt_f32 v{GR}, v{GR}")
    bf16_round(A, GR, GR)
    bf16_round(A, SUM, SUM)

def stats_setup(A, vBP):
    A(f"""
    v_and_b32 v{vBP}, 1, v1
    v_cmp_eq_u32 s[60:61], 1, v{vBP}
    v_and_b32 v{vBP}, 2, v1
    v_cmp_eq_u32 s[62:63], 2, v{vBP}
    v_lshrrev_b32 v{vBP}, 2, v1
    v_lshl_add_u32 v{vBP}, v{vBP}, 4, v1
    v_lshlrev_b32 v{vBP}, 2, v{vBP}
    s_mov_b32 s66, {fbits(1/640)}
    """)

class Stamp:
    def __init__(self, on, slot): self.on = on; self.slot = slot; self.n = 0
    def start(self, A):
        if self.on: A("s_memtime s[90:91]\ns_memrealtime s[92:93]")
    def mark(self, A):
        if self.on:
            A(f"s_memtime s[{80+2*self.n}:{81+2*self.n}]"); A.lg.pop(); self.n += 1; assert self.n <= 5
    def end(self, A, wave_s, ws_lo):
        if not self.on: return
        A("s_waitcnt vmcnt(0)")
        A("s_memtime s[94:95]\ns_memrealtime s[96:97]\ns_waitcnt lgkmcnt(0)")
        A("s_sub_u32 s94, s94, s90")
        for i in range(5):
            if i < self.n: A(f"s_sub_u32 s{80+2*i}, s{80+2*i}, s90")
            else: A(f"s_mov_b32 s{80+2*i}, -1")
        A("s_mov_b64 exec, 1")
        A("v_mov_b32 v0, s94\nv_mov_b32 v1, s92\nv_mov_b32 v2, s96\nv_mov_b32 v3, s80")
        A("v_mov_b32 v4, s82\nv_mov_b32 v5, s84\nv_mov_b32 v6, s86\nv_mov_b32 v7, s88")
        srd(A, 76, ws_lo, 0x10000000)
        A(f"s_lshl_b32 s98, s2, 3\ns_add_u32 s98, s98, s{wave_s}\ns_lshl_b32 s98, s98, 5\ns_add_u32 s98, s98, {STAMP_OFF + self.slot*131072}")
        A("v_mov_b32 v8, 0")
        A("buffer_store_dwordx4 v[0:3], v8, s[76:79], s98 offen\nbuffer_store_dwordx4 v[4:7], v8, s[76:79], s98 offen offset:16")
        self.n = 0

def reset(A): A.lg = []; A.vm = []

def gen_k1(stamps=False):
    A = Asm(); T = Stamp(stamps, 0)
    END = "K1_END"
    LDF = "nt" if "k1nt" in OPT else ""
    sX, sWR, sW1, sB1, sW2, sWS, sWI = 4, 6, 8, 10, 12, 14, 68
    rX, rA, rB, rC = 16, 20, 24, 28
    sW, sR, sJ, sC0, sS2, sCol = 32, 33, 34, 35, 36, 37
    SLOT = 36864; NS = 3; C1X = NS*SLOT
    PS = 32768; RPK = 3*PS; FX = RPK + 40960; RX = FX + 16384
    if "g1" in OPT: ROT = f"s_mov_b32 s{sC0}, 0"
    elif "g2" in OPT: ROT = f"s_add_u32 s46, s44, s45\ns_and_b32 s46, s46, 1\ns_mul_i32 s{sC0}, s46, 5"
    elif "g4" in OPT: ROT = f"s_add_u32 s46, s44, s45\ns_and_b32 s46, s46, 3\ns_mul_i32 s46, s46, 5\ns_add_u32 s46, s46, 1\ns_lshr_b32 s{sC0}, s46, 1"
    elif "g3" in OPT: ROT = f"s_add_u32 s46, s44, s45\ns_mul_i32 s{sC0}, s46, 43\ns_lshr_b32 s{sC0}, s{sC0}, 7\ns_mul_i32 s{sC0}, s{sC0}, 3\ns_sub_u32 s46, s46, s{sC0}\ns_mul_i32 s46, s46, 27\ns_lshr_b32 s{sC0}, s46, 3"
    else: ROT = f"""s_mul_i32 s46, s44, 5
    s_add_u32 s46, s46, 1
    s_lshr_b32 s46, s46, 1
    s_add_u32 s{sC0}, s46, s45
    s_cmp_ge_u32 s{sC0}, 10
    s_cselect_b32 s46, 10, 0
    s_sub_u32 s{sC0}, s{sC0}, s46"""
    A(f"s_cmp_ge_u32 s2, 256\ns_cbranch_scc1 {END}")
    T.start(A)
    A(f"""
    s_load_dwordx4 s[{sX}:{sX+3}], s[0:1], 0
    s_load_dwordx4 s[{sW1}:{sW1+3}], s[0:1], 32
    s_load_dwordx2 s[{sW2}:{sW2+1}], s[0:1], 48
    s_load_dwordx2 s[{sWS}:{sWS+1}], s[0:1], 80
    s_load_dwordx2 s[{sWI}:{sWI+1}], s[0:1], 16
    v_lshrrev_b32 v1, 6, v0
    v_and_b32 v0, 63, v0
    v_readfirstlane_b32 s{sW}, v1
    s_and_b32 s40, s2, 7
    s_lshr_b32 s41, s2, 3
    s_lshr_b32 s42, s40, 1
    s_and_b32 s43, s40, 1
    s_lshr_b32 s44, s41, 3
    s_and_b32 s45, s41, 7
    s_lshl_b32 s{sR}, s42, 2
    s_add_u32 s{sR}, s{sR}, s44
    {ROT}
    s_mul_i32 s{sJ}, s43, 5
    s_add_u32 s{sJ}, s{sJ}, s45
    s_mul_i32 s{sCol}, s{sJ}, 160
    s_min_u32 s{sCol}, s{sCol}, 1568
    s_add_u32 s47, s43, 5
    v_and_b32 v1, 15, v0
    v_lshrrev_b32 v2, 4, v0
    s_cmp_lt_u32 s{sW}, 4
    s_cbranch_scc1 K1_COMPUTE
    """)
    A(f"""
    v_lshrrev_b32 v3, 3, v0
    v_mul_u32_u24 v3, 81920, v3
    v_and_b32 v4, 7, v0
    v_xor_b32 v4, v4, v2
    v_lshl_add_u32 v4, v4, 4, v3
    v_xor_b32 v5, 64, v4
    v_add_u32 v5, {655360-1024}, v5
    v_add_u32 v6, {2*(655360-1024)}, v4
    v_add_u32 v7, {2*(655360-1024)}, v5
    s_mul_i32 s48, s{sR}, 5120
    s_cmp_ge_u32 s45, s47
    s_cbranch_scc1 K1_LD_DFT
    s_mov_b32 s52, {(1<<32)//20+1}
    """)
    for i in range(5):
        A(f"""
        v_add_u32 v14, {64*i}, v0
        v_mul_hi_u32 v15, v14, s52
        v_mul_u32_u24 v16, 20, v15
        v_sub_u32 v16, v14, v16
        v_lshrrev_b32 v17, 2, v15
        v_and_b32 v17, 2, v17
        v_xor_b32 v16, v16, v17
        v_mul_u32_u24 v15, 3456, v15
        v_lshl_add_u32 v{9+i}, v16, 4, v15
        """)
        if 0 < i < 4: A(f"v_subrev_u32 v{9+i}, {1024*i}, v{9+i}")
    sCh, sSl, sXo, sWo, sIt = 49, 50, 51, 53, 54
    A(f"s_mov_b32 s{sCh}, s{sC0}\ns_mov_b32 s{sSl}, 0\ns_lshl_b32 s55, s{sCol}, 1\ns_waitcnt lgkmcnt(0)")
    srd(A, rX, sX, 2048*1280); srd(A, rA, sW1, 640*3456)
    def xblock(base_m0_expr):
        for w in range(4):
            A(base_m0_expr(4096*w))
            for i in range(4): A(f"buffer_load_dwordx4 v{4+i}, s[{rX}:{rX+3}], s{sXo} offen offset:{1024*i} {LDF} lds")
            if w < 3: A(f"s_add_u32 s{sXo}, s{sXo}, 1280")
    def mlp_chunk():
        A(f"s_lshl_b32 s{sXo}, s{sCh}, 7\ns_add_u32 s{sXo}, s{sXo}, s48\ns_mul_i32 s{sWo}, s{sCh}, {64*3456}\ns_add_u32 s{sWo}, s{sWo}, s55")
        xblock(lambda o: f"s_add_u32 m0, s{sSl}, {o}")
        for q in range(4):
            A(f"s_add_u32 m0, s{sSl}, {16384+5120*q}")
            for i in range(4): A(f"buffer_load_dwordx4 v{9+i}, s[{rA}:{rA+3}], s{sWo} offen offset:{1024*i} {LDF} lds")
            A(f"s_add_u32 m0, s{sSl}, {16384+5120*q+4096}")
            A(f"buffer_load_dwordx4 v13, s[{rA}:{rA+3}], s{sWo} offen {LDF} lds")
            if q < 3: A(f"s_add_u32 s{sWo}, s{sWo}, {16*3456}")
        A(f"""
        s_add_u32 s{sCh}, s{sCh}, 1
        s_cmp_eq_u32 s{sCh}, 10
        s_cselect_b32 s{sCh}, 0, s{sCh}
        s_add_u32 s{sSl}, s{sSl}, {SLOT}
        s_cmp_eq_u32 s{sSl}, {NS*SLOT}
        s_cselect_b32 s{sSl}, 0, s{sSl}
        """)
    T.mark(A)
    PFM = int([x[4:] for x in OPT if x.startswith("pfm=")][0]) if any(x.startswith("pfm=") for x in OPT) else 4
    def pf_setup():
        srd(A, rB, sWS, W2P_SZ, W2P_OFF)
        A("v_lshlrev_b32 v3, 7, v0")
    def pf_w():
        srd(A, rB, sWR, 2048*642); srd(A, rC, sWI, 2048*642)
        A(f"""
        v_lshrrev_b32 v14, 5, v0
        v_mul_u32_u24 v14, 20544, v14
        v_and_b32 v15, 31, v0
        v_min_u32 v15, 20, v15
        v_lshl_add_u32 v14, v15, 7, v14
        s_mul_i32 s46, s41, {2*20544}
        s_mul_i32 s52, s40, 2568
        s_add_u32 s46, s46, s52
        buffer_load_ubyte v30, v14, s[{rB}:{rB+3}], s46 offen
        buffer_load_ubyte v31, v14, s[{rC}:{rC+3}], s46 offen
        """)
    A(f"s_mov_b32 s{sIt}, 0\nK1_LDM:")
    mlp_chunk()
    A(f"s_add_u32 s{sIt}, s{sIt}, 1\ns_cmp_eq_u32 s{sIt}, 1\ns_cbranch_scc1 K1_LDM")
    A(f"s_waitcnt vmcnt(36)\ns_barrier\ns_cmp_lt_u32 s{sIt}, 10\ns_cbranch_scc1 K1_LDM")
    reset(A)
    npf = 0
    if "nopf" not in OPT:
        pf_setup()
        A(f"s_mul_i32 s46, s44, s47\ns_add_u32 s46, s46, s45\ns_mul_i32 s46, s46, {PFM*8192}")
        for i in range(PFM): A(f"buffer_load_dword v{20+i}, v3, s[{rB}:{rB+3}], s46 offen\ns_add_u32 s46, s46, 8192")
        pf_w(); npf = PFM + 2
    A(f"s_waitcnt vmcnt({npf})\ns_barrier")
    T.mark(A)
    A("s_barrier\ns_barrier")
    A("s_branch K1_PF")
    A("K1_LD_DFT:")
    reset(A); T.n = 0
    sE = 56
    A(f"""
    s_cmp_ge_u32 s{sC0}, 5
    s_cselect_b32 s46, 5, 0
    s_sub_u32 s{sCh}, s{sC0}, s46
    s_mov_b32 s{sSl}, 0
    s_lshl_b32 s46, s43, 1
    s_add_u32 s46, s46, s45
    s_sub_u32 s46, s46, 5
    s_mul_i32 s{sE}, s{sR}, 5
    s_add_u32 s{sE}, s{sE}, s46
    s_mov_b32 s52, {(1<<32)//80+1}
    s_mul_i32 s55, s{sE}, 40960
    """)
    for i in range(10):
        A(f"""
        v_add_u32 v{20+i}, {64*i}, v0
        v_mul_hi_u32 v14, v{20+i}, s52
        v_lshlrev_b32 v14, 1, v14
        v_xor_b32 v{20+i}, v{20+i}, v14
        v_lshlrev_b32 v{20+i}, 4, v{20+i}
        """)
    A("s_waitcnt lgkmcnt(0)")
    srd(A, rX, sX, 2048*1280); srd(A, rA, sW2, 1728*1280); srd(A, rB, sWS, W2P_SZ, W2P_OFF)
    T.mark(A)
    def pair():
        A(f"s_lshl_b32 s{sXo}, s{sCh}, 7\ns_add_u32 s{sXo}, s{sXo}, s48")
        xblock(lambda o: f"s_add_u32 m0, s{sSl}, {o}")
        A(f"s_sub_u32 s{sXo}, s{sXo}, {3*1280-640}")
        xblock(lambda o: f"s_add_u32 m0, s{sSl}, {16384+o}")
        A(f"""
        s_add_u32 s{sCh}, s{sCh}, 1
        s_cmp_eq_u32 s{sCh}, 5
        s_cselect_b32 s{sCh}, 0, s{sCh}
        s_add_u32 s{sSl}, s{sSl}, {PS}
        s_cmp_eq_u32 s{sSl}, {3*PS}
        s_cselect_b32 s{sSl}, 0, s{sSl}
        """)
    A(f"s_mov_b32 s{sIt}, 0\nK1_LDD:")
    pair()
    A(f"s_add_u32 s{sIt}, s{sIt}, 1\ns_cmp_eq_u32 s{sIt}, 1\ns_cbranch_scc1 K1_LDD")
    A(f"s_waitcnt vmcnt(32)\ns_barrier")
    A(f"s_cmp_ge_u32 s{sE}, 54\ns_cbranch_scc1 K1_LDD2")
    A(f"s_cmp_eq_u32 s{sIt}, 4\ns_cbranch_scc1 K1_RPK")
    A(f"s_cmp_lg_u32 s{sIt}, 2\ns_cbranch_scc1 K1_LDD2")
    A("s_waitcnt vmcnt(20)")
    for q in range(4):
        for i in range(10):
            A(f"s_mov_b32 m0, {RPK + 10240*q + 1024*i}")
            A(f"buffer_load_dwordx4 v{20+i}, s[{rA}:{rA+3}], s55 offen {LDF} lds")
        A("s_add_u32 s55, s55, 10240")
    A("s_waitcnt vmcnt(30)\ns_branch K1_LDD")
    A("K1_RPK:")
    reset(A)
    pair()
    reset(A)
    A(f"""
    v_lshrrev_b32 v14, 2, v1
    v_lshl_add_u32 v14, v2, 2, v14
    v_and_b32 v15, 7, v14
    v_lshlrev_b32 v15, 5, v15
    v_mul_u32_u24 v14, 1280, v14
    v_and_b32 v16, 3, v1
    v_lshl_add_u32 v14, v16, 3, v14
    v_add_u32 v14, {RPK}, v14
    v_lshlrev_b32 v17, 4, v0
    v_add_u32 v18, 4096, v17
    s_mul_i32 s55, s{sE}, 5120
    """)
    for q in range(8): A(f"v_xor_b32 v{20+q}, {32*q}, v15\nv_add_u32 v{20+q}, v{20+q}, v14")
    for nt in range(40):
        for jh in range(2): A(f"ds_read_b64_tr_b16 {v(32+4*nt+2*jh,2)}, v{20+nt%8} offset:{jh*16*1280 + (nt//8)*256}")
    A("s_waitcnt vmcnt(20)")
    for nt in range(40):
        q = nt % 5
        if q < 4: A(f"buffer_store_dwordx4 {v(32+4*nt,4)}, v17, s[{rB}:{rB+3}], s55 offen offset:{1024*q} {ST}")
        else: A(f"buffer_store_dwordx4 {v(32+4*nt,4)}, v18, s[{rB}:{rB+3}], s55 offen {ST}\ns_add_u32 s55, s55, {54*5120}")
    A("s_barrier\ns_branch K1_LDD3")
    A(f"K1_LDD2:\ns_cmp_lt_u32 s{sIt}, 5\ns_cbranch_scc1 K1_LDD")
    A("K1_LDD3:")
    reset(A)
    T.mark(A)
    A("s_waitcnt vmcnt(0)\ns_barrier")
    if "nopf" not in OPT:
        pf_setup()
        c0 = -(-(270 - 20*PFM) // 12); c1 = -(-(270 - 24*PFM) // 8)
        A(f"""
        s_cmp_eq_u32 s43, 0
        s_cselect_b32 s57, {c0}, {c1}
        s_sub_u32 s46, 8, s47
        s_mul_i32 s46, s46, s44
        s_add_u32 s46, s46, s45
        s_sub_u32 s46, s46, s47
        s_mul_i32 s46, s46, s57
        s_mul_i32 s58, s47, {4*PFM}
        s_add_u32 s46, s46, s58
        s_lshl_b32 s46, s46, 13
        K1_PFL:
        buffer_load_dword v20, v3, s[{rB}:{rB+3}], s46 offen
        s_add_u32 s46, s46, 8192
        s_sub_u32 s57, s57, 1
        s_cmp_lg_u32 s57, 0
        s_cbranch_scc1 K1_PFL
        """)
        reset(A)
        pf_w()
    A("s_barrier\ns_barrier")
    A("K1_PF:")
    T.mark(A)
    A(f"s_cmp_lg_u32 s2, 0\ns_cbranch_scc1 K1_LDE")
    srd(A, rX, sWS, FLG_SZ, FLG_OFF)
    A(f"v_lshlrev_b32 v3, 8, v0\nv_mov_b32 v4, 0\nbuffer_store_dword v4, v3, s[{rX}:{rX+3}], 0 offen {ST}")
    A("K1_LDE:")
    T.n = 3
    T.end(A, sW, sWS)
    A("s_endpgm")

    reset(A); T.n = 0
    A("K1_COMPUTE:")
    if "nocpf" not in OPT:
        A(f"""
        s_getpc_b64 s[70:71]
        K1_PC:
        s_lshl_b32 s46, s41, 2
        s_add_u32 s46, s46, s{sW}
        s_lshl_b32 s46, s46, 9
        s_sub_u32 s70, s70, K1_PC-k1_kernel
        s_subb_u32 s71, s71, 0
        v_lshl_add_u32 v10, v2, 7, s46
        v_min_u32 v10, CODE_END-k1_kernel-4, v10
        v_mov_b32 v11, s71
        v_add_co_u32 v10, vcc, s70, v10
        v_addc_co_u32 v11, vcc, 0, v11, vcc
        global_load_dword v252, v[10:11], off
        """)
        reset(A)
    A(f"""
    s_lshl_b32 s{sS2}, s{sR}, 2
    s_add_u32 s{sS2}, s{sS2}, s{sW}
    v_lshrrev_b32 v3, 1, v1
    v_xor_b32 v3, v3, v2
    v_lshlrev_b32 v3, 4, v3
    v_lshl_add_u32 v8, v1, 7, v3
    """)
    vBP = 9
    stats_setup(A, vBP)
    A(f"s_waitcnt lgkmcnt(0)\ns_cmp_ge_u32 s45, s47\ns_cbranch_scc1 K1_DFT")
    rH, rB1 = rA, rB
    srd(A, rH, sWS, H_SZ, H_OFF); srd(A, rB1, sB1, 1728*2)
    ONES = 20; B1R = 24; ACC = 36; AF = 116; XF = 196; C1A = 212; SUM = 232; GR = 240
    vXA0, vXA1, vWE, vWO, vXB, vWB, vG32 = 10, 11, 12, 13, 14, 15, 16
    A(f"""
    v_lshlrev_b32 v17, 1, v1
    v_lshl_add_u32 v17, v2, 28, v17
    s_lshl_b32 s46, s{sCol}, 1
    """)
    for ft in range(10): A(f"buffer_load_ushort v{B1R+ft}, v17, s[{rB1}:{rB1+3}], s46 offen offset:{32*ft}")
    A(f"""
    s_lshl_b32 s46, s{sW}, 12
    v_add_u32 v{vXB}, s46, v8
    v_lshrrev_b32 v18, 2, v1
    v_lshl_add_u32 v18, v2, 3, v18
    v_mul_u32_u24 v18, 320, v18
    v_and_b32 v19, 3, v1
    v_lshl_add_u32 v18, v19, 3, v18
    v_add_u32 v{vWB}, 16384, v18
    v_and_b32 v{vG32}, 1, v2
    v_lshlrev_b32 v{vG32}, 5, v{vG32}
    """)
    for i in range(4): A(f"v_mov_b32 v{ONES+i}, 0x3f803f80")
    for i in range(80): A(f"v_mov_b32 v{ACC+i}, 0")
    for i in range(36): A(f"v_mov_b32 v{C1A+i}, 0")
    sSl, sIt = 50, 54
    def addr_upd():
        return [f"v_add_u32 v{vXA0}, s{sSl}, v{vXB}", f"v_add_u32 v{vWO}, s{sSl}, v{vWB}", f"v_add_u32 v{vWE}, v{vWO}, v{vG32}",
                f"v_sub_u32 v{vWO}, v{vWO}, v{vG32}", f"v_xor_b32 v{vXA1}, 64, v{vXA0}"]
    def reads(t):
        r = [f"ds_read_b128 {v(XF+8*t+4*mt,4)}, v{vXA0+t} offset:{2048*mt}" for mt in range(2)]
        for ft in range(10):
            for jh in range(2):
                r.append(f"ds_read_b64_tr_b16 {v(AF+40*t+4*ft+2*jh,2)}, v{vWE if ft%2==0 else vWO} offset:{t*10240+jh*1280+ft*32}")
        return r
    def mains(t, w):
        m = []
        for ft in range(10):
            for mt in range(2): m.append(mfma(ACC+(ft*2+mt)*4, AF+40*t+4*ft, XF+8*t+4*mt))
        for mt in range(2):
            m.append(mfma(SUM+4*mt, ONES, XF+8*t+4*mt)); m.append(mfma(GR+4*mt, XF+8*t+4*mt, XF+8*t+4*mt))
        if t == (w & 1):
            for q in range(5): m.append(mfma(C1A+4*q, ONES, AF+40*t+4*(5*(w>>1)+q)))
        return m
    A(f"s_mov_b32 s{sSl}, 0\ns_mov_b32 s{sIt}, 10")
    for x in addr_upd(): A(x)
    A("s_waitcnt vmcnt(0)")
    T.mark(A)
    A("s_barrier")
    T.mark(A)
    for x in reads(0): A(x)
    st0 = A.state()
    for w in range(3): A(f"s_cmp_eq_u32 s{sW}, {w+1}\ns_cbranch_scc1 K1_ML{w+1}")
    for w in range(4):
        A.lg = [set(x) for x in st0[0]]
        if "align" in OPT: A.raw(".p2align 6")
        A(f"K1_ML{w}:")
        slotadv = [f"s_add_u32 s{sSl}, s{sSl}, {SLOT}", f"s_cmp_eq_u32 s{sSl}, {NS*SLOT}", f"s_cselect_b32 s{sSl}, 0, s{sSl}", f"s_sub_u32 s{sIt}, s{sIt}, 1"]
        if "sched1" not in OPT:
            m0, m1 = mains(0, w), mains(1, w)
            allm = m0 + m1
            r1, r0 = reads(1), reads(0)
            BAR = 27
            for i, m in enumerate(allm):
                A(m)
                if i < 22: A(r1[i])
                elif i < 26: A(slotadv[i-22])
                if i == BAR - 1:
                    A("s_waitcnt lgkmcnt(0)\ns_barrier")
                if i in (BAR, BAR+1):
                    for x in addr_upd()[(0 if i == BAR else 2):(2 if i == BAR else 5)]: A(x)
                if BAR + 2 <= i < BAR + 24: A(r0[i-BAR-2])
                if i == BAR + 24: A(f"s_cmp_lg_u32 s{sIt}, 0")
        else:
            weave(A, mains(0, w), reads(1) + slotadv, per=1.5)
            A("s_waitcnt lgkmcnt(0)\ns_barrier")
            m1 = mains(1, w)
            weave(A, m1, addr_upd() + reads(0) + [f"s_cmp_lg_u32 s{sIt}, 0"], per=1.5)
        assert A.state()[0] == st0[0], (A.state()[0], st0[0])
        A(f"s_cbranch_scc1 K1_ML{w}")
        if w < 3: A("s_branch K1_MLE")
    A("K1_MLE:")
    T.mark(A)
    A(f"""
    s_lshr_b32 s46, s{sW}, 1
    s_mul_i32 s46, s46, {5*128}
    s_and_b32 s52, s{sW}, 1
    s_lshl_b32 s52, s52, 2
    s_add_u32 s46, s46, s52
    s_add_u32 s46, s46, {C1X}
    v_lshlrev_b32 v18, 3, v1
    v_add_u32 v19, s46, v18
    v_add_u32 v18, {C1X}, v18
    s_waitcnt lgkmcnt(0)
    """)
    for q in range(5): A(f"ds_write_b32 v19, v{C1A+4*q} offset:{128*q}")
    A("s_waitcnt lgkmcnt(0)\ns_barrier")
    AUG = AF; CR = AF + 40
    for ft in range(10): A(f"ds_read_b64 {v(CR+2*ft,2)}, v18 offset:{128*ft}")
    stats_from_mfma(A, SUM, GR, 1, vBP, 10, 11); stats_from_mfma(A, SUM+4, GR+4, 1, vBP, 10, 11)
    A("v_cmp_eq_u32 vcc, 0, v2")
    for mt in range(2):
        b = XF+4*mt
        A(f"v_cvt_pk_bf16_f32 v{b}, -v{SUM+4*mt}, -v{SUM+4*mt}\nv_lshrrev_b32 v{b+1}, 16, v{GR+4*mt}\nv_cndmask_b32 v{b}, 0, v{b}, vcc\nv_mov_b32 v{b+2}, 0\nv_mov_b32 v{b+3}, 0")
    KA, KB, SD = C1A, C1A+4, C1A+8
    for mt in range(2):
        A(f"""
        v_rcp_f32 v10, v{GR+4*mt}
        v_mov_b32 v{SD+2*mt}, v{GR+4*mt}
        v_mul_f32 v{KB+2*mt}, {fbits(K0)}, v10
        v_mul_f32 v11, v10, v10
        v_mul_f32 v11, v11, v10
        v_mul_f32 v{KA+2*mt}, {fbits(K1c)}, v11
        """)
    A(f"""
    s_lshr_b32 s46, s{sS2}, 1
    s_mul_i32 s46, s46, 54
    s_lshr_b32 s52, s{sCol}, 5
    s_add_u32 s46, s46, s52
    s_lshl_b32 s46, s46, 2
    s_and_b32 s52, s{sS2}, 1
    s_lshl_b32 s52, s52, 1
    s_add_u32 s46, s46, s52
    s_lshl_b32 s46, s46, 10
    v_lshlrev_b32 v18, 4, v0
    """)
    for ft in range(10):
        g = AUG+4*ft
        A(f"v_add_f32 v10, v{CR+2*ft}, v{CR+2*ft+1}\nv_and_b32 v11, 0xffff0000, v10\nv_sub_f32 v11, v10, v11")
        A(f"v_cvt_pk_bf16_f32 v11, v11, v11\nv_alignbit_b32 v{g}, v11, v10, 16\nv_mov_b32 v{g+1}, v{B1R+ft}\nv_mov_b32 v{g+2}, 0\nv_mov_b32 v{g+3}, 0")
        for mt in range(2): A(mfma(ACC+(ft*2+mt)*4, g, XF+4*mt))
    T.mark(A)
    TMP = CR
    for q in range(5):
        for mt in range(2):
            o = TMP + 16 + 4*((q*2+mt) % 4)
            tm = TMP + 8*((q*2+mt) % 2)
            prs = [ACC + ((2*q+h)*2+mt)*4 + 2*p for h in range(2) for p in range(2)]
            for i, c in enumerate(prs): A(f"v_pk_mul_f32 {v(tm+2*i,2)}, {v(c,2)}, {v(c,2)}")
            for i, c in enumerate(prs): A(f"v_pk_fma_f32 {v(tm+2*i,2)}, {v(tm+2*i,2)}, {v(KA+2*mt,2)}, {v(KB+2*mt,2)} op_sel_hi:[1,0,0]")
            for i, c in enumerate(prs): A(f"v_pk_mul_f32 {v(tm+2*i,2)}, {v(tm+2*i,2)}, {v(c,2)}")
            for i in range(8): A(f"v_exp_f32 v{tm+i}, v{tm+i}")
            for i, c in enumerate(prs): A(f"v_pk_fma_f32 {v(tm+2*i,2)}, {v(tm+2*i,2)}, {v(SD+2*mt,2)}, {v(SD+2*mt,2)} op_sel_hi:[1,0,0]")
            for i in range(8): A(f"v_rcp_f32 v{tm+i}, v{tm+i}")
            for i, c in enumerate(prs): A(f"v_pk_mul_f32 {v(tm+2*i,2)}, {v(tm+2*i,2)}, {v(c,2)}")
            for i in range(4): A(f"v_cvt_pk_bf16_f32 v{o+i}, v{tm+2*i}, v{tm+2*i+1}")
            A(f"buffer_store_dwordx4 {v(o,4)}, v18, s[{rH}:{rH+3}], s46 offen offset:{1024*mt} {ST}")
        A("s_add_u32 s46, s46, 4096")
    T.mark(A)
    T.end(A, sW, sWS)
    A("s_endpgm")

    reset(A); T.n = 0
    A("K1_DFT:")
    rV = rA
    srd(A, rV, sWS, V_SZ, V_OFF)
    sKT, sG = 38, 39
    ONES = 24; ACC = 28; XF = 156; BF = 188; TA = 220; SUM = 236; GR = 244
    vKF, vG8, vSIG, vBase = 4, 5, 6, 7
    vXA = 10; vXB = 18
    A(f"""
    s_lshl_b32 s46, s43, 1
    s_add_u32 s46, s45, s46
    s_sub_u32 s46, s46, 5
    s_lshl_b32 s{sKT}, s46, 2
    s_add_u32 s{sKT}, s{sKT}, s{sW}
    s_cmp_ge_u32 s{sC0}, 5
    s_cselect_b32 s46, 5, 0
    s_sub_u32 s{sG}, s{sC0}, s46
    s_lshl_b32 s46, s{sKT}, 4
    s_add_u32 s46, s46, 1
    v_add_u32 v22, s46, v1
    v_cvt_f32_u32 v{vKF}, v22
    v_mul_f32 v{vKF}, {fbits(1/640)}, v{vKF}
    v_lshlrev_b32 v22, 31, v22
    v_or_b32 v{vSIG}, 1.0, v22
    v_lshlrev_b32 v22, 3, v2
    v_cvt_f32_u32 v{vG8}, v22
    v_add_f32 v{vG8}, 0.5, v{vG8}
    """)
    def bgen(buf):
        g = [f"s_lshl_b32 s46, s{sG}, 6", f"v_cvt_f32_u32 v{vBase}, s46", f"v_add_f32 v{vBase}, v{vBase}, v{vG8}", f"v_mul_f32 v{vBase}, v{vBase}, v{vKF}",
             f"s_add_u32 s{sG}, s{sG}, 1", f"s_cmp_eq_u32 s{sG}, 5", f"s_cselect_b32 s{sG}, 0, s{sG}"]
        for t in range(2):
            for p in range(4):
                a0, a1, s0, s1 = TA+4*(p%2), TA+4*(p%2)+1, TA+4*(p%2)+2, TA+4*(p%2)+3
                for (r, j) in ((a0, 2*p), (a1, 2*p+1)):
                    g.append(f"v_fmamk_f32 v{r}, v{vKF}, {fbits(32.0*t+j)}, v{vBase}")
                g += [f"v_sin_f32 v{s0}, -v{a0}", f"v_sin_f32 v{s1}, -v{a1}", f"v_cos_f32 v{a0}, v{a0}", f"v_cos_f32 v{a1}, v{a1}",
                      f"v_cvt_pk_bf16_f32 v{BF+16*buf+8*t+4+p}, v{s0}, v{s1}", f"v_cvt_pk_bf16_f32 v{BF+16*buf+8*t+p}, v{a0}, v{a1}"]
        return g
    for x in bgen(0): A(x)
    A(f"""
    v_lshlrev_b32 v22, 8, v2
    v_add_u32 v22, s{sS2}, v22
    v_cvt_f32_u32 v22, v22
    s_lshl_b32 s46, s{sW}, 12
    s_add_u32 s46, s46, {FX}
    v_lshl_add_u32 v3, v0, 4, s46
    """)
    for ut in range(2):
        A(f"v_add_u32 v23, {16*ut}, v1\nv_cvt_f32_u32 v23, v23\nv_mul_f32 v23, {fbits(1/2048)}, v23\nv_mul_f32 v{vBase}, v23, v22")
        for j in range(8): A(f"v_fmamk_f32 v{TA+j}, v23, {fbits(64.0*(16*(j>>2) + (j&3)))}, v{vBase}")
        for j in range(8): A(f"v_sin_f32 v{TA+8+j}, v{TA+j}\nv_cos_f32 v{TA+j}, v{TA+j}")
        o = XF + 8*ut
        for p in range(4): A(f"v_cvt_pk_bf16_f32 v{o+p}, v{TA+2*p}, v{TA+2*p+1}\nv_cvt_pk_bf16_f32 v{o+4+p}, v{TA+8+2*p}, v{TA+8+2*p+1}")
        A(f"ds_write_b128 v3, {v(o,4)} offset:{2048*ut}\nds_write_b128 v3, {v(o+4,4)} offset:{2048*ut+1024}")
    for gq in range(4):
        A(f"s_xor_b32 s46, s{sW}, {gq}\ns_lshl_b32 s46, s46, 12\nv_add_u32 v{vXB+gq}, s46, v8")
    for i in range(4): A(f"v_mov_b32 v{ONES+i}, 0x3f803f80")
    for i in range(128): A(f"v_mov_b32 v{ACC+i}, 0")
    for i in range(16): A(f"v_mov_b32 v{SUM+i}, 0")
    def dupd(): return sum([[f"v_add_u32 v{vXA+2*gq}, s{sSl}, v{vXB+gq}", f"v_xor_b32 v{vXA+2*gq+1}, 64, v{vXA+2*gq}"] for gq in range(4)], [])
    frs = [(h, t, m) for h in range(2) for t in range(2) for m in range(8)]
    def rd(i):
        h, t, m = frs[i % 32]
        return f"ds_read_b128 {v(XF+4*(i%8),4)}, v{vXA+2*(m//2)+t} offset:{h*16384+2048*(m%2)}"
    AH = 6
    A(f"s_mov_b32 s{sSl}, 0")
    for x in dupd(): A(x)
    A("s_waitcnt lgkmcnt(0)")
    T.mark(A)
    A("s_barrier")
    T.mark(A)
    for i in range(AH): A(rd(i))
    def body(buf, gen_next):
        g = bgen(buf ^ 1) if gen_next else []
        slotadv = [f"s_add_u32 s{sSl}, s{sSl}, {PS}", f"s_cmp_eq_u32 s{sSl}, {3*PS}", f"s_cselect_b32 s{sSl}, 0, s{sSl}"]
        g = slotadv + g
        gi = 0; nm = 0
        for i, (h, t, m) in enumerate(frs):
            x = XF + 4*(i % 8)
            ms = [mfma(ACC+((h*8+m)*2+rho)*4, x, BF+16*buf+8*t+4*rho) for rho in range(2)]
            if m < 2: ms += [mfma(SUM+4*m, ONES, x), mfma(GR+4*m, x, x)]
            for k, mm in enumerate(ms):
                A(mm); nm += 1
                if k == 0:
                    if i + AH == 32:
                        A("s_waitcnt lgkmcnt(0)\ns_barrier")
                        for z in dupd(): A(z)
                    A(rd(i + AH))
                want = min(len(g), (len(g) * nm + 63) // 64)
                while gi < want: A(g[gi]); gi += 1
        while gi < len(g): A(g[gi]); gi += 1
    st0 = A.state()
    A(f"s_mov_b32 s{sIt}, 2\nK1_DL:")
    body(0, True)
    A(f"s_cmp_eq_u32 s{sIt}, 0\ns_cbranch_scc1 K1_DLE")
    body(1, True)
    assert A.state()[0] == st0[0]
    A(f"s_sub_u32 s{sIt}, s{sIt}, 1\ns_branch K1_DL\nK1_DLE:")
    T.mark(A)
    A("s_waitcnt lgkmcnt(0)")
    stats_from_mfma(A, SUM, GR, 1, vBP, 22, 23); stats_from_mfma(A, SUM+4, GR+4, 1, vBP, 22, 23)
    A(f"v_rcp_f32 v{GR}, v{GR}\nv_rcp_f32 v{GR+4}, v{GR+4}")
    A(f"s_lshl_b32 s46, s{sW}, 7\ns_add_u32 s46, s46, {RX}\nv_lshl_add_u32 v22, v1, 2, s46")
    A(f"v_mul_f32 v{GR}, {fbits(2.0/(2048*640))}, v{GR}\nv_mul_f32 v{GR+4}, {fbits(2.0/(2048*640))}, v{GR+4}")
    A(f"ds_write_b32 v22, v{GR}\nds_write_b32 v22, v{GR+4} offset:64")
    for gq in range(4):
        A(f"s_xor_b32 s46, s{sW}, {gq}\ns_lshl_b32 s46, s46, 12\ns_add_u32 s46, s46, {FX}\nv_lshl_add_u32 v23, v0, 4, s46")
        for q in range(4): A(f"ds_read_b128 {v(XF+16*gq+4*q,4)}, v23 offset:{1024*q}")
    for i in range(32): A(f"v_pk_fma_f32 {v(ACC+2*i,2)}, {v(ACC+64+2*i,2)}, {v(vSIG,2)}, {v(ACC+2*i,2)} op_sel_hi:[1,0,1]")
    A("s_waitcnt lgkmcnt(0)\ns_barrier")
    RR = TA
    for gq in range(4):
        A(f"s_xor_b32 s46, s{sW}, {gq}\ns_lshl_b32 s46, s46, 7\ns_add_u32 s46, s46, {RX}\nv_lshl_add_u32 v23, v2, 4, s46")
        for jh in range(2): A(f"ds_read_b128 {v(RR+8*gq+4*jh,4)}, v23 offset:{64*jh}")
    TF = ACC + 64
    A(f"s_lshl_b32 s57, s{sW}, 13\nv_and_b32 v3, 7, v1")
    for gq in range(4):
        for jh in range(2):
            for rho in range(2):
                c = ACC + ((2*gq+jh)*2+rho)*4
                for p in range(2): A(f"v_pk_mul_f32 {v(c+2*p,2)}, {v(c+2*p,2)}, {v(RR+8*gq+4*jh+2*p,2)}")
        for rho in range(2):
            for jh in range(2):
                c = ACC + ((2*gq+jh)*2+rho)*4
                for p in range(2):
                    A(f"v_cvt_pk_bf16_f32 v{TF+12*gq+4*rho+2*jh+p}, v{c+2*p}, v{c+2*p+1}")
                    if rho == 0: A(f"v_cvt_pk_bf16_f32 v{TF+12*gq+8+2*jh+p}, -v{c+2*p}, -v{c+2*p+1}")
    for gq in range(4):
        for ut in range(2):
            Cf, Sf = XF+16*gq+8*ut, XF+16*gq+8*ut+4
            re, im, nre = TF+12*gq, TF+12*gq+4, TF+12*gq+8
            dre, dim = ACC+(gq*2+ut)*8, ACC+(gq*2+ut)*8+4
            A(mfma(dre, re, Cf, 0)); A(mfma(dim, im, Cf, 0)); A(mfma(dre, im, Sf)); A(mfma(dim, nre, Sf))
        A(f"""
        s_xor_b32 s46, s{sW}, {gq}
        s_lshl_b32 s46, s46, 2
        v_add_u32 v{10+gq}, s46, v2
        v_xor_b32 v{10+gq}, v{10+gq}, v3
        v_lshlrev_b32 v{10+gq}, 4, v{10+gq}
        v_lshl_add_u32 v{10+gq}, v1, 8, v{10+gq}
        v_add_u32 v{10+gq}, s57, v{10+gq}
        """)
    for gq in range(4):
        for ut in range(2):
            d = ACC+(gq*2+ut)*8; o = TA + 4*(gq*2+ut)
            for p in range(4): A(f"v_cvt_pk_bf16_f32 v{o+p}, v{d+2*p}, v{d+2*p+1}")
            A(f"ds_write_b128 v{10+gq}, {v(o,4)} offset:{4096*ut}")
    A(f"""
    v_xor_b32 v14, v1, v2
    v_lshlrev_b32 v14, 4, v14
    v_lshl_add_u32 v14, v2, 8, v14
    v_add_u32 v14, s57, v14
    v_xor_b32 v15, 64, v14
    v_mul_u32_u24 v16, {20*4096}, v2
    v_lshl_add_u32 v16, v1, 4, v16
    s_lshl_b32 s46, s{sKT}, 12
    s_lshl_b32 s52, s{sR}, 8
    s_add_u32 s46, s46, s52
    s_waitcnt lgkmcnt(0)
    """)
    for n in range(8): A(f"ds_read_b128 {v(XF+4*n,4)}, v{14 + (n&1)} offset:{1024*n}")
    for n in range(8):
        A(f"buffer_store_dwordx4 {v(XF+4*n,4)}, v16, s[{rV}:{rV+3}], s46 offen {ST}\ns_add_u32 s46, s46, {4*20*4096}")
    T.mark(A)
    T.end(A, sW, sWS)
    A(f"{END}:")
    return dict(label="k1_kernel", body=A.text(), vgpr=256, grid=256, block=320, lds=160*1024)


def optval(name, default):
    for x in OPT:
        if x.startswith(name + "="): return int(x[len(name)+1:])
    return default

def gen_k2(stamps=False):
    A = Asm(); T = Stamp(stamps, 1)
    END = "K2_END"
    GP = optval("gp", 1); HP = optval("hp", 2)
    sX, sWR, sWI, sB2, sOUT, sWS = 4, 6, 8, 10, 12, 14
    rA, rB, rC, rD, rE = 16, 20, 24, 28, 56
    sW, sRB, sCB, sL, sA, sRot, sG = 32, 33, 34, 35, 36, 37, 38
    REG = 20480; ABASE = 4*REG
    XO, BO, FO = 15360, 15360+2560, 15360+2560+256
    ACC = 176
    mode = "early" if "early" in OPT else "late" if "late" in OPT else "tail" if "tail" in OPT else "std"
    def mk(*modes):
        if mode in modes: T.mark(A)
    def spin(vaddr, off, thr=1):
        L, G = A.label("SP"), A.label("SG")
        A(f"s_mov_b32 s61, 4000000\n{L}:\nds_read_b32 v11, v{vaddr} offset:{off}\ns_waitcnt lgkmcnt(0)\nv_readfirstlane_b32 s60, v11\ns_cmp_ge_u32 s60, {thr}\ns_cbranch_scc1 {G}")
        A(f"s_sub_u32 s61, s61, 1\ns_cmp_eq_u32 s61, 0\ns_cbranch_scc1 {G}\ns_sleep 1\ns_branch {L}\n{G}:")

    A(f"s_cmp_ge_u32 s2, 256\ns_cbranch_scc1 {END}")
    T.start(A)
    A(f"""
    s_load_dwordx2 s[{sWS}:{sWS+1}], s[0:1], 80
    s_load_dwordx4 s[{sX}:{sX+3}], s[0:1], 0
    s_load_dwordx2 s[{sWI}:{sWI+1}], s[0:1], 16
    s_load_dwordx2 s[{sB2}:{sB2+1}], s[0:1], 56
    s_load_dwordx2 s[{sOUT}:{sOUT+1}], s[0:1], 64
    v_lshrrev_b32 v1, 6, v0
    v_and_b32 v0, 63, v0
    v_readfirstlane_b32 s{sW}, v1
    s_and_b32 s40, s2, 7
    s_lshr_b32 s41, s2, 3
    s_lshr_b32 s42, s41, 3
    s_lshl_b32 s{sRB}, s40, 2
    s_add_u32 s{sRB}, s{sRB}, s42
    s_and_b32 s{sCB}, s41, 7
    v_lshlrev_b32 v3, 4, v0
    s_and_b32 s{sA}, s{sW}, 3
    s_mul_i32 s{sG}, s{sA}, {REG}
    v_mov_b32 v10, s{sG}
    s_cmp_lt_u32 s{sW}, 4
    s_cbranch_scc1 K2_GEMM
    """)
    sKT, sU1 = 44, sRB
    rV, rU, rWR, rWI, rF = rA, rB, rC, rD, rE
    CF, SF = 16, 48; WR, WI = 80, 96; XA = 112; VF = 144; TA = 168; YF = 184; UA = 208
    A(f"""
    s_setprio 3
    s_add_u32 s{sL}, s{sG}, {ABASE}
    s_mul_i32 s{sKT}, s{sCB}, 5
    s_add_u32 s{sKT}, s{sKT}, 1
    s_lshr_b32 s{sKT}, s{sKT}, 1
    s_add_u32 s{sKT}, s{sKT}, s{sA}
    s_and_b32 s46, s{sCB}, 1
    s_sub_u32 s46, 3, s46
    s_cmp_lt_u32 s{sA}, s46
    s_cselect_b32 s50, 1, 0
    s_mul_i32 s47, s{sU1}, 20
    s_add_u32 s47, s47, s{sKT}
    s_lshl_b32 s47, s47, 12
    v_lshrrev_b32 v4, 2, v0
    v_mul_u32_u24 v4, 20544, v4
    v_and_b32 v5, 3, v0
    v_min_u32 v5, 2, v5
    v_lshl_add_u32 v4, v5, 4, v4
    s_mul_i32 s48, s{sU1}, 321
    s_lshl_b32 s49, s{sKT}, 4
    s_add_u32 s48, s48, s49
    s_add_u32 s48, s48, 1
    s_lshl_b32 s48, s48, 1
    s_and_b32 s49, s48, 2
    s_sub_u32 s48, s48, s49
    s_mov_b32 m0, s{sL}
    s_mov_b32 s{rV+2}, {V_SZ}
    s_mov_b32 s{rV+3}, 0x20000
    s_mov_b32 s{rWR+2}, {2048*642}
    s_mov_b32 s{rWR+3}, 0x20000
    s_mov_b32 s{rWI+2}, {2048*642}
    s_mov_b32 s{rWI+3}, 0x20000
    v_and_b32 v1, 15, v0
    v_lshrrev_b32 v2, 4, v0
    s_waitcnt lgkmcnt(0)
    s_add_u32 s{rV}, s{sWS}, {V_OFF}
    s_addc_u32 s{rV+1}, s{sWS+1}, 0
    s_mov_b64 s[{rWR}:{rWR+1}], s[{sWR}:{sWR+1}]
    s_mov_b64 s[{rWI}:{rWI+1}], s[{sWI}:{sWI+1}]
    s_cmp_eq_u32 s50, 0
    s_cbranch_scc1 K2_NOLD
    """)
    for i in range(4): A(f"buffer_load_dwordx4 v3, s[{rV}:{rV+3}], s47 offen offset:{1024*i} lds")
    for q in range(4):
        A(f"s_add_u32 m0, s{sL}, {4096+1024*q}\nbuffer_load_dwordx4 v4, s[{rWR}:{rWR+3}], s48 offen lds")
        A(f"s_add_u32 m0, s{sL}, {8192+1024*q}\nbuffer_load_dwordx4 v4, s[{rWI}:{rWI+3}], s48 offen lds")
        if q < 3: A(f"s_add_u32 s48, s48, {16*20544}")
    A("K2_NOLD:")
    mk("early")
    A(f"s_barrier\ns_setprio {GP}")
    srd(A, rU, sWS, U_SZ, U_OFF); srd(A, rF, sWS, FLG_SZ, FLG_OFF)
    if "nodry" in OPT: A("s_cmp_eq_u32 s50, 0\ns_cbranch_scc1 K2_GEN")
    else: A(f"s_cmp_eq_u32 s{sA}, 3\ns_cbranch_scc1 K2_JOB\ns_cmp_eq_u32 s50, 0\ns_cbranch_scc1 K2_GEN")
    A(f"v_lshlrev_b32 v5, 2, v2\nv_cvt_f32_u32 v5, v5\nv_cvt_f32_u32 v6, v1\nv_mul_f32 v6, {fbits(1/64)}, v6\nv_mul_f32 v7, v6, v5")
    for j in range(8): A(f"v_fmamk_f32 v{TA+j}, v6, {fbits(16.0*(j>>2) + (j&3))}, v7")
    for j in range(8): A(f"v_sin_f32 v{TA+8+j}, v{TA+j}\nv_cos_f32 v{TA+j}, v{TA+j}")
    cf = lambda mt, t, p: CF+(mt*2+t)*4+p
    sf = lambda mt, t, p: SF+(mt*2+t)*4+p
    A("s_brev_b32 s67, 1")
    for p in range(4):
        c0, c1, s0, s1 = TA+2*p, TA+2*p+1, TA+8+2*p, TA+8+2*p+1
        A(f"v_cvt_pk_bf16_f32 v{cf(0,0,p)}, v{c0}, v{c1}\nv_cvt_pk_bf16_f32 v{sf(0,0,p)}, v{s0}, v{s1}")
        if p % 2 == 0: A(f"v_cvt_pk_bf16_f32 v{cf(1,0,p)}, v{c0}, -v{s1}\nv_cvt_pk_bf16_f32 v{sf(1,0,p)}, v{s0}, v{c1}")
        else: A(f"v_cvt_pk_bf16_f32 v{cf(1,0,p)}, -v{c0}, v{s1}\nv_cvt_pk_bf16_f32 v{sf(1,0,p)}, -v{s0}, -v{c1}")
    A("v_and_b32 v5, 1, v1\nv_mul_u32_u24 v5, 0x8000, v5\nv_lshl_or_b32 v5, v5, 16, v5")
    for f in (cf, sf):
        for mt in (2, 3):
            for p in range(4): A(f"v_xor_b32 v{f(mt,0,p)}, s67, v{f(mt-2,0,p)}")
        for mt in range(4):
            for p in range(4): A(f"v_xor_b32 v{f(mt,1,p)}, v5, v{f(mt,0,p)}")
    for i in range(32): A(f"v_mov_b32 v{WR+i}, 0")
    A("K2_JOB:")
    A(f"""
    v_lshrrev_b32 v5, 2, v1
    v_lshl_add_u32 v5, v2, 2, v5
    v_lshlrev_b32 v5, 6, v5
    v_and_b32 v6, 3, v1
    v_lshl_add_u32 v5, v6, 4, v5
    v_add_u32 v5, s{sL}, v5
    s_add_u32 s49, s49, s{sL}
    v_lshlrev_b32 v6, 8, v2
    v_lshl_add_u32 v6, v1, 1, v6
    v_add_u32 v6, s49, v6
    s_mov_b32 s68, 0x80008000
    """)
    mk("std")
    A("s_waitcnt vmcnt(8)")
    mk("early")
    for t in range(2):
        for rho in range(2):
            for jh in range(2): A(f"ds_read_b64_tr_b16 {v(VF+12*t+4*rho+2*jh,2)}, v5 offset:{2048*t+1024*jh+8*rho}")
    wr = [f"ds_read_u16_d16_hi v{(WR,WI)[ar]+4*mt+r}, v6 offset:{4096+4096*ar+(16*mt+r)*64}" for mt in range(4) for r in range(4) for ar in range(2)]
    for t in range(2):
        for p in range(4): A(f"v_xor_b32 v{VF+12*t+8+p}, s68, v{VF+12*t+p}")
    def fwd(mt):
        m = []
        for t in range(2):
            re, im = XA+8*mt, XA+8*mt+4
            C, S = CF+(mt*2+t)*4, SF+(mt*2+t)*4
            m += [mfma(re, C, VF+12*t, None if t else 0), mfma(im, C, VF+12*t+4, None if t else 0), mfma(re, S, VF+12*t+4), mfma(im, S, VF+12*t+8)]
        return m
    def filt(mt):
        f = []
        tb = TA + 8*(mt & 1)
        for r in range(4):
            xr, xi, w_r, w_i = XA+8*mt+r, XA+8*mt+4+r, WR+4*mt+r, WI+4*mt+r
            f += [f"v_mul_f32 v{tb+r}, v{xi}, v{w_i}", f"v_mul_f32 v{tb+4+r}, v{xr}, v{w_i}", f"v_fma_f32 v{tb+r}, v{xr}, v{w_r}, -v{tb+r}", f"v_fmac_f32 v{tb+4+r}, v{xi}, v{w_r}"]
        t, jh = mt >> 1, mt & 1
        for p in range(2):
            f += [f"v_cvt_pk_bf16_f32 v{YF+12*t+2*jh+p}, v{tb+2*p}, v{tb+2*p+1}", f"v_cvt_pk_bf16_f32 v{YF+12*t+4+2*jh+p}, v{tb+4+2*p}, v{tb+4+2*p+1}",
                  f"v_xor_b32 v{YF+12*t+8+2*jh+p}, s68, v{YF+12*t+4+2*jh+p}"]
        return f
    def inv(t):
        m = []
        for nt in range(4):
            re, im = UA+8*nt, UA+8*nt+4
            C, S = CF+(nt*2+t)*4, SF+(nt*2+t)*4
            m += [mfma(re, YF+12*t, C, None if t else 0), mfma(im, YF+12*t+4, C, None if t else 0), mfma(re, YF+12*t+8, S), mfma(im, YF+12*t, S)]
        return m
    f01 = fwd(0) + fwd(1)
    for x in f01[:2]: A(x)
    A("s_waitcnt vmcnt(0)")
    mk("early")
    weave(A, f01[2:], wr)
    weave(A, fwd(2) + fwd(3), filt(0) + filt(1))
    addr = f"""v_lshrrev_b32 v5, 1, v1
    v_and_b32 v5, 3, v5
    v_xor_b32 v5, v5, v2
    v_lshlrev_b32 v5, 4, v5
    v_lshl_add_u32 v5, v1, 6, v5
    v_add_u32 v5, s{sL}, v5
    v_lshrrev_b32 v6, 3, v0
    v_and_b32 v7, 3, v6
    v_lshlrev_b32 v7, 4, v7
    v_xor_b32 v7, v7, v3
    v_add_u32 v7, s{sL}, v7
    v_mul_u32_u24 v6, 81920, v6
    v_and_b32 v8, 7, v0
    v_lshl_add_u32 v6, v8, 4, v6
    s_lshl_b32 s47, s{sKT}, 12
    s_lshl_b32 s48, s{sU1}, 7
    s_add_u32 s47, s47, s48
    s_cmp_eq_u32 s{sKT}, 19
    s_cselect_b32 s46, 0.5, 1.0
    v_cmp_eq_u32 vcc, 3, v2
    v_mov_b32 v8, s46
    v_cndmask_b32 v8, 1.0, v8, vcc""".split("\n")
    weave(A, inv(0), filt(2) + filt(3))
    i1 = inv(1)
    weave(A, i1[:8], addr)
    def outp(nt):
        d = UA+8*nt
        return [f"v_mul_f32 v{d+3}, v{d+3}, v8", f"v_mul_f32 v{d+7}, v{d+7}, v8"] + [f"v_cvt_pk_bf16_f32 v{TA+4*nt+p}, v{d+2*p}, v{d+2*p+1}" for p in range(4)] + [f"ds_write_b128 v5, {v(TA+4*nt,4)} offset:{1024*nt}"]
    weave(A, i1[8:], outp(0) + outp(1))
    for x in outp(2) + outp(3): A(x)
    A("s_waitcnt lgkmcnt(0)")
    for q in range(4): A(f"ds_read_b128 {v(VF+4*q,4)}, v7 offset:{1024*q}")
    A("s_cmp_eq_u32 s50, 0\ns_cbranch_scc1 K2_GEN\ns_setprio 3")
    for q in range(4):
        A(f"buffer_store_dwordx4 {v(VF+4*q,4)}, v6, s[{rU}:{rU+3}], s47 offen sc1\ns_add_u32 s47, s47, {8*81920}")
    A(f"K2_GEN:\ns_setprio {GP}\ns_waitcnt lgkmcnt(0)")
    mk("std", "early")
    reset(A)
    FP = 12; FI = 44; UF = 84; ZA = 108; ZF = 140; OF = 148; XB = 152
    TC = ACC; DF = ACC + 16; KF = ACC + 24; TB = ACC + 32
    A("v_lshlrev_b32 v5, 3, v2\nv_cvt_f32_u32 v5, v5\ns_brev_b32 s67, 1")
    for p in range(2):
        A(f"s_lshl_b32 s46, s{sRB}, 1\ns_add_u32 s46, s46, {p}")
        A(f"v_lshl_add_u32 v6, v1, 6, s46\nv_cvt_f32_u32 v6, v6\nv_mul_f32 v6, {fbits(1/2048)}, v6\nv_mul_f32 v{TC}, v6, v5")
        for j in range(1, 8): A(f"v_add_f32 v{TC+j}, v6, v{TC+j-1}")
        for j in range(8): A(f"v_sin_f32 v{TC+8+j}, v{TC+j}\nv_cos_f32 v{TC+j}, v{TC+j}")
        o = FP + p*16
        for q in range(4): A(f"v_cvt_pk_bf16_f32 v{o+q}, v{TC+2*q}, v{TC+2*q+1}\nv_cvt_pk_bf16_f32 v{o+4+q}, v{TC+8+2*q}, v{TC+8+2*q+1}")
        for q in range(8): A(f"v_xor_b32 v{o+8+q}, s67, v{o+q}")
    A(f"s_mul_i32 s46, s{sCB}, 80\ns_cmp_ge_u32 s{sCB}, 4\ns_cselect_b32 s51, 640, 0\ns_sub_i32 s46, s46, s51")
    A(f"v_add_u32 v{DF}, s46, v1\nv_cvt_f32_i32 v{DF}, v{DF}\nv_add_f32 v{DF}, 0.5, v{DF}\ns_mov_b32 s46, {fbits(-1/640)}")
    for nt in range(4, 0, -1): A(f"v_add_f32 v{DF+nt}, {fbits(16.0*nt)}, v{DF}\nv_mul_f32 v{DF+nt}, s46, v{DF+nt}")
    A(f"v_mul_f32 v{DF}, s46, v{DF}")
    A(f"s_cmp_ge_u32 s{sCB}, 5\ns_cselect_b32 s51, 5, 0\ns_sub_u32 s{sRot}, s{sCB}, s51")
    A(f"s_mov_b32 s66, 0\ns_cmp_eq_u32 s50, 0\ns_cbranch_scc1 K2_S1\ns_lshl_b32 s46, s{sKT}, 8\ns_mov_b32 s66, 1\ns_waitcnt vmcnt(0)")
    A.raw(f"s_atomic_add s66, s[{rF}:{rF+1}], s46 glc")
    A("K2_S1:")
    mk("early")
    G = FI + 20
    A(f"""
    s_add_u32 s62, s{sRot}, 2
    s_cmp_ge_u32 s62, 5
    s_cselect_b32 s51, 5, 0
    s_sub_u32 s62, s62, s51
    s_mul_i32 s51, s{sA}, 5
    s_add_u32 s46, s62, s51
    s_lshl_b32 s46, s46, 4
    s_add_u32 s46, s46, 1
    v_lshl_add_u32 v{KF}, v2, 2, s46
    v_cvt_f32_u32 v{KF}, v{KF}
    v_add_f32 v{KF+1}, 1.0, v{KF}
    v_add_f32 v{KF+2}, 2.0, v{KF}
    v_add_f32 v{KF+3}, 1.0, v{KF+2}
    v_add_u32 v8, s{sG}, v3
    s_mov_b32 s53, 0
    s_mov_b32 s63, {fbits(16.0)}
    """)
    A.raw(".p2align 6")
    A("K2_FG:")
    for nt in range(5):
        tb = TB + 8*(nt & 1)
        if nt == 0:
            for r in range(4): A(f"v_mul_f32 v{tb+r}, v{DF+nt}, v{KF+r}")
        for r in range(4):
            A(f"v_sin_f32 v{tb+4+r}, v{tb+r}\nv_cos_f32 v{tb+r}, v{tb+r}")
            if nt < 4: A(f"v_mul_f32 v{(tb^8 if False else TB+8*((nt+1)&1))+r}, v{DF+nt+1}, v{KF+r}")
            if r > 0: A(f"v_cvt_pk_bf16_f32 v{G+4*nt+r-1}, v{tb+r-1}, v{tb+4+r-1}")
        if nt == 4: A(f"s_add_u32 s62, s62, 1\ns_cmp_eq_u32 s62, 5\ns_cselect_b32 s46, {fbits(-64.0)}, s63")
        A(f"v_cvt_pk_bf16_f32 v{G+4*nt+3}, v{tb+3}, v{tb+7}")
        A(f"ds_write_b128 v8, {v(G+4*nt,4)} offset:{nt*1024}")
    for r in range(4): A(f"v_add_f32 v{KF+r}, s46, v{KF+r}")
    A(f"s_add_u32 s53, s53, 1\ns_cmp_eq_u32 s53, 3\ns_cselect_b32 s46, 0x40000, 0\ns_add_u32 s46, s46, 5120\nv_add_u32 v8, s46, v8")
    A("s_cmp_ge_u32 s53, 4\ns_cbranch_scc1 K2_FG2\ns_cmp_lg_u32 s53, 1\ns_cbranch_scc1 K2_FG")
    A(f"s_waitcnt lgkmcnt(0)\ns_cmp_lg_u32 s66, 31\ns_cbranch_scc1 K2_FG")
    A(f"s_setprio 3\ns_lshl_b32 s46, s{sKT}, 8\ns_add_u32 s46, s46, {20*256}\nv_mov_b32 v6, 0\nv_mov_b32 v7, 32\ns_mov_b64 exec, 1")
    A(f"buffer_store_dword v7, v6, s[{rF}:{rF+3}], s46 offen sc1\ns_mov_b64 exec, -1\ns_setprio {GP}\ns_branch K2_FG")
    A("K2_FG2:\ns_cmp_eq_u32 s53, 5\ns_cbranch_scc1 K2_FG3")
    for i in range(20): A(f"v_mov_b32 v{FI+i}, v{G+i}")
    A("s_branch K2_FG\nK2_FG3:")
    reset(A)
    rX, rB2 = rA, rC
    srd(A, rX, sX, 2048*1280); srd(A, rB2, sB2, 1280)
    A(f"""
    s_mov_b32 s52, {(1<<32)//10+1}
    s_mul_i32 s54, s{sCB}, 160
    s_lshr_b32 s46, s{sA}, 1
    s_lshl_b32 s55, s{sRB}, 1
    s_add_u32 s55, s55, s46
    s_and_b32 s46, s{sA}, 1
    s_lshl_b32 s46, s46, 10
    s_add_u32 s55, s55, s46
    s_mul_i32 s55, s55, 1280
    s_add_u32 s55, s55, s54
    """)
    for q in range(3):
        A(f"""
        v_add_u32 v6, {64*q}, v0
        v_mul_hi_u32 v7, v6, s52
        v_mul_u32_u24 v5, 10, v7
        v_sub_u32 v5, v6, v5
        v_mul_u32_u24 v7, 81920, v7
        v_lshl_add_u32 v{OF+q}, v5, 4, v7
        """)
    A(f"""
    v_lshrrev_b32 v5, 2, v1
    v_lshl_add_u32 v5, v2, 3, v5
    v_lshlrev_b32 v5, 7, v5
    v_and_b32 v6, 3, v1
    v_lshl_add_u32 v5, v6, 4, v5
    v_add_u32 v5, s{sL}, v5
    v_add_u32 v8, s{sG}, v3
    v_mul_u32_u24 v9, 160, v1
    v_lshl_add_u32 v9, v2, 3, v9
    s_mov_b32 s68, 0x80008000
    """)
    mk("std")
    A(f"s_cmp_lg_u32 s{sA}, 3\ns_cbranch_scc1 K2_GO\ns_setprio 3")
    A(f"""
    v_min_u32 v6, 19, v0
    v_lshlrev_b32 v6, 8, v6
    s_mov_b32 s61, 100000
    s_movk_i32 s46, {20*256}
    K2_POLL:
    buffer_load_dword v7, v6, s[{rF}:{rF+3}], s46 offen sc1
    s_waitcnt vmcnt(0)
    v_cmp_ne_u32 vcc, 32, v7
    s_cbranch_vccz K2_PD
    s_sub_u32 s61, s61, 1
    s_cmp_eq_u32 s61, 0
    s_cbranch_scc1 K2_PD
    s_sleep {optval('ps', 3)}
    s_branch K2_POLL
    K2_PD:
    s_mul_i32 s65, s{sRB}, 20
    s_mov_b32 s62, {ABASE}
    s_mov_b32 s53, 0
    v_and_b32 v6, 3, v0
    v_mul_u32_u24 v6, {REG}, v6
    v_mov_b32 v7, 1
    """)
    mk("late")
    A("K2_UL:")
    A(f"s_add_u32 s51, s65, s{sRot}\ns_lshl_b32 s51, s51, 12")
    for w in range(4):
        A(f"s_add_u32 m0, s62, {w*REG}")
        for q in range(4): A(f"buffer_load_dwordx4 v3, s[{rU}:{rU+3}], s51 offen offset:{1024*q} sc1 lds")
        if w < 3: A(f"s_add_u32 s51, s51, {5*4096}")
    A(f"s_add_u32 s{sRot}, s{sRot}, 1\ns_cmp_eq_u32 s{sRot}, 5\ns_cselect_b32 s{sRot}, 0, s{sRot}\ns_add_u32 s62, s62, 4096\ns_add_u32 s53, s53, 1")
    A("s_cmp_lg_u32 s53, 1\ns_cbranch_scc1 K2_UL1")
    for w in range(4):
        d = ((w >> 1) + 1024*(w & 1) - 1025) * 1280
        A(f"s_sub_u32 s51, s55, {-d}")
        for q in range(3):
            A(f"s_mov_b32 m0, {w*REG+XO+1024*q}" + ("\ns_mov_b32 exec_hi, 0" if q == 2 else "") + f"\nbuffer_load_dwordx4 v{OF+q}, s[{rX}:{rX+3}], s51 offen lds")
        A(f"s_mov_b32 m0, {w*REG+BO}\ns_mov_b32 exec_lo, 0x3ff\nbuffer_load_dwordx4 v3, s[{rB2}:{rB2+3}], s54 offen lds\ns_mov_b64 exec, -1")
    A(f"""
    K2_UL1:
    s_cmp_lg_u32 s53, 3
    s_cbranch_scc1 K2_UL2
    s_waitcnt vmcnt(16)
    ds_write_b32 v6, v7 offset:{FO}
    K2_UL2:
    s_cmp_lt_u32 s53, 5
    s_cbranch_scc1 K2_UL
    v_mov_b32 v7, 2
    s_waitcnt vmcnt(0)
    ds_write_b32 v6, v7 offset:{FO}
    K2_GO:
    s_setprio {optval('zprio', 3)}
    """)
    reset(A)
    if mode == "late": T.n = 1
    mk("late")
    spin(10, FO, 1)
    mk("std", "late")
    def trr(p, o): return [f"ds_read_b64_tr_b16 {v(UF+12*p+4*rho+2*jh,2)}, v5 offset:{o+512*jh+64*p+8*rho}" for rho in (1, 0) for jh in range(2)]
    def neg(p): return [f"v_xor_b32 v{UF+12*p+8+q}, s68, v{UF+12*p+4+q}" for q in range(4)]
    def sa(p):
        U0 = UF+12*p; m = []
        for st in range(2):
            C, S = FP+(p*2+st)*8, FP+(p*2+st)*8+4
            re, im = ZA+16*p+st*8, ZA+16*p+st*8+4
            m += [mfma(re, U0, C, 0), mfma(im, U0+4, C, 0), mfma(im, U0, S), mfma(re, U0+8, S)]
        return m
    def cv(p): return [f"v_cvt_pk_bf16_f32 v{ZF+4*st+r}, v{ZA+16*p+8*st+r}, v{ZA+16*p+8*st+4+r}" for st in range(2) for r in range(4)]
    def mn(p, fb, c=None): return [mfma(ACC+(nt*4+2*p+st)*4, FI+20*fb+4*nt, ZF+4*st, c) for st in range(2) for nt in range(5)]
    def fird(fb, o): return [f"ds_read_b128 {v(FI+20*fb+4*nt,4)}, v8 offset:{o+nt*1024}" for nt in range(5)]
    for x in trr(0, 0) + trr(1, 0): A(x)
    XT = ZA + 16; BT = ZA
    A(f"v_add_u32 v6, s{sG}, v9\nv_lshl_add_u32 v7, v2, 3, s{sG}")
    for nt in range(5): A(f"ds_read_b64 {v(XT+2*nt,2)}, v6 offset:{XO+32*nt}\nds_read_b64 {v(BT+2*nt,2)}, v7 offset:{BO+32*nt}")
    A("s_mov_b32 s69, 0xffff0000")
    for nt in range(5):
        for h in range(2):
            A(f"v_lshlrev_b32 v6, 16, v{XT+2*nt+h}\nv_lshlrev_b32 v7, 16, v{BT+2*nt+h}\nv_add_f32 v{XB+4*nt+2*h}, v6, v7")
            A(f"v_and_b32 v6, s69, v{XT+2*nt+h}\nv_and_b32 v7, s69, v{BT+2*nt+h}\nv_add_f32 v{XB+4*nt+2*h+1}, v6, v7")
    for x in neg(0): A(x)
    weave(A, sa(0), neg(1))
    def tile(fb, o, first=False):
        c = 0 if first else None
        weave(A, sa(1), cv(0), start=3)
        m = mn(0, fb, c); weave(A, m[:5], trr(0, o)); weave(A, m[5:], neg(0), start=1)
        weave(A, sa(0), cv(1), start=3)
        m = mn(1, fb, c); weave(A, m[:5], trr(1, o)); weave(A, m[5:], neg(1), start=1)
    tile(0, 4096, True)
    for x in fird(0, 0): A(x)
    A("s_mov_b32 s53, 1")
    spin(10, FO, 2)
    reset(A)
    A("K2_ZL:")
    tile(1, 8192)
    for x in fird(1, 5120): A(x)
    A(f"s_cmp_lg_u32 s53, 0\ns_cbranch_scc1 K2_Z1\ns_waitcnt lgkmcnt(0)\nv_mov_b32 v7, 1\nds_write_b32 v10, v7 offset:{FO+4}\nK2_Z1:\ns_waitcnt lgkmcnt(0)")
    tile(0, 12288)
    A("s_cmp_eq_u32 s53, 0\ns_cbranch_scc1 K2_ZE")
    for x in fird(0, 10240): A(x)
    A(f"v_add_u32 v5, 8192, v5\ns_mov_b32 s53, 0\ns_waitcnt lgkmcnt(0)\ns_branch K2_ZL\nK2_ZE:")
    reset(A)
    A("s_waitcnt lgkmcnt(0)")
    mk("std", "late", "tail")
    A(f"v_add_u32 v5, s{sL}, v3")
    for mt in range(4):
        L, L2 = A.label(), A.label()
        A(f"s_cmp_eq_u32 s{sA}, {mt}\ns_cbranch_scc1 {L}")
        A(f"s_xor_b32 s46, s{sA}, {mt}\ns_sub_u32 s46, s46, 1\ns_mul_i32 s46, s46, 5120\nv_add_u32 v6, s46, v5")
        for nt in range(5): A(f"ds_write_b128 v6, {v(ACC+(nt*4+mt)*4,4)} offset:{1024*nt}")
        A(f"s_branch {L2}\n{L}:")
        for nt in range(5):
            for h in range(2): A(f"v_pk_add_f32 {v(XB+4*nt+2*h,2)}, {v(XB+4*nt+2*h,2)}, {v(ACC+(nt*4+mt)*4+2*h,2)}")
        A(f"{L2}:")
    rO = rA
    srd(A, rO, sOUT, 2048*1280)
    for d in range(1, 4): A(f"s_xor_b32 s46, s{sA}, {d}\ns_mul_i32 s46, s46, {REG}\ns_add_u32 s46, s46, {ABASE + (d-1)*5120}\nv_add_u32 v{3+d}, s46, v3")
    A(f"s_mul_i32 s46, s{sA}, 5120\nv_add_u32 v7, s46, v3\nv_add_u32 v8, {2*REG}, v7\ns_add_u32 s46, s{sL}, 15360\nv_add_u32 v9, s46, v9\nv_add_u32 v10, s46, v3")
    A("s_waitcnt lgkmcnt(0)")
    mk("tail")
    A("s_barrier")
    mk("tail")
    P = 12
    srcs = [(4, 0), (5, 0), (6, 0), (7, 0), (7, REG), (8, 0), (8, REG)]
    PB = [12, 32, 52, 72, 92, 112, 176]
    for k, (ad, o) in enumerate(srcs):
        for nt in range(5): A(f"ds_read_b128 {v(PB[k]+4*nt,4)}, v{ad} offset:{o+1024*nt}")
    for k in range(7):
        for i in range(10): A(f"v_pk_add_f32 {v(XB+2*i,2)}, {v(XB+2*i,2)}, {v(PB[k]+2*i,2)}")
    for nt in range(5):
        A(f"v_cvt_pk_bf16_f32 v{P+2*nt}, v{XB+4*nt}, v{XB+4*nt+1}\nv_cvt_pk_bf16_f32 v{P+2*nt+1}, v{XB+4*nt+2}, v{XB+4*nt+3}")
        A(f"ds_write_b64 v9, {v(P+2*nt,2)} offset:{32*nt}")
    A("s_waitcnt lgkmcnt(0)")
    for q in range(3): A(f"ds_read_b128 {v(P+12+4*q,4)}, v10 offset:{1024*q}")
    for q in range(3):
        if q == 2: A("s_mov_b32 exec_hi, 0")
        A(f"buffer_store_dwordx4 {v(P+12+4*q,4)}, v{OF+q}, s[{rO}:{rO+3}], s55 offen {ST if 'osc1' in OPT else ''}")
    mk("tail")
    T.end(A, sW, sWS)
    A("s_endpgm")

    reset(A); T.n = 0
    A("K2_GEMM:")
    rH, rW = rA, rB
    A(f"""
    v_add_u32 v4, 4096, v3
    v_mov_b32 v6, 0
    v_mov_b32 v7, 0
    ds_write_b64 v10, v[6:7] offset:{FO}
    s_mul_i32 s43, s{sW}, 14
    s_cmp_eq_u32 s{sW}, 3
    s_cselect_b32 s43, 41, s43
    s_cmp_ge_u32 s{sW}, 2
    s_cselect_b32 s44, 13, 14
    s_mul_i32 s45, s{sCB}, 7
    s_lshr_b32 s45, s45, 2
    s_mul_i32 s46, s{sRB}, 54
    s_add_u32 s46, s46, s43
    s_lshl_b32 s46, s46, 12
    s_add_u32 s46, s46, {H_OFF}
    s_mul_i32 s47, s{sCB}, 54
    s_add_u32 s47, s47, s43
    s_mul_i32 s47, s47, 5120
    s_add_u32 s47, s47, {W2P_OFF}
    s_lshl_b32 s{rH+2}, s44, 12
    s_mov_b32 s{rH+3}, 0x20000
    s_mul_i32 s{rW+2}, s44, 5120
    s_mov_b32 s{rW+3}, 0x20000
    s_lshl_b32 s48, s45, 12
    s_mul_i32 s49, s45, 5120
    s_waitcnt lgkmcnt(0)
    s_add_u32 s{rH}, s{sWS}, s46
    s_addc_u32 s{rH+1}, s{sWS+1}, 0
    s_add_u32 s{rW}, s{sWS}, s47
    s_addc_u32 s{rW+1}, s{sWS+1}, 0
    s_barrier
    s_setprio {HP}
    """)
    DEPTH = 4; STG = 32
    sHo, sWo, sN = 48, 49, 50
    def issH(slot):
        b = STG + 36*slot
        return [f"buffer_load_dwordx4 {v(b+4*i,4)}, v3, s[{rH}:{rH+3}], s{sHo} offen offset:{1024*i}" for i in range(4)] + \
               [f"s_add_u32 s{sHo}, s{sHo}, 4096", f"s_cmp_eq_u32 s{sHo}, {14*4096}", f"s_cselect_b32 s{sHo}, 0, s{sHo}"]
    def issW(slot):
        b = STG + 36*slot
        return [f"buffer_load_dwordx4 {v(b+16+4*i,4)}, v3, s[{rW}:{rW+3}], s{sWo} offen offset:{1024*i}" for i in range(4)] + \
               [f"buffer_load_dwordx4 {v(b+32,4)}, v4, s[{rW}:{rW+3}], s{sWo} offen", f"s_add_u32 s{sWo}, s{sWo}, 5120", f"s_cmp_eq_u32 s{sWo}, {14*5120}", f"s_cselect_b32 s{sWo}, 0, s{sWo}"]
    T.mark(A)
    for x in issH(0) + issH(1): A(x)
    for i in range(80): A(f"v_mov_b32 v{ACC+i}, 0")
    for x in issW(0) + issW(1) + issH(2) + issW(2): A(x)
    T.mark(A)
    A(f"s_waitcnt vmcnt(9)\ns_mov_b32 s{sN}, 3\nv_add_u32 v5, s{sG}, v3")
    reset(A)
    A.auto = False
    A("K2_HL:")
    for st in range(4):
        b = STG + 36*st
        if st == 3: A(f"s_cmp_eq_u32 s{sN}, 1\ns_cselect_b32 s{rH+2}, 0, s{rH+2}\ns_cselect_b32 s{rW+2}, 0, s{rW+2}")
        for x in issH((st+3) % DEPTH) + issW((st+3) % DEPTH): A(x)
        A("s_waitcnt vmcnt(27)")
        for nt in range(5):
            for mt in range(4): A(mfma(ACC+(nt*4+mt)*4, b+16+4*nt, b+4*mt))
        if st == 1: A(f"s_cmp_eq_u32 s{sN}, 0\ns_cbranch_scc1 K2_HE")
    A(f"s_sub_u32 s{sN}, s{sN}, 1\ns_branch K2_HL\nK2_HE:")
    A.auto = True
    T.mark(A)
    spin(10, FO+4)
    for mt in range(4):
        for nt in range(5): A(f"ds_write_b128 v5, {v(ACC+(nt*4+mt)*4,4)} offset:{mt*5120+nt*1024}")
    A("s_waitcnt lgkmcnt(0)")
    T.mark(A)
    A("s_barrier")
    T.end(A, sW, sWS)
    A(f"{END}:\nCODE_END:")
    return dict(label="k2_kernel", body=A.text(), vgpr=256, grid=256, block=512, lds=160*1024)

def groups(i, shape):
    import numpy as np
    if i == 0:
        b = np.arange(256); i8 = (b >> 3) & 7; ch = b & 1
        mlp = i8 < 5 + ch
        w = np.arange(shape[1])
        return [("mlp", np.ix_(mlp, w < 4)), ("mlp-ld", np.ix_(mlp, w == 4)), ("dft", np.ix_(~mlp, w < 4)), ("dft-ld", np.ix_(~mlp, w == 4))]
    if shape[1] == 8:
        w = np.arange(8); al = np.ones(shape[0], bool)
        return [("gemm", np.ix_(al, w < 4)), ("aux01", np.ix_(al, (w == 4) | (w == 5))), ("aux3", np.ix_(al, w == 7))]
    return [("all", np.ones(shape[0], bool))]

if __name__ == "__main__":
    st = "stamps" in sys.argv
    OPT.update(sys.argv[2:])
    ks = [gen_k1(st), gen_k2(st)]
    if "k1only" in sys.argv: ks = ks[:1]
    open(sys.argv[1], "w").write(file_text(ks))
```

```python
import struct, math, sys
from asmlib import *

def fbits(x): return "0x%08x" % struct.unpack("<I", struct.pack("<f", x))[0]

H_OFF = 0;            H_SZ = 32*54*4096
W2P_OFF = 8 << 20;    W2P_SZ = 8*54*5120
V_OFF = 12 << 20;     V_SZ = 32*20*64*64
U_OFF = 16 << 20;     U_SZ = V_SZ
FLG_OFF = 20 << 20;   FLG_SZ = 48*256
STAMP_OFF = 64 << 20
ST = "sc1"
OPT = set()

K0 = -2.0*math.sqrt(2.0/math.pi)*math.log2(math.e)
K1c = K0*0.044715
MF = "v_mfma_f32_16x16x32_bf16"

def mfma(d, x, y, c=None):
    return f"{MF} {v(d,4)}, {v(x,4)}, {v(y,4)}, {v(d,4) if c is None else c}"

def srd(A, d, lo, nbytes, add=0):
    if add: A(f"s_add_u32 s{d}, s{lo}, {add}\ns_addc_u32 s{d+1}, s{lo+1}, 0")
    else: A(f"s_mov_b32 s{d}, s{lo}\ns_mov_b32 s{d+1}, s{lo+1}")
    A(f"s_mov_b32 s{d+2}, {nbytes}\ns_mov_b32 s{d+3}, 0x20000")

def bf16_round(A, dst, src):
    A(f"v_cvt_pk_bf16_f32 v{dst}, v{src}, v{src}\nv_lshlrev_b32 v{dst}, 16, v{dst}")

def weave(A, main, fill, per=None, start=0):
    fill = list(fill); n = len(main) - start; done = 0
    for i, m in enumerate(main):
        A(m)
        if i < start: continue
        want = min(len(fill), int(math.ceil((i - start + 1) * per))) if per else (len(fill) * (i - start + 1) + n - 1) // n
        while done < want: A(fill[done]); done += 1
    while done < len(fill): A(fill[done]); done += 1

def stats_from_mfma(A, SUM, GR, vN, vG, t0, t1):
    A(f"v_cndmask_b32 v{GR}, v{GR}, v{GR+1}, s[60:61]\nv_cndmask_b32 v{GR+2}, v{GR+2}, v{GR+3}, s[60:61]")
    A(f"v_cndmask_b32 v{GR}, v{GR}, v{GR+2}, s[62:63]")
    A(f"ds_bpermute_b32 v{GR}, v{vG}, v{GR}")
    A(f"v_mul_f32 v{SUM}, {fbits(1/640)}, v{SUM}")
    A(f"v_mul_f32 v{t0}, v{SUM}, v{SUM}")
    A(f"v_fma_f32 v{GR}, v{GR}, s66, -v{t0}")
    A(f"v_max_f32 v{GR}, 0, v{GR}")
    bf16_round(A, GR, GR)
    A(f"v_add_f32 v{GR}, {fbits(1e-5)}, v{GR}")
    bf16_round(A, GR, GR)
    A(f"v_sqrt_f32 v{GR}, v{GR}")
    bf16_round(A, GR, GR)
    bf16_round(A, SUM, SUM)

def stats_setup(A, vBP):
    A(f"""
    v_and_b32 v{vBP}, 1, v1
    v_cmp_eq_u32 s[60:61], 1, v{vBP}
    v_and_b32 v{vBP}, 2, v1
    v_cmp_eq_u32 s[62:63], 2, v{vBP}
    v_lshrrev_b32 v{vBP}, 2, v1
    v_lshl_add_u32 v{vBP}, v{vBP}, 4, v1
    v_lshlrev_b32 v{vBP}, 2, v{vBP}
    s_mov_b32 s66, {fbits(1/640)}
    """)

class Stamp:
    def __init__(self, on, slot): self.on = on; self.slot = slot; self.n = 0
    def start(self, A):
        if self.on: A("s_memtime s[90:91]\ns_memrealtime s[92:93]")
    def mark(self, A):
        if self.on:
            A(f"s_memtime s[{80+2*self.n}:{81+2*self.n}]"); A.lg.pop(); self.n += 1; assert self.n <= 5
    def end(self, A, wave_s, ws_lo):
        if not self.on: return
        A("s_waitcnt vmcnt(0)")
        A("s_memtime s[94:95]\ns_memrealtime s[96:97]\ns_waitcnt lgkmcnt(0)")
        A("s_sub_u32 s94, s94, s90")
        for i in range(5):
            if i < self.n: A(f"s_sub_u32 s{80+2*i}, s{80+2*i}, s90")
            else: A(f"s_mov_b32 s{80+2*i}, -1")
        A("s_mov_b64 exec, 1")
        A("v_mov_b32 v0, s94\nv_mov_b32 v1, s92\nv_mov_b32 v2, s96\nv_mov_b32 v3, s80")
        A("v_mov_b32 v4, s82\nv_mov_b32 v5, s84\nv_mov_b32 v6, s86\nv_mov_b32 v7, s88")
        srd(A, 76, ws_lo, 0x10000000)
        A(f"s_lshl_b32 s98, s2, 3\ns_add_u32 s98, s98, s{wave_s}\ns_lshl_b32 s98, s98, 5\ns_add_u32 s98, s98, {STAMP_OFF + self.slot*131072}")
        A("v_mov_b32 v8, 0")
        A("buffer_store_dwordx4 v[0:3], v8, s[76:79], s98 offen\nbuffer_store_dwordx4 v[4:7], v8, s[76:79], s98 offen offset:16")
        self.n = 0

def optval(name, default):
    for x in OPT:
        if x.startswith(name + "="): return int(x[len(name)+1:])
    return default

def reset(A): A.lg = []; A.vm = []

def gen_k1(stamps=False):
    A = Asm(); T = Stamp(stamps, 0)
    END = "K1_END"
    LDF = "nt" if "k1nt" in OPT else ""
    sX, sWR, sW1, sB1, sW2, sWS, sWI = 4, 6, 8, 10, 12, 14, 68
    rX, rA, rB, rC = 16, 20, 24, 28
    sW, sR, sJ, sC0, sS2, sCol = 32, 33, 34, 35, 36, 37
    SLOT = 36864; NS = 3; C1X = NS*SLOT
    PS = 32768; RPK = 3*PS; FX = RPK + 40960; RX = FX + 16384
    if "g1" in OPT: ROT = f"s_mov_b32 s{sC0}, 0"
    elif "g2" in OPT: ROT = f"s_add_u32 s46, s44, s45\ns_and_b32 s46, s46, 1\ns_mul_i32 s{sC0}, s46, 5"
    elif "g4" in OPT: ROT = f"s_add_u32 s46, s44, s45\ns_and_b32 s46, s46, 3\ns_mul_i32 s46, s46, 5\ns_add_u32 s46, s46, 1\ns_lshr_b32 s{sC0}, s46, 1"
    elif "g3" in OPT: ROT = f"s_add_u32 s46, s44, s45\ns_mul_i32 s{sC0}, s46, 43\ns_lshr_b32 s{sC0}, s{sC0}, 7\ns_mul_i32 s{sC0}, s{sC0}, 3\ns_sub_u32 s46, s46, s{sC0}\ns_mul_i32 s46, s46, 27\ns_lshr_b32 s{sC0}, s46, 3"
    else: ROT = f"""s_mul_i32 s46, s44, 5
    s_add_u32 s46, s46, 1
    s_lshr_b32 s46, s46, 1
    s_add_u32 s{sC0}, s46, s45
    s_cmp_ge_u32 s{sC0}, 10
    s_cselect_b32 s46, 10, 0
    s_sub_u32 s{sC0}, s{sC0}, s46"""
    A(f"s_cmp_ge_u32 s2, 256\ns_cbranch_scc1 {END}")
    T.start(A)
    A(f"""
    s_load_dwordx4 s[{sX}:{sX+3}], s[0:1], 0
    s_load_dwordx4 s[{sW1}:{sW1+3}], s[0:1], 32
    s_load_dwordx2 s[{sW2}:{sW2+1}], s[0:1], 48
    s_load_dwordx2 s[{sWS}:{sWS+1}], s[0:1], 80
    s_load_dwordx2 s[{sWI}:{sWI+1}], s[0:1], 16
    s_load_dwordx2 s[72:73], s[0:1], 72
    v_lshrrev_b32 v1, 6, v0
    v_and_b32 v0, 63, v0
    v_readfirstlane_b32 s{sW}, v1
    s_and_b32 s40, s2, 7
    s_lshr_b32 s41, s2, 3
    s_lshr_b32 s42, s40, 1
    s_and_b32 s43, s40, 1
    s_lshr_b32 s44, s41, 3
    s_and_b32 s45, s41, 7
    s_lshl_b32 s{sR}, s42, 2
    s_add_u32 s{sR}, s{sR}, s44
    {ROT}
    s_mul_i32 s{sJ}, s43, 5
    s_add_u32 s{sJ}, s{sJ}, s45
    s_mul_i32 s{sCol}, s{sJ}, 160
    s_min_u32 s{sCol}, s{sCol}, 1568
    s_add_u32 s47, s43, 5
    v_and_b32 v1, 15, v0
    v_lshrrev_b32 v2, 4, v0
    s_cmp_lt_u32 s{sW}, 4
    s_cbranch_scc1 K1_COMPUTE
    """)
    A(f"""
    v_lshrrev_b32 v3, 3, v0
    v_mul_u32_u24 v3, 81920, v3
    v_and_b32 v4, 7, v0
    v_xor_b32 v4, v4, v2
    v_lshl_add_u32 v4, v4, 4, v3
    v_xor_b32 v5, 64, v4
    v_add_u32 v5, {655360-1024}, v5
    v_add_u32 v6, {2*(655360-1024)}, v4
    v_add_u32 v7, {2*(655360-1024)}, v5
    s_mul_i32 s48, s{sR}, 5120
    s_cmp_ge_u32 s45, s47
    s_cbranch_scc1 K1_LD_DFT
    s_mov_b32 s52, {(1<<32)//20+1}
    """)
    for i in range(5):
        A(f"""
        v_add_u32 v14, {64*i}, v0
        v_mul_hi_u32 v15, v14, s52
        v_mul_u32_u24 v16, 20, v15
        v_sub_u32 v16, v14, v16
        v_lshrrev_b32 v17, 2, v15
        v_and_b32 v17, 2, v17
        v_xor_b32 v16, v16, v17
        v_mul_u32_u24 v15, 3456, v15
        v_lshl_add_u32 v{9+i}, v16, 4, v15
        """)
        if 0 < i < 4: A(f"v_subrev_u32 v{9+i}, {1024*i}, v{9+i}")
    sCh, sSl, sXo, sWo, sIt = 49, 50, 51, 53, 54
    A(f"s_mov_b32 s{sCh}, s{sC0}\ns_mov_b32 s{sSl}, 0\ns_lshl_b32 s55, s{sCol}, 1\ns_waitcnt lgkmcnt(0)")
    srd(A, rX, sX, 2048*1280); srd(A, rA, sW1, 640*3456)
    def xblock(base_m0_expr):
        for w in range(4):
            A(base_m0_expr(4096*w))
            for i in range(4): A(f"buffer_load_dwordx4 v{4+i}, s[{rX}:{rX+3}], s{sXo} offen offset:{1024*i} {LDF} lds")
            if w < 3: A(f"s_add_u32 s{sXo}, s{sXo}, 1280")
    def mlp_chunk():
        A(f"s_lshl_b32 s{sXo}, s{sCh}, 7\ns_add_u32 s{sXo}, s{sXo}, s48\ns_mul_i32 s{sWo}, s{sCh}, {64*3456}\ns_add_u32 s{sWo}, s{sWo}, s55")
        xblock(lambda o: f"s_add_u32 m0, s{sSl}, {o}")
        for q in range(4):
            A(f"s_add_u32 m0, s{sSl}, {16384+5120*q}")
            for i in range(4): A(f"buffer_load_dwordx4 v{9+i}, s[{rA}:{rA+3}], s{sWo} offen offset:{1024*i} {LDF} lds")
            A(f"s_add_u32 m0, s{sSl}, {16384+5120*q+4096}")
            A(f"buffer_load_dwordx4 v13, s[{rA}:{rA+3}], s{sWo} offen {LDF} lds")
            if q < 3: A(f"s_add_u32 s{sWo}, s{sWo}, {16*3456}")
        A(f"""
        s_add_u32 s{sCh}, s{sCh}, 1
        s_cmp_eq_u32 s{sCh}, 10
        s_cselect_b32 s{sCh}, 0, s{sCh}
        s_add_u32 s{sSl}, s{sSl}, {SLOT}
        s_cmp_eq_u32 s{sSl}, {NS*SLOT}
        s_cselect_b32 s{sSl}, 0, s{sSl}
        """)
    T.mark(A)
    PFM = int([x[4:] for x in OPT if x.startswith("pfm=")][0]) if any(x.startswith("pfm=") for x in OPT) else 4
    PFD = optval("pfd", 18)
    def pf_ticket(n):
        A(f"s_getreg_b32 s74, hwreg(HW_REG_XCC_ID)\ns_and_b32 s74, s74, 7\ns_lshl_b32 s74, s74, 5\ns_mov_b32 s75, {n}")
        A.raw("s_atomic_add s75, s[72:73], s74 glc")
    pf_ticket(PFM)
    def pf_setup():
        srd(A, rB, sWS, W2P_SZ, W2P_OFF)
        A("v_lshlrev_b32 v3, 7, v0")
    def pf_w():
        srd(A, rB, sWR, 2048*642); srd(A, rC, sWI, 2048*642)
        A(f"""
        v_lshrrev_b32 v14, 5, v0
        v_mul_u32_u24 v14, 20544, v14
        v_and_b32 v15, 31, v0
        v_min_u32 v15, 20, v15
        v_lshl_add_u32 v14, v15, 7, v14
        s_mul_i32 s46, s41, {2*20544}
        s_mul_i32 s52, s40, 2568
        s_add_u32 s46, s46, s52
        buffer_load_ubyte v30, v14, s[{rB}:{rB+3}], s46 offen
        buffer_load_ubyte v31, v14, s[{rC}:{rC+3}], s46 offen
        """)
    A(f"s_mov_b32 s{sIt}, 0\nK1_LDM:")
    mlp_chunk()
    A(f"s_add_u32 s{sIt}, s{sIt}, 1\ns_cmp_eq_u32 s{sIt}, 1\ns_cbranch_scc1 K1_LDM")
    A(f"s_waitcnt vmcnt(36)\ns_barrier\ns_cmp_lt_u32 s{sIt}, 10\ns_cbranch_scc1 K1_LDM")
    reset(A)
    npf = 0
    if "nopf" not in OPT:
        pf_setup()
        A(f"s_waitcnt lgkmcnt(0)\ns_lshl_b32 s46, s75, 13")
        for i in range(PFM): A(f"buffer_load_dword v{20+i}, v3, s[{rB}:{rB+3}], s46 offen\ns_add_u32 s46, s46, 8192")
        pf_w(); npf = PFM + 2
    A(f"s_waitcnt vmcnt({npf})\ns_barrier")
    T.mark(A)
    A("s_barrier\ns_barrier")
    A("s_branch K1_PF")
    A("K1_LD_DFT:")
    reset(A); T.n = 0
    sE = 56
    A(f"""
    s_cmp_ge_u32 s{sC0}, 5
    s_cselect_b32 s46, 5, 0
    s_sub_u32 s{sCh}, s{sC0}, s46
    s_mov_b32 s{sSl}, 0
    s_lshl_b32 s46, s43, 1
    s_add_u32 s46, s46, s45
    s_sub_u32 s46, s46, 5
    s_mul_i32 s{sE}, s{sR}, 5
    s_add_u32 s{sE}, s{sE}, s46
    s_mov_b32 s52, {(1<<32)//80+1}
    s_mul_i32 s55, s{sE}, 40960
    """)
    for i in range(10):
        A(f"""
        v_add_u32 v{20+i}, {64*i}, v0
        v_mul_hi_u32 v14, v{20+i}, s52
        v_lshlrev_b32 v14, 1, v14
        v_xor_b32 v{20+i}, v{20+i}, v14
        v_lshlrev_b32 v{20+i}, 4, v{20+i}
        """)
    A("s_waitcnt lgkmcnt(0)")
    srd(A, rX, sX, 2048*1280); srd(A, rA, sW2, 1728*1280); srd(A, rB, sWS, W2P_SZ, W2P_OFF)
    T.mark(A)
    pf_ticket(PFD)
    def pair():
        A(f"s_lshl_b32 s{sXo}, s{sCh}, 7\ns_add_u32 s{sXo}, s{sXo}, s48")
        xblock(lambda o: f"s_add_u32 m0, s{sSl}, {o}")
        A(f"s_sub_u32 s{sXo}, s{sXo}, {3*1280-640}")
        xblock(lambda o: f"s_add_u32 m0, s{sSl}, {16384+o}")
        A(f"""
        s_add_u32 s{sCh}, s{sCh}, 1
        s_cmp_eq_u32 s{sCh}, 5
        s_cselect_b32 s{sCh}, 0, s{sCh}
        s_add_u32 s{sSl}, s{sSl}, {PS}
        s_cmp_eq_u32 s{sSl}, {3*PS}
        s_cselect_b32 s{sSl}, 0, s{sSl}
        """)
    A(f"s_mov_b32 s{sIt}, 0\nK1_LDD:")
    pair()
    A(f"s_add_u32 s{sIt}, s{sIt}, 1\ns_cmp_eq_u32 s{sIt}, 1\ns_cbranch_scc1 K1_LDD")
    A(f"s_waitcnt vmcnt(32)\ns_barrier")
    A(f"s_cmp_ge_u32 s{sE}, 54\ns_cbranch_scc1 K1_LDD2")
    A(f"s_cmp_eq_u32 s{sIt}, 4\ns_cbranch_scc1 K1_RPK")
    A(f"s_cmp_lg_u32 s{sIt}, 2\ns_cbranch_scc1 K1_LDD2")
    A("s_waitcnt vmcnt(20)")
    for q in range(4):
        for i in range(10):
            A(f"s_mov_b32 m0, {RPK + 10240*q + 1024*i}")
            A(f"buffer_load_dwordx4 v{20+i}, s[{rA}:{rA+3}], s55 offen {LDF} lds")
        A("s_add_u32 s55, s55, 10240")
    A("s_waitcnt vmcnt(30)\ns_branch K1_LDD")
    A("K1_RPK:")
    reset(A)
    pair()
    reset(A)
    A(f"""
    v_lshrrev_b32 v14, 2, v1
    v_lshl_add_u32 v14, v2, 2, v14
    v_and_b32 v15, 7, v14
    v_lshlrev_b32 v15, 5, v15
    v_mul_u32_u24 v14, 1280, v14
    v_and_b32 v16, 3, v1
    v_lshl_add_u32 v14, v16, 3, v14
    v_add_u32 v14, {RPK}, v14
    v_lshlrev_b32 v17, 4, v0
    v_add_u32 v18, 4096, v17
    s_mul_i32 s55, s{sE}, 5120
    """)
    for q in range(8): A(f"v_xor_b32 v{20+q}, {32*q}, v15\nv_add_u32 v{20+q}, v{20+q}, v14")
    for nt in range(40):
        for jh in range(2): A(f"ds_read_b64_tr_b16 {v(32+4*nt+2*jh,2)}, v{20+nt%8} offset:{jh*16*1280 + (nt//8)*256}")
    A("s_waitcnt vmcnt(20)")
    for nt in range(40):
        q = nt % 5
        if q < 4: A(f"buffer_store_dwordx4 {v(32+4*nt,4)}, v17, s[{rB}:{rB+3}], s55 offen offset:{1024*q} {ST}")
        else: A(f"buffer_store_dwordx4 {v(32+4*nt,4)}, v18, s[{rB}:{rB+3}], s55 offen {ST}\ns_add_u32 s55, s55, {54*5120}")
    A("s_barrier\ns_branch K1_LDD3")
    A(f"K1_LDD2:\ns_cmp_lt_u32 s{sIt}, 5\ns_cbranch_scc1 K1_LDD")
    A("K1_LDD3:")
    reset(A)
    T.mark(A)
    A("s_waitcnt vmcnt(0)\ns_barrier")
    if "nopf" not in OPT:
        pf_setup()
        A(f"""
        s_mov_b32 s57, {PFD}
        s_waitcnt lgkmcnt(0)
        s_lshl_b32 s46, s75, 13
        K1_PFL:
        buffer_load_dword v20, v3, s[{rB}:{rB+3}], s46 offen
        s_add_u32 s46, s46, 8192
        s_sub_u32 s57, s57, 1
        s_cmp_lg_u32 s57, 0
        s_cbranch_scc1 K1_PFL
        """)
        reset(A)
        pf_w()
    A("s_barrier\ns_barrier")
    A("K1_PF:")
    T.mark(A)
    A(f"s_cmp_lg_u32 s2, 0\ns_cbranch_scc1 K1_LDE")
    srd(A, rX, sWS, FLG_SZ, FLG_OFF)
    A(f"v_lshlrev_b32 v3, 8, v0\nv_mov_b32 v4, 0\nbuffer_store_dword v4, v3, s[{rX}:{rX+3}], 0 offen {ST}")
    A("K1_LDE:")
    T.n = 3
    T.end(A, sW, sWS)
    A("s_endpgm")

    reset(A); T.n = 0
    A("K1_COMPUTE:")
    if "nocpf" not in OPT:
        A(f"""
        s_getpc_b64 s[70:71]
        K1_PC:
        s_lshl_b32 s46, s41, 2
        s_add_u32 s46, s46, s{sW}
        s_lshl_b32 s46, s46, 9
        s_sub_u32 s70, s70, K1_PC-k1_kernel
        s_subb_u32 s71, s71, 0
        v_lshl_add_u32 v10, v2, 7, s46
        v_min_u32 v10, CODE_END-k1_kernel-4, v10
        v_mov_b32 v11, s71
        v_add_co_u32 v10, vcc, s70, v10
        v_addc_co_u32 v11, vcc, 0, v11, vcc
        global_load_dword v252, v[10:11], off
        """)
        reset(A)
    A(f"""
    s_lshl_b32 s{sS2}, s{sR}, 2
    s_add_u32 s{sS2}, s{sS2}, s{sW}
    v_lshrrev_b32 v3, 1, v1
    v_xor_b32 v3, v3, v2
    v_lshlrev_b32 v3, 4, v3
    v_lshl_add_u32 v8, v1, 7, v3
    """)
    vBP = 9
    stats_setup(A, vBP)
    A(f"s_waitcnt lgkmcnt(0)\ns_cmp_ge_u32 s45, s47\ns_cbranch_scc1 K1_DFT")
    rH, rB1 = rA, rB
    srd(A, rH, sWS, H_SZ, H_OFF); srd(A, rB1, sB1, 1728*2)
    ONES = 20; B1R = 24; ACC = 36; AF = 116; XF = 196; C1A = 212; SUM = 232; GR = 240
    vXA0, vXA1, vWE, vWO, vXB, vWB, vG32 = 10, 11, 12, 13, 14, 15, 16
    A(f"""
    v_lshlrev_b32 v17, 1, v1
    v_lshl_add_u32 v17, v2, 28, v17
    s_lshl_b32 s46, s{sCol}, 1
    """)
    for ft in range(10): A(f"buffer_load_ushort v{B1R+ft}, v17, s[{rB1}:{rB1+3}], s46 offen offset:{32*ft}")
    A(f"""
    s_lshl_b32 s46, s{sW}, 12
    v_add_u32 v{vXB}, s46, v8
    v_lshrrev_b32 v18, 2, v1
    v_lshl_add_u32 v18, v2, 3, v18
    v_mul_u32_u24 v18, 320, v18
    v_and_b32 v19, 3, v1
    v_lshl_add_u32 v18, v19, 3, v18
    v_add_u32 v{vWB}, 16384, v18
    v_and_b32 v{vG32}, 1, v2
    v_lshlrev_b32 v{vG32}, 5, v{vG32}
    """)
    for i in range(4): A(f"v_mov_b32 v{ONES+i}, 0x3f803f80")
    for i in range(80): A(f"v_mov_b32 v{ACC+i}, 0")
    for i in range(36): A(f"v_mov_b32 v{C1A+i}, 0")
    sSl, sIt = 50, 54
    def addr_upd():
        return [f"v_add_u32 v{vXA0}, s{sSl}, v{vXB}", f"v_add_u32 v{vWO}, s{sSl}, v{vWB}", f"v_add_u32 v{vWE}, v{vWO}, v{vG32}",
                f"v_sub_u32 v{vWO}, v{vWO}, v{vG32}", f"v_xor_b32 v{vXA1}, 64, v{vXA0}"]
    def reads(t):
        r = [f"ds_read_b128 {v(XF+8*t+4*mt,4)}, v{vXA0+t} offset:{2048*mt}" for mt in range(2)]
        for ft in range(10):
            for jh in range(2):
                r.append(f"ds_read_b64_tr_b16 {v(AF+40*t+4*ft+2*jh,2)}, v{vWE if ft%2==0 else vWO} offset:{t*10240+jh*1280+ft*32}")
        return r
    def mains(t, w):
        m = []
        for ft in range(10):
            for mt in range(2): m.append(mfma(ACC+(ft*2+mt)*4, AF+40*t+4*ft, XF+8*t+4*mt))
        for mt in range(2):
            m.append(mfma(SUM+4*mt, ONES, XF+8*t+4*mt)); m.append(mfma(GR+4*mt, XF+8*t+4*mt, XF+8*t+4*mt))
        if t == (w & 1):
            for q in range(5): m.append(mfma(C1A+4*q, ONES, AF+40*t+4*(5*(w>>1)+q)))
        return m
    A(f"s_mov_b32 s{sSl}, 0\ns_mov_b32 s{sIt}, 10")
    for x in addr_upd(): A(x)
    A("s_waitcnt vmcnt(0)")
    T.mark(A)
    A("s_barrier")
    T.mark(A)
    for x in reads(0): A(x)
    st0 = A.state()
    for w in range(3): A(f"s_cmp_eq_u32 s{sW}, {w+1}\ns_cbranch_scc1 K1_ML{w+1}")
    for w in range(4):
        A.lg = [set(x) for x in st0[0]]
        if "align" in OPT: A.raw(".p2align 6")
        A(f"K1_ML{w}:")
        slotadv = [f"s_add_u32 s{sSl}, s{sSl}, {SLOT}", f"s_cmp_eq_u32 s{sSl}, {NS*SLOT}", f"s_cselect_b32 s{sSl}, 0, s{sSl}", f"s_sub_u32 s{sIt}, s{sIt}, 1"]
        if "sched1" not in OPT:
            m0, m1 = mains(0, w), mains(1, w)
            allm = m0 + m1
            r1, r0 = reads(1), reads(0)
            BAR = 27
            for i, m in enumerate(allm):
                A(m)
                if i < 22: A(r1[i])
                elif i < 26: A(slotadv[i-22])
                if i == BAR - 1:
                    A("s_waitcnt lgkmcnt(0)\ns_barrier")
                if i in (BAR, BAR+1):
                    for x in addr_upd()[(0 if i == BAR else 2):(2 if i == BAR else 5)]: A(x)
                if BAR + 2 <= i < BAR + 24: A(r0[i-BAR-2])
                if i == BAR + 24: A(f"s_cmp_lg_u32 s{sIt}, 0")
        else:
            weave(A, mains(0, w), reads(1) + slotadv, per=1.5)
            A("s_waitcnt lgkmcnt(0)\ns_barrier")
            m1 = mains(1, w)
            weave(A, m1, addr_upd() + reads(0) + [f"s_cmp_lg_u32 s{sIt}, 0"], per=1.5)
        assert A.state()[0] == st0[0], (A.state()[0], st0[0])
        A(f"s_cbranch_scc1 K1_ML{w}")
        if w < 3: A("s_branch K1_MLE")
    A("K1_MLE:")
    T.mark(A)
    A(f"""
    s_lshr_b32 s46, s{sW}, 1
    s_mul_i32 s46, s46, {5*128}
    s_and_b32 s52, s{sW}, 1
    s_lshl_b32 s52, s52, 2
    s_add_u32 s46, s46, s52
    s_add_u32 s46, s46, {C1X}
    v_lshlrev_b32 v18, 3, v1
    v_add_u32 v19, s46, v18
    v_add_u32 v18, {C1X}, v18
    s_waitcnt lgkmcnt(0)
    """)
    for q in range(5): A(f"ds_write_b32 v19, v{C1A+4*q} offset:{128*q}")
    A("s_waitcnt lgkmcnt(0)\ns_barrier")
    AUG = AF; CR = AF + 40
    for ft in range(10): A(f"ds_read_b64 {v(CR+2*ft,2)}, v18 offset:{128*ft}")
    stats_from_mfma(A, SUM, GR, 1, vBP, 10, 11); stats_from_mfma(A, SUM+4, GR+4, 1, vBP, 10, 11)
    A("v_cmp_eq_u32 vcc, 0, v2")
    for mt in range(2):
        b = XF+4*mt
        A(f"v_cvt_pk_bf16_f32 v{b}, -v{SUM+4*mt}, -v{SUM+4*mt}\nv_lshrrev_b32 v{b+1}, 16, v{GR+4*mt}\nv_cndmask_b32 v{b}, 0, v{b}, vcc\nv_mov_b32 v{b+2}, 0\nv_mov_b32 v{b+3}, 0")
    KA, KB, SD = C1A, C1A+4, C1A+8
    for mt in range(2):
        A(f"""
        v_rcp_f32 v10, v{GR+4*mt}
        v_mov_b32 v{SD+2*mt}, v{GR+4*mt}
        v_mul_f32 v{KB+2*mt}, {fbits(K0)}, v10
        v_mul_f32 v11, v10, v10
        v_mul_f32 v11, v11, v10
        v_mul_f32 v{KA+2*mt}, {fbits(K1c)}, v11
        """)
    A(f"""
    s_lshr_b32 s46, s{sS2}, 1
    s_mul_i32 s46, s46, 54
    s_lshr_b32 s52, s{sCol}, 5
    s_add_u32 s46, s46, s52
    s_lshl_b32 s46, s46, 2
    s_and_b32 s52, s{sS2}, 1
    s_lshl_b32 s52, s52, 1
    s_add_u32 s46, s46, s52
    s_lshl_b32 s46, s46, 10
    v_lshlrev_b32 v18, 4, v0
    """)
    for ft in range(10):
        g = AUG+4*ft
        A(f"v_add_f32 v10, v{CR+2*ft}, v{CR+2*ft+1}\nv_and_b32 v11, 0xffff0000, v10\nv_sub_f32 v11, v10, v11")
        A(f"v_cvt_pk_bf16_f32 v11, v11, v11\nv_alignbit_b32 v{g}, v11, v10, 16\nv_mov_b32 v{g+1}, v{B1R+ft}\nv_mov_b32 v{g+2}, 0\nv_mov_b32 v{g+3}, 0")
        for mt in range(2): A(mfma(ACC+(ft*2+mt)*4, g, XF+4*mt))
    T.mark(A)
    TMP = CR
    for q in range(5):
        for mt in range(2):
            o = TMP + 16 + 4*((q*2+mt) % 4)
            tm = TMP + 8*((q*2+mt) % 2)
            prs = [ACC + ((2*q+h)*2+mt)*4 + 2*p for h in range(2) for p in range(2)]
            for i, c in enumerate(prs): A(f"v_pk_mul_f32 {v(tm+2*i,2)}, {v(c,2)}, {v(c,2)}")
            for i, c in enumerate(prs): A(f"v_pk_fma_f32 {v(tm+2*i,2)}, {v(tm+2*i,2)}, {v(KA+2*mt,2)}, {v(KB+2*mt,2)} op_sel_hi:[1,0,0]")
            for i, c in enumerate(prs): A(f"v_pk_mul_f32 {v(tm+2*i,2)}, {v(tm+2*i,2)}, {v(c,2)}")
            for i in range(8): A(f"v_exp_f32 v{tm+i}, v{tm+i}")
            for i, c in enumerate(prs): A(f"v_pk_fma_f32 {v(tm+2*i,2)}, {v(tm+2*i,2)}, {v(SD+2*mt,2)}, {v(SD+2*mt,2)} op_sel_hi:[1,0,0]")
            for i in range(8): A(f"v_rcp_f32 v{tm+i}, v{tm+i}")
            for i, c in enumerate(prs): A(f"v_pk_mul_f32 {v(tm+2*i,2)}, {v(tm+2*i,2)}, {v(c,2)}")
            for i in range(4): A(f"v_cvt_pk_bf16_f32 v{o+i}, v{tm+2*i}, v{tm+2*i+1}")
            A(f"buffer_store_dwordx4 {v(o,4)}, v18, s[{rH}:{rH+3}], s46 offen offset:{1024*mt} {ST}")
        A("s_add_u32 s46, s46, 4096")
    T.mark(A)
    T.end(A, sW, sWS)
    A("s_endpgm")

    reset(A); T.n = 0
    A("K1_DFT:")
    rV = rA
    srd(A, rV, sWS, V_SZ, V_OFF)
    sKT, sG = 38, 39
    ONES = 24; ACC = 28; XF = 156; BF = 188; TA = 220; SUM = 236; GR = 244
    vKF, vG8, vSIG, vBase = 4, 5, 6, 7
    vXA = 10; vXB = 18
    A(f"""
    s_lshl_b32 s46, s43, 1
    s_add_u32 s46, s45, s46
    s_sub_u32 s46, s46, 5
    s_lshl_b32 s{sKT}, s46, 2
    s_add_u32 s{sKT}, s{sKT}, s{sW}
    s_cmp_ge_u32 s{sC0}, 5
    s_cselect_b32 s46, 5, 0
    s_sub_u32 s{sG}, s{sC0}, s46
    s_lshl_b32 s46, s{sKT}, 4
    s_add_u32 s46, s46, 1
    v_add_u32 v22, s46, v1
    v_cvt_f32_u32 v{vKF}, v22
    v_mul_f32 v{vKF}, {fbits(1/640)}, v{vKF}
    v_lshlrev_b32 v22, 31, v22
    v_or_b32 v{vSIG}, 1.0, v22
    v_lshlrev_b32 v22, 3, v2
    v_cvt_f32_u32 v{vG8}, v22
    v_add_f32 v{vG8}, 0.5, v{vG8}
    """)
    def bgen(buf):
        g = [f"s_lshl_b32 s46, s{sG}, 6", f"v_cvt_f32_u32 v{vBase}, s46", f"v_add_f32 v{vBase}, v{vBase}, v{vG8}", f"v_mul_f32 v{vBase}, v{vBase}, v{vKF}",
             f"s_add_u32 s{sG}, s{sG}, 1", f"s_cmp_eq_u32 s{sG}, 5", f"s_cselect_b32 s{sG}, 0, s{sG}"]
        for t in range(2):
            for p in range(4):
                a0, a1, s0, s1 = TA+4*(p%2), TA+4*(p%2)+1, TA+4*(p%2)+2, TA+4*(p%2)+3
                for (r, j) in ((a0, 2*p), (a1, 2*p+1)):
                    g.append(f"v_fmamk_f32 v{r}, v{vKF}, {fbits(32.0*t+j)}, v{vBase}")
                g += [f"v_sin_f32 v{s0}, -v{a0}", f"v_sin_f32 v{s1}, -v{a1}", f"v_cos_f32 v{a0}, v{a0}", f"v_cos_f32 v{a1}, v{a1}",
                      f"v_cvt_pk_bf16_f32 v{BF+16*buf+8*t+4+p}, v{s0}, v{s1}", f"v_cvt_pk_bf16_f32 v{BF+16*buf+8*t+p}, v{a0}, v{a1}"]
        return g
    for x in bgen(0): A(x)
    A(f"""
    v_lshlrev_b32 v22, 8, v2
    v_add_u32 v22, s{sS2}, v22
    v_cvt_f32_u32 v22, v22
    s_lshl_b32 s46, s{sW}, 12
    s_add_u32 s46, s46, {FX}
    v_lshl_add_u32 v3, v0, 4, s46
    """)
    for ut in range(2):
        A(f"v_add_u32 v23, {16*ut}, v1\nv_cvt_f32_u32 v23, v23\nv_mul_f32 v23, {fbits(1/2048)}, v23\nv_mul_f32 v{vBase}, v23, v22")
        for j in range(8): A(f"v_fmamk_f32 v{TA+j}, v23, {fbits(64.0*(16*(j>>2) + (j&3)))}, v{vBase}")
        for j in range(8): A(f"v_sin_f32 v{TA+8+j}, v{TA+j}\nv_cos_f32 v{TA+j}, v{TA+j}")
        o = XF + 8*ut
        for p in range(4): A(f"v_cvt_pk_bf16_f32 v{o+p}, v{TA+2*p}, v{TA+2*p+1}\nv_cvt_pk_bf16_f32 v{o+4+p}, v{TA+8+2*p}, v{TA+8+2*p+1}")
        A(f"ds_write_b128 v3, {v(o,4)} offset:{2048*ut}\nds_write_b128 v3, {v(o+4,4)} offset:{2048*ut+1024}")
    for gq in range(4):
        A(f"s_xor_b32 s46, s{sW}, {gq}\ns_lshl_b32 s46, s46, 12\nv_add_u32 v{vXB+gq}, s46, v8")
    for i in range(4): A(f"v_mov_b32 v{ONES+i}, 0x3f803f80")
    for i in range(128): A(f"v_mov_b32 v{ACC+i}, 0")
    for i in range(16): A(f"v_mov_b32 v{SUM+i}, 0")
    def dupd(): return sum([[f"v_add_u32 v{vXA+2*gq}, s{sSl}, v{vXB+gq}", f"v_xor_b32 v{vXA+2*gq+1}, 64, v{vXA+2*gq}"] for gq in range(4)], [])
    frs = [(h, t, m) for h in range(2) for t in range(2) for m in range(8)]
    def rd(i):
        h, t, m = frs[i % 32]
        return f"ds_read_b128 {v(XF+4*(i%8),4)}, v{vXA+2*(m//2)+t} offset:{h*16384+2048*(m%2)}"
    AH = 6
    A(f"s_mov_b32 s{sSl}, 0")
    for x in dupd(): A(x)
    A("s_waitcnt lgkmcnt(0)")
    T.mark(A)
    A("s_barrier")
    T.mark(A)
    for i in range(AH): A(rd(i))
    def body(buf, gen_next):
        g = bgen(buf ^ 1) if gen_next else []
        slotadv = [f"s_add_u32 s{sSl}, s{sSl}, {PS}", f"s_cmp_eq_u32 s{sSl}, {3*PS}", f"s_cselect_b32 s{sSl}, 0, s{sSl}"]
        g = slotadv + g
        gi = 0; nm = 0
        for i, (h, t, m) in enumerate(frs):
            x = XF + 4*(i % 8)
            ms = [mfma(ACC+((h*8+m)*2+rho)*4, x, BF+16*buf+8*t+4*rho) for rho in range(2)]
            if m < 2: ms += [mfma(SUM+4*m, ONES, x), mfma(GR+4*m, x, x)]
            for k, mm in enumerate(ms):
                A(mm); nm += 1
                if k == 0:
                    if i + AH == 32:
                        A("s_waitcnt lgkmcnt(0)\ns_barrier")
                        for z in dupd(): A(z)
                    A(rd(i + AH))
                want = min(len(g), (len(g) * nm + 63) // 64)
                while gi < want: A(g[gi]); gi += 1
        while gi < len(g): A(g[gi]); gi += 1
    st0 = A.state()
    A(f"s_mov_b32 s{sIt}, 2\nK1_DL:")
    body(0, True)
    A(f"s_cmp_eq_u32 s{sIt}, 0\ns_cbranch_scc1 K1_DLE")
    body(1, True)
    assert A.state()[0] == st0[0]
    A(f"s_sub_u32 s{sIt}, s{sIt}, 1\ns_branch K1_DL\nK1_DLE:")
    T.mark(A)
    A("s_waitcnt lgkmcnt(0)")
    stats_from_mfma(A, SUM, GR, 1, vBP, 22, 23); stats_from_mfma(A, SUM+4, GR+4, 1, vBP, 22, 23)
    A(f"v_rcp_f32 v{GR}, v{GR}\nv_rcp_f32 v{GR+4}, v{GR+4}")
    A(f"s_lshl_b32 s46, s{sW}, 7\ns_add_u32 s46, s46, {RX}\nv_lshl_add_u32 v22, v1, 2, s46")
    A(f"v_mul_f32 v{GR}, {fbits(2.0/(2048*640))}, v{GR}\nv_mul_f32 v{GR+4}, {fbits(2.0/(2048*640))}, v{GR+4}")
    A(f"ds_write_b32 v22, v{GR}\nds_write_b32 v22, v{GR+4} offset:64")
    for gq in range(4):
        A(f"s_xor_b32 s46, s{sW}, {gq}\ns_lshl_b32 s46, s46, 12\ns_add_u32 s46, s46, {FX}\nv_lshl_add_u32 v23, v0, 4, s46")
        for q in range(4): A(f"ds_read_b128 {v(XF+16*gq+4*q,4)}, v23 offset:{1024*q}")
    for i in range(32): A(f"v_pk_fma_f32 {v(ACC+2*i,2)}, {v(ACC+64+2*i,2)}, {v(vSIG,2)}, {v(ACC+2*i,2)} op_sel_hi:[1,0,1]")
    A("s_waitcnt lgkmcnt(0)\ns_barrier")
    RR = TA
    for gq in range(4):
        A(f"s_xor_b32 s46, s{sW}, {gq}\ns_lshl_b32 s46, s46, 7\ns_add_u32 s46, s46, {RX}\nv_lshl_add_u32 v23, v2, 4, s46")
        for jh in range(2): A(f"ds_read_b128 {v(RR+8*gq+4*jh,4)}, v23 offset:{64*jh}")
    TF = ACC + 64
    A(f"s_lshl_b32 s57, s{sW}, 13\nv_and_b32 v3, 7, v1")
    for gq in range(4):
        for jh in range(2):
            for rho in range(2):
                c = ACC + ((2*gq+jh)*2+rho)*4
                for p in range(2): A(f"v_pk_mul_f32 {v(c+2*p,2)}, {v(c+2*p,2)}, {v(RR+8*gq+4*jh+2*p,2)}")
        for rho in range(2):
            for jh in range(2):
                c = ACC + ((2*gq+jh)*2+rho)*4
                for p in range(2):
                    A(f"v_cvt_pk_bf16_f32 v{TF+12*gq+4*rho+2*jh+p}, v{c+2*p}, v{c+2*p+1}")
                    if rho == 0: A(f"v_cvt_pk_bf16_f32 v{TF+12*gq+8+2*jh+p}, -v{c+2*p}, -v{c+2*p+1}")
    for gq in range(4):
        for ut in range(2):
            Cf, Sf = XF+16*gq+8*ut, XF+16*gq+8*ut+4
            re, im, nre = TF+12*gq, TF+12*gq+4, TF+12*gq+8
            dre, dim = ACC+(gq*2+ut)*8, ACC+(gq*2+ut)*8+4
            A(mfma(dre, re, Cf, 0)); A(mfma(dim, im, Cf, 0)); A(mfma(dre, im, Sf)); A(mfma(dim, nre, Sf))
        A(f"""
        s_xor_b32 s46, s{sW}, {gq}
        s_lshl_b32 s46, s46, 2
        v_add_u32 v{10+gq}, s46, v2
        v_xor_b32 v{10+gq}, v{10+gq}, v3
        v_lshlrev_b32 v{10+gq}, 4, v{10+gq}
        v_lshl_add_u32 v{10+gq}, v1, 8, v{10+gq}
        v_add_u32 v{10+gq}, s57, v{10+gq}
        """)
    for gq in range(4):
        for ut in range(2):
            d = ACC+(gq*2+ut)*8; o = TA + 4*(gq*2+ut)
            for p in range(4): A(f"v_cvt_pk_bf16_f32 v{o+p}, v{d+2*p}, v{d+2*p+1}")
            A(f"ds_write_b128 v{10+gq}, {v(o,4)} offset:{4096*ut}")
    A(f"""
    v_xor_b32 v14, v1, v2
    v_lshlrev_b32 v14, 4, v14
    v_lshl_add_u32 v14, v2, 8, v14
    v_add_u32 v14, s57, v14
    v_xor_b32 v15, 64, v14
    v_mul_u32_u24 v16, {20*4096}, v2
    v_lshl_add_u32 v16, v1, 4, v16
    s_lshl_b32 s46, s{sKT}, 12
    s_lshl_b32 s52, s{sR}, 8
    s_add_u32 s46, s46, s52
    s_waitcnt lgkmcnt(0)
    """)
    for n in range(8): A(f"ds_read_b128 {v(XF+4*n,4)}, v{14 + (n&1)} offset:{1024*n}")
    for n in range(8):
        A(f"buffer_store_dwordx4 {v(XF+4*n,4)}, v16, s[{rV}:{rV+3}], s46 offen {ST}\ns_add_u32 s46, s46, {4*20*4096}")
    T.mark(A)
    T.end(A, sW, sWS)
    A(f"{END}:")
    return dict(label="k1_kernel", body=A.text(), vgpr=256, grid=256, block=320, lds=160*1024)


def gen_k2(stamps=False):
    A = Asm(); T = Stamp(stamps, 1)
    END = "K2_END"
    GP = optval("gp", 1); HP = optval("hp", 2)
    sX, sWR, sWI, sB2, sOUT, sWS = 4, 6, 8, 10, 12, 14
    rA, rB, rC, rD, rE = 16, 20, 24, 28, 56
    sW, sRB, sCB, sL, sA, sRot, sG = 32, 33, 34, 35, 36, 37, 38
    sJU, sJC = 39, 43
    REG = 20480; ABASE = 4*REG
    XO, BO, FO = 15360, 15360+2560, 15360+2560+256
    ACC = 176
    mode = "early" if "early" in OPT else "late" if "late" in OPT else "tail" if "tail" in OPT else "std"
    def mk(*modes):
        if mode in modes: T.mark(A)
    def spin(vaddr, off, thr=1):
        L, G = A.label("SP"), A.label("SG")
        A(f"s_mov_b32 s61, 4000000\n{L}:\nds_read_b32 v11, v{vaddr} offset:{off}\ns_waitcnt lgkmcnt(0)\nv_readfirstlane_b32 s60, v11\ns_cmp_ge_u32 s60, {thr}\ns_cbranch_scc1 {G}")
        A(f"s_sub_u32 s61, s61, 1\ns_cmp_eq_u32 s61, 0\ns_cbranch_scc1 {G}\ns_sleep 1\ns_branch {L}\n{G}:")

    A(f"s_cmp_ge_u32 s2, 256\ns_cbranch_scc1 {END}")
    T.start(A)
    A(f"""
    s_load_dwordx2 s[{sWS}:{sWS+1}], s[0:1], 80
    s_load_dwordx4 s[{sX}:{sX+3}], s[0:1], 0
    s_load_dwordx2 s[{sWI}:{sWI+1}], s[0:1], 16
    s_load_dwordx2 s[{sB2}:{sB2+1}], s[0:1], 56
    s_load_dwordx2 s[{sOUT}:{sOUT+1}], s[0:1], 64
    v_lshrrev_b32 v1, 6, v0
    v_and_b32 v0, 63, v0
    v_readfirstlane_b32 s{sW}, v1
    s_and_b32 s40, s2, 7
    s_lshr_b32 s41, s2, 3
    s_lshr_b32 s42, s41, 3
    s_lshl_b32 s{sJU}, s40, 2
    s_add_u32 s{sJU}, s{sJU}, s42
    s_and_b32 s{sJC}, s41, 7
    v_lshlrev_b32 v3, 4, v0
    s_and_b32 s{sA}, s{sW}, 3
    s_mul_i32 s{sG}, s{sA}, {REG}
    v_mov_b32 v10, s{sG}
    s_cmp_lt_u32 s{sW}, 4
    s_cbranch_scc1 K2_GEMM
    """)
    sKT, sU1 = 44, sJU
    rV, rU, rWR, rWI, rF = rA, rB, rC, rD, rE
    CF, SF = 16, 48; WR, WI = 80, 96; XA = 112; VF = 144; TA = 168; YF = 184; UA = 208
    A(f"""
    s_setprio 3
    s_add_u32 s{sL}, s{sG}, {ABASE}
    s_mul_i32 s{sKT}, s{sJC}, 5
    s_add_u32 s{sKT}, s{sKT}, 1
    s_lshr_b32 s{sKT}, s{sKT}, 1
    s_add_u32 s{sKT}, s{sKT}, s{sA}
    s_and_b32 s46, s{sJC}, 1
    s_sub_u32 s46, 3, s46
    s_cmp_lt_u32 s{sA}, s46
    s_cselect_b32 s50, 1, 0
    s_mul_i32 s47, s{sU1}, 20
    s_add_u32 s47, s47, s{sKT}
    s_lshl_b32 s47, s47, 12
    v_lshrrev_b32 v4, 2, v0
    v_mul_u32_u24 v4, 20544, v4
    v_and_b32 v5, 3, v0
    v_min_u32 v5, 2, v5
    v_lshl_add_u32 v4, v5, 4, v4
    s_mul_i32 s48, s{sU1}, 321
    s_lshl_b32 s49, s{sKT}, 4
    s_add_u32 s48, s48, s49
    s_add_u32 s48, s48, 1
    s_lshl_b32 s48, s48, 1
    s_and_b32 s49, s48, 2
    s_sub_u32 s48, s48, s49
    s_mov_b32 m0, s{sL}
    s_mov_b32 s{rV+2}, {V_SZ}
    s_mov_b32 s{rV+3}, 0x20000
    s_mov_b32 s{rWR+2}, {2048*642}
    s_mov_b32 s{rWR+3}, 0x20000
    s_mov_b32 s{rWI+2}, {2048*642}
    s_mov_b32 s{rWI+3}, 0x20000
    v_and_b32 v1, 15, v0
    v_lshrrev_b32 v2, 4, v0
    s_waitcnt lgkmcnt(0)
    s_add_u32 s{rV}, s{sWS}, {V_OFF}
    s_addc_u32 s{rV+1}, s{sWS+1}, 0
    s_mov_b64 s[{rWR}:{rWR+1}], s[{sWR}:{sWR+1}]
    s_mov_b64 s[{rWI}:{rWI+1}], s[{sWI}:{sWI+1}]
    s_cmp_eq_u32 s50, 0
    s_cbranch_scc1 K2_NOLD
    """)
    for i in range(4): A(f"buffer_load_dwordx4 v3, s[{rV}:{rV+3}], s47 offen offset:{1024*i} lds")
    for q in range(4):
        A(f"s_add_u32 m0, s{sL}, {4096+1024*q}\nbuffer_load_dwordx4 v4, s[{rWR}:{rWR+3}], s48 offen lds")
        A(f"s_add_u32 m0, s{sL}, {8192+1024*q}\nbuffer_load_dwordx4 v4, s[{rWI}:{rWI+3}], s48 offen lds")
        if q < 3: A(f"s_add_u32 s48, s48, {16*20544}")
    A("K2_NOLD:")
    mk("early")
    A(f"s_barrier\ns_setprio {GP}")
    srd(A, rU, sWS, U_SZ, U_OFF); srd(A, rF, sWS, FLG_SZ, FLG_OFF)
    if "nodry" in OPT: A("s_cmp_eq_u32 s50, 0\ns_cbranch_scc1 K2_GEN")
    else: A(f"s_cmp_eq_u32 s{sA}, 3\ns_cbranch_scc1 K2_JOB\ns_cmp_eq_u32 s50, 0\ns_cbranch_scc1 K2_GEN")
    A(f"v_lshlrev_b32 v5, 2, v2\nv_cvt_f32_u32 v5, v5\nv_cvt_f32_u32 v6, v1\nv_mul_f32 v6, {fbits(1/64)}, v6\nv_mul_f32 v7, v6, v5")
    for j in range(8): A(f"v_fmamk_f32 v{TA+j}, v6, {fbits(16.0*(j>>2) + (j&3))}, v7")
    for j in range(8): A(f"v_sin_f32 v{TA+8+j}, v{TA+j}\nv_cos_f32 v{TA+j}, v{TA+j}")
    cf = lambda mt, t, p: CF+(mt*2+t)*4+p
    sf = lambda mt, t, p: SF+(mt*2+t)*4+p
    A("s_brev_b32 s67, 1")
    for p in range(4):
        c0, c1, s0, s1 = TA+2*p, TA+2*p+1, TA+8+2*p, TA+8+2*p+1
        A(f"v_cvt_pk_bf16_f32 v{cf(0,0,p)}, v{c0}, v{c1}\nv_cvt_pk_bf16_f32 v{sf(0,0,p)}, v{s0}, v{s1}")
        if p % 2 == 0: A(f"v_cvt_pk_bf16_f32 v{cf(1,0,p)}, v{c0}, -v{s1}\nv_cvt_pk_bf16_f32 v{sf(1,0,p)}, v{s0}, v{c1}")
        else: A(f"v_cvt_pk_bf16_f32 v{cf(1,0,p)}, -v{c0}, v{s1}\nv_cvt_pk_bf16_f32 v{sf(1,0,p)}, -v{s0}, -v{c1}")
    A("v_and_b32 v5, 1, v1\nv_mul_u32_u24 v5, 0x8000, v5\nv_lshl_or_b32 v5, v5, 16, v5")
    for f in (cf, sf):
        for mt in (2, 3):
            for p in range(4): A(f"v_xor_b32 v{f(mt,0,p)}, s67, v{f(mt-2,0,p)}")
        for mt in range(4):
            for p in range(4): A(f"v_xor_b32 v{f(mt,1,p)}, v5, v{f(mt,0,p)}")
    for i in range(32): A(f"v_mov_b32 v{WR+i}, 0")
    A("K2_JOB:")
    A(f"""
    v_lshrrev_b32 v5, 2, v1
    v_lshl_add_u32 v5, v2, 2, v5
    v_lshlrev_b32 v5, 6, v5
    v_and_b32 v6, 3, v1
    v_lshl_add_u32 v5, v6, 4, v5
    v_add_u32 v5, s{sL}, v5
    s_add_u32 s49, s49, s{sL}
    v_lshlrev_b32 v6, 8, v2
    v_lshl_add_u32 v6, v1, 1, v6
    v_add_u32 v6, s49, v6
    s_mov_b32 s68, 0x80008000
    """)
    mk("std")
    A("s_waitcnt vmcnt(8)")
    mk("early")
    for t in range(2):
        for rho in range(2):
            for jh in range(2): A(f"ds_read_b64_tr_b16 {v(VF+12*t+4*rho+2*jh,2)}, v5 offset:{2048*t+1024*jh+8*rho}")
    wr = [f"ds_read_u16_d16_hi v{(WR,WI)[ar]+4*mt+r}, v6 offset:{4096+4096*ar+(16*mt+r)*64}" for mt in range(4) for r in range(4) for ar in range(2)]
    for t in range(2):
        for p in range(4): A(f"v_xor_b32 v{VF+12*t+8+p}, s68, v{VF+12*t+p}")
    def fwd(mt):
        m = []
        for t in range(2):
            re, im = XA+8*mt, XA+8*mt+4
            C, S = CF+(mt*2+t)*4, SF+(mt*2+t)*4
            m += [mfma(re, C, VF+12*t, None if t else 0), mfma(im, C, VF+12*t+4, None if t else 0), mfma(re, S, VF+12*t+4), mfma(im, S, VF+12*t+8)]
        return m
    def filt(mt):
        f = []
        tb = TA + 8*(mt & 1)
        for r in range(4):
            xr, xi, w_r, w_i = XA+8*mt+r, XA+8*mt+4+r, WR+4*mt+r, WI+4*mt+r
            f += [f"v_mul_f32 v{tb+r}, v{xi}, v{w_i}", f"v_mul_f32 v{tb+4+r}, v{xr}, v{w_i}", f"v_fma_f32 v{tb+r}, v{xr}, v{w_r}, -v{tb+r}", f"v_fmac_f32 v{tb+4+r}, v{xi}, v{w_r}"]
        t, jh = mt >> 1, mt & 1
        for p in range(2):
            f += [f"v_cvt_pk_bf16_f32 v{YF+12*t+2*jh+p}, v{tb+2*p}, v{tb+2*p+1}", f"v_cvt_pk_bf16_f32 v{YF+12*t+4+2*jh+p}, v{tb+4+2*p}, v{tb+4+2*p+1}",
                  f"v_xor_b32 v{YF+12*t+8+2*jh+p}, s68, v{YF+12*t+4+2*jh+p}"]
        return f
    def inv(t):
        m = []
        for nt in range(4):
            re, im = UA+8*nt, UA+8*nt+4
            C, S = CF+(nt*2+t)*4, SF+(nt*2+t)*4
            m += [mfma(re, YF+12*t, C, None if t else 0), mfma(im, YF+12*t+4, C, None if t else 0), mfma(re, YF+12*t+8, S), mfma(im, YF+12*t, S)]
        return m
    f01 = fwd(0) + fwd(1)
    for x in f01[:2]: A(x)
    A("s_waitcnt vmcnt(0)")
    mk("early")
    weave(A, f01[2:], wr)
    weave(A, fwd(2) + fwd(3), filt(0) + filt(1))
    addr = f"""v_lshrrev_b32 v5, 1, v1
    v_and_b32 v5, 3, v5
    v_xor_b32 v5, v5, v2
    v_lshlrev_b32 v5, 4, v5
    v_lshl_add_u32 v5, v1, 6, v5
    v_add_u32 v5, s{sL}, v5
    v_lshrrev_b32 v6, 3, v0
    v_and_b32 v7, 3, v6
    v_lshlrev_b32 v7, 4, v7
    v_xor_b32 v7, v7, v3
    v_add_u32 v7, s{sL}, v7
    v_mul_u32_u24 v6, 81920, v6
    v_and_b32 v8, 7, v0
    v_lshl_add_u32 v6, v8, 4, v6
    s_lshl_b32 s47, s{sKT}, 12
    s_lshl_b32 s48, s{sU1}, 7
    s_add_u32 s47, s47, s48
    s_cmp_eq_u32 s{sKT}, 19
    s_cselect_b32 s46, 0.5, 1.0
    v_cmp_eq_u32 vcc, 3, v2
    v_mov_b32 v8, s46
    v_cndmask_b32 v8, 1.0, v8, vcc""".split("\n")
    weave(A, inv(0), filt(2) + filt(3))
    i1 = inv(1)
    weave(A, i1[:8], addr)
    def outp(nt):
        d = UA+8*nt
        return [f"v_mul_f32 v{d+3}, v{d+3}, v8", f"v_mul_f32 v{d+7}, v{d+7}, v8"] + [f"v_cvt_pk_bf16_f32 v{TA+4*nt+p}, v{d+2*p}, v{d+2*p+1}" for p in range(4)] + [f"ds_write_b128 v5, {v(TA+4*nt,4)} offset:{1024*nt}"]
    weave(A, i1[8:], outp(0) + outp(1))
    for x in outp(2) + outp(3): A(x)
    A("s_waitcnt lgkmcnt(0)")
    for q in range(4): A(f"ds_read_b128 {v(VF+4*q,4)}, v7 offset:{1024*q}")
    A("s_cmp_eq_u32 s50, 0\ns_cbranch_scc1 K2_GEN\ns_setprio 3")
    for q in range(4):
        A(f"buffer_store_dwordx4 {v(VF+4*q,4)}, v6, s[{rU}:{rU+3}], s47 offen sc1\ns_add_u32 s47, s47, {8*81920}")
    A(f"K2_GEN:\ns_setprio {GP}\ns_waitcnt lgkmcnt(0)")
    mk("std", "early")
    reset(A)
    spin(10, FO+8)
    A(f"s_sub_u32 s60, s60, 1\ns_lshr_b32 s{sRB}, s60, 3\ns_and_b32 s{sRB}, s{sRB}, 31\ns_and_b32 s{sCB}, s60, 7")
    FP = 12; FI = 44; UF = 84; ZA = 108; ZF = 140; OF = 148; XB = 152
    TC = ACC; DF = ACC + 16; KF = ACC + 24; TB = ACC + 32
    A("v_lshlrev_b32 v5, 3, v2\nv_cvt_f32_u32 v5, v5\ns_brev_b32 s67, 1")
    for p in range(2):
        A(f"s_lshl_b32 s46, s{sRB}, 1\ns_add_u32 s46, s46, {p}")
        A(f"v_lshl_add_u32 v6, v1, 6, s46\nv_cvt_f32_u32 v6, v6\nv_mul_f32 v6, {fbits(1/2048)}, v6\nv_mul_f32 v{TC}, v6, v5")
        for j in range(1, 8): A(f"v_add_f32 v{TC+j}, v6, v{TC+j-1}")
        for j in range(8): A(f"v_sin_f32 v{TC+8+j}, v{TC+j}\nv_cos_f32 v{TC+j}, v{TC+j}")
        o = FP + p*16
        for q in range(4): A(f"v_cvt_pk_bf16_f32 v{o+q}, v{TC+2*q}, v{TC+2*q+1}\nv_cvt_pk_bf16_f32 v{o+4+q}, v{TC+8+2*q}, v{TC+8+2*q+1}")
        for q in range(8): A(f"v_xor_b32 v{o+8+q}, s67, v{o+q}")
    A(f"s_mul_i32 s46, s{sCB}, 80\ns_cmp_ge_u32 s{sCB}, 4\ns_cselect_b32 s51, 640, 0\ns_sub_i32 s46, s46, s51")
    A(f"v_add_u32 v{DF}, s46, v1\nv_cvt_f32_i32 v{DF}, v{DF}\nv_add_f32 v{DF}, 0.5, v{DF}\ns_mov_b32 s46, {fbits(-1/640)}")
    for nt in range(4, 0, -1): A(f"v_add_f32 v{DF+nt}, {fbits(16.0*nt)}, v{DF}\nv_mul_f32 v{DF+nt}, s46, v{DF+nt}")
    A(f"v_mul_f32 v{DF}, s46, v{DF}")
    A(f"s_cmp_ge_u32 s{sCB}, 5\ns_cselect_b32 s51, 5, 0\ns_sub_u32 s{sRot}, s{sCB}, s51")
    A(f"s_mov_b32 s66, 0\ns_cmp_eq_u32 s50, 0\ns_cbranch_scc1 K2_S1\ns_lshl_b32 s46, s{sKT}, 8\ns_mov_b32 s66, 1\ns_waitcnt vmcnt(0)")
    A.raw(f"s_atomic_add s66, s[{rF}:{rF+1}], s46 glc")
    A("K2_S1:")
    mk("early")
    G = FI + 20
    A(f"""
    s_add_u32 s62, s{sRot}, 2
    s_cmp_ge_u32 s62, 5
    s_cselect_b32 s51, 5, 0
    s_sub_u32 s62, s62, s51
    s_mul_i32 s51, s{sA}, 5
    s_add_u32 s46, s62, s51
    s_lshl_b32 s46, s46, 4
    s_add_u32 s46, s46, 1
    v_lshl_add_u32 v{KF}, v2, 2, s46
    v_cvt_f32_u32 v{KF}, v{KF}
    v_add_f32 v{KF+1}, 1.0, v{KF}
    v_add_f32 v{KF+2}, 2.0, v{KF}
    v_add_f32 v{KF+3}, 1.0, v{KF+2}
    v_add_u32 v8, s{sG}, v3
    s_mov_b32 s53, 0
    s_mov_b32 s63, {fbits(16.0)}
    """)
    A.raw(".p2align 6")
    A("K2_FG:")
    for nt in range(5):
        tb = TB + 8*(nt & 1)
        if nt == 0:
            for r in range(4): A(f"v_mul_f32 v{tb+r}, v{DF+nt}, v{KF+r}")
        for r in range(4):
            A(f"v_sin_f32 v{tb+4+r}, v{tb+r}\nv_cos_f32 v{tb+r}, v{tb+r}")
            if nt < 4: A(f"v_mul_f32 v{(tb^8 if False else TB+8*((nt+1)&1))+r}, v{DF+nt+1}, v{KF+r}")
            if r > 0: A(f"v_cvt_pk_bf16_f32 v{G+4*nt+r-1}, v{tb+r-1}, v{tb+4+r-1}")
        if nt == 4: A(f"s_add_u32 s62, s62, 1\ns_cmp_eq_u32 s62, 5\ns_cselect_b32 s46, {fbits(-64.0)}, s63")
        A(f"v_cvt_pk_bf16_f32 v{G+4*nt+3}, v{tb+3}, v{tb+7}")
        A(f"ds_write_b128 v8, {v(G+4*nt,4)} offset:{nt*1024}")
    for r in range(4): A(f"v_add_f32 v{KF+r}, s46, v{KF+r}")
    A(f"s_add_u32 s53, s53, 1\ns_cmp_eq_u32 s53, 3\ns_cselect_b32 s46, 0x40000, 0\ns_add_u32 s46, s46, 5120\nv_add_u32 v8, s46, v8")
    A("s_cmp_ge_u32 s53, 4\ns_cbranch_scc1 K2_FG2\ns_cmp_lg_u32 s53, 1\ns_cbranch_scc1 K2_FG")
    A(f"s_waitcnt lgkmcnt(0)\ns_cmp_lg_u32 s66, 31\ns_cbranch_scc1 K2_FG")
    A(f"s_setprio 3\ns_lshl_b32 s46, s{sKT}, 8\ns_add_u32 s46, s46, {20*256}\nv_mov_b32 v6, 0\nv_mov_b32 v7, 32\ns_mov_b64 exec, 1")
    A(f"buffer_store_dword v7, v6, s[{rF}:{rF+3}], s46 offen sc1\ns_mov_b64 exec, -1\ns_setprio {GP}\ns_branch K2_FG")
    A("K2_FG2:\ns_cmp_eq_u32 s53, 5\ns_cbranch_scc1 K2_FG3")
    for i in range(20): A(f"v_mov_b32 v{FI+i}, v{G+i}")
    A("s_branch K2_FG\nK2_FG3:")
    reset(A)
    rX, rB2 = rA, rC
    srd(A, rX, sX, 2048*1280); srd(A, rB2, sB2, 1280)
    A(f"""
    s_mov_b32 s52, {(1<<32)//10+1}
    s_mul_i32 s54, s{sCB}, 160
    s_lshr_b32 s46, s{sA}, 1
    s_lshl_b32 s55, s{sRB}, 1
    s_add_u32 s55, s55, s46
    s_and_b32 s46, s{sA}, 1
    s_lshl_b32 s46, s46, 10
    s_add_u32 s55, s55, s46
    s_mul_i32 s55, s55, 1280
    s_add_u32 s55, s55, s54
    """)
    for q in range(3):
        A(f"""
        v_add_u32 v6, {64*q}, v0
        v_mul_hi_u32 v7, v6, s52
        v_mul_u32_u24 v5, 10, v7
        v_sub_u32 v5, v6, v5
        v_mul_u32_u24 v7, 81920, v7
        v_lshl_add_u32 v{OF+q}, v5, 4, v7
        """)
    A(f"""
    v_lshrrev_b32 v5, 2, v1
    v_lshl_add_u32 v5, v2, 3, v5
    v_lshlrev_b32 v5, 7, v5
    v_and_b32 v6, 3, v1
    v_lshl_add_u32 v5, v6, 4, v5
    v_add_u32 v5, s{sL}, v5
    v_add_u32 v8, s{sG}, v3
    v_mul_u32_u24 v9, 160, v1
    v_lshl_add_u32 v9, v2, 3, v9
    s_mov_b32 s68, 0x80008000
    """)
    mk("std")
    A(f"s_setprio 3\ns_cmp_lg_u32 s{sA}, 3\ns_cbranch_scc1 K2_WGO")
    A(f"""
    v_min_u32 v6, 19, v0
    v_lshlrev_b32 v6, 8, v6
    s_mov_b32 s61, 100000
    s_movk_i32 s46, {20*256}
    K2_POLL:
    buffer_load_dword v7, v6, s[{rF}:{rF+3}], s46 offen sc1
    s_waitcnt vmcnt(0)
    v_cmp_ne_u32 vcc, 32, v7
    s_cbranch_vccz K2_PD
    s_sub_u32 s61, s61, 1
    s_cmp_eq_u32 s61, 0
    s_cbranch_scc1 K2_PD
    s_sleep {optval('ps', 3)}
    s_branch K2_POLL
    K2_PD:
    v_and_b32 v6, 3, v0
    v_mul_u32_u24 v6, {REG}, v6
    v_mov_b32 v7, 1
    ds_write_b32 v6, v7 offset:{FO}
    s_branch K2_GO
    K2_WGO:
    """)
    spin(10, FO)
    A("K2_GO:")
    reset(A)
    mk("std", "late")
    A(f"s_mul_i32 s65, s{sRB}, 20\ns_mul_i32 s51, s{sA}, 5\ns_add_u32 s65, s65, s51\ns_mov_b32 s62, s{sL}\ns_mov_b32 s53, 0\nK2_UL:")
    A(f"s_add_u32 s51, s65, s{sRot}\ns_lshl_b32 s51, s51, 12\ns_mov_b32 m0, s62")
    for q in range(4): A(f"buffer_load_dwordx4 v3, s[{rU}:{rU+3}], s51 offen offset:{1024*q} sc1 lds")
    A(f"s_add_u32 s{sRot}, s{sRot}, 1\ns_cmp_eq_u32 s{sRot}, 5\ns_cselect_b32 s{sRot}, 0, s{sRot}\ns_add_u32 s62, s62, 4096\ns_add_u32 s53, s53, 1")
    A("s_cmp_lg_u32 s53, 1\ns_cbranch_scc1 K2_UL1")
    for q in range(3):
        A(f"s_add_u32 m0, s{sG}, {XO+1024*q}" + ("\ns_mov_b32 exec_hi, 0" if q == 2 else "") + f"\nbuffer_load_dwordx4 v{OF+q}, s[{rX}:{rX+3}], s55 offen lds")
    A(f"s_add_u32 m0, s{sG}, {BO}\ns_mov_b32 exec_lo, 0x3ff\nbuffer_load_dwordx4 v3, s[{rB2}:{rB2+3}], s54 offen lds\ns_mov_b64 exec, -1")
    A(f"K2_UL1:\ns_cmp_lt_u32 s53, 5\ns_cbranch_scc1 K2_UL\ns_setprio {optval('zprio', 3)}")
    reset(A)
    mk("late")
    A("s_waitcnt vmcnt(12)")
    mk("late")
    def trr(p, o): return [f"ds_read_b64_tr_b16 {v(UF+12*p+4*rho+2*jh,2)}, v5 offset:{o+512*jh+64*p+8*rho}" for rho in (1, 0) for jh in range(2)]
    def neg(p): return [f"v_xor_b32 v{UF+12*p+8+q}, s68, v{UF+12*p+4+q}" for q in range(4)]
    def sa(p):
        U0 = UF+12*p; m = []
        for st in range(2):
            C, S = FP+(p*2+st)*8, FP+(p*2+st)*8+4
            re, im = ZA+16*p+st*8, ZA+16*p+st*8+4
            m += [mfma(re, U0, C, 0), mfma(im, U0+4, C, 0), mfma(im, U0, S), mfma(re, U0+8, S)]
        return m
    def cv(p): return [f"v_cvt_pk_bf16_f32 v{ZF+4*st+r}, v{ZA+16*p+8*st+r}, v{ZA+16*p+8*st+4+r}" for st in range(2) for r in range(4)]
    def mn(p, fb, c=None): return [mfma(ACC+(nt*4+2*p+st)*4, FI+20*fb+4*nt, ZF+4*st, c) for st in range(2) for nt in range(5)]
    def fird(fb, o): return [f"ds_read_b128 {v(FI+20*fb+4*nt,4)}, v8 offset:{o+nt*1024}" for nt in range(5)]
    for x in trr(0, 0) + trr(1, 0): A(x)
    XT = ZA + 16; BT = ZA
    A(f"v_add_u32 v6, s{sG}, v9\nv_lshl_add_u32 v7, v2, 3, s{sG}")
    for nt in range(5): A(f"ds_read_b64 {v(XT+2*nt,2)}, v6 offset:{XO+32*nt}\nds_read_b64 {v(BT+2*nt,2)}, v7 offset:{BO+32*nt}")
    A("s_mov_b32 s69, 0xffff0000")
    for nt in range(5):
        for h in range(2):
            A(f"v_lshlrev_b32 v6, 16, v{XT+2*nt+h}\nv_lshlrev_b32 v7, 16, v{BT+2*nt+h}\nv_add_f32 v{XB+4*nt+2*h}, v6, v7")
            A(f"v_and_b32 v6, s69, v{XT+2*nt+h}\nv_and_b32 v7, s69, v{BT+2*nt+h}\nv_add_f32 v{XB+4*nt+2*h+1}, v6, v7")
    for x in neg(0): A(x)
    weave(A, sa(0), neg(1))
    def tile(fb, o, first=False):
        c = 0 if first else None
        weave(A, sa(1), cv(0), start=3)
        m = mn(0, fb, c); weave(A, m[:5], trr(0, o)); weave(A, m[5:], neg(0), start=1)
        weave(A, sa(0), cv(1), start=3)
        m = mn(1, fb, c); weave(A, m[:5], trr(1, o)); weave(A, m[5:], neg(1), start=1)
    tile(0, 4096, True)
    for x in fird(0, 0): A(x)
    A("s_mov_b32 s53, 1")
    A("s_waitcnt vmcnt(0) lgkmcnt(0)")
    reset(A)
    A("K2_ZL:")
    tile(1, 8192)
    for x in fird(1, 5120): A(x)
    A(f"s_cmp_lg_u32 s53, 0\ns_cbranch_scc1 K2_Z1\ns_waitcnt lgkmcnt(0)\nv_mov_b32 v7, 1\nds_write_b32 v10, v7 offset:{FO+4}\nK2_Z1:\ns_waitcnt lgkmcnt(0)")
    tile(0, 12288)
    A("s_cmp_eq_u32 s53, 0\ns_cbranch_scc1 K2_ZE")
    for x in fird(0, 10240): A(x)
    A(f"v_add_u32 v5, 8192, v5\ns_mov_b32 s53, 0\ns_waitcnt lgkmcnt(0)\ns_branch K2_ZL\nK2_ZE:")
    reset(A)
    A("s_waitcnt lgkmcnt(0)")
    mk("std", "late", "tail")
    A(f"v_add_u32 v5, s{sL}, v3")
    for mt in range(4):
        L, L2 = A.label(), A.label()
        A(f"s_cmp_eq_u32 s{sA}, {mt}\ns_cbranch_scc1 {L}")
        A(f"s_xor_b32 s46, s{sA}, {mt}\ns_sub_u32 s46, s46, 1\ns_mul_i32 s46, s46, 5120\nv_add_u32 v6, s46, v5")
        for nt in range(5): A(f"ds_write_b128 v6, {v(ACC+(nt*4+mt)*4,4)} offset:{1024*nt}")
        A(f"s_branch {L2}\n{L}:")
        for nt in range(5):
            for h in range(2): A(f"v_pk_add_f32 {v(XB+4*nt+2*h,2)}, {v(XB+4*nt+2*h,2)}, {v(ACC+(nt*4+mt)*4+2*h,2)}")
        A(f"{L2}:")
    rO = rA
    srd(A, rO, sOUT, 2048*1280)
    for d in range(1, 4): A(f"s_xor_b32 s46, s{sA}, {d}\ns_mul_i32 s46, s46, {REG}\ns_add_u32 s46, s46, {ABASE + (d-1)*5120}\nv_add_u32 v{3+d}, s46, v3")
    A(f"s_mul_i32 s46, s{sA}, 5120\nv_add_u32 v7, s46, v3\nv_add_u32 v8, {2*REG}, v7\ns_add_u32 s46, s{sL}, 15360\nv_add_u32 v9, s46, v9\nv_add_u32 v10, s46, v3")
    A("s_waitcnt lgkmcnt(0)")
    mk("tail")
    A("s_barrier")
    mk("tail")
    P = 12
    srcs = [(4, 0), (5, 0), (6, 0), (7, 0), (7, REG), (8, 0), (8, REG)]
    PB = [12, 32, 52, 72, 92, 112, 176]
    for k, (ad, o) in enumerate(srcs):
        for nt in range(5): A(f"ds_read_b128 {v(PB[k]+4*nt,4)}, v{ad} offset:{o+1024*nt}")
    for k in range(7):
        for i in range(10): A(f"v_pk_add_f32 {v(XB+2*i,2)}, {v(XB+2*i,2)}, {v(PB[k]+2*i,2)}")
    for nt in range(5):
        A(f"v_cvt_pk_bf16_f32 v{P+2*nt}, v{XB+4*nt}, v{XB+4*nt+1}\nv_cvt_pk_bf16_f32 v{P+2*nt+1}, v{XB+4*nt+2}, v{XB+4*nt+3}")
        A(f"ds_write_b64 v9, {v(P+2*nt,2)} offset:{32*nt}")
    A("s_waitcnt lgkmcnt(0)")
    for q in range(3): A(f"ds_read_b128 {v(P+12+4*q,4)}, v10 offset:{1024*q}")
    for q in range(3):
        if q == 2: A("s_mov_b32 exec_hi, 0")
        A(f"buffer_store_dwordx4 {v(P+12+4*q,4)}, v{OF+q}, s[{rO}:{rO+3}], s55 offen {ST if 'osc1' in OPT else ''}")
    mk("tail")
    T.end(A, sW, sWS)
    A("s_endpgm")

    reset(A); T.n = 0
    A("K2_GEMM:")
    rH, rW = rA, rB
    A(f"""
    v_add_u32 v4, 4096, v3
    v_mov_b32 v6, 0
    v_mov_b32 v7, 0
    v_mov_b32 v8, 0
    v_mov_b32 v9, 0
    ds_write_b128 v10, v[6:9] offset:{FO}
    s_getreg_b32 s62, hwreg(HW_REG_XCC_ID)
    s_mov_b32 s63, 8
    s_waitcnt lgkmcnt(0)
    s_add_u32 s64, s{sWS}, {FLG_OFF + 40*256}
    s_addc_u32 s65, s{sWS+1}, 0
    s_cmp_lg_u32 s{sW}, 0
    s_cbranch_scc1 K2_NT
    s_and_b32 s62, s62, 7
    s_lshl_b32 s46, s62, 8
    s_mov_b32 s66, 1
    """)
    A.raw("s_atomic_add s66, s[64:65], s46 glc")
    A("K2_NT:")
    for i in range(80): A(f"v_mov_b32 v{ACC+i}, 0")
    A(f"""
    s_barrier
    s_cmp_lg_u32 s{sW}, 0
    s_cbranch_scc1 K2_RL
    K2_TK:
    s_waitcnt lgkmcnt(0)
    s_cmp_lt_u32 s66, 32
    s_cbranch_scc1 K2_TD
    s_sub_u32 s63, s63, 1
    s_cmp_eq_u32 s63, 0
    s_cbranch_scc1 K2_TD
    s_add_u32 s62, s62, 1
    s_and_b32 s62, s62, 7
    s_lshl_b32 s46, s62, 8
    s_mov_b32 s66, 1
    """)
    A.raw("s_atomic_add s66, s[64:65], s46 glc")
    A(f"""
    s_branch K2_TK
    K2_TD:
    s_lshl_b32 s62, s62, 5
    s_add_u32 s62, s62, s66
    {"s_and_b32 s40, s2, 7" if "static" in OPT else ""}
    {"s_lshl_b32 s62, s40, 5" if "static" in OPT else ""}
    {"s_add_u32 s62, s62, s41" if "static" in OPT else ""}
    s_add_u32 s62, s62, 1
    v_and_b32 v6, 3, v0
    v_mul_u32_u24 v6, {REG}, v6
    v_mov_b32 v7, s62
    ds_write_b32 v6, v7 offset:{FO+8}
    K2_RL:
    s_mul_i32 s43, s{sW}, 14
    s_cmp_eq_u32 s{sW}, 3
    s_cselect_b32 s43, 41, s43
    s_cmp_ge_u32 s{sW}, 2
    s_cselect_b32 s44, 13, 14
    s_lshl_b32 s{rH+2}, s44, 12
    s_mov_b32 s{rH+3}, 0x20000
    s_mul_i32 s{rW+2}, s44, 5120
    s_mov_b32 s{rW+3}, 0x20000
    """)
    spin(10, FO+8)
    A(f"s_sub_u32 s60, s60, 1\ns_lshr_b32 s{sRB}, s60, 3\ns_and_b32 s{sRB}, s{sRB}, 31\ns_and_b32 s{sCB}, s60, 7")
    A(f"""
    s_setprio {HP}
    s_mul_i32 s45, s{sCB}, 7
    s_lshr_b32 s45, s45, 2
    s_mul_i32 s46, s{sRB}, 54
    s_add_u32 s46, s46, s43
    s_lshl_b32 s46, s46, 12
    s_add_u32 s46, s46, {H_OFF}
    s_lshl_b32 s48, s45, 12
    s_add_u32 s{rH}, s{sWS}, s46
    s_addc_u32 s{rH+1}, s{sWS+1}, 0
    s_mul_i32 s47, s{sCB}, 54
    s_add_u32 s47, s47, s43
    s_mul_i32 s47, s47, 5120
    s_add_u32 s47, s47, {W2P_OFF}
    s_mul_i32 s49, s45, 5120
    s_add_u32 s{rW}, s{sWS}, s47
    s_addc_u32 s{rW+1}, s{sWS+1}, 0
    """)
    DEPTH = 4; STG = 32
    sHo, sWo, sN = 48, 49, 50
    def issH(slot):
        b = STG + 36*slot
        return [f"buffer_load_dwordx4 {v(b+4*i,4)}, v3, s[{rH}:{rH+3}], s{sHo} offen offset:{1024*i}" for i in range(4)] + \
               [f"s_add_u32 s{sHo}, s{sHo}, 4096", f"s_cmp_eq_u32 s{sHo}, {14*4096}", f"s_cselect_b32 s{sHo}, 0, s{sHo}"]
    def issW(slot):
        b = STG + 36*slot
        return [f"buffer_load_dwordx4 {v(b+16+4*i,4)}, v3, s[{rW}:{rW+3}], s{sWo} offen offset:{1024*i}" for i in range(4)] + \
               [f"buffer_load_dwordx4 {v(b+32,4)}, v4, s[{rW}:{rW+3}], s{sWo} offen", f"s_add_u32 s{sWo}, s{sWo}, 5120", f"s_cmp_eq_u32 s{sWo}, {14*5120}", f"s_cselect_b32 s{sWo}, 0, s{sWo}"]
    T.mark(A)
    for x in issH(0) + issH(1): A(x)
    for x in issW(0) + issW(1) + issH(2) + issW(2): A(x)
    T.mark(A)
    A(f"s_waitcnt vmcnt(9)\ns_mov_b32 s{sN}, 3\nv_add_u32 v5, s{sG}, v3")
    reset(A)
    A.auto = False
    A("K2_HL:")
    for st in range(4):
        b = STG + 36*st
        if st == 3: A(f"s_cmp_eq_u32 s{sN}, 1\ns_cselect_b32 s{rH+2}, 0, s{rH+2}\ns_cselect_b32 s{rW+2}, 0, s{rW+2}")
        for x in issH((st+3) % DEPTH) + issW((st+3) % DEPTH): A(x)
        A("s_waitcnt vmcnt(27)")
        for nt in range(5):
            for mt in range(4): A(mfma(ACC+(nt*4+mt)*4, b+16+4*nt, b+4*mt))
        if st == 1: A(f"s_cmp_eq_u32 s{sN}, 0\ns_cbranch_scc1 K2_HE")
    A(f"s_sub_u32 s{sN}, s{sN}, 1\ns_branch K2_HL\nK2_HE:")
    A.auto = True
    T.mark(A)
    spin(10, FO+4)
    for mt in range(4):
        for nt in range(5): A(f"ds_write_b128 v5, {v(ACC+(nt*4+mt)*4,4)} offset:{mt*5120+nt*1024}")
    A("s_waitcnt lgkmcnt(0)")
    T.mark(A)
    A("s_barrier")
    T.end(A, sW, sWS)
    A(f"{END}:\nCODE_END:")
    return dict(label="k2_kernel", body=A.text(), vgpr=256, grid=256, block=512, lds=160*1024)

def groups(i, shape):
    import numpy as np
    if i == 0:
        b = np.arange(256); i8 = (b >> 3) & 7; ch = b & 1
        mlp = i8 < 5 + ch
        w = np.arange(shape[1])
        return [("mlp", np.ix_(mlp, w < 4)), ("mlp-ld", np.ix_(mlp, w == 4)), ("dft", np.ix_(~mlp, w < 4)), ("dft-ld", np.ix_(~mlp, w == 4))]
    if shape[1] == 8:
        w = np.arange(8); al = np.ones(shape[0], bool)
        return [("gemm", np.ix_(al, w < 4)), ("aux01", np.ix_(al, (w == 4) | (w == 5))), ("aux3", np.ix_(al, w == 7))]
    return [("all", np.ones(shape[0], bool))]

if __name__ == "__main__":
    st = "stamps" in sys.argv
    OPT.update(sys.argv[2:])
    ks = [gen_k1(st), gen_k2(st)]
    if "k1only" in sys.argv: ks = ks[:1]
    open(sys.argv[1], "w").write(file_text(ks))
```

```python
from asmlib import *
def gen_diag(metric, STAMP_OFF, mult=10):
    A = Asm()
    A(f"""
    s_cmp_ge_u32 s2, 1
    s_cbranch_scc1 D_END
    s_load_dwordx2 s[14:15], s[0:1], 80
    v_lshlrev_b32 v1, 8, v0
    v_mov_b32 v2, 0
    v_mov_b32 v3, -1
    v_mov_b32 v4, 0
    ds_write_b32 v2, v3
    ds_write_b32 v2, v4 offset:4
    ds_write_b32 v2, v4 offset:8
    s_waitcnt lgkmcnt(0)
    s_mov_b32 s16, s14
    s_mov_b32 s17, s15
    s_mov_b32 s18, 0x10000000
    s_mov_b32 s19, 0x20000
    s_barrier
    """)
    def ld(dst, k, wave, field): A(f"s_mov_b32 s20, {STAMP_OFF + k*131072 + wave*32 + field*4}\nbuffer_load_dword v{dst}, v1, s[16:19], s20 offen")
    if metric[0] == "span":
        k, nw = metric[1], metric[2]
        for w in range(nw):
            ld(5, k, w, 1); ld(6, k, w, 2); A("ds_min_u32 v2, v5\nds_max_u32 v2, v6 offset:4")
    elif metric[0] == "gap":
        for w in range(metric[1]):
            ld(6, 0, w, 2); A("v_not_b32 v6, v6\nds_min_u32 v2, v6")
        ld(5, 1, 0, 1); A("v_not_b32 v5, v5\nds_max_u32 v2, v5 offset:4")
    elif metric[0] == "avg":
        k, w, f = metric[1:4]
        ld(5, k, w, f); A("ds_add_u32 v2, v5 offset:8")
    A("s_waitcnt vmcnt(0) lgkmcnt(0)\ns_barrier\nds_read_b96 v[8:10], v2\ns_waitcnt lgkmcnt(0)")
    A("v_readfirstlane_b32 s21, v8\nv_readfirstlane_b32 s22, v9\nv_readfirstlane_b32 s23, v10")
    if metric[0] == "span": A(f"s_sub_u32 s24, s22, s21\ns_mul_i32 s24, s24, {mult}")
    elif metric[0] == "gap": A(f"s_sub_u32 s24, s21, s22\ns_mul_i32 s24, s24, {mult}")
    elif metric[0] == "avg": A("s_lshr_b32 s24, s23, 9")
    else: A("s_mov_b32 s24, 0")
    A("""
    s_min_u32 s24, s24, 60000
    s_memrealtime s[26:27]
    s_waitcnt lgkmcnt(0)
    D_L:
    s_memrealtime s[28:29]
    s_waitcnt lgkmcnt(0)
    s_sub_u32 s30, s28, s26
    s_cmp_lt_u32 s30, s24
    s_cbranch_scc1 D_L
    D_END:
    """)
    return dict(label="diag_kernel", body=A.text(), vgpr=16, grid=1, block=256, lds=64)
```

```python
import struct, math, sys
from asmlib import *

def fbits(x): return "0x%08x" % struct.unpack("<I", struct.pack("<f", x))[0]

H_OFF = 0;            H_SZ = 32*54*4096
W2P_OFF = 8 << 20;    W2P_SZ = 8*54*5120
V_OFF = 12 << 20;     V_SZ = 32*20*64*64
U_OFF = 16 << 20;     U_SZ = V_SZ
FLG_OFF = 20 << 20;   FLG_SZ = 48*256
STAMP_OFF = 64 << 20
ST = "sc1"
OPT = set()

K0 = -2.0*math.sqrt(2.0/math.pi)*math.log2(math.e)
K1c = K0*0.044715
MF = "v_mfma_f32_16x16x32_bf16"

def mfma(d, x, y, c=None):
    return f"{MF} {v(d,4)}, {v(x,4)}, {v(y,4)}, {v(d,4) if c is None else c}"

def srd(A, d, lo, nbytes, add=0):
    if add: A(f"s_add_u32 s{d}, s{lo}, {add}\ns_addc_u32 s{d+1}, s{lo+1}, 0")
    else: A(f"s_mov_b32 s{d}, s{lo}\ns_mov_b32 s{d+1}, s{lo+1}")
    A(f"s_mov_b32 s{d+2}, {nbytes}\ns_mov_b32 s{d+3}, 0x20000")

def bf16_round(A, dst, src):
    A(f"v_cvt_pk_bf16_f32 v{dst}, v{src}, v{src}\nv_lshlrev_b32 v{dst}, 16, v{dst}")

def weave(A, main, fill, per=None, start=0):
    fill = list(fill); n = len(main) - start; done = 0
    for i, m in enumerate(main):
        A(m)
        if i < start: continue
        want = min(len(fill), int(math.ceil((i - start + 1) * per))) if per else (len(fill) * (i - start + 1) + n - 1) // n
        while done < want: A(fill[done]); done += 1
    while done < len(fill): A(fill[done]); done += 1

def stats_from_mfma(A, SUM, GR, vN, vG, t0, t1):
    A(f"v_cndmask_b32 v{GR}, v{GR}, v{GR+1}, s[60:61]\nv_cndmask_b32 v{GR+2}, v{GR+2}, v{GR+3}, s[60:61]")
    A(f"v_cndmask_b32 v{GR}, v{GR}, v{GR+2}, s[62:63]")
    A(f"ds_bpermute_b32 v{GR}, v{vG}, v{GR}")
    A(f"v_mul_f32 v{SUM}, {fbits(1/640)}, v{SUM}")
    A(f"v_mul_f32 v{t0}, v{SUM}, v{SUM}")
    A(f"v_fma_f32 v{GR}, v{GR}, s66, -v{t0}")
    A(f"v_max_f32 v{GR}, 0, v{GR}")
    bf16_round(A, GR, GR)
    A(f"v_add_f32 v{GR}, {fbits(1e-5)}, v{GR}")
    bf16_round(A, GR, GR)
    A(f"v_sqrt_f32 v{GR}, v{GR}")
    bf16_round(A, GR, GR)
    bf16_round(A, SUM, SUM)

def stats_setup(A, vBP):
    A(f"""
    v_and_b32 v{vBP}, 1, v1
    v_cmp_eq_u32 s[60:61], 1, v{vBP}
    v_and_b32 v{vBP}, 2, v1
    v_cmp_eq_u32 s[62:63], 2, v{vBP}
    v_lshrrev_b32 v{vBP}, 2, v1
    v_lshl_add_u32 v{vBP}, v{vBP}, 4, v1
    v_lshlrev_b32 v{vBP}, 2, v{vBP}
    s_mov_b32 s66, {fbits(1/640)}
    """)

class Stamp:
    def __init__(self, on, slot): self.on = on; self.slot = slot; self.n = 0
    def start(self, A):
        if self.on: A("s_memtime s[90:91]\ns_memrealtime s[92:93]")
    def mark(self, A):
        if self.on:
            A(f"s_memtime s[{80+2*self.n}:{81+2*self.n}]"); A.lg.pop(); self.n += 1; assert self.n <= 5
    def end(self, A, wave_s, ws_lo):
        if not self.on: return
        A("s_waitcnt vmcnt(0)")
        A("s_memtime s[94:95]\ns_memrealtime s[96:97]\ns_waitcnt lgkmcnt(0)")
        A("s_sub_u32 s94, s94, s90")
        for i in range(5):
            if i < self.n: A(f"s_sub_u32 s{80+2*i}, s{80+2*i}, s90")
            else: A(f"s_mov_b32 s{80+2*i}, -1")
        A("s_mov_b64 exec, 1")
        A("v_mov_b32 v0, s94\nv_mov_b32 v1, s92\nv_mov_b32 v2, s96\nv_mov_b32 v3, s80")
        A("v_mov_b32 v4, s82\nv_mov_b32 v5, s84\nv_mov_b32 v6, s86\nv_mov_b32 v7, s88")
        srd(A, 76, ws_lo, 0x10000000)
        A(f"s_lshl_b32 s98, s2, 3\ns_add_u32 s98, s98, s{wave_s}\ns_lshl_b32 s98, s98, 5\ns_add_u32 s98, s98, {STAMP_OFF + self.slot*131072}")
        A("v_mov_b32 v8, 0")
        A("buffer_store_dwordx4 v[0:3], v8, s[76:79], s98 offen\nbuffer_store_dwordx4 v[4:7], v8, s[76:79], s98 offen offset:16")
        self.n = 0

def optval(name, default):
    for x in OPT:
        if x.startswith(name + "="): return int(x[len(name)+1:])
    return default

def reset(A): A.lg = []; A.vm = []

def gen_k1(stamps=False):
    A = Asm(); T = Stamp(stamps, 0)
    END = "K1_END"
    LDF = "nt" if "k1nt" in OPT else ""
    sX, sWR, sW1, sB1, sW2, sWS, sWI = 4, 6, 8, 10, 12, 14, 68
    rX, rA, rB, rC = 16, 20, 24, 28
    sW, sR, sJ, sC0, sS2, sCol = 32, 33, 34, 35, 36, 37
    SLOT = 36864; NS = 3; C1X = NS*SLOT
    PS = 32768; RPK = 3*PS; FX = RPK + 40960; RX = FX + 16384
    if "g1" in OPT: ROT = f"s_mov_b32 s{sC0}, 0"
    elif "g2" in OPT: ROT = f"s_add_u32 s46, s44, s45\ns_and_b32 s46, s46, 1\ns_mul_i32 s{sC0}, s46, 5"
    elif "g4" in OPT: ROT = f"s_add_u32 s46, s44, s45\ns_and_b32 s46, s46, 3\ns_mul_i32 s46, s46, 5\ns_add_u32 s46, s46, 1\ns_lshr_b32 s{sC0}, s46, 1"
    elif "g3" in OPT: ROT = f"s_add_u32 s46, s44, s45\ns_mul_i32 s{sC0}, s46, 43\ns_lshr_b32 s{sC0}, s{sC0}, 7\ns_mul_i32 s{sC0}, s{sC0}, 3\ns_sub_u32 s46, s46, s{sC0}\ns_mul_i32 s46, s46, 27\ns_lshr_b32 s{sC0}, s46, 3"
    else: ROT = f"""s_mul_i32 s46, s44, 5
    s_add_u32 s46, s46, 1
    s_lshr_b32 s46, s46, 1
    s_add_u32 s{sC0}, s46, s45
    s_cmp_ge_u32 s{sC0}, 10
    s_cselect_b32 s46, 10, 0
    s_sub_u32 s{sC0}, s{sC0}, s46"""
    A(f"s_cmp_ge_u32 s2, 256\ns_cbranch_scc1 {END}")
    T.start(A)
    A(f"""
    s_load_dwordx4 s[{sX}:{sX+3}], s[0:1], 0
    s_load_dwordx4 s[{sW1}:{sW1+3}], s[0:1], 32
    s_load_dwordx2 s[{sW2}:{sW2+1}], s[0:1], 48
    s_load_dwordx2 s[{sWS}:{sWS+1}], s[0:1], 80
    s_load_dwordx2 s[{sWI}:{sWI+1}], s[0:1], 16
    s_load_dwordx2 s[72:73], s[0:1], 72
    v_lshrrev_b32 v1, 6, v0
    v_and_b32 v0, 63, v0
    v_readfirstlane_b32 s{sW}, v1
    s_and_b32 s40, s2, 7
    s_lshr_b32 s41, s2, 3
    s_lshr_b32 s42, s40, 1
    s_and_b32 s43, s40, 1
    s_lshr_b32 s44, s41, 3
    s_and_b32 s45, s41, 7
    s_lshl_b32 s{sR}, s42, 2
    s_add_u32 s{sR}, s{sR}, s44
    {ROT}
    s_mul_i32 s{sJ}, s43, 5
    s_add_u32 s{sJ}, s{sJ}, s45
    s_mul_i32 s{sCol}, s{sJ}, 160
    s_min_u32 s{sCol}, s{sCol}, 1568
    s_add_u32 s47, s43, 5
    v_and_b32 v1, 15, v0
    v_lshrrev_b32 v2, 4, v0
    s_cmp_lt_u32 s{sW}, 4
    s_cbranch_scc1 K1_COMPUTE
    """)
    A(f"""
    v_lshrrev_b32 v3, 3, v0
    v_mul_u32_u24 v3, 81920, v3
    v_and_b32 v4, 7, v0
    v_xor_b32 v4, v4, v2
    v_lshl_add_u32 v4, v4, 4, v3
    v_xor_b32 v5, 64, v4
    v_add_u32 v5, {655360-1024}, v5
    v_add_u32 v6, {2*(655360-1024)}, v4
    v_add_u32 v7, {2*(655360-1024)}, v5
    s_mul_i32 s48, s{sR}, 5120
    s_cmp_ge_u32 s45, s47
    s_cbranch_scc1 K1_LD_DFT
    s_mov_b32 s52, {(1<<32)//20+1}
    """)
    for i in range(5):
        A(f"""
        v_add_u32 v14, {64*i}, v0
        v_mul_hi_u32 v15, v14, s52
        v_mul_u32_u24 v16, 20, v15
        v_sub_u32 v16, v14, v16
        v_lshrrev_b32 v17, 2, v15
        v_and_b32 v17, 2, v17
        v_xor_b32 v16, v16, v17
        v_mul_u32_u24 v15, 3456, v15
        v_lshl_add_u32 v{9+i}, v16, 4, v15
        """)
        if 0 < i < 4: A(f"v_subrev_u32 v{9+i}, {1024*i}, v{9+i}")
    sCh, sSl, sXo, sWo, sIt = 49, 50, 51, 53, 54
    A(f"s_mov_b32 s{sCh}, s{sC0}\ns_mov_b32 s{sSl}, 0\ns_lshl_b32 s55, s{sCol}, 1\ns_waitcnt lgkmcnt(0)")
    srd(A, rX, sX, 2048*1280); srd(A, rA, sW1, 640*3456)
    def xblock(base_m0_expr):
        for w in range(4):
            A(base_m0_expr(4096*w))
            for i in range(4): A(f"buffer_load_dwordx4 v{4+i}, s[{rX}:{rX+3}], s{sXo} offen offset:{1024*i} {LDF} lds")
            if w < 3: A(f"s_add_u32 s{sXo}, s{sXo}, 1280")
    def mlp_chunk():
        A(f"s_lshl_b32 s{sXo}, s{sCh}, 7\ns_add_u32 s{sXo}, s{sXo}, s48\ns_mul_i32 s{sWo}, s{sCh}, {64*3456}\ns_add_u32 s{sWo}, s{sWo}, s55")
        xblock(lambda o: f"s_add_u32 m0, s{sSl}, {o}")
        for q in range(4):
            A(f"s_add_u32 m0, s{sSl}, {16384+5120*q}")
            for i in range(4): A(f"buffer_load_dwordx4 v{9+i}, s[{rA}:{rA+3}], s{sWo} offen offset:{1024*i} {LDF} lds")
            A(f"s_add_u32 m0, s{sSl}, {16384+5120*q+4096}")
            A(f"buffer_load_dwordx4 v13, s[{rA}:{rA+3}], s{sWo} offen {LDF} lds")
            if q < 3: A(f"s_add_u32 s{sWo}, s{sWo}, {16*3456}")
        A(f"""
        s_add_u32 s{sCh}, s{sCh}, 1
        s_cmp_eq_u32 s{sCh}, 10
        s_cselect_b32 s{sCh}, 0, s{sCh}
        s_add_u32 s{sSl}, s{sSl}, {SLOT}
        s_cmp_eq_u32 s{sSl}, {NS*SLOT}
        s_cselect_b32 s{sSl}, 0, s{sSl}
        """)
    T.mark(A)
    PFM = int([x[4:] for x in OPT if x.startswith("pfm=")][0]) if any(x.startswith("pfm=") for x in OPT) else 4
    PFD = optval("pfd", 18)
    def pf_ticket(n):
        A(f"s_getreg_b32 s74, hwreg(HW_REG_XCC_ID)\ns_and_b32 s74, s74, 7\ns_lshl_b32 s74, s74, 5\ns_mov_b32 s75, {n}")
        A.raw("s_atomic_add s75, s[72:73], s74 glc")
    pf_ticket(PFM)
    def pf_setup():
        srd(A, rB, sWS, W2P_SZ, W2P_OFF)
        A("v_lshlrev_b32 v3, 7, v0")
    def pf_w():
        srd(A, rB, sWR, 2048*642); srd(A, rC, sWI, 2048*642)
        A(f"""
        v_lshrrev_b32 v14, 5, v0
        v_mul_u32_u24 v14, 20544, v14
        v_and_b32 v15, 31, v0
        v_min_u32 v15, 20, v15
        v_lshl_add_u32 v14, v15, 7, v14
        s_mul_i32 s46, s41, {2*20544}
        s_mul_i32 s52, s40, 2568
        s_add_u32 s46, s46, s52
        buffer_load_ubyte v30, v14, s[{rB}:{rB+3}], s46 offen
        buffer_load_ubyte v31, v14, s[{rC}:{rC+3}], s46 offen
        """)
    A(f"s_mov_b32 s{sIt}, 0\nK1_LDM:")
    mlp_chunk()
    A(f"s_add_u32 s{sIt}, s{sIt}, 1\ns_cmp_eq_u32 s{sIt}, 1\ns_cbranch_scc1 K1_LDM")
    A(f"s_waitcnt vmcnt(36)\ns_barrier\ns_cmp_lt_u32 s{sIt}, 10\ns_cbranch_scc1 K1_LDM")
    reset(A)
    npf = 0
    if "nopf" not in OPT:
        pf_setup()
        A(f"s_waitcnt lgkmcnt(0)\ns_lshl_b32 s46, s75, 13")
        for i in range(PFM): A(f"buffer_load_dword v{20+i}, v3, s[{rB}:{rB+3}], s46 offen\ns_add_u32 s46, s46, 8192")
        pf_w(); npf = PFM + 2
    A(f"s_waitcnt vmcnt({npf})\ns_barrier")
    T.mark(A)
    A("s_barrier\ns_barrier")
    A("s_branch K1_PF")
    A("K1_LD_DFT:")
    reset(A); T.n = 0
    sE = 56
    A(f"""
    s_cmp_ge_u32 s{sC0}, 5
    s_cselect_b32 s46, 5, 0
    s_sub_u32 s{sCh}, s{sC0}, s46
    s_mov_b32 s{sSl}, 0
    s_lshl_b32 s46, s43, 1
    s_add_u32 s46, s46, s45
    s_sub_u32 s46, s46, 5
    s_mul_i32 s{sE}, s{sR}, 5
    s_add_u32 s{sE}, s{sE}, s46
    s_mov_b32 s52, {(1<<32)//80+1}
    s_mul_i32 s55, s{sE}, 40960
    """)
    for i in range(10):
        A(f"""
        v_add_u32 v{20+i}, {64*i}, v0
        v_mul_hi_u32 v14, v{20+i}, s52
        v_lshlrev_b32 v14, 1, v14
        v_xor_b32 v{20+i}, v{20+i}, v14
        v_lshlrev_b32 v{20+i}, 4, v{20+i}
        """)
    A("s_waitcnt lgkmcnt(0)")
    srd(A, rX, sX, 2048*1280); srd(A, rA, sW2, 1728*1280); srd(A, rB, sWS, W2P_SZ, W2P_OFF)
    T.mark(A)
    pf_ticket(PFD)
    def pair():
        A(f"s_lshl_b32 s{sXo}, s{sCh}, 7\ns_add_u32 s{sXo}, s{sXo}, s48")
        xblock(lambda o: f"s_add_u32 m0, s{sSl}, {o}")
        A(f"s_sub_u32 s{sXo}, s{sXo}, {3*1280-640}")
        xblock(lambda o: f"s_add_u32 m0, s{sSl}, {16384+o}")
        A(f"""
        s_add_u32 s{sCh}, s{sCh}, 1
        s_cmp_eq_u32 s{sCh}, 5
        s_cselect_b32 s{sCh}, 0, s{sCh}
        s_add_u32 s{sSl}, s{sSl}, {PS}
        s_cmp_eq_u32 s{sSl}, {3*PS}
        s_cselect_b32 s{sSl}, 0, s{sSl}
        """)
    A(f"s_mov_b32 s{sIt}, 0\nK1_LDD:")
    pair()
    A(f"s_add_u32 s{sIt}, s{sIt}, 1\ns_cmp_eq_u32 s{sIt}, 1\ns_cbranch_scc1 K1_LDD")
    A(f"s_waitcnt vmcnt(32)\ns_barrier")
    A(f"s_cmp_ge_u32 s{sE}, 54\ns_cbranch_scc1 K1_LDD2")
    A(f"s_cmp_eq_u32 s{sIt}, 4\ns_cbranch_scc1 K1_RPK")
    A(f"s_cmp_lg_u32 s{sIt}, 2\ns_cbranch_scc1 K1_LDD2")
    A("s_waitcnt vmcnt(20)")
    for q in range(4):
        for i in range(10):
            A(f"s_mov_b32 m0, {RPK + 10240*q + 1024*i}")
            A(f"buffer_load_dwordx4 v{20+i}, s[{rA}:{rA+3}], s55 offen {LDF} lds")
        A("s_add_u32 s55, s55, 10240")
    A("s_waitcnt vmcnt(30)\ns_branch K1_LDD")
    A("K1_RPK:")
    reset(A)
    pair()
    reset(A)
    A(f"""
    v_lshrrev_b32 v14, 2, v1
    v_lshl_add_u32 v14, v2, 2, v14
    v_and_b32 v15, 7, v14
    v_lshlrev_b32 v15, 5, v15
    v_mul_u32_u24 v14, 1280, v14
    v_and_b32 v16, 3, v1
    v_lshl_add_u32 v14, v16, 3, v14
    v_add_u32 v14, {RPK}, v14
    v_lshlrev_b32 v17, 4, v0
    v_add_u32 v18, 4096, v17
    s_mul_i32 s55, s{sE}, 5120
    """)
    for q in range(8): A(f"v_xor_b32 v{20+q}, {32*q}, v15\nv_add_u32 v{20+q}, v{20+q}, v14")
    for nt in range(40):
        for jh in range(2): A(f"ds_read_b64_tr_b16 {v(32+4*nt+2*jh,2)}, v{20+nt%8} offset:{jh*16*1280 + (nt//8)*256}")
    A("s_waitcnt vmcnt(20)")
    for nt in range(40):
        q = nt % 5
        if q < 4: A(f"buffer_store_dwordx4 {v(32+4*nt,4)}, v17, s[{rB}:{rB+3}], s55 offen offset:{1024*q} {ST}")
        else: A(f"buffer_store_dwordx4 {v(32+4*nt,4)}, v18, s[{rB}:{rB+3}], s55 offen {ST}\ns_add_u32 s55, s55, {54*5120}")
    A("s_barrier\ns_branch K1_LDD3")
    A(f"K1_LDD2:\ns_cmp_lt_u32 s{sIt}, 5\ns_cbranch_scc1 K1_LDD")
    A("K1_LDD3:")
    reset(A)
    T.mark(A)
    A("s_waitcnt vmcnt(0)\ns_barrier")
    if "nopf" not in OPT:
        pf_setup()
        A(f"""
        s_mov_b32 s57, {PFD}
        s_waitcnt lgkmcnt(0)
        s_lshl_b32 s46, s75, 13
        K1_PFL:
        buffer_load_dword v20, v3, s[{rB}:{rB+3}], s46 offen
        s_add_u32 s46, s46, 8192
        s_sub_u32 s57, s57, 1
        s_cmp_lg_u32 s57, 0
        s_cbranch_scc1 K1_PFL
        """)
        reset(A)
        pf_w()
    A("s_barrier\ns_barrier")
    A("K1_PF:")
    T.mark(A)
    A(f"s_cmp_lg_u32 s2, 0\ns_cbranch_scc1 K1_LDE")
    srd(A, rX, sWS, FLG_SZ, FLG_OFF)
    A(f"v_lshlrev_b32 v3, 8, v0\nv_mov_b32 v4, 0\nbuffer_store_dword v4, v3, s[{rX}:{rX+3}], 0 offen {ST}")
    A("K1_LDE:")
    T.n = 3
    if "xccmark" in OPT:
        A("s_getreg_b32 s86, hwreg(HW_REG_XCC_ID)\ns_sub_u32 s86, s86, s2\ns_and_b32 s86, s86, 7\ns_cmp_lg_u32 s86, 0\ns_cselect_b32 s86, 4000, 0\ns_add_u32 s86, s86, s90")
        T.n = 4
    T.end(A, sW, sWS)
    A("s_endpgm")

    reset(A); T.n = 0
    A("K1_COMPUTE:")
    if "nocpf" not in OPT:
        A(f"""
        s_getpc_b64 s[70:71]
        K1_PC:
        s_lshl_b32 s46, s41, 2
        s_add_u32 s46, s46, s{sW}
        s_lshl_b32 s46, s46, 9
        s_sub_u32 s70, s70, K1_PC-k1_kernel
        s_subb_u32 s71, s71, 0
        v_lshl_add_u32 v10, v2, 7, s46
        v_min_u32 v10, CODE_END-k1_kernel-4, v10
        v_mov_b32 v11, s71
        v_add_co_u32 v10, vcc, s70, v10
        v_addc_co_u32 v11, vcc, 0, v11, vcc
        global_load_dword v252, v[10:11], off
        """)
        reset(A)
    A(f"""
    s_lshl_b32 s{sS2}, s{sR}, 2
    s_add_u32 s{sS2}, s{sS2}, s{sW}
    v_lshrrev_b32 v3, 1, v1
    v_xor_b32 v3, v3, v2
    v_lshlrev_b32 v3, 4, v3
    v_lshl_add_u32 v8, v1, 7, v3
    """)
    vBP = 9
    stats_setup(A, vBP)
    A(f"s_waitcnt lgkmcnt(0)\ns_cmp_ge_u32 s45, s47\ns_cbranch_scc1 K1_DFT")
    rH, rB1 = rA, rB
    srd(A, rH, sWS, H_SZ, H_OFF); srd(A, rB1, sB1, 1728*2)
    ONES = 20; B1R = 24; ACC = 36; AF = 116; XF = 196; C1A = 212; SUM = 232; GR = 240
    vXA0, vXA1, vWE, vWO, vXB, vWB, vG32 = 10, 11, 12, 13, 14, 15, 16
    A(f"""
    v_lshlrev_b32 v17, 1, v1
    v_lshl_add_u32 v17, v2, 28, v17
    s_lshl_b32 s46, s{sCol}, 1
    """)
    for ft in range(10): A(f"buffer_load_ushort v{B1R+ft}, v17, s[{rB1}:{rB1+3}], s46 offen offset:{32*ft}")
    A(f"""
    s_lshl_b32 s46, s{sW}, 12
    v_add_u32 v{vXB}, s46, v8
    v_lshrrev_b32 v18, 2, v1
    v_lshl_add_u32 v18, v2, 3, v18
    v_mul_u32_u24 v18, 320, v18
    v_and_b32 v19, 3, v1
    v_lshl_add_u32 v18, v19, 3, v18
    v_add_u32 v{vWB}, 16384, v18
    v_and_b32 v{vG32}, 1, v2
    v_lshlrev_b32 v{vG32}, 5, v{vG32}
    """)
    for i in range(4): A(f"v_mov_b32 v{ONES+i}, 0x3f803f80")
    for i in range(80): A(f"v_mov_b32 v{ACC+i}, 0")
    for i in range(36): A(f"v_mov_b32 v{C1A+i}, 0")
    sSl, sIt = 50, 54
    def addr_upd():
        return [f"v_add_u32 v{vXA0}, s{sSl}, v{vXB}", f"v_add_u32 v{vWO}, s{sSl}, v{vWB}", f"v_add_u32 v{vWE}, v{vWO}, v{vG32}",
                f"v_sub_u32 v{vWO}, v{vWO}, v{vG32}", f"v_xor_b32 v{vXA1}, 64, v{vXA0}"]
    def reads(t):
        r = [f"ds_read_b128 {v(XF+8*t+4*mt,4)}, v{vXA0+t} offset:{2048*mt}" for mt in range(2)]
        for ft in range(10):
            for jh in range(2):
                r.append(f"ds_read_b64_tr_b16 {v(AF+40*t+4*ft+2*jh,2)}, v{vWE if ft%2==0 else vWO} offset:{t*10240+jh*1280+ft*32}")
        return r
    def mains(t, w):
        m = []
        for ft in range(10):
            for mt in range(2): m.append(mfma(ACC+(ft*2+mt)*4, AF+40*t+4*ft, XF+8*t+4*mt))
        for mt in range(2):
            m.append(mfma(SUM+4*mt, ONES, XF+8*t+4*mt)); m.append(mfma(GR+4*mt, XF+8*t+4*mt, XF+8*t+4*mt))
        if t == (w & 1):
            for q in range(5): m.append(mfma(C1A+4*q, ONES, AF+40*t+4*(5*(w>>1)+q)))
        return m
    A(f"s_mov_b32 s{sSl}, 0\ns_mov_b32 s{sIt}, 10")
    for x in addr_upd(): A(x)
    A("s_waitcnt vmcnt(0)")
    T.mark(A)
    A("s_barrier")
    T.mark(A)
    for x in reads(0): A(x)
    st0 = A.state()
    for w in range(3): A(f"s_cmp_eq_u32 s{sW}, {w+1}\ns_cbranch_scc1 K1_ML{w+1}")
    for w in range(4):
        A.lg = [set(x) for x in st0[0]]
        if "align" in OPT: A.raw(".p2align 6")
        A(f"K1_ML{w}:")
        slotadv = [f"s_add_u32 s{sSl}, s{sSl}, {SLOT}", f"s_cmp_eq_u32 s{sSl}, {NS*SLOT}", f"s_cselect_b32 s{sSl}, 0, s{sSl}", f"s_sub_u32 s{sIt}, s{sIt}, 1"]
        if "sched1" not in OPT:
            m0, m1 = mains(0, w), mains(1, w)
            allm = m0 + m1
            r1, r0 = reads(1), reads(0)
            BAR = 27
            for i, m in enumerate(allm):
                A(m)
                if i < 22: A(r1[i])
                elif i < 26: A(slotadv[i-22])
                if i == BAR - 1:
                    A("s_waitcnt lgkmcnt(0)\ns_barrier")
                if i in (BAR, BAR+1):
                    for x in addr_upd()[(0 if i == BAR else 2):(2 if i == BAR else 5)]: A(x)
                if BAR + 2 <= i < BAR + 24: A(r0[i-BAR-2])
                if i == BAR + 24: A(f"s_cmp_lg_u32 s{sIt}, 0")
        else:
            weave(A, mains(0, w), reads(1) + slotadv, per=1.5)
            A("s_waitcnt lgkmcnt(0)\ns_barrier")
            m1 = mains(1, w)
            weave(A, m1, addr_upd() + reads(0) + [f"s_cmp_lg_u32 s{sIt}, 0"], per=1.5)
        assert A.state()[0] == st0[0], (A.state()[0], st0[0])
        A(f"s_cbranch_scc1 K1_ML{w}")
        if w < 3: A("s_branch K1_MLE")
    A("K1_MLE:")
    T.mark(A)
    A(f"""
    s_lshr_b32 s46, s{sW}, 1
    s_mul_i32 s46, s46, {5*128}
    s_and_b32 s52, s{sW}, 1
    s_lshl_b32 s52, s52, 2
    s_add_u32 s46, s46, s52
    s_add_u32 s46, s46, {C1X}
    v_lshlrev_b32 v18, 3, v1
    v_add_u32 v19, s46, v18
    v_add_u32 v18, {C1X}, v18
    s_waitcnt lgkmcnt(0)
    """)
    for q in range(5): A(f"ds_write_b32 v19, v{C1A+4*q} offset:{128*q}")
    A("s_waitcnt lgkmcnt(0)\ns_barrier")
    AUG = AF; CR = AF + 40
    for ft in range(10): A(f"ds_read_b64 {v(CR+2*ft,2)}, v18 offset:{128*ft}")
    stats_from_mfma(A, SUM, GR, 1, vBP, 10, 11); stats_from_mfma(A, SUM+4, GR+4, 1, vBP, 10, 11)
    A("v_cmp_eq_u32 vcc, 0, v2")
    for mt in range(2):
        b = XF+4*mt
        A(f"v_cvt_pk_bf16_f32 v{b}, -v{SUM+4*mt}, -v{SUM+4*mt}\nv_lshrrev_b32 v{b+1}, 16, v{GR+4*mt}\nv_cndmask_b32 v{b}, 0, v{b}, vcc\nv_mov_b32 v{b+2}, 0\nv_mov_b32 v{b+3}, 0")
    KA, KB, SD = C1A, C1A+4, C1A+8
    for mt in range(2):
        A(f"""
        v_rcp_f32 v10, v{GR+4*mt}
        v_mov_b32 v{SD+2*mt}, v{GR+4*mt}
        v_mul_f32 v{KB+2*mt}, {fbits(K0)}, v10
        v_mul_f32 v11, v10, v10
        v_mul_f32 v11, v11, v10
        v_mul_f32 v{KA+2*mt}, {fbits(K1c)}, v11
        """)
    A(f"""
    s_lshr_b32 s46, s{sS2}, 1
    s_mul_i32 s46, s46, 54
    s_lshr_b32 s52, s{sCol}, 5
    s_add_u32 s46, s46, s52
    s_lshl_b32 s46, s46, 2
    s_and_b32 s52, s{sS2}, 1
    s_lshl_b32 s52, s52, 1
    s_add_u32 s46, s46, s52
    s_lshl_b32 s46, s46, 10
    v_lshlrev_b32 v18, 4, v0
    """)
    for ft in range(10):
        g = AUG+4*ft
        A(f"v_add_f32 v10, v{CR+2*ft}, v{CR+2*ft+1}\nv_and_b32 v11, 0xffff0000, v10\nv_sub_f32 v11, v10, v11")
        A(f"v_cvt_pk_bf16_f32 v11, v11, v11\nv_alignbit_b32 v{g}, v11, v10, 16\nv_mov_b32 v{g+1}, v{B1R+ft}\nv_mov_b32 v{g+2}, 0\nv_mov_b32 v{g+3}, 0")
        for mt in range(2): A(mfma(ACC+(ft*2+mt)*4, g, XF+4*mt))
    T.mark(A)
    TMP = CR
    for q in range(5):
        for mt in range(2):
            o = TMP + 16 + 4*((q*2+mt) % 4)
            tm = TMP + 8*((q*2+mt) % 2)
            prs = [ACC + ((2*q+h)*2+mt)*4 + 2*p for h in range(2) for p in range(2)]
            for i, c in enumerate(prs): A(f"v_pk_mul_f32 {v(tm+2*i,2)}, {v(c,2)}, {v(c,2)}")
            for i, c in enumerate(prs): A(f"v_pk_fma_f32 {v(tm+2*i,2)}, {v(tm+2*i,2)}, {v(KA+2*mt,2)}, {v(KB+2*mt,2)} op_sel_hi:[1,0,0]")
            for i, c in enumerate(prs): A(f"v_pk_mul_f32 {v(tm+2*i,2)}, {v(tm+2*i,2)}, {v(c,2)}")
            for i in range(8): A(f"v_exp_f32 v{tm+i}, v{tm+i}")
            for i, c in enumerate(prs): A(f"v_pk_fma_f32 {v(tm+2*i,2)}, {v(tm+2*i,2)}, {v(SD+2*mt,2)}, {v(SD+2*mt,2)} op_sel_hi:[1,0,0]")
            for i in range(8): A(f"v_rcp_f32 v{tm+i}, v{tm+i}")
            for i, c in enumerate(prs): A(f"v_pk_mul_f32 {v(tm+2*i,2)}, {v(tm+2*i,2)}, {v(c,2)}")
            for i in range(4): A(f"v_cvt_pk_bf16_f32 v{o+i}, v{tm+2*i}, v{tm+2*i+1}")
            A(f"buffer_store_dwordx4 {v(o,4)}, v18, s[{rH}:{rH+3}], s46 offen offset:{1024*mt} {ST}")
        A("s_add_u32 s46, s46, 4096")
    T.mark(A)
    T.end(A, sW, sWS)
    A("s_endpgm")

    reset(A); T.n = 0
    A("K1_DFT:")
    rV = rA
    srd(A, rV, sWS, V_SZ, V_OFF)
    sKT, sG = 38, 39
    ONES = 24; ACC = 28; XF = 156; BF = 188; TA = 220; SUM = 236; GR = 244
    vKF, vG8, vSIG, vBase = 4, 5, 6, 7
    vXA = 10; vXB = 18
    A(f"""
    s_lshl_b32 s46, s43, 1
    s_add_u32 s46, s45, s46
    s_sub_u32 s46, s46, 5
    s_lshl_b32 s{sKT}, s46, 2
    s_add_u32 s{sKT}, s{sKT}, s{sW}
    s_cmp_ge_u32 s{sC0}, 5
    s_cselect_b32 s46, 5, 0
    s_sub_u32 s{sG}, s{sC0}, s46
    s_lshl_b32 s46, s{sKT}, 4
    s_add_u32 s46, s46, 1
    v_add_u32 v22, s46, v1
    v_cvt_f32_u32 v{vKF}, v22
    v_mul_f32 v{vKF}, {fbits(1/640)}, v{vKF}
    v_lshlrev_b32 v22, 31, v22
    v_or_b32 v{vSIG}, 1.0, v22
    v_lshlrev_b32 v22, 3, v2
    v_cvt_f32_u32 v{vG8}, v22
    v_add_f32 v{vG8}, 0.5, v{vG8}
    """)
    def bgen(buf):
        g = [f"s_lshl_b32 s46, s{sG}, 6", f"v_cvt_f32_u32 v{vBase}, s46", f"v_add_f32 v{vBase}, v{vBase}, v{vG8}", f"v_mul_f32 v{vBase}, v{vBase}, v{vKF}",
             f"s_add_u32 s{sG}, s{sG}, 1", f"s_cmp_eq_u32 s{sG}, 5", f"s_cselect_b32 s{sG}, 0, s{sG}"]
        for t in range(2):
            for p in range(4):
                a0, a1, s0, s1 = TA+4*(p%2), TA+4*(p%2)+1, TA+4*(p%2)+2, TA+4*(p%2)+3
                for (r, j) in ((a0, 2*p), (a1, 2*p+1)):
                    g.append(f"v_fmamk_f32 v{r}, v{vKF}, {fbits(32.0*t+j)}, v{vBase}")
                g += [f"v_sin_f32 v{s0}, -v{a0}", f"v_sin_f32 v{s1}, -v{a1}", f"v_cos_f32 v{a0}, v{a0}", f"v_cos_f32 v{a1}, v{a1}",
                      f"v_cvt_pk_bf16_f32 v{BF+16*buf+8*t+4+p}, v{s0}, v{s1}", f"v_cvt_pk_bf16_f32 v{BF+16*buf+8*t+p}, v{a0}, v{a1}"]
        return g
    for x in bgen(0): A(x)
    A(f"""
    v_lshlrev_b32 v22, 8, v2
    v_add_u32 v22, s{sS2}, v22
    v_cvt_f32_u32 v22, v22
    s_lshl_b32 s46, s{sW}, 12
    s_add_u32 s46, s46, {FX}
    v_lshl_add_u32 v3, v0, 4, s46
    """)
    for ut in range(2):
        A(f"v_add_u32 v23, {16*ut}, v1\nv_cvt_f32_u32 v23, v23\nv_mul_f32 v23, {fbits(1/2048)}, v23\nv_mul_f32 v{vBase}, v23, v22")
        for j in range(8): A(f"v_fmamk_f32 v{TA+j}, v23, {fbits(64.0*(16*(j>>2) + (j&3)))}, v{vBase}")
        for j in range(8): A(f"v_sin_f32 v{TA+8+j}, v{TA+j}\nv_cos_f32 v{TA+j}, v{TA+j}")
        o = XF + 8*ut
        for p in range(4): A(f"v_cvt_pk_bf16_f32 v{o+p}, v{TA+2*p}, v{TA+2*p+1}\nv_cvt_pk_bf16_f32 v{o+4+p}, v{TA+8+2*p}, v{TA+8+2*p+1}")
        A(f"ds_write_b128 v3, {v(o,4)} offset:{2048*ut}\nds_write_b128 v3, {v(o+4,4)} offset:{2048*ut+1024}")
    for gq in range(4):
        A(f"s_xor_b32 s46, s{sW}, {gq}\ns_lshl_b32 s46, s46, 12\nv_add_u32 v{vXB+gq}, s46, v8")
    for i in range(4): A(f"v_mov_b32 v{ONES+i}, 0x3f803f80")
    for i in range(128): A(f"v_mov_b32 v{ACC+i}, 0")
    for i in range(16): A(f"v_mov_b32 v{SUM+i}, 0")
    def dupd(): return sum([[f"v_add_u32 v{vXA+2*gq}, s{sSl}, v{vXB+gq}", f"v_xor_b32 v{vXA+2*gq+1}, 64, v{vXA+2*gq}"] for gq in range(4)], [])
    frs = [(h, t, m) for h in range(2) for t in range(2) for m in range(8)]
    def rd(i):
        h, t, m = frs[i % 32]
        return f"ds_read_b128 {v(XF+4*(i%8),4)}, v{vXA+2*(m//2)+t} offset:{h*16384+2048*(m%2)}"
    AH = 6
    A(f"s_mov_b32 s{sSl}, 0")
    for x in dupd(): A(x)
    A("s_waitcnt lgkmcnt(0)")
    T.mark(A)
    A("s_barrier")
    T.mark(A)
    for i in range(AH): A(rd(i))
    def body(buf, gen_next):
        g = bgen(buf ^ 1) if gen_next else []
        slotadv = [f"s_add_u32 s{sSl}, s{sSl}, {PS}", f"s_cmp_eq_u32 s{sSl}, {3*PS}", f"s_cselect_b32 s{sSl}, 0, s{sSl}"]
        g = slotadv + g
        gi = 0; nm = 0
        for i, (h, t, m) in enumerate(frs):
            x = XF + 4*(i % 8)
            ms = [mfma(ACC+((h*8+m)*2+rho)*4, x, BF+16*buf+8*t+4*rho) for rho in range(2)]
            if m < 2: ms += [mfma(SUM+4*m, ONES, x), mfma(GR+4*m, x, x)]
            for k, mm in enumerate(ms):
                A(mm); nm += 1
                if k == 0:
                    if i + AH == 32:
                        A("s_waitcnt lgkmcnt(0)\ns_barrier")
                        for z in dupd(): A(z)
                    A(rd(i + AH))
                want = min(len(g), (len(g) * nm + 63) // 64)
                while gi < want: A(g[gi]); gi += 1
        while gi < len(g): A(g[gi]); gi += 1
    st0 = A.state()
    A(f"s_mov_b32 s{sIt}, 2\nK1_DL:")
    body(0, True)
    A(f"s_cmp_eq_u32 s{sIt}, 0\ns_cbranch_scc1 K1_DLE")
    body(1, True)
    assert A.state()[0] == st0[0]
    A(f"s_sub_u32 s{sIt}, s{sIt}, 1\ns_branch K1_DL\nK1_DLE:")
    T.mark(A)
    A("s_waitcnt lgkmcnt(0)")
    stats_from_mfma(A, SUM, GR, 1, vBP, 22, 23); stats_from_mfma(A, SUM+4, GR+4, 1, vBP, 22, 23)
    A(f"v_rcp_f32 v{GR}, v{GR}\nv_rcp_f32 v{GR+4}, v{GR+4}")
    A(f"s_lshl_b32 s46, s{sW}, 7\ns_add_u32 s46, s46, {RX}\nv_lshl_add_u32 v22, v1, 2, s46")
    A(f"v_mul_f32 v{GR}, {fbits(2.0/(2048*640))}, v{GR}\nv_mul_f32 v{GR+4}, {fbits(2.0/(2048*640))}, v{GR+4}")
    A(f"ds_write_b32 v22, v{GR}\nds_write_b32 v22, v{GR+4} offset:64")
    for gq in range(4):
        A(f"s_xor_b32 s46, s{sW}, {gq}\ns_lshl_b32 s46, s46, 12\ns_add_u32 s46, s46, {FX}\nv_lshl_add_u32 v23, v0, 4, s46")
        for q in range(4): A(f"ds_read_b128 {v(XF+16*gq+4*q,4)}, v23 offset:{1024*q}")
    for i in range(32): A(f"v_pk_fma_f32 {v(ACC+2*i,2)}, {v(ACC+64+2*i,2)}, {v(vSIG,2)}, {v(ACC+2*i,2)} op_sel_hi:[1,0,1]")
    A("s_waitcnt lgkmcnt(0)\ns_barrier")
    RR = TA
    for gq in range(4):
        A(f"s_xor_b32 s46, s{sW}, {gq}\ns_lshl_b32 s46, s46, 7\ns_add_u32 s46, s46, {RX}\nv_lshl_add_u32 v23, v2, 4, s46")
        for jh in range(2): A(f"ds_read_b128 {v(RR+8*gq+4*jh,4)}, v23 offset:{64*jh}")
    TF = ACC + 64
    A(f"s_lshl_b32 s57, s{sW}, 13\nv_and_b32 v3, 7, v1")
    for gq in range(4):
        for jh in range(2):
            for rho in range(2):
                c = ACC + ((2*gq+jh)*2+rho)*4
                for p in range(2): A(f"v_pk_mul_f32 {v(c+2*p,2)}, {v(c+2*p,2)}, {v(RR+8*gq+4*jh+2*p,2)}")
        for rho in range(2):
            for jh in range(2):
                c = ACC + ((2*gq+jh)*2+rho)*4
                for p in range(2):
                    A(f"v_cvt_pk_bf16_f32 v{TF+12*gq+4*rho+2*jh+p}, v{c+2*p}, v{c+2*p+1}")
                    if rho == 0: A(f"v_cvt_pk_bf16_f32 v{TF+12*gq+8+2*jh+p}, -v{c+2*p}, -v{c+2*p+1}")
    for gq in range(4):
        for ut in range(2):
            Cf, Sf = XF+16*gq+8*ut, XF+16*gq+8*ut+4
            re, im, nre = TF+12*gq, TF+12*gq+4, TF+12*gq+8
            dre, dim = ACC+(gq*2+ut)*8, ACC+(gq*2+ut)*8+4
            A(mfma(dre, re, Cf, 0)); A(mfma(dim, im, Cf, 0)); A(mfma(dre, im, Sf)); A(mfma(dim, nre, Sf))
        A(f"""
        s_xor_b32 s46, s{sW}, {gq}
        s_lshl_b32 s46, s46, 2
        v_add_u32 v{10+gq}, s46, v2
        v_xor_b32 v{10+gq}, v{10+gq}, v3
        v_lshlrev_b32 v{10+gq}, 4, v{10+gq}
        v_lshl_add_u32 v{10+gq}, v1, 8, v{10+gq}
        v_add_u32 v{10+gq}, s57, v{10+gq}
        """)
    for gq in range(4):
        for ut in range(2):
            d = ACC+(gq*2+ut)*8; o = TA + 4*(gq*2+ut)
            for p in range(4): A(f"v_cvt_pk_bf16_f32 v{o+p}, v{d+2*p}, v{d+2*p+1}")
            A(f"ds_write_b128 v{10+gq}, {v(o,4)} offset:{4096*ut}")
    A(f"""
    v_xor_b32 v14, v1, v2
    v_lshlrev_b32 v14, 4, v14
    v_lshl_add_u32 v14, v2, 8, v14
    v_add_u32 v14, s57, v14
    v_xor_b32 v15, 64, v14
    v_mul_u32_u24 v16, {20*4096}, v2
    v_lshl_add_u32 v16, v1, 4, v16
    s_lshl_b32 s46, s{sKT}, 12
    s_lshl_b32 s52, s{sR}, 8
    s_add_u32 s46, s46, s52
    s_waitcnt lgkmcnt(0)
    """)
    for n in range(8): A(f"ds_read_b128 {v(XF+4*n,4)}, v{14 + (n&1)} offset:{1024*n}")
    for n in range(8):
        A(f"buffer_store_dwordx4 {v(XF+4*n,4)}, v16, s[{rV}:{rV+3}], s46 offen {ST}\ns_add_u32 s46, s46, {4*20*4096}")
    T.mark(A)
    T.end(A, sW, sWS)
    A(f"{END}:")
    return dict(label="k1_kernel", body=A.text(), vgpr=256, grid=256, block=320, lds=160*1024)


def gen_k2(stamps=False):
    A = Asm(); T = Stamp(stamps, 1)
    END = "K2_END"
    GP = optval("gp", 1); HP = optval("hp", 2)
    sX, sWR, sWI, sB2, sOUT, sWS = 4, 6, 8, 10, 12, 14
    rA, rB, rC, rD, rE = 16, 20, 24, 28, 56
    sW, sRB, sCB, sL, sA, sRot, sG = 32, 33, 34, 35, 36, 37, 38
    sJU, sJC = 39, 43
    REG = 20480; ABASE = 4*REG
    XO, BO, FO = 15360, 15360+2560, 15360+2560+256
    ACC = 176
    mode = "early" if "early" in OPT else "late" if "late" in OPT else "tail" if "tail" in OPT else "std"
    def mk(*modes):
        if mode in modes: T.mark(A)
    def spin(vaddr, off, thr=1):
        L, G = A.label("SP"), A.label("SG")
        A(f"s_mov_b32 s61, 4000000\n{L}:\nds_read_b32 v11, v{vaddr} offset:{off}\ns_waitcnt lgkmcnt(0)\nv_readfirstlane_b32 s60, v11\ns_cmp_ge_u32 s60, {thr}\ns_cbranch_scc1 {G}")
        A(f"s_sub_u32 s61, s61, 1\ns_cmp_eq_u32 s61, 0\ns_cbranch_scc1 {G}\ns_sleep 1\ns_branch {L}\n{G}:")

    A(f"s_cmp_ge_u32 s2, 256\ns_cbranch_scc1 {END}")
    T.start(A)
    A(f"""
    s_load_dwordx2 s[{sWS}:{sWS+1}], s[0:1], 80
    s_load_dwordx4 s[{sX}:{sX+3}], s[0:1], 0
    s_load_dwordx2 s[{sWI}:{sWI+1}], s[0:1], 16
    s_load_dwordx2 s[{sB2}:{sB2+1}], s[0:1], 56
    s_load_dwordx2 s[{sOUT}:{sOUT+1}], s[0:1], 64
    v_lshrrev_b32 v1, 6, v0
    v_and_b32 v0, 63, v0
    v_readfirstlane_b32 s{sW}, v1
    s_and_b32 s40, s2, 7
    s_lshr_b32 s41, s2, 3
    s_lshr_b32 s42, s41, 3
    s_lshl_b32 s{sJU}, s40, 2
    s_add_u32 s{sJU}, s{sJU}, s42
    s_and_b32 s{sJC}, s41, 7
    v_lshlrev_b32 v3, 4, v0
    s_and_b32 s{sA}, s{sW}, 3
    s_mul_i32 s{sG}, s{sA}, {REG}
    v_mov_b32 v10, s{sG}
    s_cmp_lt_u32 s{sW}, 4
    s_cbranch_scc1 K2_GEMM
    """)
    sKT, sU1 = 44, sJU
    rV, rU, rWR, rWI, rF = rA, rB, rC, rD, rE
    CF, SF = 16, 48; WR, WI = 80, 96; XA = 112; VF = 144; TA = 168; YF = 184; UA = 208
    A(f"""
    s_setprio 3
    s_add_u32 s{sL}, s{sG}, {ABASE}
    s_mul_i32 s{sKT}, s{sJC}, 5
    s_add_u32 s{sKT}, s{sKT}, 1
    s_lshr_b32 s{sKT}, s{sKT}, 1
    s_add_u32 s{sKT}, s{sKT}, s{sA}
    s_and_b32 s46, s{sJC}, 1
    s_sub_u32 s46, 3, s46
    s_cmp_lt_u32 s{sA}, s46
    s_cselect_b32 s50, 1, 0
    s_mul_i32 s47, s{sU1}, 20
    s_add_u32 s47, s47, s{sKT}
    s_lshl_b32 s47, s47, 12
    v_lshrrev_b32 v4, 2, v0
    v_mul_u32_u24 v4, 20544, v4
    v_and_b32 v5, 3, v0
    v_min_u32 v5, 2, v5
    v_lshl_add_u32 v4, v5, 4, v4
    s_mul_i32 s48, s{sU1}, 321
    s_lshl_b32 s49, s{sKT}, 4
    s_add_u32 s48, s48, s49
    s_add_u32 s48, s48, 1
    s_lshl_b32 s48, s48, 1
    s_and_b32 s49, s48, 2
    s_sub_u32 s48, s48, s49
    s_mov_b32 m0, s{sL}
    s_mov_b32 s{rV+2}, {V_SZ}
    s_mov_b32 s{rV+3}, 0x20000
    s_mov_b32 s{rWR+2}, {2048*642}
    s_mov_b32 s{rWR+3}, 0x20000
    s_mov_b32 s{rWI+2}, {2048*642}
    s_mov_b32 s{rWI+3}, 0x20000
    v_and_b32 v1, 15, v0
    v_lshrrev_b32 v2, 4, v0
    s_waitcnt lgkmcnt(0)
    s_add_u32 s{rV}, s{sWS}, {V_OFF}
    s_addc_u32 s{rV+1}, s{sWS+1}, 0
    s_mov_b64 s[{rWR}:{rWR+1}], s[{sWR}:{sWR+1}]
    s_mov_b64 s[{rWI}:{rWI+1}], s[{sWI}:{sWI+1}]
    s_cmp_eq_u32 s50, 0
    s_cbranch_scc1 K2_NOLD
    """)
    for i in range(4): A(f"buffer_load_dwordx4 v3, s[{rV}:{rV+3}], s47 offen offset:{1024*i} lds")
    for q in range(4):
        A(f"s_add_u32 m0, s{sL}, {4096+1024*q}\nbuffer_load_dwordx4 v4, s[{rWR}:{rWR+3}], s48 offen lds")
        A(f"s_add_u32 m0, s{sL}, {8192+1024*q}\nbuffer_load_dwordx4 v4, s[{rWI}:{rWI+3}], s48 offen lds")
        if q < 3: A(f"s_add_u32 s48, s48, {16*20544}")
    A("K2_NOLD:")
    mk("early")
    A(f"s_barrier\ns_setprio {GP}")
    srd(A, rU, sWS, U_SZ, U_OFF); srd(A, rF, sWS, FLG_SZ, FLG_OFF)
    if "nodry" in OPT: A("s_cmp_eq_u32 s50, 0\ns_cbranch_scc1 K2_GEN")
    else: A(f"s_cmp_eq_u32 s{sA}, 3\ns_cbranch_scc1 K2_JOB\ns_cmp_eq_u32 s50, 0\ns_cbranch_scc1 K2_GEN")
    A(f"v_lshlrev_b32 v5, 2, v2\nv_cvt_f32_u32 v5, v5\nv_cvt_f32_u32 v6, v1\nv_mul_f32 v6, {fbits(1/64)}, v6\nv_mul_f32 v7, v6, v5")
    for j in range(8): A(f"v_fmamk_f32 v{TA+j}, v6, {fbits(16.0*(j>>2) + (j&3))}, v7")
    for j in range(8): A(f"v_sin_f32 v{TA+8+j}, v{TA+j}\nv_cos_f32 v{TA+j}, v{TA+j}")
    cf = lambda mt, t, p: CF+(mt*2+t)*4+p
    sf = lambda mt, t, p: SF+(mt*2+t)*4+p
    A("s_brev_b32 s67, 1")
    for p in range(4):
        c0, c1, s0, s1 = TA+2*p, TA+2*p+1, TA+8+2*p, TA+8+2*p+1
        A(f"v_cvt_pk_bf16_f32 v{cf(0,0,p)}, v{c0}, v{c1}\nv_cvt_pk_bf16_f32 v{sf(0,0,p)}, v{s0}, v{s1}")
        if p % 2 == 0: A(f"v_cvt_pk_bf16_f32 v{cf(1,0,p)}, v{c0}, -v{s1}\nv_cvt_pk_bf16_f32 v{sf(1,0,p)}, v{s0}, v{c1}")
        else: A(f"v_cvt_pk_bf16_f32 v{cf(1,0,p)}, -v{c0}, v{s1}\nv_cvt_pk_bf16_f32 v{sf(1,0,p)}, -v{s0}, -v{c1}")
    A("v_and_b32 v5, 1, v1\nv_mul_u32_u24 v5, 0x8000, v5\nv_lshl_or_b32 v5, v5, 16, v5")
    for f in (cf, sf):
        for mt in (2, 3):
            for p in range(4): A(f"v_xor_b32 v{f(mt,0,p)}, s67, v{f(mt-2,0,p)}")
        for mt in range(4):
            for p in range(4): A(f"v_xor_b32 v{f(mt,1,p)}, v5, v{f(mt,0,p)}")
    for i in range(32): A(f"v_mov_b32 v{WR+i}, 0")
    A("K2_JOB:")
    A(f"""
    v_lshrrev_b32 v5, 2, v1
    v_lshl_add_u32 v5, v2, 2, v5
    v_lshlrev_b32 v5, 6, v5
    v_and_b32 v6, 3, v1
    v_lshl_add_u32 v5, v6, 4, v5
    v_add_u32 v5, s{sL}, v5
    s_add_u32 s49, s49, s{sL}
    v_lshlrev_b32 v6, 8, v2
    v_lshl_add_u32 v6, v1, 1, v6
    v_add_u32 v6, s49, v6
    s_mov_b32 s68, 0x80008000
    """)
    mk("std")
    A("s_waitcnt vmcnt(8)")
    mk("early")
    for t in range(2):
        for rho in range(2):
            for jh in range(2): A(f"ds_read_b64_tr_b16 {v(VF+12*t+4*rho+2*jh,2)}, v5 offset:{2048*t+1024*jh+8*rho}")
    wr = [f"ds_read_u16_d16_hi v{(WR,WI)[ar]+4*mt+r}, v6 offset:{4096+4096*ar+(16*mt+r)*64}" for mt in range(4) for r in range(4) for ar in range(2)]
    for t in range(2):
        for p in range(4): A(f"v_xor_b32 v{VF+12*t+8+p}, s68, v{VF+12*t+p}")
    def fwd(mt):
        m = []
        for t in range(2):
            re, im = XA+8*mt, XA+8*mt+4
            C, S = CF+(mt*2+t)*4, SF+(mt*2+t)*4
            m += [mfma(re, C, VF+12*t, None if t else 0), mfma(im, C, VF+12*t+4, None if t else 0), mfma(re, S, VF+12*t+4), mfma(im, S, VF+12*t+8)]
        return m
    def filt(mt):
        f = []
        tb = TA + 8*(mt & 1)
        for r in range(4):
            xr, xi, w_r, w_i = XA+8*mt+r, XA+8*mt+4+r, WR+4*mt+r, WI+4*mt+r
            f += [f"v_mul_f32 v{tb+r}, v{xi}, v{w_i}", f"v_mul_f32 v{tb+4+r}, v{xr}, v{w_i}", f"v_fma_f32 v{tb+r}, v{xr}, v{w_r}, -v{tb+r}", f"v_fmac_f32 v{tb+4+r}, v{xi}, v{w_r}"]
        t, jh = mt >> 1, mt & 1
        for p in range(2):
            f += [f"v_cvt_pk_bf16_f32 v{YF+12*t+2*jh+p}, v{tb+2*p}, v{tb+2*p+1}", f"v_cvt_pk_bf16_f32 v{YF+12*t+4+2*jh+p}, v{tb+4+2*p}, v{tb+4+2*p+1}",
                  f"v_xor_b32 v{YF+12*t+8+2*jh+p}, s68, v{YF+12*t+4+2*jh+p}"]
        return f
    def inv(t):
        m = []
        for nt in range(4):
            re, im = UA+8*nt, UA+8*nt+4
            C, S = CF+(nt*2+t)*4, SF+(nt*2+t)*4
            m += [mfma(re, YF+12*t, C, None if t else 0), mfma(im, YF+12*t+4, C, None if t else 0), mfma(re, YF+12*t+8, S), mfma(im, YF+12*t, S)]
        return m
    f01 = fwd(0) + fwd(1)
    for x in f01[:2]: A(x)
    A("s_waitcnt vmcnt(0)")
    mk("early")
    weave(A, f01[2:], wr)
    weave(A, fwd(2) + fwd(3), filt(0) + filt(1))
    addr = f"""v_lshrrev_b32 v5, 1, v1
    v_and_b32 v5, 3, v5
    v_xor_b32 v5, v5, v2
    v_lshlrev_b32 v5, 4, v5
    v_lshl_add_u32 v5, v1, 6, v5
    v_add_u32 v5, s{sL}, v5
    v_lshrrev_b32 v6, 3, v0
    v_and_b32 v7, 3, v6
    v_lshlrev_b32 v7, 4, v7
    v_xor_b32 v7, v7, v3
    v_add_u32 v7, s{sL}, v7
    v_mul_u32_u24 v6, 81920, v6
    v_and_b32 v8, 7, v0
    v_lshl_add_u32 v6, v8, 4, v6
    s_lshl_b32 s47, s{sKT}, 12
    s_lshl_b32 s48, s{sU1}, 7
    s_add_u32 s47, s47, s48
    s_cmp_eq_u32 s{sKT}, 19
    s_cselect_b32 s46, 0.5, 1.0
    v_cmp_eq_u32 vcc, 3, v2
    v_mov_b32 v8, s46
    v_cndmask_b32 v8, 1.0, v8, vcc""".split("\n")
    weave(A, inv(0), filt(2) + filt(3))
    i1 = inv(1)
    weave(A, i1[:8], addr)
    def outp(nt):
        d = UA+8*nt
        return [f"v_mul_f32 v{d+3}, v{d+3}, v8", f"v_mul_f32 v{d+7}, v{d+7}, v8"] + [f"v_cvt_pk_bf16_f32 v{TA+4*nt+p}, v{d+2*p}, v{d+2*p+1}" for p in range(4)] + [f"ds_write_b128 v5, {v(TA+4*nt,4)} offset:{1024*nt}"]
    weave(A, i1[8:], outp(0) + outp(1))
    for x in outp(2) + outp(3): A(x)
    A("s_waitcnt lgkmcnt(0)")
    for q in range(4): A(f"ds_read_b128 {v(VF+4*q,4)}, v7 offset:{1024*q}")
    A("s_cmp_eq_u32 s50, 0\ns_cbranch_scc1 K2_GEN\ns_setprio 3")
    for q in range(4):
        A(f"buffer_store_dwordx4 {v(VF+4*q,4)}, v6, s[{rU}:{rU+3}], s47 offen sc1\ns_add_u32 s47, s47, {8*81920}")
    A(f"K2_GEN:\ns_setprio {GP}\ns_waitcnt lgkmcnt(0)")
    mk("std", "early")
    reset(A)
    spin(10, FO+8)
    A(f"s_sub_u32 s60, s60, 1\ns_lshr_b32 s{sRB}, s60, 3\ns_and_b32 s{sRB}, s{sRB}, 31\ns_and_b32 s{sCB}, s60, 7")
    FP = 12; FI = 44; UF = 84; ZA = 108; ZF = 140; OF = 148; XB = 152
    TC = ACC; DF = ACC + 16; KF = ACC + 24; TB = ACC + 32
    A("v_lshlrev_b32 v5, 3, v2\nv_cvt_f32_u32 v5, v5\ns_brev_b32 s67, 1")
    for p in range(2):
        A(f"s_lshl_b32 s46, s{sRB}, 1\ns_add_u32 s46, s46, {p}")
        A(f"v_lshl_add_u32 v6, v1, 6, s46\nv_cvt_f32_u32 v6, v6\nv_mul_f32 v6, {fbits(1/2048)}, v6\nv_mul_f32 v{TC}, v6, v5")
        for j in range(1, 8): A(f"v_add_f32 v{TC+j}, v6, v{TC+j-1}")
        for j in range(8): A(f"v_sin_f32 v{TC+8+j}, v{TC+j}\nv_cos_f32 v{TC+j}, v{TC+j}")
        o = FP + p*16
        for q in range(4): A(f"v_cvt_pk_bf16_f32 v{o+q}, v{TC+2*q}, v{TC+2*q+1}\nv_cvt_pk_bf16_f32 v{o+4+q}, v{TC+8+2*q}, v{TC+8+2*q+1}")
        for q in range(8): A(f"v_xor_b32 v{o+8+q}, s67, v{o+q}")
    A(f"s_mul_i32 s46, s{sCB}, 80\ns_cmp_ge_u32 s{sCB}, 4\ns_cselect_b32 s51, 640, 0\ns_sub_i32 s46, s46, s51")
    A(f"v_add_u32 v{DF}, s46, v1\nv_cvt_f32_i32 v{DF}, v{DF}\nv_add_f32 v{DF}, 0.5, v{DF}\ns_mov_b32 s46, {fbits(-1/640)}")
    for nt in range(4, 0, -1): A(f"v_add_f32 v{DF+nt}, {fbits(16.0*nt)}, v{DF}\nv_mul_f32 v{DF+nt}, s46, v{DF+nt}")
    A(f"v_mul_f32 v{DF}, s46, v{DF}")
    A(f"s_cmp_ge_u32 s{sCB}, 5\ns_cselect_b32 s51, 5, 0\ns_sub_u32 s{sRot}, s{sCB}, s51")
    A(f"s_mov_b32 s66, 0\ns_cmp_eq_u32 s50, 0\ns_cbranch_scc1 K2_S1\ns_lshl_b32 s46, s{sKT}, 8\ns_mov_b32 s66, 1\ns_waitcnt vmcnt(0)")
    A.raw(f"s_atomic_add s66, s[{rF}:{rF+1}], s46 glc")
    A("K2_S1:")
    mk("early")
    G = FI + 20
    A(f"""
    s_add_u32 s62, s{sRot}, 2
    s_cmp_ge_u32 s62, 5
    s_cselect_b32 s51, 5, 0
    s_sub_u32 s62, s62, s51
    s_mul_i32 s51, s{sA}, 5
    s_add_u32 s46, s62, s51
    s_lshl_b32 s46, s46, 4
    s_add_u32 s46, s46, 1
    v_lshl_add_u32 v{KF}, v2, 2, s46
    v_cvt_f32_u32 v{KF}, v{KF}
    v_add_f32 v{KF+1}, 1.0, v{KF}
    v_add_f32 v{KF+2}, 2.0, v{KF}
    v_add_f32 v{KF+3}, 1.0, v{KF+2}
    v_add_u32 v8, s{sG}, v3
    s_mov_b32 s53, 0
    s_mov_b32 s63, {fbits(16.0)}
    """)
    A.raw(".p2align 6")
    A("K2_FG:")
    for nt in range(5):
        tb = TB + 8*(nt & 1)
        if nt == 0:
            for r in range(4): A(f"v_mul_f32 v{tb+r}, v{DF+nt}, v{KF+r}")
        for r in range(4):
            A(f"v_sin_f32 v{tb+4+r}, v{tb+r}\nv_cos_f32 v{tb+r}, v{tb+r}")
            if nt < 4: A(f"v_mul_f32 v{(tb^8 if False else TB+8*((nt+1)&1))+r}, v{DF+nt+1}, v{KF+r}")
            if r > 0: A(f"v_cvt_pk_bf16_f32 v{G+4*nt+r-1}, v{tb+r-1}, v{tb+4+r-1}")
        if nt == 4: A(f"s_add_u32 s62, s62, 1\ns_cmp_eq_u32 s62, 5\ns_cselect_b32 s46, {fbits(-64.0)}, s63")
        A(f"v_cvt_pk_bf16_f32 v{G+4*nt+3}, v{tb+3}, v{tb+7}")
        A(f"ds_write_b128 v8, {v(G+4*nt,4)} offset:{nt*1024}")
    for r in range(4): A(f"v_add_f32 v{KF+r}, s46, v{KF+r}")
    A(f"s_add_u32 s53, s53, 1\ns_cmp_eq_u32 s53, 3\ns_cselect_b32 s46, 0x40000, 0\ns_add_u32 s46, s46, 5120\nv_add_u32 v8, s46, v8")
    A("s_cmp_ge_u32 s53, 4\ns_cbranch_scc1 K2_FG2\ns_cmp_lg_u32 s53, 1\ns_cbranch_scc1 K2_FG")
    A(f"s_waitcnt lgkmcnt(0)\ns_cmp_lg_u32 s66, 31\ns_cbranch_scc1 K2_FG")
    A(f"s_setprio 3\ns_lshl_b32 s46, s{sKT}, 8\ns_add_u32 s46, s46, {20*256}\nv_mov_b32 v6, 0\nv_mov_b32 v7, 32\ns_mov_b64 exec, 1")
    A(f"buffer_store_dword v7, v6, s[{rF}:{rF+3}], s46 offen sc1\ns_mov_b64 exec, -1\ns_setprio {GP}\ns_branch K2_FG")
    A("K2_FG2:\ns_cmp_eq_u32 s53, 5\ns_cbranch_scc1 K2_FG3")
    for i in range(20): A(f"v_mov_b32 v{FI+i}, v{G+i}")
    A("s_branch K2_FG\nK2_FG3:")
    reset(A)
    rX, rB2 = rA, rC
    srd(A, rX, sX, 2048*1280); srd(A, rB2, sB2, 1280)
    A(f"""
    s_mov_b32 s52, {(1<<32)//10+1}
    s_mul_i32 s54, s{sCB}, 160
    s_lshr_b32 s46, s{sA}, 1
    s_lshl_b32 s55, s{sRB}, 1
    s_add_u32 s55, s55, s46
    s_and_b32 s46, s{sA}, 1
    s_lshl_b32 s46, s46, 10
    s_add_u32 s55, s55, s46
    s_mul_i32 s55, s55, 1280
    s_add_u32 s55, s55, s54
    """)
    for q in range(3):
        A(f"""
        v_add_u32 v6, {64*q}, v0
        v_mul_hi_u32 v7, v6, s52
        v_mul_u32_u24 v5, 10, v7
        v_sub_u32 v5, v6, v5
        v_mul_u32_u24 v7, 81920, v7
        v_lshl_add_u32 v{OF+q}, v5, 4, v7
        """)
    A(f"""
    v_lshrrev_b32 v5, 2, v1
    v_lshl_add_u32 v5, v2, 3, v5
    v_lshlrev_b32 v5, 7, v5
    v_and_b32 v6, 3, v1
    v_lshl_add_u32 v5, v6, 4, v5
    v_add_u32 v5, s{sL}, v5
    v_add_u32 v8, s{sG}, v3
    v_mul_u32_u24 v9, 160, v1
    v_lshl_add_u32 v9, v2, 3, v9
    s_mov_b32 s68, 0x80008000
    """)
    mk("std")
    A(f"s_setprio 3\ns_cmp_lg_u32 s{sA}, 3\ns_cbranch_scc1 K2_WGO")
    A(f"""
    v_min_u32 v6, 19, v0
    v_lshlrev_b32 v6, 8, v6
    s_mov_b32 s61, 100000
    s_movk_i32 s46, {20*256}
    K2_POLL:
    buffer_load_dword v7, v6, s[{rF}:{rF+3}], s46 offen sc1
    s_waitcnt vmcnt(0)
    v_cmp_ne_u32 vcc, 32, v7
    s_cbranch_vccz K2_PD
    s_sub_u32 s61, s61, 1
    s_cmp_eq_u32 s61, 0
    s_cbranch_scc1 K2_PD
    s_sleep {optval('ps', 3)}
    s_branch K2_POLL
    K2_PD:
    v_and_b32 v6, 3, v0
    v_mul_u32_u24 v6, {REG}, v6
    v_mov_b32 v7, 1
    ds_write_b32 v6, v7 offset:{FO}
    s_branch K2_GO
    K2_WGO:
    """)
    spin(10, FO)
    A("K2_GO:")
    reset(A)
    mk("std", "late")
    A(f"s_mul_i32 s65, s{sRB}, 20\ns_mul_i32 s51, s{sA}, 5\ns_add_u32 s65, s65, s51\ns_mov_b32 s62, s{sL}\ns_mov_b32 s53, 0\nK2_UL:")
    A(f"s_add_u32 s51, s65, s{sRot}\ns_lshl_b32 s51, s51, 12\ns_mov_b32 m0, s62")
    for q in range(4): A(f"buffer_load_dwordx4 v3, s[{rU}:{rU+3}], s51 offen offset:{1024*q} sc1 lds")
    A(f"s_add_u32 s{sRot}, s{sRot}, 1\ns_cmp_eq_u32 s{sRot}, 5\ns_cselect_b32 s{sRot}, 0, s{sRot}\ns_add_u32 s62, s62, 4096\ns_add_u32 s53, s53, 1")
    A("s_cmp_lg_u32 s53, 1\ns_cbranch_scc1 K2_UL1")
    for q in range(3):
        A(f"s_add_u32 m0, s{sG}, {XO+1024*q}" + ("\ns_mov_b32 exec_hi, 0" if q == 2 else "") + f"\nbuffer_load_dwordx4 v{OF+q}, s[{rX}:{rX+3}], s55 offen lds")
    A(f"s_add_u32 m0, s{sG}, {BO}\ns_mov_b32 exec_lo, 0x3ff\nbuffer_load_dwordx4 v3, s[{rB2}:{rB2+3}], s54 offen lds\ns_mov_b64 exec, -1")
    A(f"K2_UL1:\ns_cmp_lt_u32 s53, 5\ns_cbranch_scc1 K2_UL\ns_setprio {optval('zprio', 3)}")
    reset(A)
    mk("late")
    A("s_waitcnt vmcnt(12)")
    mk("late")
    def trr(p, o): return [f"ds_read_b64_tr_b16 {v(UF+12*p+4*rho+2*jh,2)}, v5 offset:{o+512*jh+64*p+8*rho}" for rho in (1, 0) for jh in range(2)]
    def neg(p): return [f"v_xor_b32 v{UF+12*p+8+q}, s68, v{UF+12*p+4+q}" for q in range(4)]
    def sa(p):
        U0 = UF+12*p; m = []
        for st in range(2):
            C, S = FP+(p*2+st)*8, FP+(p*2+st)*8+4
            re, im = ZA+16*p+st*8, ZA+16*p+st*8+4
            m += [mfma(re, U0, C, 0), mfma(im, U0+4, C, 0), mfma(im, U0, S), mfma(re, U0+8, S)]
        return m
    def cv(p): return [f"v_cvt_pk_bf16_f32 v{ZF+4*st+r}, v{ZA+16*p+8*st+r}, v{ZA+16*p+8*st+4+r}" for st in range(2) for r in range(4)]
    def mn(p, fb, c=None): return [mfma(ACC+(nt*4+2*p+st)*4, FI+20*fb+4*nt, ZF+4*st, c) for st in range(2) for nt in range(5)]
    def fird(fb, o): return [f"ds_read_b128 {v(FI+20*fb+4*nt,4)}, v8 offset:{o+nt*1024}" for nt in range(5)]
    for x in trr(0, 0) + trr(1, 0): A(x)
    XT = ZA + 16; BT = ZA
    A(f"v_add_u32 v6, s{sG}, v9\nv_lshl_add_u32 v7, v2, 3, s{sG}")
    for nt in range(5): A(f"ds_read_b64 {v(XT+2*nt,2)}, v6 offset:{XO+32*nt}\nds_read_b64 {v(BT+2*nt,2)}, v7 offset:{BO+32*nt}")
    A("s_mov_b32 s69, 0xffff0000")
    for nt in range(5):
        for h in range(2):
            A(f"v_lshlrev_b32 v6, 16, v{XT+2*nt+h}\nv_lshlrev_b32 v7, 16, v{BT+2*nt+h}\nv_add_f32 v{XB+4*nt+2*h}, v6, v7")
            A(f"v_and_b32 v6, s69, v{XT+2*nt+h}\nv_and_b32 v7, s69, v{BT+2*nt+h}\nv_add_f32 v{XB+4*nt+2*h+1}, v6, v7")
    for x in neg(0): A(x)
    weave(A, sa(0), neg(1))
    def tile(fb, o, first=False):
        c = 0 if first else None
        weave(A, sa(1), cv(0), start=3)
        m = mn(0, fb, c); weave(A, m[:5], trr(0, o)); weave(A, m[5:], neg(0), start=1)
        weave(A, sa(0), cv(1), start=3)
        m = mn(1, fb, c); weave(A, m[:5], trr(1, o)); weave(A, m[5:], neg(1), start=1)
    tile(0, 4096, True)
    for x in fird(0, 0): A(x)
    A("s_mov_b32 s53, 1")
    A("s_waitcnt vmcnt(0) lgkmcnt(0)")
    reset(A)
    A("K2_ZL:")
    tile(1, 8192)
    for x in fird(1, 5120): A(x)
    A(f"s_cmp_lg_u32 s53, 0\ns_cbranch_scc1 K2_Z1\ns_waitcnt lgkmcnt(0)\nv_mov_b32 v7, 1\nds_write_b32 v10, v7 offset:{FO+4}\nK2_Z1:\ns_waitcnt lgkmcnt(0)")
    tile(0, 12288)
    A("s_cmp_eq_u32 s53, 0\ns_cbranch_scc1 K2_ZE")
    for x in fird(0, 10240): A(x)
    A(f"v_add_u32 v5, 8192, v5\ns_mov_b32 s53, 0\ns_waitcnt lgkmcnt(0)\ns_branch K2_ZL\nK2_ZE:")
    reset(A)
    A("s_waitcnt lgkmcnt(0)")
    mk("std", "late", "tail")
    A(f"v_add_u32 v5, s{sL}, v3")
    for mt in range(4):
        L, L2 = A.label(), A.label()
        A(f"s_cmp_eq_u32 s{sA}, {mt}\ns_cbranch_scc1 {L}")
        A(f"s_xor_b32 s46, s{sA}, {mt}\ns_sub_u32 s46, s46, 1\ns_mul_i32 s46, s46, 5120\nv_add_u32 v6, s46, v5")
        for nt in range(5): A(f"ds_write_b128 v6, {v(ACC+(nt*4+mt)*4,4)} offset:{1024*nt}")
        A(f"s_branch {L2}\n{L}:")
        for nt in range(5):
            for h in range(2): A(f"v_pk_add_f32 {v(XB+4*nt+2*h,2)}, {v(XB+4*nt+2*h,2)}, {v(ACC+(nt*4+mt)*4+2*h,2)}")
        A(f"{L2}:")
    rO = rA
    srd(A, rO, sOUT, 2048*1280)
    for d in range(1, 4): A(f"s_xor_b32 s46, s{sA}, {d}\ns_mul_i32 s46, s46, {REG}\ns_add_u32 s46, s46, {ABASE + (d-1)*5120}\nv_add_u32 v{3+d}, s46, v3")
    A(f"s_mul_i32 s46, s{sA}, 5120\nv_add_u32 v7, s46, v3\nv_add_u32 v8, {2*REG}, v7\ns_add_u32 s46, s{sL}, 15360\nv_add_u32 v9, s46, v9\nv_add_u32 v10, s46, v3")
    A("s_waitcnt lgkmcnt(0)")
    mk("tail")
    A("s_barrier")
    mk("tail")
    P = 12
    srcs = [(4, 0), (5, 0), (6, 0), (7, 0), (7, REG), (8, 0), (8, REG)]
    PB = [12, 32, 52, 72, 92, 112, 176]
    for k, (ad, o) in enumerate(srcs):
        for nt in range(5): A(f"ds_read_b128 {v(PB[k]+4*nt,4)}, v{ad} offset:{o+1024*nt}")
    for k in range(7):
        for i in range(10): A(f"v_pk_add_f32 {v(XB+2*i,2)}, {v(XB+2*i,2)}, {v(PB[k]+2*i,2)}")
    for nt in range(5):
        A(f"v_cvt_pk_bf16_f32 v{P+2*nt}, v{XB+4*nt}, v{XB+4*nt+1}\nv_cvt_pk_bf16_f32 v{P+2*nt+1}, v{XB+4*nt+2}, v{XB+4*nt+3}")
        A(f"ds_write_b64 v9, {v(P+2*nt,2)} offset:{32*nt}")
    A("s_waitcnt lgkmcnt(0)")
    for q in range(3): A(f"ds_read_b128 {v(P+12+4*q,4)}, v10 offset:{1024*q}")
    for q in range(3):
        if q == 2: A("s_mov_b32 exec_hi, 0")
        A(f"buffer_store_dwordx4 {v(P+12+4*q,4)}, v{OF+q}, s[{rO}:{rO+3}], s55 offen {ST if 'osc1' in OPT else ''}")
    mk("tail")
    T.end(A, sW, sWS)
    A("s_endpgm")

    reset(A); T.n = 0
    A("K2_GEMM:")
    rH, rW = rA, rB
    A(f"""
    v_add_u32 v4, 4096, v3
    v_mov_b32 v6, 0
    v_mov_b32 v7, 0
    v_mov_b32 v8, 0
    v_mov_b32 v9, 0
    ds_write_b128 v10, v[6:9] offset:{FO}
    s_getreg_b32 s62, hwreg(HW_REG_XCC_ID)
    s_mov_b32 s63, 8
    s_waitcnt lgkmcnt(0)
    s_add_u32 s64, s{sWS}, {FLG_OFF + 40*256}
    s_addc_u32 s65, s{sWS+1}, 0
    s_cmp_lg_u32 s{sW}, 0
    s_cbranch_scc1 K2_NT
    s_and_b32 s62, s62, 7
    s_lshl_b32 s46, s62, 8
    s_mov_b32 s66, 1
    """)
    A.raw("s_atomic_add s66, s[64:65], s46 glc")
    A("K2_NT:")
    for i in range(80): A(f"v_mov_b32 v{ACC+i}, 0")
    A(f"""
    s_barrier
    s_cmp_lg_u32 s{sW}, 0
    s_cbranch_scc1 K2_RL
    K2_TK:
    s_waitcnt lgkmcnt(0)
    s_cmp_lt_u32 s66, 32
    s_cbranch_scc1 K2_TD
    s_sub_u32 s63, s63, 1
    s_cmp_eq_u32 s63, 0
    s_cbranch_scc1 K2_TD
    s_add_u32 s62, s62, 1
    s_and_b32 s62, s62, 7
    s_lshl_b32 s46, s62, 8
    s_mov_b32 s66, 1
    """)
    A.raw("s_atomic_add s66, s[64:65], s46 glc")
    A(f"""
    s_branch K2_TK
    K2_TD:
    s_lshl_b32 s62, s62, 5
    s_add_u32 s62, s62, s66
    {"s_and_b32 s40, s2, 7" if "static" in OPT else ""}
    {"s_lshl_b32 s62, s40, 5" if "static" in OPT else ""}
    {"s_add_u32 s62, s62, s41" if "static" in OPT else ""}
    s_add_u32 s62, s62, 1
    v_and_b32 v6, 3, v0
    v_mul_u32_u24 v6, {REG}, v6
    v_mov_b32 v7, s62
    ds_write_b32 v6, v7 offset:{FO+8}
    K2_RL:
    s_mul_i32 s43, s{sW}, 14
    s_cmp_eq_u32 s{sW}, 3
    s_cselect_b32 s43, 41, s43
    s_cmp_ge_u32 s{sW}, 2
    s_cselect_b32 s44, 13, 14
    s_lshl_b32 s{rH+2}, s44, 12
    s_mov_b32 s{rH+3}, 0x20000
    s_mul_i32 s{rW+2}, s44, 5120
    s_mov_b32 s{rW+3}, 0x20000
    """)
    spin(10, FO+8)
    A(f"s_sub_u32 s60, s60, 1\ns_lshr_b32 s{sRB}, s60, 3\ns_and_b32 s{sRB}, s{sRB}, 31\ns_and_b32 s{sCB}, s60, 7")
    A(f"""
    s_setprio {HP}
    s_mul_i32 s45, s{sCB}, 7
    s_lshr_b32 s45, s45, 2
    s_mul_i32 s46, s{sRB}, 54
    s_add_u32 s46, s46, s43
    s_lshl_b32 s46, s46, 12
    s_add_u32 s46, s46, {H_OFF}
    s_lshl_b32 s48, s45, 12
    s_add_u32 s{rH}, s{sWS}, s46
    s_addc_u32 s{rH+1}, s{sWS+1}, 0
    s_mul_i32 s47, s{sCB}, 54
    s_add_u32 s47, s47, s43
    s_mul_i32 s47, s47, 5120
    s_add_u32 s47, s47, {W2P_OFF}
    s_mul_i32 s49, s45, 5120
    s_add_u32 s{rW}, s{sWS}, s47
    s_addc_u32 s{rW+1}, s{sWS+1}, 0
    """)
    DEPTH = 4; STG = 32
    sHo, sWo, sN = 48, 49, 50
    def issH(slot):
        b = STG + 36*slot
        return [f"buffer_load_dwordx4 {v(b+4*i,4)}, v3, s[{rH}:{rH+3}], s{sHo} offen offset:{1024*i}" for i in range(4)] + \
               [f"s_add_u32 s{sHo}, s{sHo}, 4096", f"s_cmp_eq_u32 s{sHo}, {14*4096}", f"s_cselect_b32 s{sHo}, 0, s{sHo}"]
    def issW(slot):
        b = STG + 36*slot
        return [f"buffer_load_dwordx4 {v(b+16+4*i,4)}, v3, s[{rW}:{rW+3}], s{sWo} offen offset:{1024*i}" for i in range(4)] + \
               [f"buffer_load_dwordx4 {v(b+32,4)}, v4, s[{rW}:{rW+3}], s{sWo} offen", f"s_add_u32 s{sWo}, s{sWo}, 5120", f"s_cmp_eq_u32 s{sWo}, {14*5120}", f"s_cselect_b32 s{sWo}, 0, s{sWo}"]
    T.mark(A)
    for x in issH(0) + issH(1): A(x)
    for x in issW(0) + issW(1) + issH(2) + issW(2): A(x)
    T.mark(A)
    A(f"s_waitcnt vmcnt(9)\ns_mov_b32 s{sN}, 3\nv_add_u32 v5, s{sG}, v3")
    reset(A)
    A.auto = False
    A("K2_HL:")
    for st in range(4):
        b = STG + 36*st
        if st == 3: A(f"s_cmp_eq_u32 s{sN}, 1\ns_cselect_b32 s{rH+2}, 0, s{rH+2}\ns_cselect_b32 s{rW+2}, 0, s{rW+2}")
        for x in issH((st+3) % DEPTH) + issW((st+3) % DEPTH): A(x)
        A("s_waitcnt vmcnt(27)")
        for nt in range(5):
            for mt in range(4): A(mfma(ACC+(nt*4+mt)*4, b+16+4*nt, b+4*mt))
        if st == 1: A(f"s_cmp_eq_u32 s{sN}, 0\ns_cbranch_scc1 K2_HE")
    A(f"s_sub_u32 s{sN}, s{sN}, 1\ns_branch K2_HL\nK2_HE:")
    A.auto = True
    T.mark(A)
    spin(10, FO+4)
    for mt in range(4):
        for nt in range(5): A(f"ds_write_b128 v5, {v(ACC+(nt*4+mt)*4,4)} offset:{mt*5120+nt*1024}")
    A("s_waitcnt lgkmcnt(0)")
    T.mark(A)
    A("s_barrier")
    T.end(A, sW, sWS)
    A(f"{END}:\nCODE_END:")
    return dict(label="k2_kernel", body=A.text(), vgpr=256, grid=256, block=512, lds=160*1024)

def groups(i, shape):
    import numpy as np
    if i == 0:
        b = np.arange(256); i8 = (b >> 3) & 7; ch = b & 1
        mlp = i8 < 5 + ch
        w = np.arange(shape[1])
        return [("mlp", np.ix_(mlp, w < 4)), ("mlp-ld", np.ix_(mlp, w == 4)), ("dft", np.ix_(~mlp, w < 4)), ("dft-ld", np.ix_(~mlp, w == 4))]
    if shape[1] == 8:
        w = np.arange(8); al = np.ones(shape[0], bool)
        return [("gemm", np.ix_(al, w < 4)), ("aux01", np.ix_(al, (w == 4) | (w == 5))), ("aux3", np.ix_(al, w == 7))]
    return [("all", np.ones(shape[0], bool))]

if __name__ == "__main__":
    st = "stamps" in sys.argv
    OPT.update(sys.argv[2:])
    ks = [gen_k1(st), gen_k2(st)]
    if "k1only" in sys.argv: ks = ks[:1]
    for x in sys.argv:
        if x.startswith("diag:"):
            import diag
            p = x.split(":")[1:]
            ks.append(diag.gen_diag(tuple([p[0]] + [int(y) for y in p[1:]]), STAMP_OFF))
    open(sys.argv[1], "w").write(file_text(ks))
```

```python
import struct, math, sys
from asmlib import *

def fbits(x): return "0x%08x" % struct.unpack("<I", struct.pack("<f", x))[0]

H_OFF = 0;            H_SZ = 32*54*4096
W2P_OFF = 8 << 20;    W2P_SZ = 8*54*5120
V_OFF = 12 << 20;     V_SZ = 32*20*64*64
U_OFF = 16 << 20;     U_SZ = V_SZ
FLG_OFF = 20 << 20;   FLG_SZ = 40*256
STAMP_OFF = 64 << 20
ST = "sc1"
OPT = set()

K0 = -2.0*math.sqrt(2.0/math.pi)*math.log2(math.e)
K1c = K0*0.044715
MF = "v_mfma_f32_16x16x32_bf16"

def mfma(d, x, y, c=None):
    return f"{MF} {v(d,4)}, {v(x,4)}, {v(y,4)}, {v(d,4) if c is None else c}"

def srd(A, d, lo, nbytes, add=0):
    A.prot -= set(range(d, d+4))
    if add: A(f"s_add_u32 s{d}, s{lo}, {add}\ns_addc_u32 s{d+1}, s{lo+1}, 0")
    else: A(f"s_mov_b32 s{d}, s{lo}\ns_mov_b32 s{d+1}, s{lo+1}")
    A(f"s_mov_b32 s{d+2}, {nbytes}\ns_mov_b32 s{d+3}, 0x20000")
    A.prot |= set(range(d, d+4))

def bf16_round(A, dst, src):
    A(f"v_cvt_pk_bf16_f32 v{dst}, v{src}, v{src}\nv_lshlrev_b32 v{dst}, 16, v{dst}")

def weave(A, main, fill, per=None, start=0):
    fill = list(fill); n = len(main) - start; done = 0
    for i, m in enumerate(main):
        A(m)
        if i < start: continue
        want = min(len(fill), int(math.ceil((i - start + 1) * per))) if per else (len(fill) * (i - start + 1) + n - 1) // n
        while done < want: A(fill[done]); done += 1
    while done < len(fill): A(fill[done]); done += 1

def stats_from_mfma(A, SUM, GR, vN, vG, t0, t1, mean=True):
    A(f"v_cndmask_b32 v{GR}, v{GR}, v{GR+1}, s[60:61]\nv_cndmask_b32 v{GR+2}, v{GR+2}, v{GR+3}, s[60:61]")
    A(f"v_cndmask_b32 v{GR}, v{GR}, v{GR+2}, s[62:63]")
    A(f"ds_bpermute_b32 v{GR}, v{vG}, v{GR}")
    A(f"v_mul_f32 v{SUM}, {fbits(1/640)}, v{SUM}")
    A(f"v_mul_f32 v{t0}, v{SUM}, v{SUM}")
    A(f"v_fma_f32 v{GR}, v{GR}, s66, -v{t0}")
    A(f"v_max_f32 v{GR}, 0, v{GR}")
    bf16_round(A, GR, GR)
    A(f"v_add_f32 v{GR}, {fbits(1e-5)}, v{GR}")
    bf16_round(A, GR, GR)
    A(f"v_sqrt_f32 v{GR}, v{GR}")
    bf16_round(A, GR, GR)
    if mean: bf16_round(A, SUM, SUM)

def stats_setup(A, vBP):
    A(f"""
    v_and_b32 v{vBP}, 1, v1
    v_cmp_eq_u32 s[60:61], 1, v{vBP}
    v_and_b32 v{vBP}, 2, v1
    v_cmp_eq_u32 s[62:63], 2, v{vBP}
    v_lshrrev_b32 v{vBP}, 2, v1
    v_lshl_add_u32 v{vBP}, v{vBP}, 4, v1
    v_lshlrev_b32 v{vBP}, 2, v{vBP}
    s_mov_b32 s66, {fbits(1/640)}
    """)

class Stamp:
    def __init__(self, on, slot): self.on = on; self.slot = slot; self.n = 0
    def start(self, A):
        if self.on: A("s_memtime s[90:91]\ns_memrealtime s[92:93]")
    def mark(self, A):
        if self.on:
            A(f"s_memtime s[{80+2*self.n}:{81+2*self.n}]"); A.lg.pop(); self.n += 1; assert self.n <= 5
    def end(self, A, wave_s, ws_lo):
        if not self.on: return
        A("s_waitcnt vmcnt(0)")
        A("s_memtime s[94:95]\ns_memrealtime s[96:97]\ns_waitcnt lgkmcnt(0)")
        A("s_sub_u32 s94, s94, s90")
        for i in range(5):
            if i < self.n: A(f"s_sub_u32 s{80+2*i}, s{80+2*i}, s90")
            else: A(f"s_mov_b32 s{80+2*i}, -1")
        A("s_mov_b64 exec, 1")
        A("v_mov_b32 v0, s94\nv_mov_b32 v1, s92\nv_mov_b32 v2, s96\nv_mov_b32 v3, s80")
        A("v_mov_b32 v4, s82\nv_mov_b32 v5, s84\nv_mov_b32 v6, s86\nv_mov_b32 v7, s88")
        srd(A, 76, ws_lo, 0x10000000)
        A(f"s_lshl_b32 s98, s2, 3\ns_add_u32 s98, s98, s{wave_s}\ns_lshl_b32 s98, s98, 5\ns_add_u32 s98, s98, {STAMP_OFF + self.slot*131072}")
        A("v_mov_b32 v8, 0")
        A("buffer_store_dwordx4 v[0:3], v8, s[76:79], s98 offen\nbuffer_store_dwordx4 v[4:7], v8, s[76:79], s98 offen offset:16")
        self.n = 0

def optval(name, default):
    for x in OPT:
        if x.startswith(name + "="): return int(x[len(name)+1:])
    return default

def reset(A): A.lg = []; A.vm = []

def job_consts(A, CF, SF, TA):
    A(f"v_lshlrev_b32 v5, 2, v2\nv_cvt_f32_u32 v5, v5\nv_cvt_f32_u32 v6, v1\nv_mul_f32 v6, {fbits(1/64)}, v6\nv_mul_f32 v7, v6, v5")
    for j in range(8): A(f"v_fmamk_f32 v{TA+j}, v6, {fbits(16.0*(j>>2) + (j&3))}, v7")
    for j in range(8): A(f"v_sin_f32 v{TA+8+j}, v{TA+j}\nv_cos_f32 v{TA+j}, v{TA+j}")
    cf = lambda mt, t, p: CF+(mt*2+t)*4+p
    sf = lambda mt, t, p: SF+(mt*2+t)*4+p
    A("s_brev_b32 s67, 1")
    for p in range(4):
        c0, c1, s0, s1 = TA+2*p, TA+2*p+1, TA+8+2*p, TA+8+2*p+1
        A(f"v_cvt_pk_bf16_f32 v{cf(0,0,p)}, v{c0}, v{c1}\nv_cvt_pk_bf16_f32 v{sf(0,0,p)}, v{s0}, v{s1}")
        if p % 2 == 0: A(f"v_cvt_pk_bf16_f32 v{cf(1,0,p)}, v{c0}, -v{s1}\nv_cvt_pk_bf16_f32 v{sf(1,0,p)}, v{s0}, v{c1}")
        else: A(f"v_cvt_pk_bf16_f32 v{cf(1,0,p)}, -v{c0}, v{s1}\nv_cvt_pk_bf16_f32 v{sf(1,0,p)}, -v{s0}, -v{c1}")
    A("v_and_b32 v5, 1, v1\nv_mul_u32_u24 v5, 0x8000, v5\nv_lshl_or_b32 v5, v5, 16, v5")
    for f in (cf, sf):
        for mt in (2, 3):
            for p in range(4): A(f"v_xor_b32 v{f(mt,0,p)}, s67, v{f(mt-2,0,p)}")
        for mt in range(4):
            for p in range(4): A(f"v_xor_b32 v{f(mt,1,p)}, v5, v{f(mt,0,p)}")

def gen_a(stamps=False):
    A = Asm(); T = Stamp(stamps, 0)
    END = "A_END"
    sX, sWR, sW1, sB1, sW2, sWS, sWI, sDBG = 4, 6, 8, 10, 12, 14, 74, 72
    PTRS = set(range(4, 16)) | {72, 73, 74, 75, 2, 32, 33, 35, 37, 40, 41, 43, 44, 45}
    rX, rA, rB, rC, rD = 16, 20, 24, 28, 56
    sW, sR, sC0, sS2, sCol = 32, 33, 35, 36, 37
    SLOT = 36864; NS = 3
    PS = 32768; FX = 3*PS
    JST = 114688; RPK = JST + 36864; STAT = RPK + 10240
    C1X = NS*SLOT
    assert STAT + 2048 <= 163840 and C1X + 1280 <= JST and FX + 16384 <= JST
    PFM = optval("pfm", 6)
    if "g3" in OPT: ROT = f"s_add_u32 s46, s44, s45\ns_mul_i32 s{sC0}, s46, 43\ns_lshr_b32 s{sC0}, s{sC0}, 7\ns_mul_i32 s{sC0}, s{sC0}, 3\ns_sub_u32 s46, s46, s{sC0}\ns_mul_i32 s46, s46, 27\ns_lshr_b32 s{sC0}, s46, 3"
    elif "g4" in OPT: ROT = f"s_add_u32 s46, s44, s45\ns_and_b32 s46, s46, 3\ns_mul_i32 s46, s46, 5\ns_add_u32 s46, s46, 1\ns_lshr_b32 s{sC0}, s46, 1"
    else: ROT = f"""s_mul_i32 s46, s44, 5
    s_add_u32 s46, s46, 1
    s_lshr_b32 s46, s46, 1
    s_add_u32 s{sC0}, s46, s45
    s_cmp_ge_u32 s{sC0}, 10
    s_cselect_b32 s46, 10, 0
    s_sub_u32 s{sC0}, s{sC0}, s46"""
    A(f"s_cmp_ge_u32 s2, 256\ns_cbranch_scc1 {END}")
    T.start(A)
    if "nocpf" not in OPT:
        A(f"""
        s_getpc_b64 s[70:71]
        A_PC:
        s_lshr_b32 s46, s2, 3
        s_lshl_b32 s46, s46, 11
        v_lshrrev_b32 v10, 5, v0
        v_lshl_add_u32 v10, v10, 7, s46
        v_min_u32 v10, CODE_END-A_PC-4, v10
        v_mov_b32 v11, s71
        v_add_co_u32 v10, vcc, s70, v10
        v_addc_co_u32 v11, vcc, 0, v11, vcc
        global_load_dword v255, v[10:11], off
        """)
        reset(A)
    A(f"""
    s_load_dwordx4 s[{sX}:{sX+3}], s[0:1], 0
    s_load_dwordx4 s[{sW1}:{sW1+3}], s[0:1], 32
    s_load_dwordx2 s[{sW2}:{sW2+1}], s[0:1], 48
    s_load_dwordx2 s[{sWS}:{sWS+1}], s[0:1], 80
    s_load_dwordx2 s[{sWI}:{sWI+1}], s[0:1], 16
    s_load_dwordx2 s[{sDBG}:{sDBG+1}], s[0:1], 72
    v_lshrrev_b32 v1, 6, v0
    v_and_b32 v0, 63, v0
    v_readfirstlane_b32 s{sW}, v1
    s_and_b32 s40, s2, 7
    s_lshr_b32 s41, s2, 3
    s_lshr_b32 s42, s40, 1
    s_and_b32 s43, s40, 1
    s_lshr_b32 s44, s41, 3
    s_and_b32 s45, s41, 7
    s_lshl_b32 s{sR}, s42, 2
    s_add_u32 s{sR}, s{sR}, s44
    {ROT}
    s_mul_i32 s{sCol}, s43, 5
    s_add_u32 s{sCol}, s{sCol}, s45
    s_mul_i32 s{sCol}, s{sCol}, 160
    s_min_u32 s{sCol}, s{sCol}, 1568
    s_add_u32 s47, s43, 5
    v_and_b32 v1, 15, v0
    v_lshrrev_b32 v2, 4, v0
    s_cmp_lg_u32 s{sW}, 4
    s_cbranch_scc1 A_NOTLD
    """)
    A.prot = set(PTRS)
    def div20(dst, i, stride, swz):
        A(f"""
        v_add_u32 v14, {64*i}, v0
        v_mul_hi_u32 v15, v14, s52
        v_mul_u32_u24 v16, 20, v15
        v_sub_u32 v16, v14, v16
        """)
        if swz: A("v_lshrrev_b32 v17, 2, v15\nv_and_b32 v17, 2, v17\nv_xor_b32 v16, v16, v17")
        A(f"v_mul_u32_u24 v15, {stride}, v15\nv_lshl_add_u32 v{dst}, v16, 4, v15")
        if 0 < i < 4: A(f"v_subrev_u32 v{dst}, {1024*i}, v{dst}")
    sCh, sSl, sXo, sWo, sIt = 49, 50, 51, 53, 54
    sH, sL, sKT, sU1, sWL = 34, 38, 39, 48, 55
    rWR, rWI = rA, rC
    def jobpar():
        A(f"""
        s_lshl_b32 s{sU1}, s40, 2
        s_add_u32 s{sU1}, s{sU1}, s44
        s_mul_i32 s{sKT}, s45, 5
        s_add_u32 s{sKT}, s{sKT}, 1
        s_lshr_b32 s{sKT}, s{sKT}, 1
        """)
    def pf_w():
        srd(A, rWR, sWR, 2048*642); srd(A, rWI, sWI, 2048*642)
        A(f"""
        v_lshrrev_b32 v14, 5, v0
        v_mul_u32_u24 v14, 20544, v14
        v_and_b32 v15, 31, v0
        v_min_u32 v15, 21, v15
        v_lshl_add_u32 v14, v15, 7, v14
        s_mul_i32 s62, s41, {2*20544}
        s_mul_i32 s63, s40, 2568
        s_add_u32 s62, s62, s63
        buffer_load_ubyte v18, v14, s[{rWR}:{rWR+3}], s62 offen
        buffer_load_ubyte v19, v14, s[{rWI}:{rWI+3}], s62 offen
        """)
    A(f"""
    s_setprio 3
    v_lshrrev_b32 v3, 3, v0
    v_mul_u32_u24 v3, 81920, v3
    v_and_b32 v4, 7, v0
    v_xor_b32 v4, v4, v2
    v_lshl_add_u32 v4, v4, 4, v3
    v_xor_b32 v5, 64, v4
    v_add_u32 v5, {655360-1024}, v5
    v_add_u32 v6, {2*(655360-1024)}, v4
    v_add_u32 v7, {2*(655360-1024)}, v5
    s_mul_i32 s52, s{sR}, 5120
    s_mov_b32 s{sSl}, 0
    s_mov_b32 s{sIt}, 0
    s_mov_b32 s{rX+2}, {2048*1280}
    s_mov_b32 s{rX+3}, 0x20000
    v_lshlrev_b32 v3, 7, v0
    s_cmp_ge_u32 s45, s47
    s_cbranch_scc1 A_LD_DFT
    s_mov_b32 s{sCh}, s{sC0}
    s_waitcnt lgkmcnt(0)
    s_mov_b64 s[{rX}:{rX+1}], s[{sX}:{sX+1}]
    """)
    A.prot |= set(range(rX, rX+4))
    def xblock(base):
        for w in range(4):
            A(f"s_add_u32 m0, s{sSl}, {base+4096*w}\ns_add_u32 s{sXo}, s{sXo}, 1280")
            for i in range(4): A(f"buffer_load_dwordx4 v{4+i}, s[{rX}:{rX+3}], s{sXo} offen offset:{1024*i} lds")
    def ring_tail(lab, nch, slot, nld):
        A(f"""
        s_add_u32 s{sCh}, s{sCh}, 1
        s_cmp_eq_u32 s{sCh}, {nch}
        s_cselect_b32 s{sCh}, 0, s{sCh}
        s_add_u32 s{sSl}, s{sSl}, {slot}
        s_cmp_eq_u32 s{sSl}, {3*slot}
        s_cselect_b32 s{sSl}, 0, s{sSl}
        s_add_u32 s{sIt}, s{sIt}, 1
        s_cmp_eq_u32 s{sIt}, 1
        s_cbranch_scc1 {lab}
        s_cmp_lt_u32 s{sIt}, {nch}
        s_waitcnt vmcnt({nld})
        s_barrier
        s_cbranch_scc1 {lab}
        """)
        reset(A)
    A(f"s_sub_u32 s52, s52, 1280")
    T.mark(A)
    A(f"A_LDM:\ns_lshl_b32 s{sXo}, s{sCh}, 7\ns_add_u32 s{sXo}, s{sXo}, s52")
    xblock(0)
    ring_tail("A_LDM", 10, SLOT, 16)
    pf_w()
    A(f"s_waitcnt vmcnt(2)\ns_barrier")
    T.mark(A)
    A("s_barrier\ns_barrier")
    T.end(A, sW, sWS)
    A("s_endpgm")
    A.prot = set(PTRS)
    A("A_LD_DFT:")
    reset(A); T.n = 0
    A(f"""
    s_sub_u32 s52, s52, 1280
    s_mov_b32 s{sCh}, 0
    s_waitcnt lgkmcnt(0)
    s_mov_b64 s[{rX}:{rX+1}], s[{sX}:{sX+1}]
    """)
    A.prot |= set(range(rX, rX+4))
    T.mark(A)
    A(f"A_LDD:\ns_lshl_b32 s{sXo}, s{sCh}, 7\ns_add_u32 s{sXo}, s{sXo}, s52")
    xblock(0)
    A(f"s_sub_u32 s{sXo}, s{sXo}, {4*1280-640}")
    xblock(16384)
    ring_tail("A_LDD", 5, PS, 32)
    pf_w()
    A("s_waitcnt vmcnt(2)\ns_barrier")
    T.mark(A)
    A("s_barrier\ns_barrier")
    T.end(A, sW, sWS)
    A("s_endpgm")

    reset(A); T.n = 0
    A.prot = set(PTRS)
    A(f"A_NOTLD:\ns_cmp_lt_u32 s{sW}, 4\ns_cbranch_scc1 A_COMPUTE")
    CF, SF = 16, 48; WR, WI = 80, 96; XA = 112; VF = 144; TA = 168; YF = 184; UA = 208
    A(f"""
    s_sub_u32 s{sH}, s{sW}, 5
    v_lshlrev_b32 v3, 4, v0
    s_mov_b32 s52, {(1<<32)//20+1}
    s_cmp_lg_u32 s{sH}, 0
    s_cbranch_scc1 A_H0
    s_cmp_ge_u32 s45, s47
    s_cbranch_scc1 A_H1
    s_setprio 3
    """)
    for i in range(5): div20(9+i, i, 3456, True)
    A(f"s_mov_b32 s{sCh}, s{sC0}\ns_lshl_b32 s52, s{sCol}, 1\ns_sub_u32 s52, s52, {16*3456}\ns_mov_b32 s{sSl}, 0\ns_mov_b32 s{sIt}, 0\ns_waitcnt lgkmcnt(0)")
    srd(A, rA, sW1, 640*3456)
    A(f"A_LDW:\ns_mul_i32 s{sWo}, s{sCh}, {64*3456}\ns_add_u32 s{sWo}, s{sWo}, s52")
    for q in range(4):
        A(f"s_add_u32 m0, s{sSl}, {16384+5120*q}\ns_add_u32 s{sWo}, s{sWo}, {16*3456}")
        for i in range(4): A(f"buffer_load_dwordx4 v{9+i}, s[{rA}:{rA+3}], s{sWo} offen offset:{1024*i} lds")
        A(f"s_add_u32 m0, s{sSl}, {16384+5120*q+4096}")
        A(f"buffer_load_dwordx4 v13, s[{rA}:{rA+3}], s{sWo} offen lds")
    A(f"s_cmp_lg_u32 s{sIt}, 0\ns_cbranch_scc1 A_LDW1\ns_mov_b32 s62, 1\ns_branch A_H2\nA_LDW1:")
    ring_tail("A_LDW", 10, SLOT, 20)
    srd(A, rD, sWS, FLG_SZ, FLG_OFF)
    A("s_setprio 0\ns_mov_b32 s53, 3\ns_branch A_HM")
    A(f"""
    A_H0:
    s_cmp_lg_u32 s{sH}, 2
    s_cbranch_scc1 A_H1
    s_cmp_ge_u32 s2, 216
    s_cbranch_scc1 A_H1
    """)
    for i in range(5): div20(9+i, i, 1280, False)
    A(f"s_lshr_b32 s46, s2, 2\ns_mul_i32 s46, s46, 40960\ns_and_b32 s52, s2, 3\ns_mul_i32 s52, s52, 320\ns_add_u32 s46, s46, s52\ns_waitcnt lgkmcnt(0)")
    srd(A, rA, sW2, 1728*1280)
    for q in range(2):
        A(f"s_mov_b32 m0, {RPK+5120*q}")
        for i in range(4): A(f"buffer_load_dwordx4 v{9+i}, s[{rA}:{rA+3}], s46 offen offset:{1024*i} lds")
        A(f"s_mov_b32 m0, {RPK+5120*q+4096}\nbuffer_load_dwordx4 v13, s[{rA}:{rA+3}], s46 offen lds")
        if q == 0: A(f"s_add_u32 s46, s46, {16*1280}")
    A("A_H1:\ns_mov_b32 s62, 0\ns_waitcnt lgkmcnt(0)")
    reset(A)
    rF = rD
    srd(A, rF, sWS, FLG_SZ, FLG_OFF)
    A(f"s_xor_b32 s46, s{sH}, 1\ns_or_b32 s46, s2, s46\ns_cmp_lg_u32 s46, 0\ns_cbranch_scc1 A_H2")
    srd(A, rB, sDBG, 256)
    A(f"v_lshlrev_b32 v4, 8, v0\nv_mov_b32 v5, 0\nbuffer_store_dword v5, v4, s[{rF}:{rF+3}], 0 offen sc1\nv_mov_b32 v6, 1\ns_waitcnt vmcnt(0)")
    A(f"buffer_store_dword v6, v4, s[{rB}:{rB+3}], 0 offen sc1")
    A("A_H2:")
    reset(A)
    job_consts(A, CF, SF, TA)
    jobpar()
    A("s_cmp_eq_u32 s62, 1\ns_cbranch_scc1 A_LDW1")
    def repack():
        L = A.label()
        A(f"s_cmp_lg_u32 s{sH}, 2\ns_cbranch_scc1 {L}\ns_cmp_ge_u32 s2, 216\ns_cbranch_scc1 {L}")
        srd(A, rB, sWS, W2P_SZ, W2P_OFF)
        A(f"""
        v_lshrrev_b32 v5, 2, v1
        v_lshl_add_u32 v5, v2, 2, v5
        v_mul_u32_u24 v5, 320, v5
        v_and_b32 v6, 3, v1
        v_lshl_add_u32 v5, v6, 3, v5
        v_add_u32 v5, {RPK}, v5
        v_add_u32 v6, 4096, v3
        s_and_b32 s46, s2, 3
        s_mul_i32 s46, s46, 108
        s_lshr_b32 s52, s2, 2
        s_add_u32 s46, s46, s52
        s_mul_i32 s46, s46, 5120
        s_waitcnt vmcnt(0)
        """)
        for nt in range(10):
            for jh in range(2): A(f"ds_read_b64_tr_b16 {v(YF+4*nt+2*jh,2)}, v5 offset:{jh*5120 + nt*32}")
        for nt in range(10):
            q = nt % 5
            if q < 4: A(f"buffer_store_dwordx4 {v(YF+4*nt,4)}, v3, s[{rB}:{rB+3}], s46 offen offset:{1024*q} {ST}")
            else: A(f"buffer_store_dwordx4 {v(YF+4*nt,4)}, v6, s[{rB}:{rB+3}], s46 offen {ST}\ns_add_u32 s46, s46, {54*5120}")
        A(f"{L}:")
        reset(A)
    def initcheck():
        L, G = A.label(), A.label()
        A(f"s_mov_b32 s61, 200000\n{L}:\ns_waitcnt lgkmcnt(0)\ns_cmp_eq_u32 s60, 1\ns_cbranch_scc1 {G}")
        A(f"s_sub_u32 s61, s61, 1\ns_cmp_eq_u32 s61, 0\ns_cbranch_scc1 {G}\ns_sleep 32\ns_load_dword s60, s[{sDBG}:{sDBG+1}], 0 glc\ns_branch {L}\n{G}:")
        reset(A)
    A("s_cmp_ge_u32 s45, s47\ns_cselect_b32 s53, 7, 12\ns_barrier\ns_sub_u32 s53, s53, 1")
    repack()
    T.mark(A)
    A(f"A_HM:\ns_cmp_lg_u32 s53, 3\ns_cbranch_scc1 A_HM2\ns_load_dword s60, s[{sDBG}:{sDBG+1}], 0\ns_waitcnt vmcnt(0)")
    reset(A)
    A("A_HM2:\ns_cmp_lg_u32 s53, 2\ns_cbranch_scc1 A_HM3")
    initcheck()
    A("A_HM3:\ns_sub_u32 s53, s53, 1\ns_cmp_lg_u32 s53, 0\ns_barrier\ns_cbranch_scc1 A_HM")
    T.mark(A)
    A(f"""
    A_JOB:
    s_and_b32 s46, s45, 1
    s_add_u32 s46, s46, s{sH}
    s_cmp_ge_u32 s46, 3
    s_cbranch_scc1 A_JE
    s_add_u32 s{sKT}, s{sKT}, s{sH}
    s_mul_i32 s{sL}, s{sH}, 12288
    s_add_u32 s{sL}, s{sL}, {JST}
    v_lshrrev_b32 v4, 2, v0
    v_mul_u32_u24 v4, 20544, v4
    v_and_b32 v5, 3, v0
    v_min_u32 v5, 2, v5
    v_lshl_add_u32 v4, v5, 4, v4
    s_mul_i32 s62, s{sU1}, 321
    s_lshl_b32 s63, s{sKT}, 4
    s_add_u32 s62, s62, s63
    s_add_u32 s62, s62, 1
    s_lshl_b32 s62, s62, 1
    s_and_b32 s63, s62, 2
    s_sub_u32 s62, s62, s63
    s_add_u32 s63, s63, s{sL}
    s_add_u32 s63, s63, 4096
    """)
    srd(A, rWR, sWR, 2048*642); srd(A, rWI, sWI, 2048*642)
    for q in range(4):
        A(f"s_add_u32 m0, s{sL}, {4096+1024*q}\nbuffer_load_dwordx4 v4, s[{rWR}:{rWR+3}], s62 offen lds")
        A(f"s_add_u32 m0, s{sL}, {8192+1024*q}\nbuffer_load_dwordx4 v4, s[{rWI}:{rWI+3}], s62 offen lds")
        if q < 3: A(f"s_add_u32 s62, s62, {16*20544}")
    reset(A)
    rV, rU = rX, rB
    srd(A, rV, sWS, V_SZ, V_OFF); srd(A, rU, sWS, U_SZ, U_OFF)
    for i in range(32): A(f"v_mov_b32 v{WR+i}, 0")
    A(f"""
    v_lshrrev_b32 v5, 2, v1
    v_lshl_add_u32 v5, v2, 2, v5
    v_lshlrev_b32 v5, 6, v5
    v_and_b32 v6, 3, v1
    v_lshl_add_u32 v5, v6, 4, v5
    v_add_u32 v5, s{sL}, v5
    v_lshlrev_b32 v6, 8, v2
    v_lshl_add_u32 v6, v1, 1, v6
    v_add_u32 v6, s63, v6
    s_mov_b32 s70, 0x80008000
    s_mul_i32 s47, s{sU1}, 20
    s_add_u32 s47, s47, s{sKT}
    s_lshl_b32 s47, s47, 12
    s_waitcnt vmcnt(0)
    """)
    for mt in range(4):
        for r in range(4):
            for ar in range(2): A(f"ds_read_u16_d16_hi v{(WR,WI)[ar]+4*mt+r}, v6 offset:{4096*ar+(16*mt+r)*64}")
    A(f"""
    s_setprio 3
    v_mov_b32 v7, 0
    s_lshl_b32 s46, s{sKT}, 8
    s_add_u32 s46, s46, {20*256}
    s_mov_b32 s61, 100000
    s_mov_b32 m0, s{sL}
    A_POLL:
    buffer_load_dword v8, v7, s[{rF}:{rF+3}], s46 offen sc1
    s_waitcnt vmcnt(0)
    v_cmp_ne_u32 vcc, 1, v8
    s_cbranch_vccz A_PD
    s_sub_u32 s61, s61, 1
    s_cmp_eq_u32 s61, 0
    s_cbranch_scc1 A_PD
    s_sleep {optval('ps', 3)}
    s_branch A_POLL
    A_PD:
    """)
    T.n = 2; T.mark(A)
    for i in range(4): A(f"buffer_load_dwordx4 v3, s[{rV}:{rV+3}], s47 offen offset:{1024*i} sc1 lds")
    A(f"""
    v_lshrrev_b32 v9, 1, v1
    v_and_b32 v9, 3, v9
    v_xor_b32 v9, v9, v2
    v_lshlrev_b32 v9, 4, v9
    v_lshl_add_u32 v9, v1, 6, v9
    v_add_u32 v9, s{sL}, v9
    v_lshrrev_b32 v6, 3, v0
    v_and_b32 v7, 3, v6
    v_lshlrev_b32 v7, 4, v7
    v_xor_b32 v7, v7, v3
    v_add_u32 v7, s{sL}, v7
    v_mul_u32_u24 v6, 81920, v6
    v_and_b32 v8, 7, v0
    v_lshl_add_u32 v6, v8, 4, v6
    s_lshl_b32 s47, s{sKT}, 12
    s_lshl_b32 s46, s{sU1}, 7
    s_add_u32 s47, s47, s46
    s_cmp_eq_u32 s{sKT}, 19
    s_cselect_b32 s46, 0.5, 1.0
    v_cmp_eq_u32 vcc, 3, v2
    v_mov_b32 v8, s46
    v_cndmask_b32 v8, 1.0, v8, vcc
    s_waitcnt vmcnt(0) lgkmcnt(0)
    """)
    T.mark(A)
    for t in range(2):
        for rho in range(2):
            for jh in range(2): A(f"ds_read_b64_tr_b16 {v(VF+12*t+4*rho+2*jh,2)}, v5 offset:{2048*t+1024*jh+8*rho}")
    for t in range(2):
        for p in range(4): A(f"v_xor_b32 v{VF+12*t+8+p}, s70, v{VF+12*t+p}")
    def fwd(mt):
        m = []
        for t in range(2):
            re, im = XA+8*mt, XA+8*mt+4
            C, S = CF+(mt*2+t)*4, SF+(mt*2+t)*4
            m += [mfma(re, C, VF+12*t, None if t else 0), mfma(im, C, VF+12*t+4, None if t else 0), mfma(re, S, VF+12*t+4), mfma(im, S, VF+12*t+8)]
        return m
    def filt(mt):
        f = []
        tb = TA + 8*(mt & 1)
        for r in range(4):
            xr, xi, w_r, w_i = XA+8*mt+r, XA+8*mt+4+r, WR+4*mt+r, WI+4*mt+r
            f += [f"v_mul_f32 v{tb+r}, v{xi}, v{w_i}", f"v_mul_f32 v{tb+4+r}, v{xr}, v{w_i}", f"v_fma_f32 v{tb+r}, v{xr}, v{w_r}, -v{tb+r}", f"v_fmac_f32 v{tb+4+r}, v{xi}, v{w_r}"]
        t, jh = mt >> 1, mt & 1
        for p in range(2):
            f += [f"v_cvt_pk_bf16_f32 v{YF+12*t+2*jh+p}, v{tb+2*p}, v{tb+2*p+1}", f"v_cvt_pk_bf16_f32 v{YF+12*t+4+2*jh+p}, v{tb+4+2*p}, v{tb+4+2*p+1}",
                  f"v_xor_b32 v{YF+12*t+8+2*jh+p}, s70, v{YF+12*t+4+2*jh+p}"]
        return f
    def inv(t):
        m = []
        for nt in range(4):
            re, im = UA+8*nt, UA+8*nt+4
            C, S = CF+(nt*2+t)*4, SF+(nt*2+t)*4
            m += [mfma(re, YF+12*t, C, None if t else 0), mfma(im, YF+12*t+4, C, None if t else 0), mfma(re, YF+12*t+8, S), mfma(im, YF+12*t, S)]
        return m
    for x in fwd(0) + fwd(1)[:4]: A(x)
    weave(A, fwd(1)[4:] + fwd(2) + fwd(3), filt(0) + filt(1))
    weave(A, inv(0), filt(2) + filt(3))
    def outp(nt):
        d = UA+8*nt
        return [f"v_mul_f32 v{d+3}, v{d+3}, v8", f"v_mul_f32 v{d+7}, v{d+7}, v8"] + [f"v_cvt_pk_bf16_f32 v{TA+4*nt+p}, v{d+2*p}, v{d+2*p+1}" for p in range(4)] + [f"ds_write_b128 v9, {v(TA+4*nt,4)} offset:{1024*nt}"]
    i1 = inv(1)
    for x in i1[:9]: A(x)
    weave(A, i1[9:], outp(0) + outp(1))
    for x in outp(2) + outp(3): A(x)
    A("s_waitcnt lgkmcnt(0)")
    for q in range(4): A(f"ds_read_b128 {v(VF+4*q,4)}, v7 offset:{1024*q}")
    for q in range(4):
        A(f"buffer_store_dwordx4 {v(VF+4*q,4)}, v6, s[{rU}:{rU+3}], s47 offen sc1\ns_add_u32 s47, s47, {8*81920}")
    T.mark(A)
    A("A_JE:")
    T.end(A, sW, sWS)
    A("s_endpgm")

    reset(A); T.n = 0
    A.prot = set(PTRS)
    A("A_COMPUTE:")
    A(f"""
    s_lshl_b32 s{sS2}, s{sR}, 2
    s_add_u32 s{sS2}, s{sS2}, s{sW}
    v_lshrrev_b32 v3, 1, v1
    v_xor_b32 v3, v3, v2
    v_lshlrev_b32 v3, 4, v3
    v_lshl_add_u32 v8, v1, 7, v3
    s_waitcnt lgkmcnt(0)
    s_cmp_ge_u32 s45, s47
    s_cbranch_scc1 A_DFT
    """)
    rH, rB1 = rA, rB
    srd(A, rH, sWS, H_SZ, H_OFF); srd(A, rB1, sB1, 1728*2)
    ONES = 20; B1R = 24; ACC = 36; AF = 116; XF = 196; C1A = 212; SUM = 232; GR = 240; ST4 = 212
    stats_setup(A, 9)
    vXA0, vXA1, vWE, vWO, vXB, vWB, vG32 = 10, 11, 12, 13, 14, 15, 16
    A(f"v_lshlrev_b32 v17, 1, v1\nv_lshl_add_u32 v17, v2, 28, v17\ns_lshl_b32 s46, s{sCol}, 1")
    for ft in range(10): A(f"buffer_load_ushort v{B1R+ft}, v17, s[{rB1}:{rB1+3}], s46 offen offset:{32*ft}")
    A(f"""
    s_lshl_b32 s46, s{sW}, 12
    v_add_u32 v{vXB}, s46, v8
    v_lshrrev_b32 v18, 2, v1
    v_lshl_add_u32 v18, v2, 3, v18
    v_mul_u32_u24 v18, 320, v18
    v_and_b32 v19, 3, v1
    v_lshl_add_u32 v18, v19, 3, v18
    v_add_u32 v{vWB}, 16384, v18
    v_and_b32 v{vG32}, 1, v2
    v_lshlrev_b32 v{vG32}, 5, v{vG32}
    s_lshr_b32 s46, s{sW}, 1
    s_mul_i32 s46, s46, {5*128}
    s_and_b32 s52, s{sW}, 1
    s_lshl_b32 s52, s52, 2
    s_add_u32 s46, s46, s52
    s_add_u32 s46, s46, {C1X}
    v_lshlrev_b32 v18, 3, v1
    v_add_u32 v19, s46, v18
    v_add_u32 v18, {C1X}, v18
    s_lshr_b32 s46, s{sS2}, 1
    s_mul_i32 s46, s46, 54
    s_lshr_b32 s52, s{sCol}, 5
    s_add_u32 s46, s46, s52
    s_lshl_b32 s46, s46, 2
    s_and_b32 s52, s{sS2}, 1
    s_lshl_b32 s52, s52, 1
    s_add_u32 s46, s46, s52
    s_lshl_b32 s57, s46, 10
    v_lshlrev_b32 v17, 4, v0
    v_cmp_eq_u32 s[64:65], 0, v2
    s_mov_b32 s69, 0xffff0000
    """)
    for i in range(4): A(f"v_mov_b32 v{ONES+i}, 0x3f803f80")
    for i in range(4): A(f"v_mov_b32 v{C1A+32+i}, 0")
    for r in [ACC+16*i for i in range(5)] + [C1A, C1A+16]: A(f"v_mfma_f32_32x32x16_bf16 {v(r,16)}, {v(C1A+32,4)}, {v(C1A+32,4)}, 0")
    def addr_upd():
        return [f"v_add_u32 v{vXA0}, s{sSl}, v{vXB}", f"v_add_u32 v{vWO}, s{sSl}, v{vWB}", f"v_add_u32 v{vWE}, v{vWO}, v{vG32}",
                f"v_sub_u32 v{vWO}, v{vWO}, v{vG32}", f"v_xor_b32 v{vXA1}, 64, v{vXA0}"]
    def reads(t):
        r = [f"ds_read_b128 {v(XF+8*t+4*mt,4)}, v{vXA0+t} offset:{2048*mt}" for mt in range(2)]
        for ft in range(10):
            for jh in range(2):
                r.append(f"ds_read_b64_tr_b16 {v(AF+40*t+4*ft+2*jh,2)}, v{vWE if ft%2==0 else vWO} offset:{t*10240+jh*1280+ft*32}")
        return r
    def mains(t, w):
        m = []
        for mt in range(2): m += [mfma(SUM+4*mt, ONES, XF+8*t+4*mt), mfma(GR+4*mt, XF+8*t+4*mt, XF+8*t+4*mt)]
        for ft in range(10):
            for mt in range(2): m.append(mfma(ACC+(ft*2+mt)*4, AF+40*t+4*ft, XF+8*t+4*mt))
            if t == (w & 1) and ft // 5 == (w >> 1): m.append(mfma(C1A+4*(ft % 5), ONES, AF+40*t+4*ft))
        return m
    A(f"s_mov_b32 s{sSl}, 0\ns_mov_b32 s{sIt}, 10")
    for x in addr_upd(): A(x)
    reset(A)
    T.mark(A)
    A("s_barrier")
    T.mark(A)
    r0 = reads(0)
    for x in r0[2:8] + r0[:2] + r0[8:]: A(x)
    st0 = A.state()
    for w in range(3): A(f"s_cmp_eq_u32 s{sW}, {w+1}\ns_cbranch_scc1 A_ML{w+1}")
    for w in range(4):
        A.lg = [set(x) for x in st0[0]]
        A(f"A_ML{w}:")
        slotadv = [f"s_add_u32 s{sSl}, s{sSl}, {SLOT}", f"s_cmp_eq_u32 s{sSl}, {NS*SLOT}", f"s_cselect_b32 s{sSl}, 0, s{sSl}", f"s_sub_u32 s{sIt}, s{sIt}, 1"]
        m0, m1 = mains(0, w), mains(1, w)
        allm = m0 + m1
        R1 = optval("r1", 22); BAR = optval("bar", 27); R0 = optval("r0", 51)
        weave(A, allm[:R1], reads(1)); weave(A, allm[R1:BAR], slotadv + addr_upd())
        A("s_waitcnt lgkmcnt(0)\ns_barrier")
        r0 = reads(0)
        weave(A, allm[BAR:R0], r0[2:8] + r0[:2] + r0[8:] + [f"s_cmp_lg_u32 s{sIt}, 0"])
        for x in allm[R0:]: A(x)
        assert A.state()[0] == st0[0], (A.state()[0], st0[0])
        A(f"s_cbranch_scc1 A_ML{w}")
        if w < 3: A("s_branch A_MLE")
    A("A_MLE:")
    T.mark(A)
    for q in range(5):
        c = C1A+4*q
        A(f"v_and_b32 v{c+1}, s69, v{c}\nv_sub_f32 v{c+1}, v{c}, v{c+1}\nv_cvt_pk_bf16_f32 v{c+1}, v{c+1}, v{c+1}\nv_alignbit_b32 v{c}, v{c+1}, v{c}, 16\nds_write_b32 v19, v{c} offset:{128*q}")
    AUG = AF + 40
    A("s_waitcnt vmcnt(0) lgkmcnt(0)\ns_barrier")
    for ft in range(10): A(f"ds_read_b64 {v(AUG+4*ft,2)}, v18 offset:{128*ft}")
    B0, B1 = Asm(auto=False), Asm(auto=False)
    for B, mt in ((B0, 0), (B1, 1)):
        stats_from_mfma(B, SUM+4*mt, GR+4*mt, 1, 9, 10+mt, 0)
        S = ST4 + 4*mt; b = XF+4*mt
        B(f"""
        v_rcp_f32 v{10+mt}, v{GR+4*mt}
        v_cvt_pk_bf16_f32 v{b}, -v{SUM+4*mt}, -v{SUM+4*mt}
        v_lshrrev_b32 v{b+2}, 16, v{GR+4*mt}
        v_cndmask_b32 v{b}, 0, v{b}, s[64:65]
        v_mov_b32 v{b+3}, 0
        v_mov_b32 v{b+1}, v{b}
        """)
    fillers = [x for ft in range(10) for x in (f"v_mov_b32 v{AUG+4*ft+2}, v{B1R+ft}", f"v_mov_b32 v{AUG+4*ft+3}, 0")]
    for k, (p, q) in enumerate(zip(B0.ins, B1.ins)):
        A(p.text); A(q.text)
        if k == 3:
            for x in fillers: A(x)
    late = []
    for mt in range(2):
        S = ST4 + 4*mt
        late += [f"v_mov_b32 v{S+3}, v{GR+4*mt}", f"v_mul_f32 v{S+2}, {fbits(K0)}, v{10+mt}", f"v_mul_f32 v{S+1}, v{10+mt}, v{10+mt}", f"v_mul_f32 v{S+1}, v{S+1}, v{S+2}", f"v_mul_f32 v{S+1}, {fbits(0.044715)}, v{S+1}"]
    weave(A, [mfma(ACC+(ft*2+mt)*4, AUG+4*ft, XF+4*mt) for ft in range(10) for mt in range(2)], late, per=1)
    T.mark(A)
    TMP = AF
    def grp(n):
        q, mt = n >> 1, n & 1
        tm = TMP + 8*(n % 3); o = TMP + 24 + 4*(n % 4)
        prs = [ACC + ((2*q+h)*2+mt)*4 + 2*p for h in range(2) for p in range(2)]
        S = ST4 + 4*mt
        s1 = [f"v_pk_mul_f32 {v(tm+2*i,2)}, {v(c,2)}, {v(c,2)}" for i, c in enumerate(prs)]
        s1 += [f"v_pk_fma_f32 {v(tm+2*i,2)}, {v(tm+2*i,2)}, {v(S,2)}, {v(S+2,2)} op_sel:[0,1,0] op_sel_hi:[1,1,0]" for i in range(4)]
        s1 += [f"v_pk_mul_f32 {v(tm+2*i,2)}, {v(tm+2*i,2)}, {v(c,2)}" for i, c in enumerate(prs)]
        e = [f"v_exp_f32 v{tm+i}, v{tm+i}" for i in range(8)]
        s2 = [f"v_pk_fma_f32 {v(tm+2*i,2)}, {v(tm+2*i,2)}, {v(S+2,2)}, {v(S+2,2)} op_sel:[0,1,1] op_sel_hi:[1,1,1]" for i in range(4)]
        r = [f"v_rcp_f32 v{tm+i}, v{tm+i}" for i in range(8)]
        s3 = [f"v_pk_mul_f32 {v(tm+2*i,2)}, {v(tm+2*i,2)}, {v(c,2)}" for i, c in enumerate(prs)]
        s3 += [f"v_cvt_pk_bf16_f32 v{o+i}, v{tm+2*i}, v{tm+2*i+1}" for i in range(4)]
        s3 += [f"buffer_store_dwordx4 {v(o,4)}, v17, s[{rH}:{rH+3}], s57 offen offset:{1024*mt} {ST}" + ("\ns_add_u32 s57, s57, 4096" if mt else "")]
        return s1, e, s2, r, s3
    G = [grp(n) for n in range(10)]
    for x in G[0][0]: A(x)
    for n in range(10):
        weave(A, G[n][1], G[n-1][4] if n else [])
        for x in G[n][2]: A(x)
        weave(A, G[n][3], G[n+1][0] if n < 9 else [])
    for x in G[9][4]: A(x)
    T.mark(A)
    T.end(A, sW, sWS)
    A("s_endpgm")

    reset(A); T.n = 0
    A.prot = set(PTRS)
    A("A_DFT:")
    rV = rA; rF = rD
    srd(A, rV, sWS, V_SZ, V_OFF); srd(A, rF, sWS, FLG_SZ, FLG_OFF)
    sKT = 38
    ONES = 24; ACC = 28; XF = 156; BF = 188; SQ = 204; SUM = 236; GR = 244; TA = 220
    vSIG, vTQ, vBP = 6, 4, 9
    vXA = 10; vXB = 18
    stats_setup(A, vBP)
    A(f"""
    s_lshl_b32 s46, s43, 1
    s_add_u32 s46, s45, s46
    s_sub_u32 s46, s46, 5
    s_lshl_b32 s{sKT}, s46, 2
    s_add_u32 s{sKT}, s{sKT}, s{sW}
    v_add_u32 v22, 1, v1
    v_lshlrev_b32 v22, 31, v22
    v_or_b32 v{vSIG}, 1.0, v22
    v_lshlrev_b32 v22, 8, v2
    v_add_u32 v22, s{sS2}, v22
    v_cvt_f32_u32 v22, v22
    s_lshl_b32 s46, s{sW}, 12
    s_add_u32 s46, s46, {FX}
    v_lshl_add_u32 v3, v0, 4, s46
    v_and_b32 v5, 1, v1
    v_mul_u32_u24 v5, 0x8000, v5
    v_lshl_or_b32 v5, v5, 16, v5
    """)
    for ut in range(2):
        A(f"v_add_u32 v23, {16*ut}, v1\nv_cvt_f32_u32 v23, v23\nv_mul_f32 v23, {fbits(1/2048)}, v23\nv_mul_f32 v{TA}, v23, v22\nv_mul_f32 v23, {fbits(64.0)}, v23")
        for j in range(1, 4): A(f"v_add_f32 v{TA+j}, v23, v{TA+j-1}")
        for j in range(4): A(f"v_sin_f32 v{TA+4+j}, v{TA+j}\nv_cos_f32 v{TA+j}, v{TA+j}")
        o = XF + 8*ut
        for p in range(2): A(f"v_cvt_pk_bf16_f32 v{o+p}, v{TA+2*p}, v{TA+2*p+1}\nv_cvt_pk_bf16_f32 v{o+4+p}, v{TA+4+2*p}, v{TA+4+2*p+1}")
        for p in range(2): A(f"v_xor_b32 v{o+2+p}, v5, v{o+p}\nv_xor_b32 v{o+6+p}, v5, v{o+4+p}")
        A(f"ds_write_b128 v3, {v(o,4)} offset:{2048*ut}\nds_write_b128 v3, {v(o+4,4)} offset:{2048*ut+1024}")
    A(f"""
    s_lshl_b32 s46, s{sKT}, 4
    s_add_u32 s46, s46, 1
    v_add_u32 v5, s46, v1
    v_cvt_f32_u32 v5, v5
    v_mul_f32 v5, {fbits(-1/640)}, v5
    v_lshlrev_b32 v7, 3, v2
    v_cvt_f32_u32 v7, v7
    v_add_f32 v7, 0.5, v7
    v_mul_f32 v{SQ}, v5, v7
    v_mul_f32 v7, {fbits(32.0)}, v5
    v_cos_f32 v{vTQ}, v7
    """)
    for j in range(1, 8): A(f"v_add_f32 v{SQ+j}, v5, v{SQ+j-1}")
    for j in range(8): A(f"v_sub_f32 v{SQ+16+j}, v{SQ+j}, v7")
    A(f"v_add_f32 v{vTQ}, v{vTQ}, v{vTQ}")
    for sd in range(2):
        for j in range(8): A(f"v_sin_f32 v{SQ+16*sd+8+j}, v{SQ+16*sd+j}\nv_cos_f32 v{SQ+16*sd+j}, v{SQ+16*sd+j}")
    def bcv(t): return [f"v_cvt_pk_bf16_f32 v{BF+8*t+p}, v{SQ+16*t+2*p}, v{SQ+16*t+2*p+1}" for p in range(8)]
    def bstep(t): return [f"v_fma_f32 v{SQ+16*t+j}, v{vTQ}, v{SQ+16*(t^1)+j}, -v{SQ+16*t+j}" for j in range(16)] + bcv(t)
    for gq in range(4):
        A(f"s_xor_b32 s46, s{sW}, {gq}\ns_lshl_b32 s46, s46, 12\nv_add_u32 v{vXB+gq}, s46, v8")
    for x in bcv(0): A(x)
    for i in range(4): A(f"v_mov_b32 v{ONES+i}, 0x3f803f80")
    for i in range(4): A(f"v_mov_b32 v{BF+8+i}, 0")
    for r in [ACC+16*i for i in range(8)] + [SUM]: A(f"v_mfma_f32_32x32x16_bf16 {v(r,16)}, {v(BF+8,4)}, {v(BF+8,4)}, 0")
    def dupd(): return sum([[f"v_add_u32 v{vXA+2*gq}, s{sSl}, v{vXB+gq}", f"v_xor_b32 v{vXA+2*gq+1}, 64, v{vXA+2*gq}"] for gq in range(4)], [])
    frs = [(h, t, m) for t in range(2) for h in range(2) for m in range(8)]
    NR = 8
    def rd(i):
        h, t, m = frs[i % 32]
        return f"ds_read_b128 {v(XF+4*(i%NR),4)}, v{vXA+2*(m//2)+t} offset:{h*16384+2048*(m%2)}"
    AH = 6
    A(f"s_mov_b32 s{sSl}, 0\ns_mov_b32 s{sIt}, 5")
    for x in dupd(): A(x)
    A("s_waitcnt lgkmcnt(0)")
    T.mark(A)
    A("s_barrier")
    T.mark(A)
    for i in range(AH): A(rd(i))
    st0 = A.state()
    A("A_DL:")
    pr, pv = [], []
    for i, (h, t, m) in enumerate(frs):
        x = XF + 4*(i % NR)
        ms = [mfma(ACC+((h*8+m)*2+rho)*4, x, BF+8*t+4*rho) for rho in range(2)]
        if m < 2: ms += [mfma(SUM+4*m, ONES, x), mfma(GR+4*m, x, x)]
        if i == 0: pv += bstep(1) + [f"s_add_u32 s{sSl}, s{sSl}, {PS}", f"s_cmp_eq_u32 s{sSl}, {3*PS}", f"s_cselect_b32 s{sSl}, 0, s{sSl}", f"s_sub_u32 s{sIt}, s{sIt}, 1"]
        if i == 16:
            assert not pv
            pv += bstep(0)
        if i % 2 == 0 and i + AH < 32: pr += [rd(i + AH), rd(i + AH + 1)]
        if i == 26: pv = dupd() + pv
        if i == 28:
            assert not pr and not any("v_xor" in z for z in pv)
            A("s_waitcnt lgkmcnt(0)\ns_barrier")
            pr += [rd(32+k) for k in range(4)]
        if i == 30: pr += [rd(36), rd(37)]; pv += [f"s_cmp_lg_u32 s{sIt}, 0"]
        for mm in ms:
            A(mm)
            n = 2
            if pr: A(pr.pop(0)); n -= 1
            if i % 2 == 1 and mm is ms[-1] and i < 26: n -= 1
            while n > 0 and pv: A(pv.pop(0)); n -= 1
    assert not pr and not pv
    assert A.state()[0] == st0[0], (A.state()[0], st0[0])
    A("s_cbranch_scc1 A_DL\nA_DLE:")
    T.mark(A)
    B0, B1 = Asm(auto=False), Asm(auto=False)
    for B, mt in ((B0, 0), (B1, 1)):
        stats_from_mfma(B, SUM+4*mt, GR+4*mt, 1, vBP, 22+mt, 0, mean=False)
        B(f"v_rcp_f32 v{GR+4*mt}, v{GR+4*mt}\nv_mul_f32 v{GR+4*mt}, {fbits(2.0/(2048*640))}, v{GR+4*mt}\nds_write_b32 v7, v{GR+4*mt} offset:{64*mt}")
    comb = [f"v_pk_fma_f32 {v(ACC+2*i,2)}, {v(ACC+64+2*i,2)}, {v(vSIG,2)}, {v(ACC+2*i,2)} op_sel_hi:[1,0,1]" for i in range(32)]
    A(f"s_lshl_b32 s46, s{sW}, 7\ns_add_u32 s46, s46, {STAT}\nv_lshl_add_u32 v7, v1, 2, s46")
    for k, (p, q) in enumerate(zip(B0.ins, B1.ins)):
        A(p.text); A(q.text)
        if k == 3:
            for gq in range(4):
                A(f"s_xor_b32 s46, s{sW}, {gq}\ns_lshl_b32 s52, s46, 12\ns_add_u32 s52, s52, {FX}\nv_lshl_add_u32 v{14+gq}, v0, 4, s52\ns_lshl_b32 s46, s46, 7\ns_add_u32 s46, s46, {STAT}\nv_lshl_add_u32 v{10+gq}, v2, 4, s46")
    for x in comb[:8]: A(x)
    A("s_waitcnt lgkmcnt(0)\ns_barrier")
    if "dep" in OPT: T.n = 0; T.mark(A)
    RR = TA
    for gq in range(4):
        for jh in range(2): A(f"ds_read_b128 {v(RR+8*gq+4*jh,4)}, v{10+gq} offset:{64*jh}")
    for gq in range(4):
        for q in range(4): A(f"ds_read_b128 {v(XF+16*gq+4*q,4)}, v{14+gq} offset:{1024*q}")
    for x in comb[8:]: A(x)
    TF = ACC + 64
    A(f"s_lshl_b32 s64, s{sW}, 13\nv_and_b32 v3, 7, v1\ns_mov_b32 s70, 0x80008000")
    for gq in range(4):
        for jh in range(2):
            for rho in range(2):
                c = ACC + ((2*gq+jh)*2+rho)*4
                for p in range(2): A(f"v_pk_mul_f32 {v(c+2*p,2)}, {v(c+2*p,2)}, {v(RR+8*gq+4*jh+2*p,2)}")
    def tcv(gq):
        f = []
        for rho in range(2):
            for jh in range(2):
                c = ACC + ((2*gq+jh)*2+rho)*4
                for p in range(2): f.append(f"v_cvt_pk_bf16_f32 v{TF+12*gq+4*rho+2*jh+p}, v{c+2*p}, v{c+2*p+1}")
        f += [f"v_xor_b32 v{TF+12*gq+8+p}, s70, v{TF+12*gq+p}" for p in range(4)]
        return f
    def sta(gq):
        m = []
        for ut in range(2):
            Cf, Sf = XF+16*gq+8*ut, XF+16*gq+8*ut+4
            re, im, nre = TF+12*gq, TF+12*gq+4, TF+12*gq+8
            dre, dim = ACC+(gq*2+ut)*8, ACC+(gq*2+ut)*8+4
            m += [mfma(dre, re, Cf, 0), mfma(dim, im, Cf, 0), mfma(dre, im, Sf), mfma(dim, nre, Sf)]
        return m
    def wad(gq):
        return f"""s_xor_b32 s46, s{sW}, {gq}
        s_lshl_b32 s46, s46, 2
        v_add_u32 v{10+gq}, s46, v2
        v_xor_b32 v{10+gq}, v{10+gq}, v3
        v_lshlrev_b32 v{10+gq}, 4, v{10+gq}
        v_lshl_add_u32 v{10+gq}, v1, 8, v{10+gq}
        v_add_u32 v{10+gq}, s64, v{10+gq}""".split("\n")
    def outv(gq):
        f = []
        for ut in range(2):
            d = ACC+(gq*2+ut)*8; o = TA + 4*(gq*2+ut)
            f += [f"v_cvt_pk_bf16_f32 v{o+p}, v{d+2*p}, v{d+2*p+1}" for p in range(4)] + [f"ds_write_b128 v{10+gq}, {v(o,4)} offset:{4096*ut}"]
        return f
    if "dep" in OPT: T.mark(A)
    for x in tcv(0): A(x)
    weave(A, sta(0), tcv(1) + wad(0))
    weave(A, sta(1), tcv(2) + wad(1))
    weave(A, sta(2), tcv(3) + wad(2) + wad(3))
    weave(A, sta(3), outv(0) + outv(1))
    for x in outv(2): A(x)
    A(f"""
    v_xor_b32 v14, v1, v2
    v_lshlrev_b32 v14, 4, v14
    v_lshl_add_u32 v14, v2, 8, v14
    v_add_u32 v14, s64, v14
    v_xor_b32 v15, 64, v14
    v_mul_u32_u24 v16, {20*4096}, v2
    v_lshl_add_u32 v16, v1, 4, v16
    s_lshl_b32 s46, s{sKT}, 12
    s_lshl_b32 s52, s{sR}, 8
    s_add_u32 s46, s46, s52
    """)
    for x in outv(3): A(x)
    A("s_waitcnt lgkmcnt(0)")
    if "dep" in OPT: T.mark(A)
    for n in range(8): A(f"ds_read_b128 {v(XF+4*n,4)}, v{14 + (n&1)} offset:{1024*n}")
    for n in range(8):
        A(f"buffer_store_dwordx4 {v(XF+4*n,4)}, v16, s[{rV}:{rV+3}], s46 offen sc1\ns_add_u32 s46, s46, {4*20*4096}")
    T.mark(A)
    A(f"s_lshl_b32 s46, s{sKT}, 8\ns_mov_b32 s66, 1\nv_mov_b32 v6, 0\nv_mov_b32 v7, 1\ns_waitcnt vmcnt(0)")
    if "dep" in OPT: T.mark(A)
    A.raw(f"s_atomic_add s66, s[{rF}:{rF+1}], s46 glc")
    A(f"s_add_u32 s46, s46, {20*256}\ns_waitcnt lgkmcnt(0)\ns_cmp_lg_u32 s66, 15\ns_cbranch_scc1 A_DE\ns_mov_b64 exec, 1")
    A(f"buffer_store_dword v7, v6, s[{rF}:{rF+3}], s46 offen sc1")
    A("A_DE:")
    if "dep" not in OPT: T.mark(A)
    T.end(A, sW, sWS)
    A(f"{END}:")
    return dict(label="a_kernel", body=A.text(), vgpr=256, grid=256, block=512, lds=160*1024)

def gen_b(stamps=False):
    A = Asm(); T = Stamp(stamps, 1)
    END = "B_END"
    HG = optval("hg", 1); NAT = True
    sX, sB2, sOUT, sWS = 4, 8, 10, 14
    rH, rW, rU, rX = 16, 20, 24, 28
    sW, sRB, sCB = 32, 33, 34
    SL = 18432; UN = 2*SL; NU = 4
    XO = NU*UN; BO = XO + 10240; EX = 0
    A(f"s_cmp_ge_u32 s2, 256\ns_cbranch_scc1 {END}")
    T.start(A)
    A(f"""
    s_load_dwordx2 s[{sWS}:{sWS+1}], s[0:1], 80
    s_load_dwordx2 s[{sX}:{sX+1}], s[0:1], 0
    s_load_dwordx4 s[{sB2}:{sB2+3}], s[0:1], 56
    v_lshrrev_b32 v1, 6, v0
    v_and_b32 v0, 63, v0
    v_readfirstlane_b32 s{sW}, v1
    s_and_b32 s40, s2, 7
    s_lshr_b32 s41, s2, 3
    s_lshr_b32 s42, s41, 3
    s_lshl_b32 s{sRB}, s40, 2
    s_add_u32 s{sRB}, s{sRB}, s42
    s_and_b32 s{sCB}, s41, 7
    v_lshlrev_b32 v3, 4, v0
    v_and_b32 v1, 15, v0
    v_lshrrev_b32 v2, 4, v0
    s_cmp_lt_u32 s{sW}, 4
    s_cbranch_scc1 B_COMPUTE
    s_cmp_gt_u32 s{sW}, 5
    s_cbranch_scc1 B_LX
    """)
    PTRS = {2, 4, 5, 8, 9, 10, 11, 14, 15, 32, 33, 34}
    A.prot = set(PTRS)
    sHo, sWo, sUo, sM, sIt = 44, 45, 46, 47, 48
    A(f"""
    s_setprio 3
    v_add_u32 v4, 4096, v3
    v_add_u32 v5, 8192, v3
    v_and_b32 v6, 16, v0
    v_lshlrev_b32 v6, 2, v6
    v_xor_b32 v6, v6, v3
    v_add_u32 v7, 4096, v6
    s_and_b32 s49, s{sCB}, {HG-1}
    s_mul_i32 s49, s49, 27
    s_lshr_b32 s49, s49, {HG.bit_length()-1}
    s_lshl_b32 s{sHo}, s49, 13
    s_mul_i32 s{sWo}, s49, 10240
    s_mov_b32 s{sUo}, 0
    s_mul_i32 s56, s{sCB}, 10240
    v_lshlrev_b32 v8, 7, v0
    s_mul_i32 s50, s{sRB}, {54*4096}
    s_add_u32 s50, s50, {H_OFF}
    s_mul_i32 s51, s{sCB}, {54*5120}
    s_add_u32 s51, s51, {W2P_OFF}
    s_mul_i32 s52, s{sRB}, {20*4096}
    s_add_u32 s52, s52, {U_OFF}
    s_mov_b32 s{rH+2}, {54*4096}
    s_mov_b32 s{rH+3}, 0x20000
    s_mov_b32 s{rW+2}, {54*5120}
    s_mov_b32 s{rW+3}, 0x20000
    s_mov_b32 s{rU+2}, {20*4096}
    s_mov_b32 s{rU+3}, 0x20000
    s_waitcnt lgkmcnt(0)
    s_add_u32 s{rH}, s{sWS}, s50
    s_addc_u32 s{rH+1}, s{sWS+1}, 0
    s_add_u32 s{rW}, s{sWS}, s51
    s_addc_u32 s{rW+1}, s{sWS+1}, 0
    s_add_u32 s{rU}, s{sWS}, s52
    s_addc_u32 s{rU+1}, s{sWS+1}, 0
    """)
    A.prot |= set(range(16, 28))
    def m0(base, const): return f"s_mov_b32 m0, {const}" if base is None else f"s_add_u32 m0, s{base}, {const}"
    def ld(srdr, so, wrap, step, groups, base, o):
        fill = [f"s_add_u32 s55, s{so}, {step}", f"s_cmp_eq_u32 s55, {wrap}", "s_nop 0"]
        for k, (vr, n, lo) in enumerate(groups):
            A(m0(base, o + lo) if base is None else f"s_add_u32 m0, s{base}, {o+lo}")
            A("s_nop 0" if k else fill[0])
            for i in range(n): A(f"buffer_load_dwordx4 v{vr}, s[{srdr}:{srdr+3}], s{so} offen offset:{1024*i} lds")
        A(f"{fill[1]}\ns_cselect_b32 s{so}, 0, s55")
    def ldH(base, o): ld(rH, sHo, 54*4096, 8192, [(3, 4, 0), (4, 4, 4096)], base, o)
    def ldW(base, o): ld(rW, sWo, 54*5120, 10240, [(3, 4, 8192), (4, 4, 12288), (5, 2, 16384)], base, o)
    def ldU(base, o): ld(rU, sUo, 20*4096, 8192, [(6, 4, 0), (7, 4, 4096)], base, o)
    T.mark(A)
    A(f"s_mov_b32 s{sM}, {2*UN}\ns_mov_b32 s{sIt}, 8\ns_cmp_eq_u32 s{sW}, 5\ns_cbranch_scc1 B_LW")
    if NAT: A("s_barrier")
    ldH(None, 0); ldH(None, SL); ldH(None, UN)
    if "upf" in OPT: A(f"buffer_load_dword v10, v8, s[{rU}:{rU+3}], s56 offen\ns_add_u32 s56, s56, 8192\ns_mov_b64 exec, 0xffff\nbuffer_load_dword v11, v8, s[{rU}:{rU+3}], s56 offen\ns_mov_b64 exec, -1")
    ldH(None, 2*UN)
    if not NAT:
        A("s_barrier")
        A("s_waitcnt vmcnt(8)")
    ldU(None, UN + SL)
    A("s_waitcnt vmcnt(24)")
    A("s_barrier")
    T.mark(A)
    A("B_LL:")
    ldH(sM, SL); ldH(sM, UN)
    A(f"s_sub_u32 s{sIt}, s{sIt}, 1\ns_waitcnt vmcnt(16)\ns_barrier")
    ldU(sM, UN + SL)
    A(f"s_xor_b32 s{sM}, s{sM}, {2*UN}\ns_cmp_eq_u32 s{sIt}, 0\ns_cbranch_scc1 B_LE")
    ldH(sM, 0)
    A("s_waitcnt vmcnt(24)\ns_barrier\ns_branch B_LL\nB_LE:")
    ldU(sM, SL)
    A("s_waitcnt vmcnt(24)\ns_barrier\ns_waitcnt vmcnt(8)\ns_barrier\ns_waitcnt vmcnt(0)\ns_barrier")
    T.mark(A)
    T.end(A, sW, sWS)
    A("s_endpgm")
    reset(A); T.n = 1
    A("B_LW:\ns_barrier")
    ldW(None, 0); ldW(None, SL); ldW(None, UN); ldW(None, 2*UN)
    A("s_waitcnt vmcnt(20)\ns_barrier\nB_LWL:")
    ldW(sM, SL); ldW(sM, UN)
    A(f"s_sub_u32 s{sIt}, s{sIt}, 1\ns_xor_b32 s{sM}, s{sM}, {2*UN}\ns_cmp_eq_u32 s{sIt}, 0\ns_waitcnt vmcnt(30)\ns_barrier\ns_cbranch_scc1 B_LWE")
    ldW(sM, 0)
    A("s_waitcnt vmcnt(20)\ns_barrier\ns_branch B_LWL\nB_LWE:")
    A("s_waitcnt vmcnt(10)\ns_barrier\ns_waitcnt vmcnt(0)\ns_barrier\ns_barrier")
    T.end(A, sW, sWS)
    A("s_endpgm")

    reset(A); A.prot = set(PTRS)
    A(f"B_LX:\ns_cmp_eq_u32 s{sW}, 7\ns_cbranch_scc1 {END}\ns_mov_b32 s52, {(1<<32)//10+1}\ns_mul_i32 s54, s{sCB}, 160\ns_mul_i32 s57, s{sRB}, 2560\ns_add_u32 s57, s57, s54")
    def itemoff(OF):
        for q in range(3):
            A(f"""
            v_add_u32 v9, {64*q}, v0
            v_mul_hi_u32 v10, v9, s52
            v_mul_u32_u24 v11, 10, v10
            v_sub_u32 v11, v9, v11
            v_mul_u32_u24 v10, 81920, v10
            v_lshl_add_u32 v{OF+q}, v11, 4, v10
            """)
    itemoff(12)
    A("s_waitcnt lgkmcnt(0)")
    srd(A, rX, sX, 2048*1280); srd(A, rU, sB2, 1280)
    A("s_barrier")
    for w in range(4):
        A(f"s_add_u32 s58, s57, {((w & 1) + 1024*(w >> 1))*1280}")
        for q in range(3):
            A(f"s_mov_b32 m0, {XO+2560*w+1024*q}" + ("\ns_mov_b32 exec_hi, 0" if q == 2 else "") + f"\nbuffer_load_dwordx4 v{12+q}, s[{rX}:{rX+3}], s58 offen lds")
        A("s_mov_b64 exec, -1")
    A(f"s_mov_b32 m0, {BO}\ns_mov_b64 exec, 0x3ff\nbuffer_load_dwordx4 v3, s[{rU}:{rU+3}], s54 offen lds\ns_waitcnt vmcnt(0)\ns_endpgm")

    reset(A); T.n = 0
    A.prot = set(PTRS)
    A("B_COMPUTE:")
    if NAT: A("s_barrier")
    sP, sKP, sU, sIt = 44, 45, 46, 47
    FP = 12; ACC = 28; HF = 68; UF = 124; ZA = 136; FI = 152; SQ = 164; TQ = 244; OF = 249; TC = HF
    vH, vW, vT, vHB, vTB = 4, 5, 6, 7, 8
    rO = rW
    A(f"""
    s_and_b32 s{sP}, s{sW}, 1
    s_lshr_b32 s{sKP}, s{sW}, 1
    s_mul_i32 s48, s{sKP}, 5120
    s_add_u32 s48, s48, 8192
    v_add_u32 v{vHB}, s48, v3
    v_lshrrev_b32 v9, 2, v1
    v_lshl_add_u32 v9, v2, 3, v9
    v_lshlrev_b32 v9, 7, v9
    v_and_b32 v10, 3, v1
    v_lshl_add_u32 v9, v10, 4, v9
    s_lshl_b32 s49, s{sP}, 6
    v_add_u32 v9, s49, v9
    v_and_b32 v10, 8, v1
    v_lshlrev_b32 v10, 3, v10
    v_xor_b32 v9, v9, v10
    s_lshl_b32 s48, s{sKP}, 12
    s_add_u32 s48, s48, {SL}
    v_add_u32 v{vTB}, s48, v9
    s_lshl_b32 s56, s{sP}, 11
    s_mov_b32 s52, {(1<<32)//10+1}
    s_mul_i32 s54, s{sCB}, 160
    s_lshl_b32 s55, s{sRB}, 1
    s_add_u32 s55, s55, s{sP}
    s_lshl_b32 s49, s{sKP}, 10
    s_add_u32 s49, s55, s49
    s_mul_i32 s57, s49, 1280
    s_add_u32 s57, s57, s54
    s_mul_i32 s58, s{sW}, 2560
    s_add_u32 s58, s58, {XO}
    s_mov_b32 s70, 0x80008000
    s_brev_b32 s67, 1
    """)
    BT = ZA; XT = UF
    A(f"v_lshlrev_b32 v9, 3, v2\nv_cvt_f32_u32 v9, v9\nv_lshl_add_u32 v10, v1, 6, s49\nv_cvt_f32_u32 v10, v10\nv_mul_f32 v10, {fbits(1/2048)}, v10\nv_mul_f32 v{TC}, v10, v9")
    for j in range(1, 8): A(f"v_add_f32 v{TC+j}, v10, v{TC+j-1}")
    for j in range(8): A(f"v_sin_f32 v{TC+8+j}, v{TC+j}\nv_cos_f32 v{TC+j}, v{TC+j}")
    for q in range(4): A(f"v_cvt_pk_bf16_f32 v{FP+q}, v{TC+2*q}, v{TC+2*q+1}\nv_cvt_pk_bf16_f32 v{FP+4+q}, v{TC+8+2*q}, v{TC+8+2*q+1}")
    for q in range(8): A(f"v_xor_b32 v{FP+8+q}, s67, v{FP+q}")
    if not NAT: A("s_barrier")
    itemoff(OF)
    A("s_waitcnt lgkmcnt(0)")
    srd(A, rO, sOUT, 2048*1280)
    A(f"""
    s_mul_i32 s48, s{sCB}, 80
    s_cmp_ge_u32 s{sCB}, 4
    s_cselect_b32 s51, 640, 0
    s_sub_i32 s48, s48, s51
    s_lshl_b32 s50, s{sKP}, 4
    v_lshl_add_u32 v{TC}, v2, 2, s50
    v_cvt_f32_u32 v{TC}, v{TC}
    v_add_u32 v{TC+1}, s48, v1
    v_cvt_f32_i32 v{TC+1}, v{TC+1}
    """)
    for e in range(5):
        A(f"v_add_f32 v9, {fbits(16.0*e + 0.5)}, v{TC+1}\nv_mul_f32 v9, {fbits(-1/640)}, v9\nv_mul_f32 v10, v{TC}, v9\nv_mul_f32 v{TQ+e}, {fbits(32.0)}, v9\nv_cos_f32 v{TQ+e}, v{TQ+e}")
        for sd in range(2):
            for r in range(4): A(f"v_fmamk_f32 v{SQ+16*e+8*sd+r}, v9, {fbits(r + 1.0 - 32.0*(sd+1))}, v10")
        A(f"v_add_f32 v{TQ+e}, v{TQ+e}, v{TQ+e}")
        for sd in range(2):
            o = SQ + 16*e + 8*sd
            for r in range(4): A(f"v_sin_f32 v{o+4+r}, v{o+r}\nv_cos_f32 v{o+r}, v{o+r}")
    for nt in range(5):
        for i in range(4): A(f"v_mov_b32 v{ACC+(nt*2+1)*4+i}, 0")
    A(f"v_mul_u32_u24 v11, 160, v1\nv_lshl_add_u32 v11, v2, 3, v11\nv_add_u32 v11, s58, v11\ns_mov_b32 s69, 0xffff0000\nv_lshlrev_b32 v10, 3, v2\nv_add_u32 v10, {BO}, v10")
    A(f"s_lshl_b32 s48, s{sKP}, 10\ns_add_u32 s56, s56, s48\ns_xor_b32 s59, s56, 1024\ns_add_u32 s48, s48, 8192\ns_sub_u32 s56, s56, s48\ns_sub_u32 s59, s59, s48\ns_mov_b32 s{sU}, 0\ns_mov_b32 s{sIt}, 9")
    def upd(): return [f"v_add_u32 v{vW}, s{sU}, v{vHB}", f"v_add_u32 v{vH}, s56, v{vW}", f"v_add_u32 v9, s59, v{vW}", f"v_add_u32 v{vT}, s{sU}, v{vTB}"]
    def hrd(b, o): return [f"ds_read_b128 {v(HF+28*b,4)}, v{vH} offset:{o}", f"ds_read_b128 {v(HF+28*b+8,4)}, v{vW} offset:{o}", f"ds_read_b128 {v(HF+28*b+4,4)}, v9 offset:{o}"] + \
                          [f"ds_read_b128 {v(HF+28*b+8+4*nt,4)}, v{vW} offset:{o+1024*nt}" for nt in range(1, 5)]
    def hmm(b): return [mfma(ACC+(nt*2+l)*4, HF+28*b+8+4*nt, HF+28*b+4*l) for nt in range(5) for l in range(2)]
    def trr(o): return [f"ds_read_b64_tr_b16 {v(UF+4*rho+2*jh,2)}, v{vT} offset:{o+512*jh+8*rho}" for rho in (1, 0) for jh in range(2)]
    neg = [f"v_xor_b32 v{UF+8+q}, s70, v{UF+4+q}" for q in range(4)]
    sa = []
    for l in range(2):
        C, S = FP+8*l, FP+8*l+4; re, im = ZA+8*l, ZA+8*l+4
        sa += [mfma(re, UF, C, 0), mfma(im, UF+4, C, 0), mfma(im, UF, S), mfma(re, UF+8, S)]
    cv = [f"v_cvt_pk_bf16_f32 v{ZA+8*l+r}, v{ZA+8*l+r}, v{ZA+8*l+4+r}" for l in range(2) for r in range(4)]
    def fst(par): return [f"v_fma_f32 v{SQ+16*e+8*(par^1)+j}, v{TQ+e}, v{SQ+16*e+8*par+j}, -v{SQ+16*e+8*(par^1)+j}" for e in range(5) for j in range(8)]
    def fcv(par, e): return [f"v_cvt_pk_bf16_f32 v{FI+4*(e%3)+r}, v{SQ+16*e+8*(par^1)+r}, v{SQ+16*e+8*(par^1)+4+r}" for r in range(4)]
    def zmm(e): return [mfma(ACC+(e*2+l)*4, FI+4*(e%3), ZA+8*l) for l in range(2)]
    def mix(main, reads, valu):
        reads, valu = list(reads), list(valu); n = len(main)
        for i, mm in enumerate(main):
            A(mm)
            left = n - i
            nr = -(-len(reads) // left) if reads else 0
            nr = max(nr, 1 if reads else 0)
            for _ in range(nr): A(reads.pop(0))
            nv = max(-(-len(valu) // left), min(len(valu), 2 - nr))
            for _ in range(nv): A(valu.pop(0))
    for x in upd(): A(x)
    T.mark(A)
    A("s_barrier")
    T.mark(A)
    for nt in range(5): A(f"ds_read_b64 {v(XT+2*nt,2)}, v11 offset:{32*nt}\nds_read_b64 {v(BT+2*nt,2)}, v10 offset:{32*nt}")
    for x in hrd(1, 0) + hrd(0, SL): A(x)
    for nt in range(5):
        for h in range(2):
            c = ACC + nt*8 + 2*h
            A(f"v_lshlrev_b32 v{c}, 16, v{XT+2*nt+h}\nv_lshlrev_b32 v10, 16, v{BT+2*nt+h}\nv_and_b32 v{c+1}, s69, v{XT+2*nt+h}\nv_and_b32 v{FI}, s69, v{BT+2*nt+h}")
            A(f"v_add_f32 v{c}, v{c}, v10\nv_add_f32 v{c+1}, v{c+1}, v{FI}")
    adv = [f"s_xor_b32 s{sU}, s{sU}, {2*UN}"]
    def period(par, last):
        f = fst(par)
        A("s_waitcnt lgkmcnt(0)\ns_barrier")
        mix(hmm(1), trr(UN), f[:16])
        mix(hmm(0), hrd(1, UN), neg + f[16:24])
        mix(sa[:6], [], adv + upd() + f[24:30])
        A("s_waitcnt lgkmcnt(0)\ns_barrier")
        mix(sa[6:] + hmm(1), hrd(0, SL), f[30:] + cv + fcv(par, 0) + fcv(par, 1))
        r = hrd(1, 0)
        mix(zmm(0), r[:2], fcv(par, 2)); mix(zmm(1), r[2:4], fcv(par, 3)); mix(zmm(2), r[4:6], fcv(par, 4)); mix(zmm(3) + zmm(4), r[6:], last)
    A(f"s_mov_b32 s{sIt}, 5\nB_CL:")
    period(0, [f"s_sub_u32 s{sIt}, s{sIt}, 1", f"s_cmp_eq_u32 s{sIt}, 0"])
    A("s_cbranch_scc1 B_CE")
    period(1, [])
    A("s_branch B_CL\nB_CE:")
    f = fst(1)
    for x in trr(0) + f[:24] + neg: A(x)
    mix(sa, [], f[24:])
    A(f"s_xor_b32 s48, s{sW}, 2\ns_mul_i32 s48, s48, 5120\nv_add_u32 v9, s48, v3\ns_mul_i32 s48, s{sW}, 5120\nv_add_u32 v10, s48, v3\nv_add_u32 v4, s58, v3")
    for x in fcv(1, 0) + fcv(1, 1) + cv: A(x)
    mix(zmm(0), [], fcv(1, 2)); mix(zmm(1), [], fcv(1, 3)); mix(zmm(2), [], fcv(1, 4)); mix(zmm(3) + zmm(4), [], [])
    T.mark(A)
    for nt in range(5): A(f"ds_write_b128 v9, {v(ACC+(nt*2+1)*4,4)} offset:{EX+1024*nt}")
    A("s_waitcnt lgkmcnt(0)\ns_barrier")
    P = HF
    for nt in range(5): A(f"ds_read_b128 {v(P+4*nt,4)}, v10 offset:{EX+1024*nt}")
    for nt in range(5):
        c = ACC + nt*8
        A(f"v_pk_add_f32 {v(c,2)}, {v(c,2)}, {v(P+4*nt,2)}\nv_pk_add_f32 {v(c+2,2)}, {v(c+2,2)}, {v(P+4*nt+2,2)}")
        A(f"v_cvt_pk_bf16_f32 v{c+4}, v{c}, v{c+1}\nv_cvt_pk_bf16_f32 v{c+5}, v{c+2}, v{c+3}\nds_write_b64 v11, {v(c+4,2)} offset:{32*nt}")
    A("s_waitcnt lgkmcnt(0)")
    for q in range(3): A(f"ds_read_b128 {v(P+20+4*q,4)}, v4 offset:{1024*q}")
    for q in range(3):
        if q == 2: A("s_mov_b32 exec_hi, 0")
        A(f"buffer_store_dwordx4 {v(P+20+4*q,4)}, v{OF+q}, s[{rO}:{rO+3}], s57 offen {ST if 'osc1' in OPT else ''}")
    T.mark(A)
    T.end(A, sW, sWS)
    A(f"{END}:\nCODE_END:")
    return dict(label="b_kernel", body=A.text(), vgpr=256, grid=256, block=512, lds=160*1024)

def gen_pf(do_w, do_h):
    A = Asm()
    A("""
    s_cmp_ge_u32 s2, 256
    s_cbranch_scc1 PF_END
    s_load_dwordx2 s[14:15], s[0:1], 80
    v_lshlrev_b32 v1, 7, v0
    s_and_b32 s40, s2, 7
    s_lshr_b32 s41, s2, 3
    s_waitcnt lgkmcnt(0)
    """)
    srd(A, 16, 14, W2P_SZ, W2P_OFF); srd(A, 20, 14, H_SZ, H_OFF); srd(A, 24, 14, U_SZ, U_OFF)
    if do_w:
        A(f"s_mul_i32 s42, s41, {W2P_SZ//32}")
        for i in range(3): A(f"buffer_load_dword v{2+i}, v1, s[16:19], s42 offen\ns_add_u32 s42, s42, 32768")
    if do_h:
        A(f"s_mul_i32 s42, s40, {H_SZ//8}\ns_mul_i32 s43, s41, {H_SZ//256}\ns_add_u32 s42, s42, s43")
        A(f"buffer_load_dword v6, v1, s[20:23], s42 offen")
        A(f"s_mul_i32 s42, s40, {U_SZ//8}\ns_mul_i32 s43, s41, {U_SZ//256}\ns_add_u32 s42, s42, s43")
        A(f"buffer_load_dword v7, v1, s[24:27], s42 offen")
    A("s_waitcnt vmcnt(0)\nPF_END:")
    return dict(label="pf_kernel", body=A.text(), vgpr=8, grid=256, block=256, lds=0)

def groups(i, shape):
    import numpy as np
    w = np.arange(shape[1])
    if i == 0:
        b = np.arange(256); i8 = (b >> 3) & 7; ch = b & 1
        mlp = i8 < 5 + ch
        return [("mlp", np.ix_(mlp, w < 4)), ("mlp-ld", np.ix_(mlp, w == 4)), ("mlp-h", np.ix_(mlp, (w == 5) | (w == 6))), ("dft", np.ix_(~mlp, w < 4)), ("dft-ld", np.ix_(~mlp, w == 4)), ("dft-h", np.ix_(~mlp, (w == 5) | (w == 6)))]
    al = np.ones(shape[0], bool)
    return [("comp", np.ix_(al, w < 4)), ("ld", np.ix_(al, w == 4)), ("ldw", np.ix_(al, w == 5))]

if __name__ == "__main__":
    st = "stamps" in sys.argv
    OPT.update(sys.argv[2:])
    ks = [gen_a(st), gen_b(st)]
    for x in sys.argv:
        if x.startswith("abl:"):
            _, ki, l0, l1, pre = x.split(":")
            out = []; on = False
            for l in ks[int(ki)]["body"].split("\n"):
                t = l.strip()
                if t == l0 + ":": on = True
                if t == l1 + ":": on = False
                if on and any(t.startswith(p) for p in pre.split(",")): continue
                out.append(l)
            ks[int(ki)]["body"] = "\n".join(out)
    for x in sys.argv:
        if x.startswith("diag:"):
            import diag
            p = x.split(":")[1:]
            ks.append(diag.gen_diag(tuple([p[0]] + [int(y) for y in p[1:]]), STAMP_OFF))
    if "pfw" in sys.argv or "pfh" in sys.argv: ks.insert(1, gen_pf("pfw" in sys.argv, "pfh" in sys.argv))
    open(sys.argv[1], "w").write(file_text(ks))
```

```python
import struct, math, sys
from asmlib import *

def fbits(x): return "0x%08x" % struct.unpack("<I", struct.pack("<f", x))[0]

H_OFF = 0;            H_SZ = 32*54*4096
W2P_OFF = 8 << 20;    W2P_SZ = 8*54*5120
V_OFF = 12 << 20;     V_SZ = 32*20*64*64
U_OFF = 16 << 20;     U_SZ = V_SZ
FLG_OFF = 20 << 20;   FLG_SZ = 80*256
STAMP_OFF = 64 << 20
ST = "sc1"
OPT = set()

K0 = -2.0*math.sqrt(2.0/math.pi)*math.log2(math.e)
K1c = K0*0.044715
MF = "v_mfma_f32_16x16x32_bf16"

def mfma(d, x, y, c=None):
    return f"{MF} {v(d,4)}, {v(x,4)}, {v(y,4)}, {v(d,4) if c is None else c}"

def srd(A, d, lo, nbytes, add=0):
    A.prot -= set(range(d, d+4))
    if add: A(f"s_add_u32 s{d}, s{lo}, {add}\ns_addc_u32 s{d+1}, s{lo+1}, 0")
    else: A(f"s_mov_b32 s{d}, s{lo}\ns_mov_b32 s{d+1}, s{lo+1}")
    A(f"s_mov_b32 s{d+2}, {nbytes}\ns_mov_b32 s{d+3}, 0x20000")
    A.prot |= set(range(d, d+4))

def bf16_round(A, dst, src):
    A(f"v_cvt_pk_bf16_f32 v{dst}, v{src}, v{src}\nv_lshlrev_b32 v{dst}, 16, v{dst}")

def weave(A, main, fill, per=None, start=0):
    fill = list(fill); n = len(main) - start; done = 0
    for i, m in enumerate(main):
        A(m)
        if i < start: continue
        want = min(len(fill), int(math.ceil((i - start + 1) * per))) if per else (len(fill) * (i - start + 1) + n - 1) // n
        while done < want: A(fill[done]); done += 1
    while done < len(fill): A(fill[done]); done += 1

def stats_from_mfma(A, SUM, GR, vN, vG, t0, t1, mean=True):
    A(f"v_cndmask_b32 v{GR}, v{GR}, v{GR+1}, s[60:61]\nv_cndmask_b32 v{GR+2}, v{GR+2}, v{GR+3}, s[60:61]")
    A(f"v_cndmask_b32 v{GR}, v{GR}, v{GR+2}, s[62:63]")
    A(f"ds_bpermute_b32 v{GR}, v{vG}, v{GR}")
    A(f"v_mul_f32 v{SUM}, {fbits(1/640)}, v{SUM}")
    A(f"v_mul_f32 v{t0}, v{SUM}, v{SUM}")
    A(f"v_fma_f32 v{GR}, v{GR}, s66, -v{t0}")
    A(f"v_max_f32 v{GR}, 0, v{GR}")
    bf16_round(A, GR, GR)
    A(f"v_add_f32 v{GR}, {fbits(1e-5)}, v{GR}")
    bf16_round(A, GR, GR)
    A(f"v_sqrt_f32 v{GR}, v{GR}")
    bf16_round(A, GR, GR)
    if mean: bf16_round(A, SUM, SUM)

def stats_setup(A, vBP):
    A(f"""
    v_and_b32 v{vBP}, 1, v1
    v_cmp_eq_u32 s[60:61], 1, v{vBP}
    v_and_b32 v{vBP}, 2, v1
    v_cmp_eq_u32 s[62:63], 2, v{vBP}
    v_lshrrev_b32 v{vBP}, 2, v1
    v_lshl_add_u32 v{vBP}, v{vBP}, 4, v1
    v_lshlrev_b32 v{vBP}, 2, v{vBP}
    s_mov_b32 s66, {fbits(1/640)}
    """)

class Stamp:
    def __init__(self, on, slot): self.on = on; self.slot = slot; self.n = 0
    def start(self, A):
        if self.on: A("s_memtime s[90:91]\ns_memrealtime s[92:93]\ns_mov_b32 s80, 0\ns_mov_b32 s82, 0\ns_mov_b32 s84, 0\ns_mov_b32 s86, 0\ns_mov_b32 s88, 0")
    def at(self, A, mode, i):
        if self.on and (mode in OPT or (mode == "mB" and not OPT & {"mA", "mT"})):
            A(f"s_memtime s[{80+2*i}:{81+2*i}]"); A.lg.pop()
    def mark(self, A):
        if self.on and "mA" in OPT:
            A(f"s_memtime s[{80+2*self.n}:{81+2*self.n}]"); A.lg.pop(); self.n += 1; assert self.n <= 5
    def end(self, A, wave_s, ws_lo):
        if not self.on: return
        self.n = 5
        A("s_waitcnt vmcnt(0)")
        A("s_memtime s[94:95]\ns_memrealtime s[96:97]\ns_waitcnt lgkmcnt(0)")
        A("s_sub_u32 s94, s94, s90")
        for i in range(5):
            if i < self.n: A(f"s_sub_u32 s{80+2*i}, s{80+2*i}, s90")
            else: A(f"s_mov_b32 s{80+2*i}, -1")
        A("s_mov_b64 exec, 1")
        A("v_mov_b32 v0, s94\nv_mov_b32 v1, s92\nv_mov_b32 v2, s96\nv_mov_b32 v3, s80")
        A("v_mov_b32 v4, s82\nv_mov_b32 v5, s84\nv_mov_b32 v6, s86\nv_mov_b32 v7, s88")
        srd(A, 76, ws_lo, 0x10000000)
        A(f"s_lshl_b32 s98, s2, 3\ns_add_u32 s98, s98, s{wave_s}\ns_lshl_b32 s98, s98, 5\ns_add_u32 s98, s98, {STAMP_OFF + self.slot*131072}")
        A("v_mov_b32 v8, 0")
        A("buffer_store_dwordx4 v[0:3], v8, s[76:79], s98 offen\nbuffer_store_dwordx4 v[4:7], v8, s[76:79], s98 offen offset:16")
        self.n = 0

def optval(name, default):
    for x in OPT:
        if x.startswith(name + "="): return int(x[len(name)+1:])
    return default

def reset(A): A.lg = []; A.vm = []

def job_consts(A, CF, SF, TA):
    A(f"v_lshlrev_b32 v5, 2, v2\nv_cvt_f32_u32 v5, v5\nv_cvt_f32_u32 v6, v1\nv_mul_f32 v6, {fbits(1/64)}, v6\nv_mul_f32 v7, v6, v5")
    for j in range(8): A(f"v_fmamk_f32 v{TA+j}, v6, {fbits(16.0*(j>>2) + (j&3))}, v7")
    for j in range(8): A(f"v_sin_f32 v{TA+8+j}, v{TA+j}\nv_cos_f32 v{TA+j}, v{TA+j}")
    cf = lambda mt, t, p: CF+(mt*2+t)*4+p
    sf = lambda mt, t, p: SF+(mt*2+t)*4+p
    A("s_brev_b32 s67, 1")
    for p in range(4):
        c0, c1, s0, s1 = TA+2*p, TA+2*p+1, TA+8+2*p, TA+8+2*p+1
        A(f"v_cvt_pk_bf16_f32 v{cf(0,0,p)}, v{c0}, v{c1}\nv_cvt_pk_bf16_f32 v{sf(0,0,p)}, v{s0}, v{s1}")
        if p % 2 == 0: A(f"v_cvt_pk_bf16_f32 v{cf(1,0,p)}, v{c0}, -v{s1}\nv_cvt_pk_bf16_f32 v{sf(1,0,p)}, v{s0}, v{c1}")
        else: A(f"v_cvt_pk_bf16_f32 v{cf(1,0,p)}, -v{c0}, v{s1}\nv_cvt_pk_bf16_f32 v{sf(1,0,p)}, -v{s0}, -v{c1}")
    A("v_and_b32 v5, 1, v1\nv_mul_u32_u24 v5, 0x8000, v5\nv_lshl_or_b32 v5, v5, 16, v5")
    for f in (cf, sf):
        for mt in (2, 3):
            for p in range(4): A(f"v_xor_b32 v{f(mt,0,p)}, s67, v{f(mt-2,0,p)}")
        for mt in range(4):
            for p in range(4): A(f"v_xor_b32 v{f(mt,1,p)}, v5, v{f(mt,0,p)}")

def gen_all(stamps=False):
    A = Asm(); T = Stamp(stamps, 0)
    END = "A_END"
    OPT.update({"hold", "spoll", "apoll"})
    if not OPT & {"g3", "g10"}: OPT.add("g4")
    sX, sWR, sW1, sB1, sW2, sWS, sWI, sDBG = 4, 6, 8, 10, 12, 14, 74, 72
    PTRS = set(range(4, 16)) | {0, 1, 72, 73, 74, 75, 2, 32, 33, 35, 37, 40, 41, 43, 44, 45}
    rX, rA, rB, rC, rD = 16, 20, 24, 28, 56
    sW, sR, sC0, sS2, sCol = 32, 33, 35, 36, 37
    SLOT = 36864; NS = 3
    PS = 32768; FX = 3*PS
    GAP = 122880; JST = 126976
    C1X = STAT = GAP; B1X = JST
    PFM = optval("pfm", 6)
    if "g3" in OPT: ROT = f"s_add_u32 s46, s44, s45\ns_mul_i32 s{sC0}, s46, 43\ns_lshr_b32 s{sC0}, s{sC0}, 7\ns_mul_i32 s{sC0}, s{sC0}, 3\ns_sub_u32 s46, s46, s{sC0}\ns_mul_i32 s46, s46, 27\ns_lshr_b32 s{sC0}, s46, 3"
    elif "g4" in OPT: ROT = f"s_add_u32 s46, s44, s45\ns_and_b32 s46, s46, 3\ns_mul_i32 s46, s46, 5\ns_add_u32 s46, s46, 1\ns_lshr_b32 s{sC0}, s46, 1"
    else: ROT = f"""s_mul_i32 s46, s44, 5
    s_add_u32 s46, s46, 1
    s_lshr_b32 s46, s46, 1
    s_add_u32 s{sC0}, s46, s45
    s_cmp_ge_u32 s{sC0}, 10
    s_cselect_b32 s46, 10, 0
    s_sub_u32 s{sC0}, s{sC0}, s46"""
    A(f"s_cmp_ge_u32 s2, 256\ns_cbranch_scc1 {END}")
    T.start(A)
    if "nocpf" not in OPT:
        A(f"""
        s_getpc_b64 s[70:71]
        A_PC:
        s_lshr_b32 s46, s2, 3
        s_lshl_b32 s46, s46, 11
        v_lshrrev_b32 v10, 5, v0
        v_lshl_add_u32 v10, v10, 7, s46
        v_min_u32 v10, CODE_END-A_PC-4, v10
        v_mov_b32 v11, s71
        v_add_co_u32 v10, vcc, s70, v10
        v_addc_co_u32 v11, vcc, 0, v11, vcc
        global_load_dword v255, v[10:11], off
        """)
        reset(A)
    A(f"""
    s_load_dwordx4 s[{sX}:{sX+3}], s[0:1], 0
    s_load_dwordx4 s[{sW1}:{sW1+3}], s[0:1], 32
    s_load_dwordx2 s[{sW2}:{sW2+1}], s[0:1], 48
    s_load_dwordx2 s[{sWS}:{sWS+1}], s[0:1], 80
    s_load_dwordx2 s[{sWI}:{sWI+1}], s[0:1], 16
    s_load_dwordx2 s[{sDBG}:{sDBG+1}], s[0:1], 72
    v_lshrrev_b32 v1, 6, v0
    v_and_b32 v0, 63, v0
    v_readfirstlane_b32 s{sW}, v1
    s_and_b32 s40, s2, 7
    s_lshr_b32 s41, s2, 3
    s_lshr_b32 s42, s40, 1
    s_and_b32 s43, s40, 1
    s_lshr_b32 s44, s41, 3
    s_and_b32 s45, s41, 7
    s_lshl_b32 s{sR}, s42, 2
    s_add_u32 s{sR}, s{sR}, s44
    {ROT}
    s_mul_i32 s{sCol}, s43, 5
    s_add_u32 s{sCol}, s{sCol}, s45
    s_mul_i32 s{sCol}, s{sCol}, 160
    s_min_u32 s{sCol}, s{sCol}, 1568
    s_add_u32 s47, s43, 5
    v_and_b32 v1, 15, v0
    v_lshrrev_b32 v2, 4, v0
    s_cmp_lg_u32 s{sW}, 4
    s_cbranch_scc1 A_NOTLD
    """)
    A.prot = set(PTRS)
    def div20(dst, i, stride, swz, t=(14, 15, 16)):
        A(f"""
        v_add_u32 v{t[0]}, {64*i}, v0
        v_mul_hi_u32 v{t[1]}, v{t[0]}, s52
        v_mul_u32_u24 v{t[2]}, 20, v{t[1]}
        v_sub_u32 v{t[2]}, v{t[0]}, v{t[2]}
        """)
        if swz: A(f"v_lshrrev_b32 v{t[0]}, 2, v{t[1]}\nv_and_b32 v{t[0]}, 2, v{t[0]}\nv_xor_b32 v{t[2]}, v{t[2]}, v{t[0]}")
        A(f"v_mul_u32_u24 v{t[1]}, {stride}, v{t[1]}\nv_lshl_add_u32 v{dst}, v{t[2]}, 4, v{t[1]}")
        if 0 < i < 4: A(f"v_subrev_u32 v{dst}, {1024*i}, v{dst}")
    sCh, sSl, sXo, sWo, sIt = 49, 50, 51, 53, 54
    sH, sL, sKT, sU1, sWL = 34, 38, 39, 48, 55
    rWR, rWI = rA, rC
    def jobpar():
        A(f"""
        s_lshl_b32 s{sU1}, s40, 2
        s_add_u32 s{sU1}, s{sU1}, s44
        s_mul_i32 s{sKT}, s45, 5
        s_add_u32 s{sKT}, s{sKT}, 1
        s_lshr_b32 s{sKT}, s{sKT}, 1
        """)
    def pf_w():
        srd(A, rWR, sWR, 2048*642); srd(A, rWI, sWI, 2048*642)
        A(f"""
        v_lshrrev_b32 v14, 5, v0
        v_mul_u32_u24 v14, 20544, v14
        v_and_b32 v15, 31, v0
        v_min_u32 v15, 21, v15
        v_lshl_add_u32 v14, v15, 7, v14
        s_mul_i32 s62, s41, {2*20544}
        s_mul_i32 s63, s40, 2568
        s_add_u32 s62, s62, s63
        buffer_load_ubyte v18, v14, s[{rWR}:{rWR+3}], s62 offen
        buffer_load_ubyte v19, v14, s[{rWI}:{rWI+3}], s62 offen
        """)
    A(f"""
    s_setprio 3
    v_lshrrev_b32 v3, 3, v0
    v_mul_u32_u24 v3, 81920, v3
    v_and_b32 v4, 7, v0
    v_xor_b32 v4, v4, v2
    v_lshl_add_u32 v4, v4, 4, v3
    v_xor_b32 v5, 64, v4
    v_add_u32 v5, {655360-1024}, v5
    v_add_u32 v6, {2*(655360-1024)}, v4
    v_add_u32 v7, {2*(655360-1024)}, v5
    s_mul_i32 s52, s{sR}, 5120
    s_mov_b32 s{sSl}, 0
    s_mov_b32 s{sIt}, 0
    s_mov_b32 s{rX+2}, {2048*1280}
    s_mov_b32 s{rX+3}, 0x20000
    v_lshlrev_b32 v3, 7, v0
    s_cmp_ge_u32 s45, s47
    s_cbranch_scc1 A_LD_DFT
    s_mov_b32 s{sCh}, s{sC0}
    s_waitcnt lgkmcnt(0)
    s_mov_b64 s[{rX}:{rX+1}], s[{sX}:{sX+1}]
    """)
    A.prot |= set(range(rX, rX+4))
    def xblock(base):
        for w in range(4):
            A(f"s_add_u32 m0, s{sSl}, {base+4096*w}\ns_add_u32 s{sXo}, s{sXo}, 1280")
            for i in range(4): A(f"buffer_load_dwordx4 v{4+i}, s[{rX}:{rX+3}], s{sXo} offen offset:{1024*i} lds")
    def ring_tail(lab, nch, slot, nld, pace=False):
        A(f"""
        s_add_u32 s{sCh}, s{sCh}, 1
        s_cmp_eq_u32 s{sCh}, {nch}
        s_cselect_b32 s{sCh}, 0, s{sCh}
        s_add_u32 s{sSl}, s{sSl}, {slot}
        s_cmp_eq_u32 s{sSl}, {3*slot}
        s_cselect_b32 s{sSl}, 0, s{sSl}
        s_add_u32 s{sIt}, s{sIt}, 1
        s_cmp_eq_u32 s{sIt}, 1
        s_cbranch_scc1 {lab + ("P" if pace else "")}
        s_cmp_lt_u32 s{sIt}, {nch}
        s_waitcnt vmcnt({nld})
        s_barrier
        s_cbranch_scc1 {lab}
        """)
        reset(A)
    A(f"s_sub_u32 s52, s52, 1280")
    T.mark(A)
    A(f"A_LDMP:\ns_waitcnt vmcnt({optval('pace', 15)})\nA_LDM:\ns_lshl_b32 s{sXo}, s{sCh}, 7\ns_add_u32 s{sXo}, s{sXo}, s52")
    xblock(0)
    ring_tail("A_LDM", 10, SLOT, 16, True)
    srd(A, rB, sB1, 1728*2)
    A(f"v_lshlrev_b32 v3, 4, v0\ns_lshl_b32 s46, s{sCol}, 1\ns_mov_b32 m0, {B1X}\ns_mov_b64 exec, 0xfffff\nbuffer_load_dwordx4 v3, s[{rB}:{rB+3}], s46 offen lds\ns_mov_b64 exec, -1")
    pf_w()
    A(f"s_waitcnt vmcnt(3)\ns_barrier")
    T.mark(A)
    A("s_waitcnt vmcnt(2)\ns_barrier\ns_barrier\ns_branch B_LH")
    A.prot = set(PTRS)
    A("A_LD_DFT:")
    reset(A); T.n = 0
    A(f"""
    s_sub_u32 s52, s52, 1280
    s_mov_b32 s{sCh}, 0
    s_waitcnt lgkmcnt(0)
    s_mov_b64 s[{rX}:{rX+1}], s[{sX}:{sX+1}]
    """)
    A.prot |= set(range(rX, rX+4))
    T.mark(A)
    A(f"A_LDD:\ns_lshl_b32 s{sXo}, s{sCh}, 7\ns_add_u32 s{sXo}, s{sXo}, s52")
    xblock(0)
    A(f"s_sub_u32 s{sXo}, s{sXo}, {4*1280-640}")
    xblock(16384)
    ring_tail("A_LDD", 5, PS, 32)
    pf_w()
    A("s_waitcnt vmcnt(2)\ns_barrier")
    T.mark(A)
    A("s_barrier\ns_barrier\ns_barrier\ns_branch B_LH")

    reset(A); T.n = 0
    A.prot = set(PTRS)
    A(f"A_NOTLD:\ns_cmp_lt_u32 s{sW}, 4\ns_cbranch_scc1 A_COMPUTE")
    CF, SF = 16, 48; WR, WI = 80, 96; XA = 112; VF = 144; TA = 168; YF = 184; UA = 208
    A(f"""
    s_sub_u32 s{sH}, s{sW}, 5
    s_mul_i32 s{sL}, s{sH}, 12288
    s_add_u32 s{sL}, s{sL}, {JST}
    v_lshlrev_b32 v3, 4, v0
    s_mov_b32 s52, {(1<<32)//20+1}
    s_cmp_lg_u32 s{sH}, 0
    s_cbranch_scc1 A_H0
    s_cmp_ge_u32 s45, s47
    s_cbranch_scc1 A_H1
    s_setprio 3
    """)
    for i in range(5): div20(9+i, i, 3456, True)
    A(f"s_mov_b32 s{sCh}, s{sC0}\ns_lshl_b32 s52, s{sCol}, 1\ns_sub_u32 s52, s52, {16*3456}\ns_mov_b32 s{sSl}, 0\ns_mov_b32 s{sIt}, 0\ns_waitcnt lgkmcnt(0)")
    srd(A, rA, sW1, 640*3456)
    A(f"A_LDW:\ns_mul_i32 s{sWo}, s{sCh}, {64*3456}\ns_add_u32 s{sWo}, s{sWo}, s52")
    for q in range(4):
        A(f"s_add_u32 m0, s{sSl}, {16384+5120*q}\ns_add_u32 s{sWo}, s{sWo}, {16*3456}")
        for i in range(4): A(f"buffer_load_dwordx4 v{9+i}, s[{rA}:{rA+3}], s{sWo} offen offset:{1024*i} lds")
        A(f"s_add_u32 m0, s{sSl}, {16384+5120*q+4096}")
        A(f"buffer_load_dwordx4 v13, s[{rA}:{rA+3}], s{sWo} offen lds")
    A(f"s_cmp_lg_u32 s{sIt}, 0\ns_cbranch_scc1 A_LDW1\ns_mov_b32 s62, 1\ns_branch A_H2\nA_LDW1:")
    ring_tail("A_LDW", 10, SLOT, 20)
    srd(A, rD, sWS, FLG_SZ, FLG_OFF)
    A("s_setprio 0\ns_mov_b32 s53, 3\ns_movk_i32 s55, 999\ns_branch A_HM")
    A("A_H0:")
    A("A_H1:\ns_mov_b32 s62, 0\ns_waitcnt lgkmcnt(0)")
    reset(A)
    rF = rD
    srd(A, rF, sWS, FLG_SZ, FLG_OFF)
    A(f"s_xor_b32 s46, s{sH}, 1\ns_or_b32 s46, s2, s46\ns_cmp_lg_u32 s46, 0\ns_cbranch_scc1 A_H2")
    srd(A, rB, sDBG, 256)
    A(f"v_lshlrev_b32 v4, 8, v0\nv_mov_b32 v5, 0\nbuffer_store_dword v5, v4, s[{rF}:{rF+3}], 0 offen sc1\ns_movk_i32 s46, 16384\nbuffer_store_dword v5, v4, s[{rF}:{rF+3}], s46 offen sc1\nv_mov_b32 v6, 1\ns_waitcnt vmcnt(0)")
    A(f"buffer_store_dword v6, v4, s[{rB}:{rB+3}], 0 offen sc1")
    A("A_H2:")
    reset(A)
    job_consts(A, CF, SF, TA)
    jobpar()
    A("s_cmp_eq_u32 s62, 1\ns_cbranch_scc1 A_LDW1")
    sE = 55
    def repack_load():
        for i in range(5): div20(9+i, i, 1280, False, (4, 5, 6))
        A(f"s_lshr_b32 s46, s{sE}, 2\ns_mul_i32 s46, s46, 40960\ns_and_b32 s52, s{sE}, 3\ns_mul_i32 s52, s52, 320\ns_add_u32 s46, s46, s52")
        srd(A, rA, sW2, 1728*1280)
        for q in range(2):
            A(f"s_add_u32 m0, s{sL}, {5120*q}")
            for i in range(4): A(f"buffer_load_dwordx4 v{9+i}, s[{rA}:{rA+3}], s46 offen offset:{1024*i} lds")
            A(f"s_add_u32 m0, s{sL}, {5120*q+4096}\nbuffer_load_dwordx4 v13, s[{rA}:{rA+3}], s46 offen lds")
            if q == 0: A(f"s_add_u32 s46, s46, {16*1280}")
        reset(A)
    def repack():
        srd(A, rB, sWS, W2P_SZ, W2P_OFF)
        A(f"""
        v_lshrrev_b32 v5, 2, v1
        v_lshl_add_u32 v5, v2, 2, v5
        v_mul_u32_u24 v5, 320, v5
        v_and_b32 v6, 3, v1
        v_lshl_add_u32 v5, v6, 3, v5
        v_add_u32 v5, s{sL}, v5
        v_add_u32 v6, 4096, v3
        s_and_b32 s46, s{sE}, 3
        s_mul_i32 s46, s46, 108
        s_lshr_b32 s52, s{sE}, 2
        s_add_u32 s46, s46, s52
        s_mul_i32 s46, s46, 5120
        s_waitcnt vmcnt(0)
        """)
        for nt in range(10):
            for jh in range(2): A(f"ds_read_b64_tr_b16 {v(YF+4*nt+2*jh,2)}, v5 offset:{jh*5120 + nt*32}")
        for nt in range(10):
            q = nt % 5
            if q < 4: A(f"buffer_store_dwordx4 {v(YF+4*nt,4)}, v3, s[{rB}:{rB+3}], s46 offen offset:{1024*q} {ST}")
            else: A(f"buffer_store_dwordx4 {v(YF+4*nt,4)}, v6, s[{rB}:{rB+3}], s46 offen {ST}\ns_add_u32 s46, s46, {54*5120}")
        reset(A)
    def signal2(line_expr, last, inc):
        L = A.label()
        A(f"{line_expr}\ns_lshl_b32 s46, s46, 8\ns_mov_b32 s66, 1\ns_waitcnt vmcnt(0)")
        A.raw(f"s_atomic_add s66, s[{rD}:{rD+1}], s46 glc")
        A(f"v_lshlrev_b32 v4, 8, v0\nv_mov_b32 v5, {inc}\ns_movk_i32 s46, {48*256}\ns_waitcnt lgkmcnt(0)\ns_cmp_lg_u32 s66, {last}\ns_cbranch_scc1 {L}")
        A(f"buffer_atomic_add v5, v4, s[{rD}:{rD+3}], s46 offen sc1\n{L}:")
        reset(A)
    def initcheck():
        L, G = A.label(), A.label()
        A(f"s_mov_b32 s61, 200000\n{L}:\ns_waitcnt lgkmcnt(0)\ns_cmp_eq_u32 s60, 1\ns_cbranch_scc1 {G}")
        A(f"s_sub_u32 s61, s61, 1\ns_cmp_eq_u32 s61, 0\ns_cbranch_scc1 {G}\ns_sleep 32\ns_load_dword s60, s[{sDBG}:{sDBG+1}], 0 glc\ns_branch {L}\n{G}:")
        reset(A)
    A(f"""
    s_lshl_b32 s46, s43, 1
    s_add_u32 s46, s46, s45
    s_sub_u32 s46, s46, 5
    s_mul_i32 s{sE}, s{sR}, 5
    s_add_u32 s{sE}, s{sE}, s46
    s_mul_i32 s{sE}, s{sE}, 3
    s_add_u32 s{sE}, s{sE}, s{sH}
    s_cmp_ge_u32 s45, s47
    s_cselect_b32 s53, {8 if "hold" in OPT else 7}, 12
    s_cselect_b32 s{sE}, s{sE}, 999
    """)
    T.mark(A)
    A(f"A_HM:\ns_cmp_lg_u32 s53, 3\ns_cbranch_scc1 A_HM2\ns_load_dword s60, s[{sDBG}:{sDBG+1}], 0\ns_waitcnt vmcnt(0)")
    reset(A)
    if "hold" in OPT:
        A(f"s_cmp_ge_u32 s{sE}, 216\ns_cbranch_scc1 A_HM3")
        repack()
        A(f"s_branch A_HM3\nA_HM2:\ns_cmp_lg_u32 s53, 4\ns_cbranch_scc1 A_HM2b\ns_cmp_ge_u32 s{sE}, 216\ns_cbranch_scc1 A_HM3")
        repack_load()
    else:
        A(f"s_cmp_ge_u32 s{sE}, 216\ns_cbranch_scc1 A_HM3")
        repack_load()
        A("A_HM2:")
    A("A_HM2b:\ns_cmp_lg_u32 s53, 2\ns_cbranch_scc1 A_HM2c")
    initcheck()
    A(f"s_branch A_HM3\nA_HM2c:\ns_cmp_lg_u32 s53, 1\ns_cbranch_scc1 A_HM3\ns_cmp_ge_u32 s{sE}, 216\ns_cbranch_scc1 A_HM3")
    signal2(f"s_and_b32 s46, s{sE}, 7\ns_add_u32 s46, s46, 40", 26, 1 << 16)
    A("A_HM3:\ns_sub_u32 s53, s53, 1\ns_cmp_lg_u32 s53, 0\ns_barrier\ns_cbranch_scc1 A_HM")
    if "hold" not in OPT:
        A(f"s_cmp_ge_u32 s{sE}, 216\ns_cbranch_scc1 A_HM4")
        repack()
        A("A_HM4:")
    T.mark(A)
    A(f"""
    A_JOB:
    s_and_b32 s46, s45, 1
    s_add_u32 s46, s46, s{sH}
    s_cmp_ge_u32 s46, 3
    s_cbranch_scc1 A_JE
    s_add_u32 s{sKT}, s{sKT}, s{sH}
    v_lshrrev_b32 v4, 2, v0
    v_mul_u32_u24 v4, 20544, v4
    v_and_b32 v5, 3, v0
    v_min_u32 v5, 2, v5
    v_lshl_add_u32 v4, v5, 4, v4
    s_mul_i32 s62, s{sU1}, 321
    s_lshl_b32 s63, s{sKT}, 4
    s_add_u32 s62, s62, s63
    s_add_u32 s62, s62, 1
    s_lshl_b32 s62, s62, 1
    s_and_b32 s63, s62, 2
    s_sub_u32 s62, s62, s63
    s_add_u32 s63, s63, s{sL}
    s_add_u32 s63, s63, 4096
    """)
    srd(A, rWR, sWR, 2048*642); srd(A, rWI, sWI, 2048*642)
    for q in range(4):
        A(f"s_add_u32 m0, s{sL}, {4096+1024*q}\nbuffer_load_dwordx4 v4, s[{rWR}:{rWR+3}], s62 offen lds")
        A(f"s_add_u32 m0, s{sL}, {8192+1024*q}\nbuffer_load_dwordx4 v4, s[{rWI}:{rWI+3}], s62 offen lds")
        if q < 3: A(f"s_add_u32 s62, s62, {16*20544}")
    reset(A)
    rV, rU = rX, rB
    srd(A, rV, sWS, V_SZ, V_OFF); srd(A, rU, sWS, U_SZ, U_OFF)
    for i in range(32): A(f"v_mov_b32 v{WR+i}, 0")
    A(f"""
    v_lshrrev_b32 v5, 2, v1
    v_lshl_add_u32 v5, v2, 2, v5
    v_lshlrev_b32 v5, 6, v5
    v_and_b32 v6, 3, v1
    v_lshl_add_u32 v5, v6, 4, v5
    v_add_u32 v5, s{sL}, v5
    v_lshlrev_b32 v6, 8, v2
    v_lshl_add_u32 v6, v1, 1, v6
    v_add_u32 v6, s63, v6
    s_mov_b32 s70, 0x80008000
    s_mul_i32 s47, s{sU1}, 20
    s_add_u32 s47, s47, s{sKT}
    s_lshl_b32 s47, s47, 12
    s_waitcnt vmcnt(0)
    """)
    for mt in range(4):
        for r in range(4):
            for ar in range(2): A(f"ds_read_u16_d16_hi v{(WR,WI)[ar]+4*mt+r}, v6 offset:{4096*ar+(16*mt+r)*64}")
    if "spoll" in OPT:
        A(f"""
        s_setprio 3
        s_lshl_b32 s46, s{sKT}, 8
        s_mov_b32 s61, 100000
        s_mov_b32 m0, s{sL}
        A_POLL:
        {"s_mov_b32 s60, 0" if "apoll" in OPT else ""}
        {"s_atomic_add" if "apoll" in OPT else "s_load_dword"} s60, s[{rF}:{rF+1}], s46 glc
        s_waitcnt lgkmcnt(0)
        s_cmp_eq_u32 s60, 16
        s_cbranch_scc1 A_PD
        s_sub_u32 s61, s61, 1
        s_cmp_eq_u32 s61, 0
        s_cbranch_scc1 A_PD
        s_sleep {optval('ps', 2)}
        s_branch A_POLL
        A_PD:
        """)
    elif "vpoll" in OPT:
        A(f"""
        s_setprio 3
        v_mov_b32 v7, 0
        s_lshl_b32 s46, s{sKT}, 8
        s_mov_b32 s61, 100000
        s_mov_b32 m0, s{sL}
        A_POLL:
        buffer_load_dword v8, v7, s[{rF}:{rF+3}], s46 offen {"sc0 sc1" if "sys" in OPT else "sc1"}
        s_waitcnt vmcnt(0)
        v_cmp_ne_u32 vcc, 16, v8
        s_cbranch_vccz A_PD
        s_sub_u32 s61, s61, 1
        s_cmp_eq_u32 s61, 0
        s_cbranch_scc1 A_PD
        s_sleep {optval('ps', 8)}
        s_branch A_POLL
        A_PD:
        """)
    else:
        A(f"""
        s_setprio 3
        v_mov_b32 v7, 0
        s_lshl_b32 s46, s{sKT}, 8
        s_add_u32 s46, s46, {20*256}
        s_mov_b32 s61, 100000
        s_mov_b32 m0, s{sL}
        A_POLL:
        buffer_load_dword v8, v7, s[{rF}:{rF+3}], s46 offen sc1
        s_waitcnt vmcnt(0)
        v_cmp_ne_u32 vcc, 1, v8
        s_cbranch_vccz A_PD
        s_sub_u32 s61, s61, 1
        s_cmp_eq_u32 s61, 0
        s_cbranch_scc1 A_PD
        s_sleep {optval('ps', 3)}
        s_branch A_POLL
        A_PD:
        """)
    T.n = 2; T.mark(A)
    for i in range(4): A(f"buffer_load_dwordx4 v3, s[{rV}:{rV+3}], s47 offen offset:{1024*i} sc1 lds")
    A(f"""
    v_lshrrev_b32 v9, 1, v1
    v_and_b32 v9, 3, v9
    v_xor_b32 v9, v9, v2
    v_lshlrev_b32 v9, 4, v9
    v_lshl_add_u32 v9, v1, 6, v9
    v_add_u32 v9, s{sL}, v9
    v_lshrrev_b32 v6, 3, v0
    v_and_b32 v7, 3, v6
    v_lshlrev_b32 v7, 4, v7
    v_xor_b32 v7, v7, v3
    v_add_u32 v7, s{sL}, v7
    v_mul_u32_u24 v6, 81920, v6
    v_and_b32 v8, 7, v0
    v_lshl_add_u32 v6, v8, 4, v6
    s_lshl_b32 s47, s{sKT}, 12
    s_lshl_b32 s46, s{sU1}, 7
    s_add_u32 s47, s47, s46
    s_cmp_eq_u32 s{sKT}, 19
    s_cselect_b32 s46, 0.5, 1.0
    v_cmp_eq_u32 vcc, 3, v2
    v_mov_b32 v8, s46
    v_cndmask_b32 v8, 1.0, v8, vcc
    s_waitcnt vmcnt(0) lgkmcnt(0)
    """)
    T.mark(A)
    for t in range(2):
        for rho in range(2):
            for jh in range(2): A(f"ds_read_b64_tr_b16 {v(VF+12*t+4*rho+2*jh,2)}, v5 offset:{2048*t+1024*jh+8*rho}")
    for t in range(2):
        for p in range(4): A(f"v_xor_b32 v{VF+12*t+8+p}, s70, v{VF+12*t+p}")
    def fwd(mt):
        m = []
        for t in range(2):
            re, im = XA+8*mt, XA+8*mt+4
            C, S = CF+(mt*2+t)*4, SF+(mt*2+t)*4
            m += [mfma(re, C, VF+12*t, None if t else 0), mfma(im, C, VF+12*t+4, None if t else 0), mfma(re, S, VF+12*t+4), mfma(im, S, VF+12*t+8)]
        return m
    def filt(mt):
        f = []
        tb = TA + 8*(mt & 1)
        for r in range(4):
            xr, xi, w_r, w_i = XA+8*mt+r, XA+8*mt+4+r, WR+4*mt+r, WI+4*mt+r
            f += [f"v_mul_f32 v{tb+r}, v{xi}, v{w_i}", f"v_mul_f32 v{tb+4+r}, v{xr}, v{w_i}", f"v_fma_f32 v{tb+r}, v{xr}, v{w_r}, -v{tb+r}", f"v_fmac_f32 v{tb+4+r}, v{xi}, v{w_r}"]
        t, jh = mt >> 1, mt & 1
        for p in range(2):
            f += [f"v_cvt_pk_bf16_f32 v{YF+12*t+2*jh+p}, v{tb+2*p}, v{tb+2*p+1}", f"v_cvt_pk_bf16_f32 v{YF+12*t+4+2*jh+p}, v{tb+4+2*p}, v{tb+4+2*p+1}",
                  f"v_xor_b32 v{YF+12*t+8+2*jh+p}, s70, v{YF+12*t+4+2*jh+p}"]
        return f
    def inv(t):
        m = []
        for nt in range(4):
            re, im = UA+8*nt, UA+8*nt+4
            C, S = CF+(nt*2+t)*4, SF+(nt*2+t)*4
            m += [mfma(re, YF+12*t, C, None if t else 0), mfma(im, YF+12*t+4, C, None if t else 0), mfma(re, YF+12*t+8, S), mfma(im, YF+12*t, S)]
        return m
    for x in fwd(0) + fwd(1)[:4]: A(x)
    weave(A, fwd(1)[4:] + fwd(2) + fwd(3), filt(0) + filt(1))
    weave(A, inv(0), filt(2) + filt(3))
    def outp(nt):
        d = UA+8*nt
        return [f"v_mul_f32 v{d+3}, v{d+3}, v8", f"v_mul_f32 v{d+7}, v{d+7}, v8"] + [f"v_cvt_pk_bf16_f32 v{TA+4*nt+p}, v{d+2*p}, v{d+2*p+1}" for p in range(4)] + [f"ds_write_b128 v9, {v(TA+4*nt,4)} offset:{1024*nt}"]
    i1 = inv(1)
    for x in i1[:9]: A(x)
    weave(A, i1[9:], outp(0) + outp(1))
    for x in outp(2) + outp(3): A(x)
    A("s_waitcnt lgkmcnt(0)")
    for q in range(4): A(f"ds_read_b128 {v(VF+4*q,4)}, v7 offset:{1024*q}")
    for q in range(4):
        A(f"buffer_store_dwordx4 {v(VF+4*q,4)}, v6, s[{rU}:{rU+3}], s47 offen sc1\ns_add_u32 s47, s47, {8*81920}")
    T.mark(A)
    T.at(A, "mB", 0)
    signal2(f"s_add_u32 s46, s{sKT}, 20", 31, 1 << 8)
    T.at(A, "mB", 1)
    A(f"A_JE:\ns_cmp_eq_u32 s{sW}, 5\ns_cbranch_scc1 B_LW")
    T.end(A, sW, sWS)
    A("s_endpgm")

    reset(A); T.n = 0
    A.prot = set(PTRS)
    A("A_COMPUTE:")
    A(f"""
    s_lshl_b32 s{sS2}, s{sR}, 2
    s_add_u32 s{sS2}, s{sS2}, s{sW}
    v_lshrrev_b32 v3, 1, v1
    v_xor_b32 v3, v3, v2
    v_lshlrev_b32 v3, 4, v3
    v_lshl_add_u32 v8, v1, 7, v3
    s_waitcnt lgkmcnt(0)
    s_cmp_ge_u32 s45, s47
    s_cbranch_scc1 A_DFT
    """)
    rH, rB1 = rA, rB
    srd(A, rH, sWS, H_SZ, H_OFF)
    ONES = 20; B1R = 24; ACC = 36; AF = 116; XF = 196; C1A = 212; SUM = 232; GR = 240; ST4 = 212
    stats_setup(A, 9)
    vXA0, vXA1, vWE, vWO, vXB, vWB, vG32 = 10, 11, 12, 13, 14, 15, 16
    A(f"v_lshlrev_b32 v24, 1, v1\nv_add_u32 v24, {B1X}, v24")
    A(f"""
    s_lshl_b32 s46, s{sW}, 12
    v_add_u32 v{vXB}, s46, v8
    v_lshrrev_b32 v18, 2, v1
    v_lshl_add_u32 v18, v2, 3, v18
    v_mul_u32_u24 v18, 320, v18
    v_and_b32 v19, 3, v1
    v_lshl_add_u32 v18, v19, 3, v18
    v_add_u32 v{vWB}, 16384, v18
    v_and_b32 v{vG32}, 1, v2
    v_lshlrev_b32 v{vG32}, 5, v{vG32}
    s_lshr_b32 s46, s{sW}, 1
    s_mul_i32 s46, s46, {5*128}
    s_and_b32 s52, s{sW}, 1
    s_lshl_b32 s52, s52, 2
    s_add_u32 s46, s46, s52
    s_add_u32 s46, s46, {C1X}
    v_lshlrev_b32 v18, 3, v1
    v_add_u32 v19, s46, v18
    v_add_u32 v18, {C1X}, v18
    s_lshr_b32 s46, s{sS2}, 1
    s_mul_i32 s46, s46, 54
    s_lshr_b32 s52, s{sCol}, 5
    s_add_u32 s46, s46, s52
    s_lshl_b32 s46, s46, 2
    s_and_b32 s52, s{sS2}, 1
    s_lshl_b32 s52, s52, 1
    s_add_u32 s46, s46, s52
    s_lshl_b32 s57, s46, 10
    v_lshlrev_b32 v17, 4, v0
    v_cmp_eq_u32 s[64:65], 0, v2
    s_mov_b32 s69, 0xffff0000
    """)
    for i in range(4): A(f"v_mov_b32 v{ONES+i}, 0x3f803f80")
    for i in range(4): A(f"v_mov_b32 v{C1A+32+i}, 0")
    for r in [ACC+16*i for i in range(5)] + [C1A, C1A+16]: A(f"v_mfma_f32_32x32x16_bf16 {v(r,16)}, {v(C1A+32,4)}, {v(C1A+32,4)}, 0")
    def addr_upd():
        return [f"v_add_u32 v{vXA0}, s{sSl}, v{vXB}", f"v_add_u32 v{vWO}, s{sSl}, v{vWB}", f"v_add_u32 v{vWE}, v{vWO}, v{vG32}",
                f"v_sub_u32 v{vWO}, v{vWO}, v{vG32}", f"v_xor_b32 v{vXA1}, 64, v{vXA0}"]
    def reads(t):
        r = [f"ds_read_b128 {v(XF+8*t+4*mt,4)}, v{vXA0+t} offset:{2048*mt}" for mt in range(2)]
        for ft in range(10):
            for jh in range(2):
                r.append(f"ds_read_b64_tr_b16 {v(AF+40*t+4*ft+2*jh,2)}, v{vWE if ft%2==0 else vWO} offset:{t*10240+jh*1280+ft*32}")
        return r
    def mains(t, w):
        m = []
        for mt in range(2): m += [mfma(SUM+4*mt, ONES, XF+8*t+4*mt), mfma(GR+4*mt, XF+8*t+4*mt, XF+8*t+4*mt)]
        for ft in range(10):
            for mt in range(2): m.append(mfma(ACC+(ft*2+mt)*4, AF+40*t+4*ft, XF+8*t+4*mt))
            if t == (w & 1) and ft // 5 == (w >> 1): m.append(mfma(C1A+4*(ft % 5), ONES, AF+40*t+4*ft))
        return m
    A(f"s_mov_b32 s{sSl}, 0\ns_mov_b32 s{sIt}, 10")
    for x in addr_upd(): A(x)
    reset(A)
    T.mark(A)
    A("s_barrier")
    T.mark(A)
    r0 = reads(0)
    for x in r0[2:8] + r0[:2] + r0[8:]: A(x)
    st0 = A.state()
    for w in range(3): A(f"s_cmp_eq_u32 s{sW}, {w+1}\ns_cbranch_scc1 A_ML{w+1}")
    for w in range(4):
        A.lg = [set(x) for x in st0[0]]
        A(f"A_ML{w}:")
        slotadv = [f"s_add_u32 s{sSl}, s{sSl}, {SLOT}", f"s_cmp_eq_u32 s{sSl}, {NS*SLOT}", f"s_cselect_b32 s{sSl}, 0, s{sSl}", f"s_sub_u32 s{sIt}, s{sIt}, 1"]
        m0, m1 = mains(0, w), mains(1, w)
        allm = m0 + m1
        R1 = optval("r1", 22); BAR = optval("bar", 27); R0 = optval("r0", 51)
        weave(A, allm[:R1], reads(1)); weave(A, allm[R1:BAR], slotadv + addr_upd())
        A("s_waitcnt lgkmcnt(0)\ns_barrier")
        r0 = reads(0)
        weave(A, allm[BAR:R0], r0[2:8] + r0[:2] + r0[8:] + [f"s_cmp_lg_u32 s{sIt}, 0"])
        for x in allm[R0:]: A(x)
        assert A.state()[0] == st0[0], (A.state()[0], st0[0])
        A(f"s_cbranch_scc1 A_ML{w}")
        if w < 3: A("s_branch A_MLE")
    A("A_MLE:")
    T.mark(A)
    for q in range(5):
        c = C1A+4*q
        A(f"v_and_b32 v{c+1}, s69, v{c}\nv_sub_f32 v{c+1}, v{c}, v{c+1}\nv_cvt_pk_bf16_f32 v{c+1}, v{c+1}, v{c+1}\nv_alignbit_b32 v{c}, v{c+1}, v{c}, 16\nds_write_b32 v19, v{c} offset:{128*q}")
    AUG = AF + 40
    for ft in range(10): A(f"ds_read_u16 v{AUG+4*ft+2}, v24 offset:{32*ft}\nv_mov_b32 v{AUG+4*ft+3}, 0")
    A("s_waitcnt lgkmcnt(0)\ns_barrier")
    for ft in range(10): A(f"ds_read_b64 {v(AUG+4*ft,2)}, v18 offset:{128*ft}")
    B0, B1 = Asm(auto=False), Asm(auto=False)
    for B, mt in ((B0, 0), (B1, 1)):
        stats_from_mfma(B, SUM+4*mt, GR+4*mt, 1, 9, 10+mt, 0)
        S = ST4 + 4*mt; b = XF+4*mt
        B(f"""
        v_rcp_f32 v{10+mt}, v{GR+4*mt}
        v_cvt_pk_bf16_f32 v{b}, -v{SUM+4*mt}, -v{SUM+4*mt}
        v_lshrrev_b32 v{b+2}, 16, v{GR+4*mt}
        v_cndmask_b32 v{b}, 0, v{b}, s[64:65]
        v_cndmask_b32 v{b+2}, 0, v{b+2}, s[64:65]
        v_mov_b32 v{b+3}, 0
        v_mov_b32 v{b+1}, v{b}
        """)
    fillers = []
    for k, (p, q) in enumerate(zip(B0.ins, B1.ins)):
        A(p.text); A(q.text)
        if k == 3:
            for x in fillers: A(x)
    late = []
    for mt in range(2):
        S = ST4 + 4*mt
        late += [f"v_mov_b32 v{S+3}, v{GR+4*mt}", f"v_mul_f32 v{S+2}, {fbits(K0)}, v{10+mt}", f"v_mul_f32 v{S+1}, v{10+mt}, v{10+mt}", f"v_mul_f32 v{S+1}, v{S+1}, v{S+2}", f"v_mul_f32 v{S+1}, {fbits(0.044715)}, v{S+1}"]
    weave(A, [mfma(ACC+(ft*2+mt)*4, AUG+4*ft, XF+4*mt) for ft in range(10) for mt in range(2)], late, per=1)
    T.mark(A)
    TMP = AF
    def grp(n):
        q, mt = n >> 1, n & 1
        tm = TMP + 8*(n % 3); o = TMP + 24 + 4*(n % 4)
        prs = [ACC + ((2*q+h)*2+mt)*4 + 2*p for h in range(2) for p in range(2)]
        S = ST4 + 4*mt
        s1 = [f"v_pk_mul_f32 {v(tm+2*i,2)}, {v(c,2)}, {v(c,2)}" for i, c in enumerate(prs)]
        s1 += [f"v_pk_fma_f32 {v(tm+2*i,2)}, {v(tm+2*i,2)}, {v(S,2)}, {v(S+2,2)} op_sel:[0,1,0] op_sel_hi:[1,1,0]" for i in range(4)]
        s1 += [f"v_pk_mul_f32 {v(tm+2*i,2)}, {v(tm+2*i,2)}, {v(c,2)}" for i, c in enumerate(prs)]
        e = [f"v_exp_f32 v{tm+i}, v{tm+i}" for i in range(8)]
        s2 = [f"v_pk_fma_f32 {v(tm+2*i,2)}, {v(tm+2*i,2)}, {v(S+2,2)}, {v(S+2,2)} op_sel:[0,1,1] op_sel_hi:[1,1,1]" for i in range(4)]
        r = [f"v_rcp_f32 v{tm+i}, v{tm+i}" for i in range(8)]
        s3 = [f"v_pk_mul_f32 {v(tm+2*i,2)}, {v(tm+2*i,2)}, {v(c,2)}" for i, c in enumerate(prs)]
        s3 += [f"v_cvt_pk_bf16_f32 v{o+i}, v{tm+2*i}, v{tm+2*i+1}" for i in range(4)]
        s3 += [f"buffer_store_dwordx4 {v(o,4)}, v17, s[{rH}:{rH+3}], s57 offen offset:{1024*mt} {ST}" + ("\ns_add_u32 s57, s57, 4096" if mt else "")]
        return s1, e, s2, r, s3
    G = [grp(n) for n in range(10)]
    for x in G[0][0]: A(x)
    for n in range(10):
        weave(A, G[n][1], G[n-1][4] if n else [])
        for x in G[n][2]: A(x)
        weave(A, G[n][3], G[n+1][0] if n < 9 else [])
    for x in G[9][4]: A(x)
    T.mark(A)
    A(f"s_lshr_b32 s38, s{sS2}, 1\ns_add_u32 s38, s38, 48\ns_branch B_COMPUTE")

    reset(A); T.n = 0
    A.prot = set(PTRS)
    A("A_DFT:")
    rV = rA; rF = rD
    srd(A, rV, sWS, V_SZ, V_OFF); srd(A, rF, sWS, FLG_SZ, FLG_OFF)
    sKT = 38
    ONES = 24; ACC = 28; XF = 156; BF = 188; SQ = 204; SUM = 236; GR = 244; TA = 220
    vSIG, vTQ, vBP = 6, 4, 9
    vXA = 10; vXB = 18
    stats_setup(A, vBP)
    A(f"""
    s_lshl_b32 s46, s43, 1
    s_add_u32 s46, s45, s46
    s_sub_u32 s46, s46, 5
    s_lshl_b32 s{sKT}, s46, 2
    s_add_u32 s{sKT}, s{sKT}, s{sW}
    v_add_u32 v22, 1, v1
    v_lshlrev_b32 v22, 31, v22
    v_or_b32 v{vSIG}, 1.0, v22
    v_lshlrev_b32 v22, 8, v2
    v_add_u32 v22, s{sS2}, v22
    v_cvt_f32_u32 v22, v22
    s_lshl_b32 s46, s{sW}, 12
    s_add_u32 s46, s46, {FX}
    v_lshl_add_u32 v3, v0, 4, s46
    v_and_b32 v5, 1, v1
    v_mul_u32_u24 v5, 0x8000, v5
    v_lshl_or_b32 v5, v5, 16, v5
    """)
    for ut in range(2):
        A(f"v_add_u32 v23, {16*ut}, v1\nv_cvt_f32_u32 v23, v23\nv_mul_f32 v23, {fbits(1/2048)}, v23\nv_mul_f32 v{TA}, v23, v22\nv_mul_f32 v23, {fbits(64.0)}, v23")
        for j in range(1, 4): A(f"v_add_f32 v{TA+j}, v23, v{TA+j-1}")
        for j in range(4): A(f"v_sin_f32 v{TA+4+j}, v{TA+j}\nv_cos_f32 v{TA+j}, v{TA+j}")
        o = XF + 8*ut
        for p in range(2): A(f"v_cvt_pk_bf16_f32 v{o+p}, v{TA+2*p}, v{TA+2*p+1}\nv_cvt_pk_bf16_f32 v{o+4+p}, v{TA+4+2*p}, v{TA+4+2*p+1}")
        for p in range(2): A(f"v_xor_b32 v{o+2+p}, v5, v{o+p}\nv_xor_b32 v{o+6+p}, v5, v{o+4+p}")
        A(f"ds_write_b128 v3, {v(o,4)} offset:{2048*ut}\nds_write_b128 v3, {v(o+4,4)} offset:{2048*ut+1024}")
    A(f"""
    s_lshl_b32 s46, s{sKT}, 4
    s_add_u32 s46, s46, 1
    v_add_u32 v5, s46, v1
    v_cvt_f32_u32 v5, v5
    v_mul_f32 v5, {fbits(-1/640)}, v5
    v_lshlrev_b32 v7, 3, v2
    v_cvt_f32_u32 v7, v7
    v_add_f32 v7, 0.5, v7
    v_mul_f32 v{SQ}, v5, v7
    v_mul_f32 v7, {fbits(32.0)}, v5
    v_cos_f32 v{vTQ}, v7
    """)
    for j in range(1, 8): A(f"v_add_f32 v{SQ+j}, v5, v{SQ+j-1}")
    for j in range(8): A(f"v_sub_f32 v{SQ+16+j}, v{SQ+j}, v7")
    A(f"v_add_f32 v{vTQ}, v{vTQ}, v{vTQ}")
    for sd in range(2):
        for j in range(8): A(f"v_sin_f32 v{SQ+16*sd+8+j}, v{SQ+16*sd+j}\nv_cos_f32 v{SQ+16*sd+j}, v{SQ+16*sd+j}")
    def bcv(t): return [f"v_cvt_pk_bf16_f32 v{BF+8*t+p}, v{SQ+16*t+2*p}, v{SQ+16*t+2*p+1}" for p in range(8)]
    def bstep(t): return [f"v_fma_f32 v{SQ+16*t+j}, v{vTQ}, v{SQ+16*(t^1)+j}, -v{SQ+16*t+j}" for j in range(16)] + bcv(t)
    for gq in range(4):
        A(f"s_xor_b32 s46, s{sW}, {gq}\ns_lshl_b32 s46, s46, 12\nv_add_u32 v{vXB+gq}, s46, v8")
    for x in bcv(0): A(x)
    for i in range(4): A(f"v_mov_b32 v{ONES+i}, 0x3f803f80")
    for i in range(4): A(f"v_mov_b32 v{BF+8+i}, 0")
    for r in [ACC+16*i for i in range(8)] + [SUM]: A(f"v_mfma_f32_32x32x16_bf16 {v(r,16)}, {v(BF+8,4)}, {v(BF+8,4)}, 0")
    def dupd(): return sum([[f"v_add_u32 v{vXA+2*gq}, s{sSl}, v{vXB+gq}", f"v_xor_b32 v{vXA+2*gq+1}, 64, v{vXA+2*gq}"] for gq in range(4)], [])
    frs = [(h, t, m) for t in range(2) for h in range(2) for m in range(8)]
    NR = 8
    def rd(i):
        h, t, m = frs[i % 32]
        return f"ds_read_b128 {v(XF+4*(i%NR),4)}, v{vXA+2*(m//2)+t} offset:{h*16384+2048*(m%2)}"
    AH = 6
    A(f"s_mov_b32 s{sSl}, 0\ns_mov_b32 s{sIt}, 5")
    for x in dupd(): A(x)
    A("s_waitcnt lgkmcnt(0)")
    T.mark(A)
    A("s_barrier")
    T.mark(A)
    for i in range(AH): A(rd(i))
    st0 = A.state()
    A("A_DL:")
    pr, pv = [], []
    for i, (h, t, m) in enumerate(frs):
        x = XF + 4*(i % NR)
        ms = [mfma(ACC+((h*8+m)*2+rho)*4, x, BF+8*t+4*rho) for rho in range(2)]
        if m < 2: ms += [mfma(SUM+4*m, ONES, x), mfma(GR+4*m, x, x)]
        if i == 0: pv += bstep(1) + [f"s_add_u32 s{sSl}, s{sSl}, {PS}", f"s_cmp_eq_u32 s{sSl}, {3*PS}", f"s_cselect_b32 s{sSl}, 0, s{sSl}", f"s_sub_u32 s{sIt}, s{sIt}, 1"]
        if i == 16:
            assert not pv
            pv += bstep(0)
        if i % 2 == 0 and i + AH < 32: pr += [rd(i + AH), rd(i + AH + 1)]
        if i == 26: pv = dupd() + pv
        if i == 28:
            assert not pr and not any("v_xor" in z for z in pv)
            A("s_waitcnt lgkmcnt(0)\ns_barrier")
            pr += [rd(32+k) for k in range(4)]
        if i == 30: pr += [rd(36), rd(37)]; pv += [f"s_cmp_lg_u32 s{sIt}, 0"]
        for mm in ms:
            A(mm)
            n = 2
            if pr: A(pr.pop(0)); n -= 1
            if i % 2 == 1 and mm is ms[-1] and i < 26: n -= 1
            while n > 0 and pv: A(pv.pop(0)); n -= 1
    assert not pr and not pv
    assert A.state()[0] == st0[0], (A.state()[0], st0[0])
    A("s_cbranch_scc1 A_DL\nA_DLE:")
    T.mark(A)
    B0, B1 = Asm(auto=False), Asm(auto=False)
    for B, mt in ((B0, 0), (B1, 1)):
        stats_from_mfma(B, SUM+4*mt, GR+4*mt, 1, vBP, 22+mt, 0, mean=False)
        B(f"v_rcp_f32 v{GR+4*mt}, v{GR+4*mt}\nv_mul_f32 v{GR+4*mt}, {fbits(2.0/(2048*640))}, v{GR+4*mt}\nds_write_b32 v7, v{GR+4*mt} offset:{64*mt}")
    comb = [f"v_pk_fma_f32 {v(ACC+2*i,2)}, {v(ACC+64+2*i,2)}, {v(vSIG,2)}, {v(ACC+2*i,2)} op_sel_hi:[1,0,1]" for i in range(32)]
    A(f"s_lshl_b32 s46, s{sW}, 7\ns_add_u32 s46, s46, {STAT}\nv_lshl_add_u32 v7, v1, 2, s46")
    for k, (p, q) in enumerate(zip(B0.ins, B1.ins)):
        A(p.text); A(q.text)
        if k == 3:
            for gq in range(4):
                A(f"s_xor_b32 s46, s{sW}, {gq}\ns_lshl_b32 s52, s46, 12\ns_add_u32 s52, s52, {FX}\nv_lshl_add_u32 v{14+gq}, v0, 4, s52\ns_lshl_b32 s46, s46, 7\ns_add_u32 s46, s46, {STAT}\nv_lshl_add_u32 v{10+gq}, v2, 4, s46")
    for x in comb[:8]: A(x)
    A("s_waitcnt lgkmcnt(0)\ns_barrier")
    if "dep" in OPT: T.n = 0; T.mark(A)
    RR = TA
    for gq in range(4):
        for jh in range(2): A(f"ds_read_b128 {v(RR+8*gq+4*jh,4)}, v{10+gq} offset:{64*jh}")
    for gq in range(4):
        for q in range(4): A(f"ds_read_b128 {v(XF+16*gq+4*q,4)}, v{14+gq} offset:{1024*q}")
    for x in comb[8:]: A(x)
    TF = ACC + 64
    A(f"s_lshl_b32 s64, s{sW}, 13\nv_and_b32 v3, 7, v1\ns_mov_b32 s70, 0x80008000")
    for gq in range(4):
        for jh in range(2):
            for rho in range(2):
                c = ACC + ((2*gq+jh)*2+rho)*4
                for p in range(2): A(f"v_pk_mul_f32 {v(c+2*p,2)}, {v(c+2*p,2)}, {v(RR+8*gq+4*jh+2*p,2)}")
    def tcv(gq):
        f = []
        for rho in range(2):
            for jh in range(2):
                c = ACC + ((2*gq+jh)*2+rho)*4
                for p in range(2): f.append(f"v_cvt_pk_bf16_f32 v{TF+12*gq+4*rho+2*jh+p}, v{c+2*p}, v{c+2*p+1}")
        f += [f"v_xor_b32 v{TF+12*gq+8+p}, s70, v{TF+12*gq+p}" for p in range(4)]
        return f
    def sta(gq):
        m = []
        for ut in range(2):
            Cf, Sf = XF+16*gq+8*ut, XF+16*gq+8*ut+4
            re, im, nre = TF+12*gq, TF+12*gq+4, TF+12*gq+8
            dre, dim = ACC+(gq*2+ut)*8, ACC+(gq*2+ut)*8+4
            m += [mfma(dre, re, Cf, 0), mfma(dim, im, Cf, 0), mfma(dre, im, Sf), mfma(dim, nre, Sf)]
        return m
    def wad(gq):
        return f"""s_xor_b32 s46, s{sW}, {gq}
        s_lshl_b32 s46, s46, 2
        v_add_u32 v{10+gq}, s46, v2
        v_xor_b32 v{10+gq}, v{10+gq}, v3
        v_lshlrev_b32 v{10+gq}, 4, v{10+gq}
        v_lshl_add_u32 v{10+gq}, v1, 8, v{10+gq}
        v_add_u32 v{10+gq}, s64, v{10+gq}""".split("\n")
    def outv(gq):
        f = []
        for ut in range(2):
            d = ACC+(gq*2+ut)*8; o = TA + 4*(gq*2+ut)
            f += [f"v_cvt_pk_bf16_f32 v{o+p}, v{d+2*p}, v{d+2*p+1}" for p in range(4)] + [f"ds_write_b128 v{10+gq}, {v(o,4)} offset:{4096*ut}"]
        return f
    if "dep" in OPT: T.mark(A)
    for x in tcv(0): A(x)
    weave(A, sta(0), tcv(1) + wad(0))
    weave(A, sta(1), tcv(2) + wad(1))
    weave(A, sta(2), tcv(3) + wad(2) + wad(3))
    weave(A, sta(3), outv(0) + outv(1))
    for x in outv(2): A(x)
    A(f"""
    v_xor_b32 v14, v1, v2
    v_lshlrev_b32 v14, 4, v14
    v_lshl_add_u32 v14, v2, 8, v14
    v_add_u32 v14, s64, v14
    v_xor_b32 v15, 64, v14
    v_mul_u32_u24 v16, {20*4096}, v2
    v_lshl_add_u32 v16, v1, 4, v16
    s_lshl_b32 s46, s{sKT}, 12
    s_lshl_b32 s52, s{sR}, 8
    s_add_u32 s46, s46, s52
    """)
    for x in outv(3): A(x)
    A("s_waitcnt lgkmcnt(0)")
    if "dep" in OPT: T.mark(A)
    for n in range(8): A(f"ds_read_b128 {v(XF+4*n,4)}, v{14 + (n&1)} offset:{1024*n}")
    for n in range(8):
        A(f"buffer_store_dwordx4 {v(XF+4*n,4)}, v16, s[{rV}:{rV+3}], s46 offen sc1\ns_add_u32 s46, s46, {4*20*4096}")
    T.mark(A)
    if "hold" in OPT: A("s_barrier")
    T.mark(A)
    sRB, sCB = 33, 34
    WP = 20480; HB = 4*WP; HP = 24576
    XT0 = HB + 16384; XT3 = GAP + 1280; BO = XT0 + 7680
    PTRB = {0, 1, 2, 4, 5, 14, 15, 32, 40, 41}
    def brole():
        A.prot = set(PTRB)
        A(f"s_lshr_b32 s42, s41, 3\ns_lshl_b32 s{sRB}, s40, 2\ns_add_u32 s{sRB}, s{sRB}, s42\ns_and_b32 s{sCB}, s41, 7\nv_lshlrev_b32 v3, 4, v0")
        A.prot |= {sRB, sCB}
    def itemoff(OF):
        A(f"s_mov_b32 s52, {(1<<32)//10+1}")
        for q in range(3):
            A(f"""
            v_add_u32 v9, {64*q}, v0
            v_mul_hi_u32 v10, v9, s52
            v_mul_u32_u24 v11, 10, v10
            v_sub_u32 v11, v9, v11
            v_mul_u32_u24 v10, 81920, v10
            v_lshl_add_u32 v{OF+q}, v11, 4, v10
            """)
    reset(A)
    A("B_COMPUTE:")
    T.at(A, "mB", 0)
    brole()
    sP, sKP, sUW, sUH, sIt = 44, 45, 46, 47, 48
    FP = 12; ACC = 28; HF = 68; UF = 124; ZA = 136; FI = 152; SQ = 164; TQ = 244; OF = 249; TC = 228
    vH, vW, vT, vWB, vTB, vHB = 4, 5, 6, 7, 8, 252
    rO = 20
    A(f"""
    s_load_dwordx2 s[8:9], s[0:1], 64
    s_add_u32 s56, s{sWS}, {FLG_OFF}
    s_addc_u32 s57, s{sWS+1}, 0
    s_lshl_b32 s38, s38, 8
    s_and_b32 s{sP}, s{sW}, 1
    s_lshr_b32 s{sKP}, s{sW}, 1
    s_lshl_b32 s55, s{sRB}, 1
    s_add_u32 s55, s55, s{sP}
    s_lshl_b32 s49, s{sKP}, 10
    s_add_u32 s49, s55, s49
    s_brev_b32 s67, 1
    """)
    A(f"v_lshlrev_b32 v9, 3, v2\nv_cvt_f32_u32 v9, v9\nv_lshl_add_u32 v10, v1, 6, s49\nv_cvt_f32_u32 v10, v10\nv_mul_f32 v10, {fbits(1/2048)}, v10\nv_mul_f32 v{TC}, v10, v9")
    for j in range(1, 8): A(f"v_add_f32 v{TC+j}, v10, v{TC+j-1}")
    for j in range(8): A(f"v_sin_f32 v{TC+8+j}, v{TC+j}\nv_cos_f32 v{TC+j}, v{TC+j}")
    for q in range(4): A(f"v_cvt_pk_bf16_f32 v{FP+q}, v{TC+2*q}, v{TC+2*q+1}\nv_cvt_pk_bf16_f32 v{FP+4+q}, v{TC+8+2*q}, v{TC+8+2*q+1}")
    for q in range(8): A(f"v_xor_b32 v{FP+8+q}, s67, v{FP+q}")
    itemoff(OF)
    A(f"""
    s_mul_i32 s50, s{sKP}, 5120
    v_add_u32 v{vWB}, s50, v3
    s_lshl_b32 s50, s{sKP}, 12
    s_lshl_b32 s51, s{sP}, 11
    s_add_u32 s51, s51, s50
    s_lshl_b32 s52, s{sKP}, 10
    s_add_u32 s51, s51, s52
    s_add_u32 s51, s51, {HB}
    v_add_u32 v{vHB}, s51, v3
    v_lshrrev_b32 v9, 2, v1
    v_lshl_add_u32 v9, v2, 3, v9
    v_lshlrev_b32 v9, 7, v9
    v_and_b32 v10, 3, v1
    v_lshl_add_u32 v9, v10, 4, v9
    s_lshl_b32 s51, s{sP}, 6
    v_add_u32 v9, s51, v9
    v_and_b32 v10, 8, v1
    v_lshlrev_b32 v10, 3, v10
    v_xor_b32 v9, v9, v10
    s_add_u32 s50, s50, {HB + 16384}
    v_add_u32 v{vTB}, s50, v9
    s_mul_i32 s54, s{sCB}, 160
    s_mul_i32 s59, s49, 1280
    s_add_u32 s59, s59, s54
    s_mul_i32 s58, s{sW}, 2560
    s_add_u32 s58, s58, {XT0}
    s_cmp_eq_u32 s{sW}, 3
    s_cselect_b32 s58, {XT3}, s58
    s_mov_b32 s70, 0x80008000
    s_mov_b32 s69, 0xffff0000
    s_mov_b32 s66, 1
    s_waitcnt vmcnt(0) lgkmcnt(0)
    """)
    A.raw("s_atomic_add s66, s[56:57], s38")
    T.at(A, "mB", 1)
    srd(A, rO, 8, 2048*1280)
    A(f"""
    s_mul_i32 s50, s{sCB}, 80
    s_cmp_ge_u32 s{sCB}, 4
    s_cselect_b32 s51, 640, 0
    s_sub_i32 s50, s50, s51
    s_lshl_b32 s51, s{sKP}, 4
    v_lshl_add_u32 v{HF}, v2, 2, s51
    v_cvt_f32_u32 v{HF}, v{HF}
    v_add_u32 v{HF+1}, s50, v1
    v_cvt_f32_i32 v{HF+1}, v{HF+1}
    """)
    for e in range(5):
        A(f"v_add_f32 v9, {fbits(16.0*e + 0.5)}, v{HF+1}\nv_mul_f32 v9, {fbits(-1/640)}, v9\nv_mul_f32 v10, v{HF}, v9\nv_mul_f32 v{TQ+e}, {fbits(32.0)}, v9\nv_cos_f32 v{TQ+e}, v{TQ+e}")
        for sd in range(2):
            for r in range(4): A(f"v_fmamk_f32 v{SQ+16*e+8*sd+r}, v9, {fbits(r + 1.0 - 32.0*(sd+1))}, v10")
        A(f"v_add_f32 v{TQ+e}, v{TQ+e}, v{TQ+e}")
        for sd in range(2):
            o = SQ + 16*e + 8*sd
            for r in range(4): A(f"v_sin_f32 v{o+4+r}, v{o+r}\nv_cos_f32 v{o+r}, v{o+r}")
    for nt in range(5):
        for i in range(4): A(f"v_mov_b32 v{ACC+(nt*2+1)*4+i}, 0")
    BT = ZA; XT = UF
    A(f"v_mul_u32_u24 v11, 160, v1\nv_lshl_add_u32 v11, v2, 3, v11\nv_add_u32 v253, s58, v11\nv_lshlrev_b32 v10, 3, v2\nv_add_u32 v10, {BO}, v10\ns_mov_b32 s{sUW}, 0\ns_mov_b32 s{sUH}, 0")
    adv = [f"s_add_u32 s{sUW}, s{sUW}, {WP}", f"s_cmp_eq_u32 s{sUW}, {4*WP}\ns_cselect_b32 s{sUW}, 0, s{sUW}", f"s_add_u32 s{sUH}, s{sUH}, {HP}", f"s_cmp_eq_u32 s{sUH}, {3*HP}\ns_cselect_b32 s{sUH}, 0, s{sUH}"]
    upd = [f"v_add_u32 v{vW}, s{sUW}, v{vWB}", f"v_add_u32 v{vH}, s{sUH}, v{vHB}", f"v_xor_b32 v9, 1024, v{vH}", f"v_add_u32 v{vT}, s{sUH}, v{vTB}"]
    def hrd(b): return [f"ds_read_b128 {v(HF+28*b,4)}, v{vH} offset:{8192*b}", f"ds_read_b128 {v(HF+28*b+8,4)}, v{vW} offset:{10240*b}", f"ds_read_b128 {v(HF+28*b+4,4)}, v9 offset:{8192*b}"] + \
                       [f"ds_read_b128 {v(HF+28*b+8+4*nt,4)}, v{vW} offset:{10240*b+1024*nt}" for nt in range(1, 5)]
    def hmm(b): return [mfma(ACC+(nt*2+l)*4, HF+28*b+8+4*nt, HF+28*b+4*l) for nt in range(5) for l in range(2)]
    trr = [f"ds_read_b64_tr_b16 {v(UF+4*rho+2*jh,2)}, v{vT} offset:{512*jh+8*rho}" for rho in (1, 0) for jh in range(2)]
    neg = [f"v_xor_b32 v{UF+8+q}, s70, v{UF+4+q}" for q in range(4)]
    sa = []
    for l in range(2):
        C, S = FP+8*l, FP+8*l+4; re, im = ZA+8*l, ZA+8*l+4
        sa += [mfma(re, UF, C, 0), mfma(im, UF+4, C, 0), mfma(im, UF, S), mfma(re, UF+8, S)]
    cv = [f"v_cvt_pk_bf16_f32 v{ZA+8*l+r}, v{ZA+8*l+r}, v{ZA+8*l+4+r}" for l in range(2) for r in range(4)]
    def fst(par): return [f"v_fma_f32 v{SQ+16*e+8*(par^1)+j}, v{TQ+e}, v{SQ+16*e+8*par+j}, -v{SQ+16*e+8*(par^1)+j}" for e in range(5) for j in range(8)]
    def fcv(par, e): return [f"v_cvt_pk_bf16_f32 v{FI+4*(e%3)+r}, v{SQ+16*e+8*(par^1)+r}, v{SQ+16*e+8*(par^1)+4+r}" for r in range(4)]
    def zmm(e): return [mfma(ACC+(e*2+l)*4, FI+4*(e%3), ZA+8*l) for l in range(2)]
    def mix(main, reads, valu):
        reads, valu = list(reads), list(valu); n = len(main)
        for i, mm in enumerate(main):
            A(mm)
            left = n - i
            nr = max(-(-len(reads) // left), 1) if reads else 0
            for _ in range(nr): A(reads.pop(0))
            nv = max(-(-len(valu) // left), min(len(valu), 2 - nr))
            for _ in range(nv): A(valu.pop(0))
    for x in upd: A(x)
    T.at(A, "mB", 2)
    A("s_barrier")
    T.at(A, "mB", 3)
    for nt in range(5): A(f"ds_read_b64 {v(XT+2*nt,2)}, v253 offset:{32*nt}\nds_read_b64 {v(BT+2*nt,2)}, v10 offset:{32*nt}")
    for x in hrd(0): A(x)
    for nt in range(5):
        for h in range(2):
            c = ACC + nt*8 + 2*h
            A(f"v_lshlrev_b32 v{c}, 16, v{XT+2*nt+h}\nv_lshlrev_b32 v10, 16, v{BT+2*nt+h}\nv_and_b32 v{c+1}, s69, v{XT+2*nt+h}\nv_and_b32 v{FI}, s69, v{BT+2*nt+h}")
            A(f"v_add_f32 v{c}, v{c}, v10\nv_add_f32 v{c+1}, v{c+1}, v{FI}")
    A(f"s_mov_b32 s{sIt}, 3\nB_C0:\ns_waitcnt lgkmcnt(0)\ns_barrier")
    m = hmm(0); mix(m[:7], hrd(1), adv); mix(m[7:], [], upd + [f"s_sub_u32 s{sIt}, s{sIt}, 1"])
    A(f"s_waitcnt lgkmcnt(0)\ns_barrier\ns_cmp_lg_u32 s{sIt}, 0")
    mix(hmm(1), hrd(0), [])
    A("s_cbranch_scc1 B_C0")
    for x in adv + upd: A(x)
    for x in hmm(0): A(x)
    A(f"s_mov_b32 s{sIt}, 5\ns_waitcnt lgkmcnt(0)\ns_barrier")
    for x in trr + hrd(0) + fst(0)[:20] + neg: A(x)
    def half2(par):
        f = fst(par)
        A("s_waitcnt lgkmcnt(0)\ns_barrier")
        mix(sa, hrd(1), f[20:28])
        mix(hmm(0), [], f[28:] + adv + upd + cv)
    def half1(par, nxt, extra):
        if nxt: A("s_waitcnt lgkmcnt(0)\ns_barrier")
        mix(hmm(1), (trr + hrd(0)[:6]) if nxt else [], fcv(par, 0) + fcv(par, 1))
        f = fst(par ^ 1)[:20] if nxt else []
        mix(zmm(0), hrd(0)[6:] if nxt else [], fcv(par, 2)); mix(zmm(1), [], fcv(par, 3) + f[:2]); mix(zmm(2), [], fcv(par, 4) + f[2:4])
        mix(zmm(3) + zmm(4), [], f[4:] + (neg if nxt else []) + extra)
    A("B_CL:")
    half2(0); half1(0, True, [])
    half2(1)
    A(f"s_sub_u32 s{sIt}, s{sIt}, 1\ns_cmp_eq_u32 s{sIt}, 0\ns_cbranch_scc1 B_CE")
    stE = A.state()
    half1(1, True, [])
    A("s_branch B_CL\nB_CE:")
    A.lg = [set(x) for x in stE[0]]
    EX = 2*WP; RL = 3*WP
    half1(1, False, [f"s_xor_b32 s50, s{sW}, 2", "s_mul_i32 s50, s50, 5120", "v_add_u32 v9, s50, v3", f"s_mul_i32 s50, s{sW}, 5120", "v_add_u32 v10, s50, v3", "v_add_u32 v11, s50, v11"])
    T.at(A, "mB", 4)
    for nt in range(5): A(f"ds_write_b128 v9, {v(ACC+(nt*2+1)*4,4)} offset:{EX+1024*nt}")
    A("s_waitcnt lgkmcnt(0)\ns_barrier")
    P = HF
    for nt in range(5): A(f"ds_read_b128 {v(P+4*nt,4)}, v10 offset:{EX+1024*nt}")
    for nt in range(5):
        c = ACC + nt*8
        A(f"v_pk_add_f32 {v(c,2)}, {v(c,2)}, {v(P+4*nt,2)}\nv_pk_add_f32 {v(c+2,2)}, {v(c+2,2)}, {v(P+4*nt+2,2)}")
        A(f"v_cvt_pk_bf16_f32 v{c+4}, v{c}, v{c+1}\nv_cvt_pk_bf16_f32 v{c+5}, v{c+2}, v{c+3}\nds_write_b64 v11, {v(c+4,2)} offset:{RL+32*nt}")
    A("s_waitcnt lgkmcnt(0)")
    for q in range(3): A(f"ds_read_b128 {v(P+20+4*q,4)}, v10 offset:{RL+1024*q}")
    for q in range(3):
        if q == 2: A("s_mov_b32 exec_hi, 0")
        A(f"buffer_store_dwordx4 {v(P+20+4*q,4)}, v{OF+q}, s[{rO}:{rO+3}], s59 offen {ST if 'osc1' in OPT else ''}")
    T.end(A, sW, sWS)
    A("s_endpgm")

    rH, rW, rU, rXb = 16, 20, 24, 28
    sO, sO2, sM, sIt = 44, 45, 47, 48
    def bsrd(d, mul, sreg, off):
        A.prot -= set(range(d, d+4))
        A(f"s_mul_i32 s50, s{sreg}, {mul}\ns_add_u32 s50, s50, {off}\ns_add_u32 s{d}, s{sWS}, s50\ns_addc_u32 s{d+1}, s{sWS+1}, 0\ns_mov_b32 s{d+2}, {mul}\ns_mov_b32 s{d+3}, 0x20000")
        A.prot |= set(range(d, d+4))
    def ld(srdr, so, step, groups, base, o):
        for k, (vr, n, lo) in enumerate(groups):
            A(f"s_mov_b32 m0, {o+lo}" if base is None else f"s_add_u32 m0, s{base}, {o+lo}")
            for i in range(n): A(f"buffer_load_dwordx4 v{vr}, s[{srdr}:{srdr+3}], s{so} offen offset:{1024*i} sc1 lds")
        A(f"s_add_u32 s{so}, s{so}, {step}")
    def ldW(base, o, so): ld(rW, so, 10240, [(3, 4, 0), (4, 4, 4096), (5, 2, 8192)], base, o)
    def ldH(base, o): ld(rH, sO, 8192, [(3, 4, 0), (4, 4, 4096)], base, o)
    def ldU(base, o): ld(rU, sO2, 8192, [(6, 4, 0), (7, 4, 4096)], base, o)
    def poll(shift, want):
        L, G = A.label(), A.label()
        A(f"s_mov_b32 s61, 100000\n{L}:\ns_mov_b32 s60, 0")
        A.raw("s_atomic_add s60, s[56:57], s58 glc")
        A(f"s_waitcnt lgkmcnt(0)\ns_bfe_u32 s60, s60, {shift | (8 << 16)}\ns_cmp_eq_u32 s60, {want}\ns_cbranch_scc1 {G}")
        A(f"s_sub_u32 s61, s61, 1\ns_cmp_eq_u32 s61, 0\ns_cbranch_scc1 {G}\ns_sleep {optval('pb', 2)}\ns_branch {L}\n{G}:")
    reset(A)
    A("B_LH:")
    T.at(A, "mB", 0)
    brole()
    A(f"""
    s_load_dwordx2 s[8:9], s[0:1], 56
    s_add_u32 s56, s{sWS}, {FLG_OFF}
    s_addc_u32 s57, s{sWS+1}, 0
    s_add_u32 s58, s{sRB}, 48
    s_lshl_b32 s58, s58, 8
    v_add_u32 v4, 4096, v3
    v_add_u32 v5, 8192, v3
    v_and_b32 v6, 16, v0
    v_lshlrev_b32 v6, 2, v6
    v_xor_b32 v6, v6, v3
    v_add_u32 v7, 4096, v6
    s_mul_i32 s54, s{sCB}, 160
    s_mul_i32 s53, s{sRB}, 2560
    s_add_u32 s53, s53, s54
    """)
    A.prot |= {56, 57, 58}
    itemoff(12)
    A("s_waitcnt lgkmcnt(0)")
    srd(A, rXb, sX, 2048*1280); srd(A, rU, 8, 1280)
    for w in range(4):
        A(f"s_add_u32 s55, s53, {((w & 1) + 1024*(w >> 1))*1280}")
        for q in range(3):
            A(f"s_mov_b32 m0, {(XT0+2560*w if w < 3 else XT3)+1024*q}" + ("\ns_mov_b32 exec_hi, 0" if q == 2 else "") + f"\nbuffer_load_dwordx4 v{12+q}, s[{rXb}:{rXb+3}], s55 offen lds")
        A("s_mov_b64 exec, -1")
    A(f"s_mov_b32 m0, {BO}\ns_mov_b64 exec, 0x3ff\nbuffer_load_dwordx4 v3, s[{rU}:{rU+3}], s54 offen lds\ns_mov_b64 exec, -1")
    bsrd(rW, 54*5120, sCB, W2P_OFF); bsrd(rH, 54*4096, sRB, H_OFF); bsrd(rU, 20*4096, sRB, U_OFF)
    poll(16, 8)
    T.at(A, "mB", 1)
    A(f"s_mov_b32 s{sO}, 0\ns_mov_b32 s{sM}, 0\nB_PW:")
    ldW(sM, 0, sO)
    A(f"s_add_u32 s{sM}, s{sM}, 10240\ns_cmp_lt_u32 s{sM}, {7*10240}\ns_cbranch_scc1 B_PW")
    reset(A)
    A(f"s_mov_b32 s{sO}, 0\ns_mov_b32 s{sO2}, 0")
    T.at(A, "mB", 2)
    poll(0, 22)
    T.at(A, "mB", 3)
    ldH(None, HB); ldH(None, HB + 8192); ldH(None, HB + HP); ldH(None, HB + HP + 8192)
    A("s_waitcnt vmcnt(24)\ns_barrier")
    ldH(None, HB + 2*HP); A("s_waitcnt vmcnt(24)\ns_barrier")
    ldH(None, HB + 2*HP + 8192); A("s_waitcnt vmcnt(24)\ns_barrier")
    ldH(None, HB); A("s_waitcnt vmcnt(24)\ns_barrier")
    ldH(None, HB + HP); A("s_waitcnt vmcnt(24)\ns_barrier")
    ldH(None, HB + HP + 8192); A("s_waitcnt vmcnt(24)\ns_barrier")
    poll(8, 20)
    T.at(A, "mB", 4)
    ldU(None, HB + HP + 16384)
    ldH(None, HB + 2*HP); ldU(None, HB + 2*HP + 16384)
    A("s_waitcnt vmcnt(40)\ns_barrier")
    A(f"s_mov_b32 s{sM}, {HB + 2*HP}\ns_mov_b32 s{sIt}, 9\nB_LL:")
    ldH(sM, 8192)
    A(f"s_add_u32 s{sM}, s{sM}, {HP}\ns_cmp_eq_u32 s{sM}, {HB + 3*HP}\ns_cselect_b32 s{sM}, {HB}, s{sM}\ns_sub_u32 s{sIt}, s{sIt}, 1\ns_cmp_eq_u32 s{sIt}, 0\ns_waitcnt vmcnt(24)\ns_barrier\ns_cbranch_scc1 B_LE")
    ldH(sM, 0); ldU(sM, 16384)
    A("s_waitcnt vmcnt(40)\ns_barrier\ns_branch B_LL\nB_LE:")
    A("s_barrier\ns_waitcnt vmcnt(8)\ns_barrier\ns_waitcnt vmcnt(0)\ns_barrier")
    T.end(A, sW, sWS)
    A("s_endpgm")
    reset(A)
    A("B_LW:\ns_setprio 3")
    brole()
    A(f"v_add_u32 v4, 4096, v3\nv_add_u32 v5, 8192, v3\ns_mov_b32 s{sO}, {7*10240}\ns_mov_b32 s{sM}, 0\ns_mov_b32 s{sIt}, 20")
    bsrd(rW, 54*5120, sCB, W2P_OFF)
    WL = optval("wl", 3)
    for _ in range(WL): A("s_barrier")
    A("B_LWL:")
    ldW(sM, 0, sO)
    A(f"s_add_u32 s{sM}, s{sM}, 10240\ns_cmp_eq_u32 s{sM}, {4*WP}\ns_cselect_b32 s{sM}, 0, s{sM}\ns_sub_u32 s{sIt}, s{sIt}, 1\ns_cmp_lg_u32 s{sIt}, 0\ns_waitcnt vmcnt({10*(7-WL)})\ns_barrier\ns_cbranch_scc1 B_LWL")
    for k in range(7 - WL): A(f"s_waitcnt vmcnt({10*(6-WL-k)})\ns_barrier")
    T.end(A, sW, sWS)
    A(f"{END}:\nCODE_END:")
    return dict(label=NAME + "_kernel", body=A.text(), vgpr=256, grid=256, block=512, lds=160*1024)

def groups(i, shape):
    import numpy as np
    w = np.arange(shape[1])
    b = np.arange(256); i8 = (b >> 3) & 7; ch = b & 1
    mlp = i8 < 5 + ch
    return [("mlp", np.ix_(mlp, w < 4)), ("mlp-ld", np.ix_(mlp, w == 4)), ("mlp-h", np.ix_(mlp, w == 6)), ("dft", np.ix_(~mlp, w < 4)), ("dft-ld", np.ix_(~mlp, w == 4)), ("dft-h", np.ix_(~mlp, w == 6))]

if __name__ == "__main__":
    st = "stamps" in sys.argv
    OPT.update(sys.argv[2:])
    ks = [gen_all(st)]
    for x in sys.argv:
        if x.startswith("abl:"):
            _, ki, l0, l1, pre = x.split(":")
            out = []; on = False
            for l in ks[int(ki)]["body"].split("\n"):
                t = l.strip()
                if t == l0 + ":": on = True
                if t == l1 + ":": on = False
                if on and any(t.startswith(p) for p in pre.split(",")): continue
                out.append(l)
            ks[int(ki)]["body"] = "\n".join(out)
    for x in sys.argv:
        if x.startswith("diag:"):
            import diag
            p = x.split(":")[1:]
            ks.append(diag.gen_diag(tuple([p[0]] + [int(y) for y in p[1:]]), STAMP_OFF))
    txt = file_text(ks)
    if len(ks) == 1: txt = txt.replace(f"; @launch kernel={NAME}_kernel grid", "; @launch grid")
    open(sys.argv[1], "w").write(txt)
```

```python
import struct, math, sys
from asmlib import *

def fbits(x): return "0x%08x" % struct.unpack("<I", struct.pack("<f", x))[0]

H_OFF = 0;            H_SZ = 32*54*4096
W2P_OFF = 8 << 20;    W2P_SZ = 8*54*5120
V_OFF = 12 << 20;     V_SZ = 32*20*64*64
U_OFF = 16 << 20;     U_SZ = V_SZ
FLG_OFF = 20 << 20;   FLG_SZ = 80*256
STAMP_OFF = 64 << 20
ST = "sc1"
OPT = set()

K0 = -2.0*math.sqrt(2.0/math.pi)*math.log2(math.e)
K1c = K0*0.044715
MF = "v_mfma_f32_16x16x32_bf16"

def mfma(d, x, y, c=None):
    return f"{MF} {v(d,4)}, {v(x,4)}, {v(y,4)}, {v(d,4) if c is None else c}"

def srd(A, d, lo, nbytes, add=0):
    A.prot -= set(range(d, d+4))
    if add: A(f"s_add_u32 s{d}, s{lo}, {add}\ns_addc_u32 s{d+1}, s{lo+1}, 0")
    else: A(f"s_mov_b32 s{d}, s{lo}\ns_mov_b32 s{d+1}, s{lo+1}")
    A(f"s_mov_b32 s{d+2}, {nbytes}\ns_mov_b32 s{d+3}, 0x20000")
    A.prot |= set(range(d, d+4))

def bf16_round(A, dst, src):
    A(f"v_cvt_pk_bf16_f32 v{dst}, v{src}, v{src}\nv_lshlrev_b32 v{dst}, 16, v{dst}")

def weave(A, main, fill, per=None, start=0):
    fill = list(fill); n = len(main) - start; done = 0
    for i, m in enumerate(main):
        A(m)
        if i < start: continue
        want = min(len(fill), int(math.ceil((i - start + 1) * per))) if per else (len(fill) * (i - start + 1) + n - 1) // n
        while done < want: A(fill[done]); done += 1
    while done < len(fill): A(fill[done]); done += 1

def stats_from_mfma(A, SUM, GR, vN, vG, t0, t1, mean=True):
    A(f"v_cndmask_b32 v{GR}, v{GR}, v{GR+1}, s[60:61]\nv_cndmask_b32 v{GR+2}, v{GR+2}, v{GR+3}, s[60:61]")
    A(f"v_cndmask_b32 v{GR}, v{GR}, v{GR+2}, s[62:63]")
    A(f"ds_bpermute_b32 v{GR}, v{vG}, v{GR}")
    A(f"v_mul_f32 v{SUM}, {fbits(1/640)}, v{SUM}")
    A(f"v_mul_f32 v{t0}, v{SUM}, v{SUM}")
    A(f"v_fma_f32 v{GR}, v{GR}, s66, -v{t0}")
    A(f"v_max_f32 v{GR}, 0, v{GR}")
    bf16_round(A, GR, GR)
    A(f"v_add_f32 v{GR}, {fbits(1e-5)}, v{GR}")
    bf16_round(A, GR, GR)
    A(f"v_sqrt_f32 v{GR}, v{GR}")
    bf16_round(A, GR, GR)
    if mean: bf16_round(A, SUM, SUM)

def stats_setup(A, vBP):
    A(f"""
    v_and_b32 v{vBP}, 1, v1
    v_cmp_eq_u32 s[60:61], 1, v{vBP}
    v_and_b32 v{vBP}, 2, v1
    v_cmp_eq_u32 s[62:63], 2, v{vBP}
    v_lshrrev_b32 v{vBP}, 2, v1
    v_lshl_add_u32 v{vBP}, v{vBP}, 4, v1
    v_lshlrev_b32 v{vBP}, 2, v{vBP}
    s_mov_b32 s66, {fbits(1/640)}
    """)

class Stamp:
    def __init__(self, on, slot): self.on = on; self.slot = slot; self.n = 0
    def start(self, A):
        if self.on: A("s_memtime s[90:91]\ns_memrealtime s[92:93]\ns_mov_b32 s80, 0\ns_mov_b32 s82, 0\ns_mov_b32 s84, 0\ns_mov_b32 s86, 0\ns_mov_b32 s88, 0")
    def at(self, A, mode, i):
        if self.on and (mode in OPT or (mode == "mB" and not OPT & {"mA", "mT"})):
            A(f"s_memtime s[{80+2*i}:{81+2*i}]"); A.lg.pop()
    def mark(self, A):
        if self.on and "mA" in OPT:
            A(f"s_memtime s[{80+2*self.n}:{81+2*self.n}]"); A.lg.pop(); self.n += 1; assert self.n <= 5
    def end(self, A, wave_s, ws_lo):
        if not self.on: return
        self.n = 5
        A("s_waitcnt vmcnt(0)")
        A("s_memtime s[94:95]\ns_memrealtime s[96:97]\ns_waitcnt lgkmcnt(0)")
        A("s_sub_u32 s94, s94, s90")
        for i in range(5):
            if i < self.n: A(f"s_sub_u32 s{80+2*i}, s{80+2*i}, s90")
            else: A(f"s_mov_b32 s{80+2*i}, -1")
        A("s_mov_b64 exec, 1")
        A("v_mov_b32 v0, s94\nv_mov_b32 v1, s92\nv_mov_b32 v2, s96\nv_mov_b32 v3, s80")
        A("v_mov_b32 v4, s82\nv_mov_b32 v5, s84\nv_mov_b32 v6, s86\nv_mov_b32 v7, s88")
        srd(A, 76, ws_lo, 0x10000000)
        A(f"s_lshl_b32 s98, s2, 3\ns_add_u32 s98, s98, s{wave_s}\ns_lshl_b32 s98, s98, 5\ns_add_u32 s98, s98, {STAMP_OFF + self.slot*131072}")
        A("v_mov_b32 v8, 0")
        A("buffer_store_dwordx4 v[0:3], v8, s[76:79], s98 offen\nbuffer_store_dwordx4 v[4:7], v8, s[76:79], s98 offen offset:16")
        self.n = 0

def optval(name, default):
    for x in OPT:
        if x.startswith(name + "="): return int(x[len(name)+1:])
    return default

def reset(A): A.lg = []; A.vm = []

def job_consts(A, CF, SF, TA):
    A(f"v_lshlrev_b32 v5, 2, v2\nv_cvt_f32_u32 v5, v5\nv_cvt_f32_u32 v6, v1\nv_mul_f32 v6, {fbits(1/64)}, v6\nv_mul_f32 v7, v6, v5")
    for j in range(8): A(f"v_fmamk_f32 v{TA+j}, v6, {fbits(16.0*(j>>2) + (j&3))}, v7")
    for j in range(8): A(f"v_sin_f32 v{TA+8+j}, v{TA+j}\nv_cos_f32 v{TA+j}, v{TA+j}")
    cf = lambda mt, t, p: CF+(mt*2+t)*4+p
    sf = lambda mt, t, p: SF+(mt*2+t)*4+p
    A("s_brev_b32 s67, 1")
    for p in range(4):
        c0, c1, s0, s1 = TA+2*p, TA+2*p+1, TA+8+2*p, TA+8+2*p+1
        A(f"v_cvt_pk_bf16_f32 v{cf(0,0,p)}, v{c0}, v{c1}\nv_cvt_pk_bf16_f32 v{sf(0,0,p)}, v{s0}, v{s1}")
        if p % 2 == 0: A(f"v_cvt_pk_bf16_f32 v{cf(1,0,p)}, v{c0}, -v{s1}\nv_cvt_pk_bf16_f32 v{sf(1,0,p)}, v{s0}, v{c1}")
        else: A(f"v_cvt_pk_bf16_f32 v{cf(1,0,p)}, -v{c0}, v{s1}\nv_cvt_pk_bf16_f32 v{sf(1,0,p)}, -v{s0}, -v{c1}")
    A("v_and_b32 v5, 1, v1\nv_mul_u32_u24 v5, 0x8000, v5\nv_lshl_or_b32 v5, v5, 16, v5")
    for f in (cf, sf):
        for mt in (2, 3):
            for p in range(4): A(f"v_xor_b32 v{f(mt,0,p)}, s67, v{f(mt-2,0,p)}")
        for mt in range(4):
            for p in range(4): A(f"v_xor_b32 v{f(mt,1,p)}, v5, v{f(mt,0,p)}")

def gen_all(stamps=False):
    A = Asm(); T = Stamp(stamps, 0)
    END = "A_END"
    OPT.update({"hold", "spoll", "apoll", "gdup"})
    if not OPT & {"g3", "g10"}: OPT.add("g4")
    sX, sWR, sW1, sB1, sW2, sWS, sWI, sDBG = 4, 6, 8, 10, 12, 14, 74, 72
    PTRS = set(range(4, 16)) | {0, 1, 72, 73, 74, 75, 2, 32, 33, 35, 37, 40, 41, 43, 44, 45}
    rX, rA, rB, rC, rD = 16, 20, 24, 28, 56
    sW, sR, sC0, sS2, sCol = 32, 33, 35, 36, 37
    SLOT = 36864; NS = 3
    PS = 32768; FX = 3*PS
    GAP = 122880; JST = 126976
    C1X = STAT = GAP; B1X = JST
    PFM = optval("pfm", 6)
    if "g3" in OPT: ROT = f"s_add_u32 s46, s44, s45\ns_mul_i32 s{sC0}, s46, 43\ns_lshr_b32 s{sC0}, s{sC0}, 7\ns_mul_i32 s{sC0}, s{sC0}, 3\ns_sub_u32 s46, s46, s{sC0}\ns_mul_i32 s46, s46, 27\ns_lshr_b32 s{sC0}, s46, 3"
    elif "g4" in OPT: ROT = f"s_add_u32 s46, s44, s45\ns_and_b32 s46, s46, 3\ns_mul_i32 s46, s46, 5\ns_add_u32 s46, s46, 1\ns_lshr_b32 s{sC0}, s46, 1"
    else: ROT = f"""s_mul_i32 s46, s44, 5
    s_add_u32 s46, s46, 1
    s_lshr_b32 s46, s46, 1
    s_add_u32 s{sC0}, s46, s45
    s_cmp_ge_u32 s{sC0}, 10
    s_cselect_b32 s46, 10, 0
    s_sub_u32 s{sC0}, s{sC0}, s46"""
    A(f"s_cmp_ge_u32 s2, 256\ns_cbranch_scc1 {END}")
    T.start(A)
    if "nocpf" not in OPT:
        A(f"""
        s_getpc_b64 s[70:71]
        A_PC:
        s_lshr_b32 s46, s2, 3
        s_lshl_b32 s46, s46, 11
        v_lshrrev_b32 v10, 5, v0
        v_lshl_add_u32 v10, v10, 7, s46
        v_min_u32 v10, CODE_END-A_PC-4, v10
        v_mov_b32 v11, s71
        v_add_co_u32 v10, vcc, s70, v10
        v_addc_co_u32 v11, vcc, 0, v11, vcc
        global_load_dword v255, v[10:11], off
        """)
        reset(A)
    A(f"""
    s_load_dwordx4 s[{sX}:{sX+3}], s[0:1], 0
    s_load_dwordx4 s[{sW1}:{sW1+3}], s[0:1], 32
    s_load_dwordx2 s[{sW2}:{sW2+1}], s[0:1], 48
    s_load_dwordx2 s[{sWS}:{sWS+1}], s[0:1], 80
    s_load_dwordx2 s[{sWI}:{sWI+1}], s[0:1], 16
    s_load_dwordx2 s[{sDBG}:{sDBG+1}], s[0:1], 72
    v_lshrrev_b32 v1, 6, v0
    v_and_b32 v0, 63, v0
    v_readfirstlane_b32 s{sW}, v1
    s_and_b32 s40, s2, 7
    s_lshr_b32 s41, s2, 3
    s_lshr_b32 s42, s40, 1
    s_and_b32 s43, s40, 1
    s_lshr_b32 s44, s41, 3
    s_and_b32 s45, s41, 7
    s_lshl_b32 s{sR}, s42, 2
    s_add_u32 s{sR}, s{sR}, s44
    {ROT}
    s_mul_i32 s{sCol}, s43, 5
    s_add_u32 s{sCol}, s{sCol}, s45
    s_mul_i32 s{sCol}, s{sCol}, 160
    s_min_u32 s{sCol}, s{sCol}, 1568
    s_add_u32 s47, s43, 5
    v_and_b32 v1, 15, v0
    v_lshrrev_b32 v2, 4, v0
    s_cmp_lg_u32 s{sW}, 4
    s_cbranch_scc1 A_NOTLD
    """)
    A.prot = set(PTRS)
    def div20(dst, i, stride, swz, t=(14, 15, 16)):
        A(f"""
        v_add_u32 v{t[0]}, {64*i}, v0
        v_mul_hi_u32 v{t[1]}, v{t[0]}, s52
        v_mul_u32_u24 v{t[2]}, 20, v{t[1]}
        v_sub_u32 v{t[2]}, v{t[0]}, v{t[2]}
        """)
        if swz: A(f"v_lshrrev_b32 v{t[0]}, 2, v{t[1]}\nv_and_b32 v{t[0]}, 2, v{t[0]}\nv_xor_b32 v{t[2]}, v{t[2]}, v{t[0]}")
        A(f"v_mul_u32_u24 v{t[1]}, {stride}, v{t[1]}\nv_lshl_add_u32 v{dst}, v{t[2]}, 4, v{t[1]}")
        if 0 < i < 4: A(f"v_subrev_u32 v{dst}, {1024*i}, v{dst}")
    sCh, sSl, sXo, sWo, sIt = 49, 50, 51, 53, 54
    sH, sL, sKT, sU1, sWL = 34, 38, 39, 48, 55
    rWR, rWI = rA, rC
    def jobpar():
        A(f"""
        s_lshl_b32 s{sU1}, s40, 2
        s_add_u32 s{sU1}, s{sU1}, s44
        s_mul_i32 s{sKT}, s45, 5
        s_add_u32 s{sKT}, s{sKT}, 1
        s_lshr_b32 s{sKT}, s{sKT}, 1
        """)
    def pf_w():
        srd(A, rWR, sWR, 2048*642); srd(A, rWI, sWI, 2048*642)
        A(f"""
        v_lshrrev_b32 v14, 5, v0
        v_mul_u32_u24 v14, 20544, v14
        v_and_b32 v15, 31, v0
        v_min_u32 v15, 21, v15
        v_lshl_add_u32 v14, v15, 7, v14
        s_mul_i32 s62, s41, {2*20544}
        s_mul_i32 s63, s40, 2568
        s_add_u32 s62, s62, s63
        buffer_load_ubyte v18, v14, s[{rWR}:{rWR+3}], s62 offen
        buffer_load_ubyte v19, v14, s[{rWI}:{rWI+3}], s62 offen
        """)
    A(f"""
    s_setprio 3
    v_lshrrev_b32 v3, 3, v0
    v_mul_u32_u24 v3, 81920, v3
    v_and_b32 v4, 7, v0
    v_xor_b32 v4, v4, v2
    v_lshl_add_u32 v4, v4, 4, v3
    v_xor_b32 v5, 64, v4
    v_add_u32 v5, {655360-1024}, v5
    v_add_u32 v6, {2*(655360-1024)}, v4
    v_add_u32 v7, {2*(655360-1024)}, v5
    s_mul_i32 s52, s{sR}, 5120
    s_mov_b32 s{sSl}, 0
    s_mov_b32 s{sIt}, 0
    s_mov_b32 s{rX+2}, {2048*1280}
    s_mov_b32 s{rX+3}, 0x20000
    v_lshlrev_b32 v3, 7, v0
    s_cmp_ge_u32 s45, s47
    s_cbranch_scc1 A_LD_DFT
    s_mov_b32 s{sCh}, s{sC0}
    s_waitcnt lgkmcnt(0)
    s_mov_b64 s[{rX}:{rX+1}], s[{sX}:{sX+1}]
    """)
    A.prot |= set(range(rX, rX+4))
    def xblock(base):
        for w in range(4):
            A(f"s_add_u32 m0, s{sSl}, {base+4096*w}\ns_add_u32 s{sXo}, s{sXo}, 1280")
            for i in range(4): A(f"buffer_load_dwordx4 v{4+i}, s[{rX}:{rX+3}], s{sXo} offen offset:{1024*i} lds")
    def ring_tail(lab, nch, slot, nld, pace=False):
        A(f"""
        s_add_u32 s{sCh}, s{sCh}, 1
        s_cmp_eq_u32 s{sCh}, {nch}
        s_cselect_b32 s{sCh}, 0, s{sCh}
        s_add_u32 s{sSl}, s{sSl}, {slot}
        s_cmp_eq_u32 s{sSl}, {3*slot}
        s_cselect_b32 s{sSl}, 0, s{sSl}
        s_add_u32 s{sIt}, s{sIt}, 1
        s_cmp_eq_u32 s{sIt}, 1
        s_cbranch_scc1 {lab + ("P" if pace else "")}
        s_cmp_lt_u32 s{sIt}, {nch}
        s_waitcnt vmcnt({nld})
        s_barrier
        s_cbranch_scc1 {lab}
        """)
        reset(A)
    A(f"s_sub_u32 s52, s52, 1280")
    T.mark(A)
    A(f"A_LDMP:\ns_waitcnt vmcnt({optval('pace', 15)})\nA_LDM:\ns_lshl_b32 s{sXo}, s{sCh}, 7\ns_add_u32 s{sXo}, s{sXo}, s52")
    xblock(0)
    ring_tail("A_LDM", 10, SLOT, 16, True)
    srd(A, rB, sB1, 1728*2)
    A(f"v_lshlrev_b32 v3, 4, v0\ns_lshl_b32 s46, s{sCol}, 1\ns_mov_b32 m0, {B1X}\ns_mov_b64 exec, 0xfffff\nbuffer_load_dwordx4 v3, s[{rB}:{rB+3}], s46 offen lds\ns_mov_b64 exec, -1")
    pf_w()
    A(f"s_waitcnt vmcnt(3)\ns_barrier")
    T.mark(A)
    A("s_waitcnt vmcnt(2)\ns_barrier\ns_barrier\ns_branch B_LH")
    A.prot = set(PTRS)
    A("A_LD_DFT:")
    reset(A); T.n = 0
    A(f"""
    s_sub_u32 s52, s52, 1280
    s_mov_b32 s{sCh}, 0
    s_waitcnt lgkmcnt(0)
    s_mov_b64 s[{rX}:{rX+1}], s[{sX}:{sX+1}]
    """)
    A.prot |= set(range(rX, rX+4))
    T.mark(A)
    A(f"A_LDD:\ns_lshl_b32 s{sXo}, s{sCh}, 7\ns_add_u32 s{sXo}, s{sXo}, s52")
    xblock(0)
    A(f"s_sub_u32 s{sXo}, s{sXo}, {4*1280-640}")
    xblock(16384)
    ring_tail("A_LDD", 5, PS, 32)
    pf_w()
    A("s_waitcnt vmcnt(2)\ns_barrier")
    T.mark(A)
    A("s_barrier\ns_barrier\ns_barrier\ns_branch B_LH")

    reset(A); T.n = 0
    A.prot = set(PTRS)
    A(f"A_NOTLD:\ns_cmp_lt_u32 s{sW}, 4\ns_cbranch_scc1 A_COMPUTE")
    CF, SF = 16, 48; WR, WI = 80, 96; XA = 112; VF = 144; TA = 168; YF = 184; UA = 208
    A(f"""
    s_sub_u32 s{sH}, s{sW}, 5
    s_mul_i32 s{sL}, s{sH}, 12288
    s_add_u32 s{sL}, s{sL}, {JST}
    v_lshlrev_b32 v3, 4, v0
    s_mov_b32 s52, {(1<<32)//20+1}
    s_cmp_lg_u32 s{sH}, 0
    s_cbranch_scc1 A_H0
    s_cmp_ge_u32 s45, s47
    s_cbranch_scc1 A_H1
    s_setprio 3
    """)
    for i in range(5): div20(9+i, i, 3456, True)
    A(f"s_mov_b32 s{sCh}, s{sC0}\ns_lshl_b32 s52, s{sCol}, 1\ns_sub_u32 s52, s52, {16*3456}\ns_mov_b32 s{sSl}, 0\ns_mov_b32 s{sIt}, 0\ns_waitcnt lgkmcnt(0)")
    srd(A, rA, sW1, 640*3456)
    A(f"A_LDW:\ns_mul_i32 s{sWo}, s{sCh}, {64*3456}\ns_add_u32 s{sWo}, s{sWo}, s52")
    for q in range(4):
        A(f"s_add_u32 m0, s{sSl}, {16384+5120*q}\ns_add_u32 s{sWo}, s{sWo}, {16*3456}")
        for i in range(4): A(f"buffer_load_dwordx4 v{9+i}, s[{rA}:{rA+3}], s{sWo} offen offset:{1024*i} lds")
        A(f"s_add_u32 m0, s{sSl}, {16384+5120*q+4096}")
        A(f"buffer_load_dwordx4 v13, s[{rA}:{rA+3}], s{sWo} offen lds")
    A(f"s_cmp_lg_u32 s{sIt}, 0\ns_cbranch_scc1 A_LDW1\ns_mov_b32 s62, 1\ns_branch A_H2\nA_LDW1:")
    ring_tail("A_LDW", 10, SLOT, 20)
    srd(A, rD, sWS, FLG_SZ, FLG_OFF)
    A("s_setprio 0\ns_mov_b32 s53, 3\ns_movk_i32 s55, 999\ns_branch A_HM")
    A("A_H0:")
    A("A_H1:\ns_mov_b32 s62, 0\ns_waitcnt lgkmcnt(0)")
    reset(A)
    rF = rD
    srd(A, rF, sWS, FLG_SZ, FLG_OFF)
    A(f"s_xor_b32 s46, s{sH}, 1\ns_or_b32 s46, s2, s46\ns_cmp_lg_u32 s46, 0\ns_cbranch_scc1 A_H2")
    srd(A, rB, sDBG, 256)
    A(f"v_lshlrev_b32 v4, 8, v0\nv_mov_b32 v5, 0\nbuffer_store_dword v5, v4, s[{rF}:{rF+3}], 0 offen sc1\ns_movk_i32 s46, 16384\nbuffer_store_dword v5, v4, s[{rF}:{rF+3}], s46 offen sc1\nv_mov_b32 v6, 1\ns_waitcnt vmcnt(0)")
    A(f"buffer_store_dword v6, v4, s[{rB}:{rB+3}], 0 offen sc1")
    A("A_H2:")
    reset(A)
    job_consts(A, CF, SF, TA)
    jobpar()
    A("s_cmp_eq_u32 s62, 1\ns_cbranch_scc1 A_LDW1")
    sE = 55
    def repack_load():
        for i in range(5): div20(9+i, i, 1280, False, (4, 5, 6))
        A(f"s_lshr_b32 s46, s{sE}, 2\ns_mul_i32 s46, s46, 40960\ns_and_b32 s52, s{sE}, 3\ns_mul_i32 s52, s52, 320\ns_add_u32 s46, s46, s52")
        srd(A, rA, sW2, 1728*1280)
        for q in range(2):
            A(f"s_add_u32 m0, s{sL}, {5120*q}")
            for i in range(4): A(f"buffer_load_dwordx4 v{9+i}, s[{rA}:{rA+3}], s46 offen offset:{1024*i} lds")
            A(f"s_add_u32 m0, s{sL}, {5120*q+4096}\nbuffer_load_dwordx4 v13, s[{rA}:{rA+3}], s46 offen lds")
            if q == 0: A(f"s_add_u32 s46, s46, {16*1280}")
        reset(A)
    def repack():
        srd(A, rB, sWS, W2P_SZ, W2P_OFF)
        A(f"""
        v_lshrrev_b32 v5, 2, v1
        v_lshl_add_u32 v5, v2, 2, v5
        v_mul_u32_u24 v5, 320, v5
        v_and_b32 v6, 3, v1
        v_lshl_add_u32 v5, v6, 3, v5
        v_add_u32 v5, s{sL}, v5
        v_add_u32 v6, 4096, v3
        s_and_b32 s46, s{sE}, 3
        s_mul_i32 s46, s46, 108
        s_lshr_b32 s52, s{sE}, 2
        s_add_u32 s46, s46, s52
        s_mul_i32 s46, s46, 5120
        s_waitcnt vmcnt(0)
        """)
        for nt in range(10):
            for jh in range(2): A(f"ds_read_b64_tr_b16 {v(YF+4*nt+2*jh,2)}, v5 offset:{jh*5120 + nt*32}")
        for nt in range(10):
            q = nt % 5
            if q < 4: A(f"buffer_store_dwordx4 {v(YF+4*nt,4)}, v3, s[{rB}:{rB+3}], s46 offen offset:{1024*q} {ST}")
            else: A(f"buffer_store_dwordx4 {v(YF+4*nt,4)}, v6, s[{rB}:{rB+3}], s46 offen {ST}\ns_add_u32 s46, s46, {54*5120}")
        reset(A)
    def signal2(line_expr, last, inc):
        L = A.label()
        A(f"{line_expr}\ns_lshl_b32 s46, s46, 8\ns_mov_b32 s66, 1\ns_waitcnt vmcnt(0)")
        A.raw(f"s_atomic_add s66, s[{rD}:{rD+1}], s46 glc")
        A(f"v_lshlrev_b32 v4, 8, v0\nv_mov_b32 v5, {inc}\ns_movk_i32 s46, {48*256}\ns_waitcnt lgkmcnt(0)\ns_cmp_lg_u32 s66, {last}\ns_cbranch_scc1 {L}")
        A(f"buffer_atomic_add v5, v4, s[{rD}:{rD+3}], s46 offen sc1\n{L}:")
        reset(A)
    def initcheck():
        L, G = A.label(), A.label()
        A(f"s_mov_b32 s61, 200000\n{L}:\ns_waitcnt lgkmcnt(0)\ns_cmp_eq_u32 s60, 1\ns_cbranch_scc1 {G}")
        A(f"s_sub_u32 s61, s61, 1\ns_cmp_eq_u32 s61, 0\ns_cbranch_scc1 {G}\ns_sleep 32\ns_load_dword s60, s[{sDBG}:{sDBG+1}], 0 glc\ns_branch {L}\n{G}:")
        reset(A)
    A(f"""
    s_lshl_b32 s46, s43, 1
    s_add_u32 s46, s46, s45
    s_sub_u32 s46, s46, 5
    s_mul_i32 s{sE}, s{sR}, 5
    s_add_u32 s{sE}, s{sE}, s46
    s_mul_i32 s{sE}, s{sE}, 3
    s_add_u32 s{sE}, s{sE}, s{sH}
    s_cmp_ge_u32 s45, s47
    s_cselect_b32 s53, {8 if "hold" in OPT else 7}, 12
    s_cselect_b32 s{sE}, s{sE}, 999
    """)
    T.mark(A)
    A(f"A_HM:\ns_cmp_lg_u32 s53, 3\ns_cbranch_scc1 A_HM2\ns_load_dword s60, s[{sDBG}:{sDBG+1}], 0\ns_waitcnt vmcnt(0)")
    reset(A)
    if "hold" in OPT:
        A(f"s_cmp_ge_u32 s{sE}, 216\ns_cbranch_scc1 A_HM3")
        repack()
        A(f"s_branch A_HM3\nA_HM2:\ns_cmp_lg_u32 s53, 4\ns_cbranch_scc1 A_HM2b\ns_cmp_ge_u32 s{sE}, 216\ns_cbranch_scc1 A_HM3")
        repack_load()
    else:
        A(f"s_cmp_ge_u32 s{sE}, 216\ns_cbranch_scc1 A_HM3")
        repack_load()
        A("A_HM2:")
    A("A_HM2b:\ns_cmp_lg_u32 s53, 2\ns_cbranch_scc1 A_HM2c")
    initcheck()
    A(f"s_branch A_HM3\nA_HM2c:\ns_cmp_lg_u32 s53, 1\ns_cbranch_scc1 A_HM3\ns_cmp_ge_u32 s{sE}, 216\ns_cbranch_scc1 A_HM3")
    signal2(f"s_and_b32 s46, s{sE}, 7\ns_add_u32 s46, s46, 40", 26, 1 << 16)
    A("A_HM3:\ns_sub_u32 s53, s53, 1\ns_cmp_lg_u32 s53, 0\ns_barrier\ns_cbranch_scc1 A_HM")
    if "hold" not in OPT:
        A(f"s_cmp_ge_u32 s{sE}, 216\ns_cbranch_scc1 A_HM4")
        repack()
        A("A_HM4:")
    T.mark(A)
    A(f"""
    A_JOB:
    s_and_b32 s46, s45, 1
    s_add_u32 s46, s46, s{sH}
    s_cmp_ge_u32 s46, 3
    s_cbranch_scc1 A_JE
    s_add_u32 s{sKT}, s{sKT}, s{sH}
    v_lshrrev_b32 v4, 2, v0
    v_mul_u32_u24 v4, 20544, v4
    v_and_b32 v5, 3, v0
    v_min_u32 v5, 2, v5
    v_lshl_add_u32 v4, v5, 4, v4
    s_mul_i32 s62, s{sU1}, 321
    s_lshl_b32 s63, s{sKT}, 4
    s_add_u32 s62, s62, s63
    s_add_u32 s62, s62, 1
    s_lshl_b32 s62, s62, 1
    s_and_b32 s63, s62, 2
    s_sub_u32 s62, s62, s63
    s_add_u32 s63, s63, s{sL}
    s_add_u32 s63, s63, 4096
    """)
    srd(A, rWR, sWR, 2048*642); srd(A, rWI, sWI, 2048*642)
    for q in range(4):
        A(f"s_add_u32 m0, s{sL}, {4096+1024*q}\nbuffer_load_dwordx4 v4, s[{rWR}:{rWR+3}], s62 offen lds")
        A(f"s_add_u32 m0, s{sL}, {8192+1024*q}\nbuffer_load_dwordx4 v4, s[{rWI}:{rWI+3}], s62 offen lds")
        if q < 3: A(f"s_add_u32 s62, s62, {16*20544}")
    reset(A)
    rV, rU = rX, rB
    srd(A, rV, sWS, V_SZ, V_OFF); srd(A, rU, sWS, U_SZ, U_OFF)
    for i in range(32): A(f"v_mov_b32 v{WR+i}, 0")
    A(f"""
    v_lshrrev_b32 v5, 2, v1
    v_lshl_add_u32 v5, v2, 2, v5
    v_lshlrev_b32 v5, 6, v5
    v_and_b32 v6, 3, v1
    v_lshl_add_u32 v5, v6, 4, v5
    v_add_u32 v5, s{sL}, v5
    v_lshlrev_b32 v6, 8, v2
    v_lshl_add_u32 v6, v1, 1, v6
    v_add_u32 v6, s63, v6
    s_mov_b32 s70, 0x80008000
    s_mul_i32 s47, s{sU1}, 20
    s_add_u32 s47, s47, s{sKT}
    s_lshl_b32 s47, s47, 12
    s_waitcnt vmcnt(0)
    """)
    for mt in range(4):
        for r in range(4):
            for ar in range(2): A(f"ds_read_u16_d16_hi v{(WR,WI)[ar]+4*mt+r}, v6 offset:{4096*ar+(16*mt+r)*64}")
    if "spoll" in OPT:
        A(f"""
        s_setprio 3
        s_lshl_b32 s46, s{sKT}, 8
        s_mov_b32 s61, 100000
        s_mov_b32 m0, s{sL}
        A_POLL:
        {"s_mov_b32 s60, 0" if "apoll" in OPT else ""}
        {"s_atomic_add" if "apoll" in OPT else "s_load_dword"} s60, s[{rF}:{rF+1}], s46 glc
        s_waitcnt lgkmcnt(0)
        s_cmp_eq_u32 s60, 16
        s_cbranch_scc1 A_PD
        s_sub_u32 s61, s61, 1
        s_cmp_eq_u32 s61, 0
        s_cbranch_scc1 A_PD
        s_sleep {optval('ps', 2)}
        s_branch A_POLL
        A_PD:
        """)
    elif "vpoll" in OPT:
        A(f"""
        s_setprio 3
        v_mov_b32 v7, 0
        s_lshl_b32 s46, s{sKT}, 8
        s_mov_b32 s61, 100000
        s_mov_b32 m0, s{sL}
        A_POLL:
        buffer_load_dword v8, v7, s[{rF}:{rF+3}], s46 offen {"sc0 sc1" if "sys" in OPT else "sc1"}
        s_waitcnt vmcnt(0)
        v_cmp_ne_u32 vcc, 16, v8
        s_cbranch_vccz A_PD
        s_sub_u32 s61, s61, 1
        s_cmp_eq_u32 s61, 0
        s_cbranch_scc1 A_PD
        s_sleep {optval('ps', 8)}
        s_branch A_POLL
        A_PD:
        """)
    else:
        A(f"""
        s_setprio 3
        v_mov_b32 v7, 0
        s_lshl_b32 s46, s{sKT}, 8
        s_add_u32 s46, s46, {20*256}
        s_mov_b32 s61, 100000
        s_mov_b32 m0, s{sL}
        A_POLL:
        buffer_load_dword v8, v7, s[{rF}:{rF+3}], s46 offen sc1
        s_waitcnt vmcnt(0)
        v_cmp_ne_u32 vcc, 1, v8
        s_cbranch_vccz A_PD
        s_sub_u32 s61, s61, 1
        s_cmp_eq_u32 s61, 0
        s_cbranch_scc1 A_PD
        s_sleep {optval('ps', 3)}
        s_branch A_POLL
        A_PD:
        """)
    T.n = 2; T.mark(A)
    for i in range(4): A(f"buffer_load_dwordx4 v3, s[{rV}:{rV+3}], s47 offen offset:{1024*i} sc1 lds")
    A(f"""
    v_lshrrev_b32 v9, 1, v1
    v_and_b32 v9, 3, v9
    v_xor_b32 v9, v9, v2
    v_lshlrev_b32 v9, 4, v9
    v_lshl_add_u32 v9, v1, 6, v9
    v_add_u32 v9, s{sL}, v9
    v_lshrrev_b32 v6, 3, v0
    v_and_b32 v7, 3, v6
    v_lshlrev_b32 v7, 4, v7
    v_xor_b32 v7, v7, v3
    v_add_u32 v7, s{sL}, v7
    v_mul_u32_u24 v6, 81920, v6
    v_and_b32 v8, 7, v0
    v_lshl_add_u32 v6, v8, 4, v6
    s_lshl_b32 s47, s{sKT}, 12
    s_lshl_b32 s46, s{sU1}, 7
    s_add_u32 s47, s47, s46
    s_cmp_eq_u32 s{sKT}, 19
    s_cselect_b32 s46, 0.5, 1.0
    v_cmp_eq_u32 vcc, 3, v2
    v_mov_b32 v8, s46
    v_cndmask_b32 v8, 1.0, v8, vcc
    s_waitcnt vmcnt(0) lgkmcnt(0)
    """)
    T.mark(A)
    for t in range(2):
        for rho in range(2):
            for jh in range(2): A(f"ds_read_b64_tr_b16 {v(VF+12*t+4*rho+2*jh,2)}, v5 offset:{2048*t+1024*jh+8*rho}")
    for t in range(2):
        for p in range(4): A(f"v_xor_b32 v{VF+12*t+8+p}, s70, v{VF+12*t+p}")
    def fwd(mt):
        m = []
        for t in range(2):
            re, im = XA+8*mt, XA+8*mt+4
            C, S = CF+(mt*2+t)*4, SF+(mt*2+t)*4
            m += [mfma(re, C, VF+12*t, None if t else 0), mfma(im, C, VF+12*t+4, None if t else 0), mfma(re, S, VF+12*t+4), mfma(im, S, VF+12*t+8)]
        return m
    def filt(mt):
        f = []
        tb = TA + 8*(mt & 1)
        for r in range(4):
            xr, xi, w_r, w_i = XA+8*mt+r, XA+8*mt+4+r, WR+4*mt+r, WI+4*mt+r
            f += [f"v_mul_f32 v{tb+r}, v{xi}, v{w_i}", f"v_mul_f32 v{tb+4+r}, v{xr}, v{w_i}", f"v_fma_f32 v{tb+r}, v{xr}, v{w_r}, -v{tb+r}", f"v_fmac_f32 v{tb+4+r}, v{xi}, v{w_r}"]
        t, jh = mt >> 1, mt & 1
        for p in range(2):
            f += [f"v_cvt_pk_bf16_f32 v{YF+12*t+2*jh+p}, v{tb+2*p}, v{tb+2*p+1}", f"v_cvt_pk_bf16_f32 v{YF+12*t+4+2*jh+p}, v{tb+4+2*p}, v{tb+4+2*p+1}",
                  f"v_xor_b32 v{YF+12*t+8+2*jh+p}, s70, v{YF+12*t+4+2*jh+p}"]
        return f
    def inv(t):
        m = []
        for nt in range(4):
            re, im = UA+8*nt, UA+8*nt+4
            C, S = CF+(nt*2+t)*4, SF+(nt*2+t)*4
            m += [mfma(re, YF+12*t, C, None if t else 0), mfma(im, YF+12*t+4, C, None if t else 0), mfma(re, YF+12*t+8, S), mfma(im, YF+12*t, S)]
        return m
    for x in fwd(0) + fwd(1)[:4]: A(x)
    weave(A, fwd(1)[4:] + fwd(2) + fwd(3), filt(0) + filt(1))
    weave(A, inv(0), filt(2) + filt(3))
    def outp(nt):
        d = UA+8*nt
        return [f"v_mul_f32 v{d+3}, v{d+3}, v8", f"v_mul_f32 v{d+7}, v{d+7}, v8"] + [f"v_cvt_pk_bf16_f32 v{TA+4*nt+p}, v{d+2*p}, v{d+2*p+1}" for p in range(4)] + [f"ds_write_b128 v9, {v(TA+4*nt,4)} offset:{1024*nt}"]
    i1 = inv(1)
    for x in i1[:9]: A(x)
    weave(A, i1[9:], outp(0) + outp(1))
    for x in outp(2) + outp(3): A(x)
    A("s_waitcnt lgkmcnt(0)")
    for q in range(4): A(f"ds_read_b128 {v(VF+4*q,4)}, v7 offset:{1024*q}")
    for q in range(4):
        A(f"buffer_store_dwordx4 {v(VF+4*q,4)}, v6, s[{rU}:{rU+3}], s47 offen sc1\ns_add_u32 s47, s47, {8*81920}")
    T.mark(A)
    T.at(A, "mB", 0)
    signal2(f"s_add_u32 s46, s{sKT}, 20", 31, 1 << 8)
    T.at(A, "mB", 1)
    A(f"A_JE:\ns_cmp_eq_u32 s{sW}, 5\ns_cbranch_scc1 B_LW")
    T.end(A, sW, sWS)
    A("s_endpgm")

    reset(A); T.n = 0
    A.prot = set(PTRS)
    A("A_COMPUTE:")
    A(f"""
    s_lshl_b32 s{sS2}, s{sR}, 2
    s_add_u32 s{sS2}, s{sS2}, s{sW}
    v_lshrrev_b32 v3, 1, v1
    v_xor_b32 v3, v3, v2
    v_lshlrev_b32 v3, 4, v3
    v_lshl_add_u32 v8, v1, 7, v3
    s_waitcnt lgkmcnt(0)
    s_cmp_ge_u32 s45, s47
    s_cbranch_scc1 A_DFT
    """)
    rH, rB1 = rA, rB
    srd(A, rH, sWS, H_SZ, H_OFF)
    ONES = 20; B1R = 24; ACC = 36; AF = 116; XF = 196; C1A = 212; SUM = 232; GR = 240; ST4 = 212
    stats_setup(A, 9)
    vXA0, vXA1, vWE, vWO, vXB, vWB, vG32 = 10, 11, 12, 13, 14, 15, 16
    A(f"v_lshlrev_b32 v24, 1, v1\nv_add_u32 v24, {B1X}, v24")
    A(f"""
    s_lshl_b32 s46, s{sW}, 12
    v_add_u32 v{vXB}, s46, v8
    v_lshrrev_b32 v18, 2, v1
    v_lshl_add_u32 v18, v2, 3, v18
    v_mul_u32_u24 v18, 320, v18
    v_and_b32 v19, 3, v1
    v_lshl_add_u32 v18, v19, 3, v18
    v_add_u32 v{vWB}, 16384, v18
    v_and_b32 v{vG32}, 1, v2
    v_lshlrev_b32 v{vG32}, 5, v{vG32}
    s_lshr_b32 s46, s{sW}, 1
    s_mul_i32 s46, s46, {5*128}
    s_and_b32 s52, s{sW}, 1
    s_lshl_b32 s52, s52, 2
    s_add_u32 s46, s46, s52
    s_add_u32 s46, s46, {C1X}
    v_lshlrev_b32 v18, 3, v1
    v_add_u32 v19, s46, v18
    v_add_u32 v18, {C1X}, v18
    s_lshr_b32 s46, s{sS2}, 1
    s_mul_i32 s46, s46, 54
    s_lshr_b32 s52, s{sCol}, 5
    s_add_u32 s46, s46, s52
    s_lshl_b32 s46, s46, 2
    s_and_b32 s52, s{sS2}, 1
    s_lshl_b32 s52, s52, 1
    s_add_u32 s46, s46, s52
    s_lshl_b32 s57, s46, 10
    s_cmp_eq_u32 s{sCol}, 1568
    s_cselect_b32 s58, 0x40000000, s57
    v_lshlrev_b32 v17, 4, v0
    v_cmp_eq_u32 s[64:65], 0, v2
    s_mov_b32 s69, 0xffff0000
    """)
    for i in range(4): A(f"v_mov_b32 v{ONES+i}, 0x3f803f80")
    for i in range(4): A(f"v_mov_b32 v{C1A+32+i}, 0")
    for r in [ACC+16*i for i in range(5)] + [C1A, C1A+16]: A(f"v_mfma_f32_32x32x16_bf16 {v(r,16)}, {v(C1A+32,4)}, {v(C1A+32,4)}, 0")
    def addr_upd():
        return [f"v_add_u32 v{vXA0}, s{sSl}, v{vXB}", f"v_add_u32 v{vWO}, s{sSl}, v{vWB}", f"v_add_u32 v{vWE}, v{vWO}, v{vG32}",
                f"v_sub_u32 v{vWO}, v{vWO}, v{vG32}", f"v_xor_b32 v{vXA1}, 64, v{vXA0}"]
    def reads(t):
        r = [f"ds_read_b128 {v(XF+8*t+4*mt,4)}, v{vXA0+t} offset:{2048*mt}" for mt in range(2)]
        for ft in range(10):
            for jh in range(2):
                r.append(f"ds_read_b64_tr_b16 {v(AF+40*t+4*ft+2*jh,2)}, v{vWE if ft%2==0 else vWO} offset:{t*10240+jh*1280+ft*32}")
        return r
    def mains(t, w):
        m = []
        for mt in range(2): m += [mfma(SUM+4*mt, ONES, XF+8*t+4*mt), mfma(GR+4*mt, XF+8*t+4*mt, XF+8*t+4*mt)]
        for ft in range(10):
            for mt in range(2): m.append(mfma(ACC+(ft*2+mt)*4, AF+40*t+4*ft, XF+8*t+4*mt))
            if t == (w & 1) and ft // 5 == (w >> 1): m.append(mfma(C1A+4*(ft % 5), ONES, AF+40*t+4*ft))
        return m
    A(f"s_mov_b32 s{sSl}, 0\ns_mov_b32 s{sIt}, 10")
    for x in addr_upd(): A(x)
    reset(A)
    T.mark(A)
    A("s_barrier")
    T.mark(A)
    r0 = reads(0)
    for x in r0[2:8] + r0[:2] + r0[8:]: A(x)
    st0 = A.state()
    for w in range(3): A(f"s_cmp_eq_u32 s{sW}, {w+1}\ns_cbranch_scc1 A_ML{w+1}")
    for w in range(4):
        A.lg = [set(x) for x in st0[0]]
        A(f"A_ML{w}:")
        slotadv = [f"s_add_u32 s{sSl}, s{sSl}, {SLOT}", f"s_cmp_eq_u32 s{sSl}, {NS*SLOT}", f"s_cselect_b32 s{sSl}, 0, s{sSl}", f"s_sub_u32 s{sIt}, s{sIt}, 1"]
        m0, m1 = mains(0, w), mains(1, w)
        allm = m0 + m1
        R1 = optval("r1", 22); BAR = optval("bar", 27); R0 = optval("r0", 51)
        weave(A, allm[:R1], reads(1)); weave(A, allm[R1:BAR], slotadv + addr_upd())
        A("s_waitcnt lgkmcnt(0)\ns_barrier")
        r0 = reads(0)
        weave(A, allm[BAR:R0], r0[2:8] + r0[:2] + r0[8:] + [f"s_cmp_lg_u32 s{sIt}, 0"])
        for x in allm[R0:]: A(x)
        assert A.state()[0] == st0[0], (A.state()[0], st0[0])
        A(f"s_cbranch_scc1 A_ML{w}")
        if w < 3: A("s_branch A_MLE")
    A("A_MLE:")
    T.mark(A)
    for q in range(5):
        c = C1A+4*q
        A(f"v_and_b32 v{c+1}, s69, v{c}\nv_sub_f32 v{c+1}, v{c}, v{c+1}\nv_cvt_pk_bf16_f32 v{c+1}, v{c+1}, v{c+1}\nv_alignbit_b32 v{c}, v{c+1}, v{c}, 16\nds_write_b32 v19, v{c} offset:{128*q}")
    AUG = AF + 40
    for ft in range(10): A(f"ds_read_u16 v{AUG+4*ft+2}, v24 offset:{32*ft}\nv_mov_b32 v{AUG+4*ft+3}, 0")
    A("s_waitcnt lgkmcnt(0)\ns_barrier")
    for ft in range(10): A(f"ds_read_b64 {v(AUG+4*ft,2)}, v18 offset:{128*ft}")
    B0, B1 = Asm(auto=False), Asm(auto=False)
    for B, mt in ((B0, 0), (B1, 1)):
        stats_from_mfma(B, SUM+4*mt, GR+4*mt, 1, 9, 10+mt, 0)
        S = ST4 + 4*mt; b = XF+4*mt
        B(f"""
        v_rcp_f32 v{10+mt}, v{GR+4*mt}
        v_cvt_pk_bf16_f32 v{b}, -v{SUM+4*mt}, -v{SUM+4*mt}
        v_lshrrev_b32 v{b+2}, 16, v{GR+4*mt}
        v_cndmask_b32 v{b}, 0, v{b}, s[64:65]
        v_cndmask_b32 v{b+2}, 0, v{b+2}, s[64:65]
        v_mov_b32 v{b+3}, 0
        v_mov_b32 v{b+1}, v{b}
        """)
    fillers = []
    for k, (p, q) in enumerate(zip(B0.ins, B1.ins)):
        A(p.text); A(q.text)
        if k == 3:
            for x in fillers: A(x)
    late = []
    for mt in range(2):
        S = ST4 + 4*mt
        late += [f"v_mov_b32 v{S+3}, v{GR+4*mt}", f"v_mul_f32 v{S+2}, {fbits(K0)}, v{10+mt}", f"v_mul_f32 v{S+1}, v{10+mt}, v{10+mt}", f"v_mul_f32 v{S+1}, v{S+1}, v{S+2}", f"v_mul_f32 v{S+1}, {fbits(0.044715)}, v{S+1}"]
    weave(A, [mfma(ACC+(ft*2+mt)*4, AUG+4*ft, XF+4*mt) for ft in range(10) for mt in range(2)], late, per=1)
    T.mark(A)
    TMP = AF
    def grp(n):
        q, mt = n >> 1, n & 1
        tm = TMP + 8*(n % 3); o = TMP + 24 + 4*(n % 4)
        prs = [ACC + ((2*q+h)*2+mt)*4 + 2*p for h in range(2) for p in range(2)]
        S = ST4 + 4*mt
        s1 = [f"v_pk_mul_f32 {v(tm+2*i,2)}, {v(c,2)}, {v(c,2)}" for i, c in enumerate(prs)]
        s1 += [f"v_pk_fma_f32 {v(tm+2*i,2)}, {v(tm+2*i,2)}, {v(S,2)}, {v(S+2,2)} op_sel:[0,1,0] op_sel_hi:[1,1,0]" for i in range(4)]
        s1 += [f"v_pk_mul_f32 {v(tm+2*i,2)}, {v(tm+2*i,2)}, {v(c,2)}" for i, c in enumerate(prs)]
        e = [f"v_exp_f32 v{tm+i}, v{tm+i}" for i in range(8)]
        s2 = [f"v_pk_fma_f32 {v(tm+2*i,2)}, {v(tm+2*i,2)}, {v(S+2,2)}, {v(S+2,2)} op_sel:[0,1,1] op_sel_hi:[1,1,1]" for i in range(4)]
        r = [f"v_rcp_f32 v{tm+i}, v{tm+i}" for i in range(8)]
        s3 = [f"v_pk_mul_f32 {v(tm+2*i,2)}, {v(tm+2*i,2)}, {v(c,2)}" for i, c in enumerate(prs)]
        s3 += [f"v_cvt_pk_bf16_f32 v{o+i}, v{tm+2*i}, v{tm+2*i+1}" for i in range(4)]
        s3 += [f"buffer_store_dwordx4 {v(o,4)}, v17, s[{rH}:{rH+3}], s{57 if q else 58} offen offset:{1024*mt} {ST}" + ("\ns_add_u32 s57, s57, 4096" if mt else "")]
        if "gsel" in OPT or "gdup" in OPT:
            hi = "op_sel_hi:[1,0,0]" if "gsel" in OPT else ""
            for i in range(4):
                s1[4+i] = f"v_pk_fma_f32 {v(tm+2*i,2)}, {v(tm+2*i,2)}, {v(220+2*mt,2)}, {v(224+2*mt,2)} {hi}"
                s2[i] = f"v_pk_fma_f32 {v(tm+2*i,2)}, {v(tm+2*i,2)}, {v(228+2*mt,2)}, {v(228+2*mt,2)} {hi}"
        if "gnopk" in OPT:
            el = [c + k for c in prs for k in range(2)]
            s1 = [f"v_mul_f32 v{tm+i}, v{c}, v{c}" for i, c in enumerate(el)] + [f"v_fma_f32 v{tm+i}, v{tm+i}, v{S+1}, v{S+2}" for i in range(8)] + [f"v_mul_f32 v{tm+i}, v{tm+i}, v{c}" for i, c in enumerate(el)]
            s2 = [f"v_fma_f32 v{tm+i}, v{tm+i}, v{S+3}, v{S+3}" for i in range(8)]
            s3 = [f"v_mul_f32 v{tm+i}, v{tm+i}, v{c}" for i, c in enumerate(el)] + s3[4:]
        return s1, e, s2, r, s3
    if "gsel" in OPT or "gdup" in OPT:
        for mt in range(2):
            for k in range(3):
                for h in range(2): A(f"v_mov_b32 v{220+4*k+2*mt+h}, v{ST4+4*mt+1+k}")
    G = [list(grp(n)) for n in range(10)]
    if "gnop" in OPT:
        for g in G:
            g[1] = [x + "\ns_nop 0" for x in g[1]]; g[3] = [x + "\ns_nop 0" for x in g[3]]
    if "gnopb" in OPT:
        for g in G:
            g[1] = ["s_nop 0\n" + x for x in g[1]]; g[3] = ["s_nop 0\n" + x for x in g[3]]
    if "gblock" in OPT:
        for n in range(10):
            for st in range(5 if n < 9 else 4):
                for x in G[n][st]: A(x)
    else:
        for x in G[0][0]: A(x)
        for n in range(10):
            if "gw1" in OPT:
                for x in (G[n-1][4] if n else []) + G[n][1]: A(x)
            else: weave(A, G[n][1], G[n-1][4] if n else [])
            for x in G[n][2]: A(x)
            if "gw2" in OPT:
                for x in G[n][3] + (G[n+1][0] if n < 9 else []): A(x)
            else: weave(A, G[n][3], G[n+1][0] if n < 9 else [])
    for x in G[9][4]: A(x)
    T.mark(A)
    A(f"s_lshr_b32 s38, s{sS2}, 1\ns_add_u32 s38, s38, 48\ns_branch B_COMPUTE")

    reset(A); T.n = 0
    A.prot = set(PTRS)
    A("A_DFT:")
    rV = rA; rF = rD
    srd(A, rV, sWS, V_SZ, V_OFF); srd(A, rF, sWS, FLG_SZ, FLG_OFF)
    sKT = 38
    ONES = 24; ACC = 28; XF = 156; BF = 188; SQ = 204; SUM = 236; GR = 244; TA = 220
    vSIG, vTQ, vBP = 252, 4, 9
    vXA = 10; vXB = 18
    stats_setup(A, vBP)
    A(f"""
    s_lshl_b32 s46, s43, 1
    s_add_u32 s46, s45, s46
    s_sub_u32 s46, s46, 5
    s_lshl_b32 s{sKT}, s46, 2
    s_add_u32 s{sKT}, s{sKT}, s{sW}
    v_add_u32 v22, 1, v1
    v_lshlrev_b32 v22, 31, v22
    v_or_b32 v{vSIG}, 1.0, v22
    v_or_b32 v{vSIG+1}, 1.0, v22
    v_lshlrev_b32 v22, 8, v2
    v_add_u32 v22, s{sS2}, v22
    v_cvt_f32_u32 v22, v22
    s_lshl_b32 s46, s{sW}, 12
    s_add_u32 s46, s46, {FX}
    v_lshl_add_u32 v3, v0, 4, s46
    v_and_b32 v5, 1, v1
    v_mul_u32_u24 v5, 0x8000, v5
    v_lshl_or_b32 v5, v5, 16, v5
    """)
    for ut in range(2):
        A(f"v_add_u32 v23, {16*ut}, v1\nv_cvt_f32_u32 v23, v23\nv_mul_f32 v23, {fbits(1/2048)}, v23\nv_mul_f32 v{TA}, v23, v22\nv_mul_f32 v23, {fbits(64.0)}, v23")
        for j in range(1, 4): A(f"v_add_f32 v{TA+j}, v23, v{TA+j-1}")
        for j in range(4): A(f"v_sin_f32 v{TA+4+j}, v{TA+j}\nv_cos_f32 v{TA+j}, v{TA+j}")
        o = XF + 8*ut
        for p in range(2): A(f"v_cvt_pk_bf16_f32 v{o+p}, v{TA+2*p}, v{TA+2*p+1}\nv_cvt_pk_bf16_f32 v{o+4+p}, v{TA+4+2*p}, v{TA+4+2*p+1}")
        for p in range(2): A(f"v_xor_b32 v{o+2+p}, v5, v{o+p}\nv_xor_b32 v{o+6+p}, v5, v{o+4+p}")
        A(f"ds_write_b128 v3, {v(o,4)} offset:{2048*ut}\nds_write_b128 v3, {v(o+4,4)} offset:{2048*ut+1024}")
    A(f"""
    s_lshl_b32 s46, s{sKT}, 4
    s_add_u32 s46, s46, 1
    v_add_u32 v5, s46, v1
    v_cvt_f32_u32 v5, v5
    v_mul_f32 v5, {fbits(-1/640)}, v5
    v_lshlrev_b32 v7, 3, v2
    v_cvt_f32_u32 v7, v7
    v_add_f32 v7, 0.5, v7
    v_mul_f32 v{SQ}, v5, v7
    v_mul_f32 v7, {fbits(32.0)}, v5
    v_cos_f32 v{vTQ}, v7
    """)
    for j in range(1, 8): A(f"v_add_f32 v{SQ+j}, v5, v{SQ+j-1}")
    for j in range(8): A(f"v_sub_f32 v{SQ+16+j}, v{SQ+j}, v7")
    A(f"v_add_f32 v{vTQ}, v{vTQ}, v{vTQ}")
    for sd in range(2):
        for j in range(8): A(f"v_sin_f32 v{SQ+16*sd+8+j}, v{SQ+16*sd+j}\nv_cos_f32 v{SQ+16*sd+j}, v{SQ+16*sd+j}")
    def bcv(t): return [f"v_cvt_pk_bf16_f32 v{BF+8*t+p}, v{SQ+16*t+2*p}, v{SQ+16*t+2*p+1}" for p in range(8)]
    def bstep(t): return [f"v_fma_f32 v{SQ+16*t+j}, v{vTQ}, v{SQ+16*(t^1)+j}, -v{SQ+16*t+j}" for j in range(16)] + bcv(t)
    for gq in range(4):
        A(f"s_xor_b32 s46, s{sW}, {gq}\ns_lshl_b32 s46, s46, 12\nv_add_u32 v{vXB+gq}, s46, v8")
    for x in bcv(0): A(x)
    for i in range(4): A(f"v_mov_b32 v{ONES+i}, 0x3f803f80")
    for i in range(4): A(f"v_mov_b32 v{BF+8+i}, 0")
    for r in [ACC+16*i for i in range(8)] + [SUM]: A(f"v_mfma_f32_32x32x16_bf16 {v(r,16)}, {v(BF+8,4)}, {v(BF+8,4)}, 0")
    def dupd(): return sum([[f"v_add_u32 v{vXA+2*gq}, s{sSl}, v{vXB+gq}", f"v_xor_b32 v{vXA+2*gq+1}, 64, v{vXA+2*gq}"] for gq in range(4)], [])
    frs = [(h, t, m) for t in range(2) for h in range(2) for m in range(8)]
    NR = 8
    def rd(i):
        h, t, m = frs[i % 32]
        return f"ds_read_b128 {v(XF+4*(i%NR),4)}, v{vXA+2*(m//2)+t} offset:{h*16384+2048*(m%2)}"
    AH = 6
    A(f"s_mov_b32 s{sSl}, 0\ns_mov_b32 s{sIt}, 5")
    for x in dupd(): A(x)
    A("s_waitcnt lgkmcnt(0)")
    T.mark(A)
    A("s_barrier")
    T.mark(A)
    for i in range(AH): A(rd(i))
    st0 = A.state()
    A("A_DL:")
    pr, pv = [], []
    for i, (h, t, m) in enumerate(frs):
        x = XF + 4*(i % NR)
        ms = [mfma(ACC+((h*8+m)*2+rho)*4, x, BF+8*t+4*rho) for rho in range(2)]
        if m < 2: ms += [mfma(SUM+4*m, ONES, x), mfma(GR+4*m, x, x)]
        if i == 0: pv += bstep(1) + [f"s_add_u32 s{sSl}, s{sSl}, {PS}", f"s_cmp_eq_u32 s{sSl}, {3*PS}", f"s_cselect_b32 s{sSl}, 0, s{sSl}", f"s_sub_u32 s{sIt}, s{sIt}, 1"]
        if i == 16:
            assert not pv
            pv += bstep(0)
        if i % 2 == 0 and i + AH < 32: pr += [rd(i + AH), rd(i + AH + 1)]
        if i == 26: pv = dupd() + pv
        if i == 28:
            assert not pr and not any("v_xor" in z for z in pv)
            A("s_waitcnt lgkmcnt(0)\ns_barrier")
            pr += [rd(32+k) for k in range(4)]
        if i == 30: pr += [rd(36), rd(37)]; pv += [f"s_cmp_lg_u32 s{sIt}, 0"]
        for mm in ms:
            A(mm)
            n = 2
            if pr: A(pr.pop(0)); n -= 1
            if i % 2 == 1 and mm is ms[-1] and i < 26: n -= 1
            while n > 0 and pv: A(pv.pop(0)); n -= 1
    assert not pr and not pv
    assert A.state()[0] == st0[0], (A.state()[0], st0[0])
    A("s_cbranch_scc1 A_DL\nA_DLE:")
    T.mark(A)
    B0, B1 = Asm(auto=False), Asm(auto=False)
    for B, mt in ((B0, 0), (B1, 1)):
        stats_from_mfma(B, SUM+4*mt, GR+4*mt, 1, vBP, 22+mt, 0, mean=False)
        B(f"v_rcp_f32 v{GR+4*mt}, v{GR+4*mt}\nv_mul_f32 v{GR+4*mt}, {fbits(2.0/(2048*640))}, v{GR+4*mt}\nds_write_b32 v7, v{GR+4*mt} offset:{64*mt}")
    comb = [f"v_pk_fma_f32 {v(ACC+2*i,2)}, {v(ACC+64+2*i,2)}, {v(vSIG,2)}, {v(ACC+2*i,2)}" for i in range(32)]
    A(f"s_lshl_b32 s46, s{sW}, 7\ns_add_u32 s46, s46, {STAT}\nv_lshl_add_u32 v7, v1, 2, s46")
    for k, (p, q) in enumerate(zip(B0.ins, B1.ins)):
        A(p.text); A(q.text)
        if k == 3:
            for gq in range(4):
                A(f"s_xor_b32 s46, s{sW}, {gq}\ns_lshl_b32 s52, s46, 12\ns_add_u32 s52, s52, {FX}\nv_lshl_add_u32 v{14+gq}, v0, 4, s52\ns_lshl_b32 s46, s46, 7\ns_add_u32 s46, s46, {STAT}\nv_lshl_add_u32 v{10+gq}, v2, 4, s46")
    for x in comb[:8]: A(x)
    A("s_waitcnt lgkmcnt(0)\ns_barrier")
    if "dep" in OPT: T.n = 0; T.mark(A)
    RR = TA
    for gq in range(4):
        for jh in range(2): A(f"ds_read_b128 {v(RR+8*gq+4*jh,4)}, v{10+gq} offset:{64*jh}")
    for gq in range(4):
        for q in range(4): A(f"ds_read_b128 {v(XF+16*gq+4*q,4)}, v{14+gq} offset:{1024*q}")
    for x in comb[8:]: A(x)
    TF = ACC + 64
    A(f"s_lshl_b32 s64, s{sW}, 13\nv_and_b32 v3, 7, v1\ns_mov_b32 s70, 0x80008000")
    for gq in range(4):
        for jh in range(2):
            for rho in range(2):
                c = ACC + ((2*gq+jh)*2+rho)*4
                for p in range(2): A(f"v_pk_mul_f32 {v(c+2*p,2)}, {v(c+2*p,2)}, {v(RR+8*gq+4*jh+2*p,2)}")
    def tcv(gq):
        f = []
        for rho in range(2):
            for jh in range(2):
                c = ACC + ((2*gq+jh)*2+rho)*4
                for p in range(2): f.append(f"v_cvt_pk_bf16_f32 v{TF+12*gq+4*rho+2*jh+p}, v{c+2*p}, v{c+2*p+1}")
        f += [f"v_xor_b32 v{TF+12*gq+8+p}, s70, v{TF+12*gq+p}" for p in range(4)]
        return f
    def sta(gq):
        m = []
        for ut in range(2):
            Cf, Sf = XF+16*gq+8*ut, XF+16*gq+8*ut+4
            re, im, nre = TF+12*gq, TF+12*gq+4, TF+12*gq+8
            dre, dim = ACC+(gq*2+ut)*8, ACC+(gq*2+ut)*8+4
            m += [mfma(dre, re, Cf, 0), mfma(dim, im, Cf, 0), mfma(dre, im, Sf), mfma(dim, nre, Sf)]
        return m
    def wad(gq):
        return f"""s_xor_b32 s46, s{sW}, {gq}
        s_lshl_b32 s46, s46, 2
        v_add_u32 v{10+gq}, s46, v2
        v_xor_b32 v{10+gq}, v{10+gq}, v3
        v_lshlrev_b32 v{10+gq}, 4, v{10+gq}
        v_lshl_add_u32 v{10+gq}, v1, 8, v{10+gq}
        v_add_u32 v{10+gq}, s64, v{10+gq}""".split("\n")
    def outv(gq):
        f = []
        for ut in range(2):
            d = ACC+(gq*2+ut)*8; o = TA + 4*(gq*2+ut)
            f += [f"v_cvt_pk_bf16_f32 v{o+p}, v{d+2*p}, v{d+2*p+1}" for p in range(4)] + [f"ds_write_b128 v{10+gq}, {v(o,4)} offset:{4096*ut}"]
        return f
    if "dep" in OPT: T.mark(A)
    for x in tcv(0): A(x)
    weave(A, sta(0), tcv(1) + wad(0))
    weave(A, sta(1), tcv(2) + wad(1))
    weave(A, sta(2), tcv(3) + wad(2) + wad(3))
    weave(A, sta(3), outv(0) + outv(1))
    for x in outv(2): A(x)
    A(f"""
    v_xor_b32 v14, v1, v2
    v_lshlrev_b32 v14, 4, v14
    v_lshl_add_u32 v14, v2, 8, v14
    v_add_u32 v14, s64, v14
    v_xor_b32 v15, 64, v14
    v_mul_u32_u24 v16, {20*4096}, v2
    v_lshl_add_u32 v16, v1, 4, v16
    s_lshl_b32 s46, s{sKT}, 12
    s_lshl_b32 s52, s{sR}, 8
    s_add_u32 s46, s46, s52
    """)
    for x in outv(3): A(x)
    A("s_waitcnt lgkmcnt(0)")
    if "dep" in OPT: T.mark(A)
    for n in range(8): A(f"ds_read_b128 {v(XF+4*n,4)}, v{14 + (n&1)} offset:{1024*n}")
    for n in range(8):
        A(f"buffer_store_dwordx4 {v(XF+4*n,4)}, v16, s[{rV}:{rV+3}], s46 offen sc1\ns_add_u32 s46, s46, {4*20*4096}")
    T.mark(A)
    if "hold" in OPT: A("s_barrier")
    T.mark(A)
    sRB, sCB = 33, 34
    WP = 20480; HB = 4*WP; HP = 24576
    XT0 = HB + 16384; XT3 = GAP + 1280; BO = XT0 + 7680
    PTRB = {0, 1, 2, 4, 5, 14, 15, 32, 40, 41}
    def brole():
        A.prot = set(PTRB)
        A(f"s_lshr_b32 s42, s41, 3\ns_lshl_b32 s{sRB}, s40, 2\ns_add_u32 s{sRB}, s{sRB}, s42\ns_and_b32 s{sCB}, s41, 7\nv_lshlrev_b32 v3, 4, v0")
        A.prot |= {sRB, sCB}
    def itemoff(OF):
        A(f"s_mov_b32 s52, {(1<<32)//10+1}")
        for q in range(3):
            A(f"""
            v_add_u32 v9, {64*q}, v0
            v_mul_hi_u32 v10, v9, s52
            v_mul_u32_u24 v11, 10, v10
            v_sub_u32 v11, v9, v11
            v_mul_u32_u24 v10, 81920, v10
            v_lshl_add_u32 v{OF+q}, v11, 4, v10
            """)
    reset(A)
    A("B_COMPUTE:")
    T.at(A, "mB", 0)
    brole()
    sP, sKP, sUW, sUH, sIt = 44, 45, 46, 47, 48
    FP = 12; ACC = 28; HF = 68; UF = 124; ZA = 136; FI = 152; SQ = 164; TQ = 244; OF = 249; TC = 228
    vH, vW, vT, vWB, vTB, vHB = 4, 5, 6, 7, 8, 252
    rO = 20
    A(f"""
    s_load_dwordx2 s[8:9], s[0:1], 64
    s_add_u32 s56, s{sWS}, {FLG_OFF}
    s_addc_u32 s57, s{sWS+1}, 0
    s_lshl_b32 s38, s38, 8
    s_and_b32 s{sP}, s{sW}, 1
    s_lshr_b32 s{sKP}, s{sW}, 1
    s_lshl_b32 s55, s{sRB}, 1
    s_add_u32 s55, s55, s{sP}
    s_lshl_b32 s49, s{sKP}, 10
    s_add_u32 s49, s55, s49
    s_brev_b32 s67, 1
    """)
    A(f"v_lshlrev_b32 v9, 3, v2\nv_cvt_f32_u32 v9, v9\nv_lshl_add_u32 v10, v1, 6, s49\nv_cvt_f32_u32 v10, v10\nv_mul_f32 v10, {fbits(1/2048)}, v10\nv_mul_f32 v{TC}, v10, v9")
    for j in range(1, 8): A(f"v_add_f32 v{TC+j}, v10, v{TC+j-1}")
    for j in range(8): A(f"v_sin_f32 v{TC+8+j}, v{TC+j}\nv_cos_f32 v{TC+j}, v{TC+j}")
    for q in range(4): A(f"v_cvt_pk_bf16_f32 v{FP+q}, v{TC+2*q}, v{TC+2*q+1}\nv_cvt_pk_bf16_f32 v{FP+4+q}, v{TC+8+2*q}, v{TC+8+2*q+1}")
    for q in range(8): A(f"v_xor_b32 v{FP+8+q}, s67, v{FP+q}")
    itemoff(OF)
    A(f"""
    s_mul_i32 s50, s{sKP}, 5120
    v_add_u32 v{vWB}, s50, v3
    s_lshl_b32 s50, s{sKP}, 12
    s_lshl_b32 s51, s{sP}, 11
    s_add_u32 s51, s51, s50
    s_lshl_b32 s52, s{sKP}, 10
    s_add_u32 s51, s51, s52
    s_add_u32 s51, s51, {HB}
    v_add_u32 v{vHB}, s51, v3
    v_lshrrev_b32 v9, 2, v1
    v_lshl_add_u32 v9, v2, 3, v9
    v_lshlrev_b32 v9, 7, v9
    v_and_b32 v10, 3, v1
    v_lshl_add_u32 v9, v10, 4, v9
    s_lshl_b32 s51, s{sP}, 6
    v_add_u32 v9, s51, v9
    v_and_b32 v10, 8, v1
    v_lshlrev_b32 v10, 3, v10
    v_xor_b32 v9, v9, v10
    s_add_u32 s50, s50, {HB + 16384}
    v_add_u32 v{vTB}, s50, v9
    s_mul_i32 s54, s{sCB}, 160
    s_mul_i32 s59, s49, 1280
    s_add_u32 s59, s59, s54
    s_mul_i32 s58, s{sW}, 2560
    s_add_u32 s58, s58, {XT0}
    s_cmp_eq_u32 s{sW}, 3
    s_cselect_b32 s58, {XT3}, s58
    s_mov_b32 s70, 0x80008000
    s_mov_b32 s69, 0xffff0000
    s_mov_b32 s66, 1
    s_waitcnt vmcnt(0) lgkmcnt(0)
    """)
    A.raw("s_atomic_add s66, s[56:57], s38")
    T.at(A, "mB", 1)
    srd(A, rO, 8, 2048*1280)
    A(f"""
    s_mul_i32 s50, s{sCB}, 80
    s_cmp_ge_u32 s{sCB}, 4
    s_cselect_b32 s51, 640, 0
    s_sub_i32 s50, s50, s51
    s_lshl_b32 s51, s{sKP}, 4
    v_lshl_add_u32 v{HF}, v2, 2, s51
    v_cvt_f32_u32 v{HF}, v{HF}
    v_add_u32 v{HF+1}, s50, v1
    v_cvt_f32_i32 v{HF+1}, v{HF+1}
    """)
    for e in range(5):
        A(f"v_add_f32 v9, {fbits(16.0*e + 0.5)}, v{HF+1}\nv_mul_f32 v9, {fbits(-1/640)}, v9\nv_mul_f32 v10, v{HF}, v9\nv_mul_f32 v{TQ+e}, {fbits(32.0)}, v9\nv_cos_f32 v{TQ+e}, v{TQ+e}")
        for sd in range(2):
            for r in range(4): A(f"v_fmamk_f32 v{SQ+16*e+8*sd+r}, v9, {fbits(r + 1.0 - 32.0*(sd+1))}, v10")
        A(f"v_add_f32 v{TQ+e}, v{TQ+e}, v{TQ+e}")
        for sd in range(2):
            o = SQ + 16*e + 8*sd
            for r in range(4): A(f"v_sin_f32 v{o+4+r}, v{o+r}\nv_cos_f32 v{o+r}, v{o+r}")
    for nt in range(5):
        for i in range(4): A(f"v_mov_b32 v{ACC+(nt*2+1)*4+i}, 0")
    BT = ZA; XT = UF
    A(f"v_mul_u32_u24 v11, 160, v1\nv_lshl_add_u32 v11, v2, 3, v11\nv_add_u32 v253, s58, v11\nv_lshlrev_b32 v10, 3, v2\nv_add_u32 v10, {BO}, v10\ns_mov_b32 s{sUW}, 0\ns_mov_b32 s{sUH}, 0")
    adv = [f"s_add_u32 s{sUW}, s{sUW}, {WP}", f"s_cmp_eq_u32 s{sUW}, {4*WP}\ns_cselect_b32 s{sUW}, 0, s{sUW}", f"s_add_u32 s{sUH}, s{sUH}, {HP}", f"s_cmp_eq_u32 s{sUH}, {3*HP}\ns_cselect_b32 s{sUH}, 0, s{sUH}"]
    upd = [f"v_add_u32 v{vW}, s{sUW}, v{vWB}", f"v_add_u32 v{vH}, s{sUH}, v{vHB}", f"v_xor_b32 v9, 1024, v{vH}", f"v_add_u32 v{vT}, s{sUH}, v{vTB}"]
    def hrd(b): return [f"ds_read_b128 {v(HF+28*b,4)}, v{vH} offset:{8192*b}", f"ds_read_b128 {v(HF+28*b+8,4)}, v{vW} offset:{10240*b}", f"ds_read_b128 {v(HF+28*b+4,4)}, v9 offset:{8192*b}"] + \
                       [f"ds_read_b128 {v(HF+28*b+8+4*nt,4)}, v{vW} offset:{10240*b+1024*nt}" for nt in range(1, 5)]
    def hmm(b): return [mfma(ACC+(nt*2+l)*4, HF+28*b+8+4*nt, HF+28*b+4*l) for nt in range(5) for l in range(2)]
    trr = [f"ds_read_b64_tr_b16 {v(UF+4*rho+2*jh,2)}, v{vT} offset:{512*jh+8*rho}" for rho in (1, 0) for jh in range(2)]
    neg = [f"v_xor_b32 v{UF+8+q}, s70, v{UF+4+q}" for q in range(4)]
    sa = []
    for l in range(2):
        C, S = FP+8*l, FP+8*l+4; re, im = ZA+8*l, ZA+8*l+4
        sa += [mfma(re, UF, C, 0), mfma(im, UF+4, C, 0), mfma(im, UF, S), mfma(re, UF+8, S)]
    cv = [f"v_cvt_pk_bf16_f32 v{ZA+8*l+r}, v{ZA+8*l+r}, v{ZA+8*l+4+r}" for l in range(2) for r in range(4)]
    def fst(par): return [f"v_fma_f32 v{SQ+16*e+8*(par^1)+j}, v{TQ+e}, v{SQ+16*e+8*par+j}, -v{SQ+16*e+8*(par^1)+j}" for e in range(5) for j in range(8)]
    def fcv(par, e): return [f"v_cvt_pk_bf16_f32 v{FI+4*(e%3)+r}, v{SQ+16*e+8*(par^1)+r}, v{SQ+16*e+8*(par^1)+4+r}" for r in range(4)]
    def zmm(e): return [mfma(ACC+(e*2+l)*4, FI+4*(e%3), ZA+8*l) for l in range(2)]
    def mix(main, reads, valu):
        reads, valu = list(reads), list(valu); n = len(main)
        for i, mm in enumerate(main):
            A(mm)
            left = n - i
            nr = max(-(-len(reads) // left), 1) if reads else 0
            for _ in range(nr): A(reads.pop(0))
            nv = max(-(-len(valu) // left), min(len(valu), 2 - nr))
            for _ in range(nv): A(valu.pop(0))
    for x in upd: A(x)
    T.at(A, "mB", 2)
    A("s_barrier")
    T.at(A, "mB", 3)
    for nt in range(5): A(f"ds_read_b64 {v(XT+2*nt,2)}, v253 offset:{32*nt}\nds_read_b64 {v(BT+2*nt,2)}, v10 offset:{32*nt}")
    for x in hrd(0): A(x)
    for nt in range(5):
        for h in range(2):
            c = ACC + nt*8 + 2*h
            A(f"v_lshlrev_b32 v{c}, 16, v{XT+2*nt+h}\nv_lshlrev_b32 v10, 16, v{BT+2*nt+h}\nv_and_b32 v{c+1}, s69, v{XT+2*nt+h}\nv_and_b32 v{FI}, s69, v{BT+2*nt+h}")
            A(f"v_add_f32 v{c}, v{c}, v10\nv_add_f32 v{c+1}, v{c+1}, v{FI}")
    A(f"s_mov_b32 s{sIt}, 3\nB_C0:\ns_waitcnt lgkmcnt(0)\ns_barrier")
    m = hmm(0); mix(m[:7], hrd(1), adv); mix(m[7:], [], upd + [f"s_sub_u32 s{sIt}, s{sIt}, 1"])
    A(f"s_waitcnt lgkmcnt(0)\ns_barrier\ns_cmp_lg_u32 s{sIt}, 0")
    mix(hmm(1), hrd(0), [])
    A("s_cbranch_scc1 B_C0")
    for x in adv + upd: A(x)
    for x in hmm(0): A(x)
    A(f"s_mov_b32 s{sIt}, 5\ns_waitcnt lgkmcnt(0)\ns_barrier")
    for x in trr + hrd(0) + fst(0)[:20] + neg: A(x)
    def half2(par):
        f = fst(par)
        A("s_waitcnt lgkmcnt(0)\ns_barrier")
        mix(sa, hrd(1), f[20:28])
        mix(hmm(0), [], f[28:] + adv + upd + cv)
    def half1(par, nxt, extra):
        if nxt: A("s_waitcnt lgkmcnt(0)\ns_barrier")
        mix(hmm(1), (trr + hrd(0)[:6]) if nxt else [], fcv(par, 0) + fcv(par, 1))
        f = fst(par ^ 1)[:20] if nxt else []
        mix(zmm(0), hrd(0)[6:] if nxt else [], fcv(par, 2)); mix(zmm(1), [], fcv(par, 3) + f[:2]); mix(zmm(2), [], fcv(par, 4) + f[2:4])
        mix(zmm(3) + zmm(4), [], f[4:] + (neg if nxt else []) + extra)
    A("B_CL:")
    half2(0); half1(0, True, [])
    half2(1)
    A(f"s_sub_u32 s{sIt}, s{sIt}, 1\ns_cmp_eq_u32 s{sIt}, 0\ns_cbranch_scc1 B_CE")
    stE = A.state()
    half1(1, True, [])
    A("s_branch B_CL\nB_CE:")
    A.lg = [set(x) for x in stE[0]]
    EX = 2*WP; RL = 3*WP
    half1(1, False, [f"s_xor_b32 s50, s{sW}, 2", "s_mul_i32 s50, s50, 5120", "v_add_u32 v9, s50, v3", f"s_mul_i32 s50, s{sW}, 5120", "v_add_u32 v10, s50, v3", "v_add_u32 v11, s50, v11"])
    T.at(A, "mB", 4)
    for nt in range(5): A(f"ds_write_b128 v9, {v(ACC+(nt*2+1)*4,4)} offset:{EX+1024*nt}")
    A("s_waitcnt lgkmcnt(0)\ns_barrier")
    P = HF
    for nt in range(5): A(f"ds_read_b128 {v(P+4*nt,4)}, v10 offset:{EX+1024*nt}")
    for nt in range(5):
        c = ACC + nt*8
        A(f"v_pk_add_f32 {v(c,2)}, {v(c,2)}, {v(P+4*nt,2)}\nv_pk_add_f32 {v(c+2,2)}, {v(c+2,2)}, {v(P+4*nt+2,2)}")
        A(f"v_cvt_pk_bf16_f32 v{c+4}, v{c}, v{c+1}\nv_cvt_pk_bf16_f32 v{c+5}, v{c+2}, v{c+3}\nds_write_b64 v11, {v(c+4,2)} offset:{RL+32*nt}")
    A("s_waitcnt lgkmcnt(0)")
    for q in range(3): A(f"ds_read_b128 {v(P+20+4*q,4)}, v10 offset:{RL+1024*q}")
    for q in range(3):
        if q == 2: A("s_mov_b32 exec_hi, 0")
        A(f"buffer_store_dwordx4 {v(P+20+4*q,4)}, v{OF+q}, s[{rO}:{rO+3}], s59 offen {ST if 'osc1' in OPT else ''}")
    T.end(A, sW, sWS)
    A("s_endpgm")

    rH, rW, rU, rXb = 16, 20, 24, 28
    sO, sO2, sM, sIt = 44, 45, 47, 48
    def bsrd(d, mul, sreg, off):
        A.prot -= set(range(d, d+4))
        A(f"s_mul_i32 s50, s{sreg}, {mul}\ns_add_u32 s50, s50, {off}\ns_add_u32 s{d}, s{sWS}, s50\ns_addc_u32 s{d+1}, s{sWS+1}, 0\ns_mov_b32 s{d+2}, {mul}\ns_mov_b32 s{d+3}, 0x20000")
        A.prot |= set(range(d, d+4))
    def ld(srdr, so, step, groups, base, o):
        for k, (vr, n, lo) in enumerate(groups):
            A(f"s_mov_b32 m0, {o+lo}" if base is None else f"s_add_u32 m0, s{base}, {o+lo}")
            for i in range(n): A(f"buffer_load_dwordx4 v{vr}, s[{srdr}:{srdr+3}], s{so} offen offset:{1024*i} sc1 lds")
        A(f"s_add_u32 s{so}, s{so}, {step}")
    def ldW(base, o, so): ld(rW, so, 10240, [(3, 4, 0), (4, 4, 4096), (5, 2, 8192)], base, o)
    def ldH(base, o): ld(rH, sO, 8192, [(3, 4, 0), (4, 4, 4096)], base, o)
    def ldU(base, o): ld(rU, sO2, 8192, [(6, 4, 0), (7, 4, 4096)], base, o)
    def poll(shift, want):
        L, G = A.label(), A.label()
        A(f"s_mov_b32 s61, 100000\n{L}:\ns_mov_b32 s60, 0")
        A.raw("s_atomic_add s60, s[56:57], s58 glc")
        A(f"s_waitcnt lgkmcnt(0)\ns_bfe_u32 s60, s60, {shift | (8 << 16)}\ns_cmp_eq_u32 s60, {want}\ns_cbranch_scc1 {G}")
        A(f"s_sub_u32 s61, s61, 1\ns_cmp_eq_u32 s61, 0\ns_cbranch_scc1 {G}\ns_sleep {optval('pb', 2)}\ns_branch {L}\n{G}:")
    reset(A)
    A("B_LH:")
    T.at(A, "mB", 0)
    brole()
    A(f"""
    s_load_dwordx2 s[8:9], s[0:1], 56
    s_add_u32 s56, s{sWS}, {FLG_OFF}
    s_addc_u32 s57, s{sWS+1}, 0
    s_add_u32 s58, s{sRB}, 48
    s_lshl_b32 s58, s58, 8
    v_add_u32 v4, 4096, v3
    v_add_u32 v5, 8192, v3
    v_and_b32 v6, 16, v0
    v_lshlrev_b32 v6, 2, v6
    v_xor_b32 v6, v6, v3
    v_add_u32 v7, 4096, v6
    s_mul_i32 s54, s{sCB}, 160
    s_mul_i32 s53, s{sRB}, 2560
    s_add_u32 s53, s53, s54
    """)
    A.prot |= {56, 57, 58}
    itemoff(12)
    A("s_waitcnt lgkmcnt(0)")
    srd(A, rXb, sX, 2048*1280); srd(A, rU, 8, 1280)
    for w in range(4):
        A(f"s_add_u32 s55, s53, {((w & 1) + 1024*(w >> 1))*1280}")
        for q in range(3):
            A(f"s_mov_b32 m0, {(XT0+2560*w if w < 3 else XT3)+1024*q}" + ("\ns_mov_b32 exec_hi, 0" if q == 2 else "") + f"\nbuffer_load_dwordx4 v{12+q}, s[{rXb}:{rXb+3}], s55 offen lds")
        A("s_mov_b64 exec, -1")
    A(f"s_mov_b32 m0, {BO}\ns_mov_b64 exec, 0x3ff\nbuffer_load_dwordx4 v3, s[{rU}:{rU+3}], s54 offen lds\ns_mov_b64 exec, -1")
    bsrd(rW, 54*5120, sCB, W2P_OFF); bsrd(rH, 54*4096, sRB, H_OFF); bsrd(rU, 20*4096, sRB, U_OFF)
    poll(16, 8)
    T.at(A, "mB", 1)
    A(f"s_mov_b32 s{sO}, 0\ns_mov_b32 s{sM}, 0\nB_PW:")
    ldW(sM, 0, sO)
    A(f"s_add_u32 s{sM}, s{sM}, 10240\ns_cmp_lt_u32 s{sM}, {7*10240}\ns_cbranch_scc1 B_PW")
    reset(A)
    A(f"s_mov_b32 s{sO}, 0\ns_mov_b32 s{sO2}, 0")
    T.at(A, "mB", 2)
    poll(0, 22)
    T.at(A, "mB", 3)
    ldH(None, HB); ldH(None, HB + 8192); ldH(None, HB + HP); ldH(None, HB + HP + 8192)
    A("s_waitcnt vmcnt(24)\ns_barrier")
    ldH(None, HB + 2*HP); A("s_waitcnt vmcnt(24)\ns_barrier")
    ldH(None, HB + 2*HP + 8192); A("s_waitcnt vmcnt(24)\ns_barrier")
    ldH(None, HB); A("s_waitcnt vmcnt(24)\ns_barrier")
    ldH(None, HB + HP); A("s_waitcnt vmcnt(24)\ns_barrier")
    ldH(None, HB + HP + 8192); A("s_waitcnt vmcnt(24)\ns_barrier")
    poll(8, 20)
    T.at(A, "mB", 4)
    ldU(None, HB + HP + 16384)
    ldH(None, HB + 2*HP); ldU(None, HB + 2*HP + 16384)
    A("s_waitcnt vmcnt(40)\ns_barrier")
    A(f"s_mov_b32 s{sM}, {HB + 2*HP}\ns_mov_b32 s{sIt}, 9\nB_LL:")
    ldH(sM, 8192)
    A(f"s_add_u32 s{sM}, s{sM}, {HP}\ns_cmp_eq_u32 s{sM}, {HB + 3*HP}\ns_cselect_b32 s{sM}, {HB}, s{sM}\ns_sub_u32 s{sIt}, s{sIt}, 1\ns_cmp_eq_u32 s{sIt}, 0\ns_waitcnt vmcnt(24)\ns_barrier\ns_cbranch_scc1 B_LE")
    ldH(sM, 0); ldU(sM, 16384)
    A("s_waitcnt vmcnt(40)\ns_barrier\ns_branch B_LL\nB_LE:")
    A("s_barrier\ns_waitcnt vmcnt(8)\ns_barrier\ns_waitcnt vmcnt(0)\ns_barrier")
    T.end(A, sW, sWS)
    A("s_endpgm")
    reset(A)
    A("B_LW:\ns_setprio 3")
    brole()
    A(f"v_add_u32 v4, 4096, v3\nv_add_u32 v5, 8192, v3\ns_mov_b32 s{sO}, {7*10240}\ns_mov_b32 s{sM}, 0\ns_mov_b32 s{sIt}, 20")
    bsrd(rW, 54*5120, sCB, W2P_OFF)
    WL = optval("wl", 3)
    for _ in range(WL): A("s_barrier")
    A("B_LWL:")
    ldW(sM, 0, sO)
    A(f"s_add_u32 s{sM}, s{sM}, 10240\ns_cmp_eq_u32 s{sM}, {4*WP}\ns_cselect_b32 s{sM}, 0, s{sM}\ns_sub_u32 s{sIt}, s{sIt}, 1\ns_cmp_lg_u32 s{sIt}, 0\ns_waitcnt vmcnt({10*(7-WL)})\ns_barrier\ns_cbranch_scc1 B_LWL")
    for k in range(7 - WL): A(f"s_waitcnt vmcnt({10*(6-WL-k)})\ns_barrier")
    T.end(A, sW, sWS)
    A(f"{END}:\nCODE_END:")
    return dict(label=NAME + "_kernel", body=A.text(), vgpr=256, grid=256, block=512, lds=160*1024)

def groups(i, shape):
    import numpy as np
    w = np.arange(shape[1])
    b = np.arange(256); i8 = (b >> 3) & 7; ch = b & 1
    mlp = i8 < 5 + ch
    return [("mlp", np.ix_(mlp, w < 4)), ("mlp-ld", np.ix_(mlp, w == 4)), ("mlp-h", np.ix_(mlp, w == 6)), ("dft", np.ix_(~mlp, w < 4)), ("dft-ld", np.ix_(~mlp, w == 4)), ("dft-h", np.ix_(~mlp, w == 6))]

if __name__ == "__main__":
    st = "stamps" in sys.argv
    OPT.update(sys.argv[2:])
    ks = [gen_all(st)]
    for x in sys.argv:
        if x.startswith("abl:"):
            _, ki, l0, l1, pre = x.split(":")
            out = []; on = False
            for l in ks[int(ki)]["body"].split("\n"):
                t = l.strip()
                if t == l0 + ":": on = True
                if t == l1 + ":": on = False
                if on and any(t.startswith(p) for p in pre.split(",")): continue
                out.append(l)
            ks[int(ki)]["body"] = "\n".join(out)
    for x in sys.argv:
        if x.startswith("diag:"):
            import diag
            p = x.split(":")[1:]
            ks.append(diag.gen_diag(tuple([p[0]] + [int(y) for y in p[1:]]), STAMP_OFF))
    txt = file_text(ks)
    if len(ks) == 1 and "aslist" not in OPT: txt = txt.replace(f"; @launch kernel={NAME}_kernel grid", "; @launch grid")
    open(sys.argv[1], "w").write(txt)
```

```python
import struct, math, sys
from asmlib import *

def fbits(x): return "0x%08x" % struct.unpack("<I", struct.pack("<f", x))[0]

H_OFF = 0;            H_SZ = 32*54*4096
W2P_OFF = 8 << 20;    W2P_SZ = 8*54*5120
V_OFF = 12 << 20;     V_SZ = 32*20*64*64
U_OFF = 16 << 20;     U_SZ = V_SZ
FLG_OFF = 20 << 20
L_V, L_U, L_W, L_S, L_C, L_R = 0, 20, 40, 48, 64, 80
FLG_SZ = 112*256
SP_OFF = 21 << 20;    SP_SZ = 16*5*1024
CP_OFF = 22 << 20;    CP_SZ = 11*10*640
STAMP_OFF = 64 << 20
OPT = set()
K0 = -2.0*math.sqrt(2.0/math.pi)*math.log2(math.e)
MF = "v_mfma_f32_16x16x32_bf16"

def optval(name, default):
    for x in OPT:
        if x.startswith(name + "="): return int(x[len(name)+1:])
    return default
def mfma(d, x, y, c=None): return f"{MF} {v(d,4)}, {v(x,4)}, {v(y,4)}, {v(d,4) if c is None else c}"
def srd(A, d, lo, nbytes, add=0):
    A.prot -= set(range(d, d+4))
    if add: A(f"s_add_u32 s{d}, s{lo}, {add}\ns_addc_u32 s{d+1}, s{lo+1}, 0")
    else: A(f"s_mov_b64 s[{d}:{d+1}], s[{lo}:{lo+1}]")
    A(f"s_mov_b32 s{d+2}, {nbytes}\ns_mov_b32 s{d+3}, 0x20000")
    A.prot |= set(range(d, d+4))
def bf16_round(A, dst, src): A(f"v_cvt_pk_bf16_f32 v{dst}, v{src}, v{src}\nv_lshlrev_b32 v{dst}, 16, v{dst}")
def weave(A, main, fill, per=None, start=0):
    fill = list(fill); n = len(main) - start; done = 0
    for i, m in enumerate(main):
        A(m)
        if i < start: continue
        want = min(len(fill), int(math.ceil((i - start + 1) * per))) if per else (len(fill) * (i - start + 1) + n - 1) // n
        while done < want: A(fill[done]); done += 1
    while done < len(fill): A(fill[done]); done += 1
def reset(A): A.lg = []; A.vm = []

class Stamp:
    def __init__(self, on): self.on = on
    def start(self, A):
        if self.on: A("s_memtime s[90:91]\ns_memrealtime s[92:93]\ns_mov_b32 s80, 0\ns_mov_b32 s82, 0\ns_mov_b32 s84, 0\ns_mov_b32 s86, 0\ns_mov_b32 s88, 0")
    def at(self, A, mode, i):
        if self.on and (mode in OPT or (mode == "mB" and not OPT & {"mA", "mJ", "mD", "mE"})):
            A(f"s_memtime s[{80+2*i}:{81+2*i}]"); A.lg.pop()
    def end(self, A, wave_s, ws_lo):
        if not self.on: return
        A("s_waitcnt vmcnt(0)\ns_memtime s[94:95]\ns_memrealtime s[96:97]\ns_waitcnt lgkmcnt(0)\ns_sub_u32 s94, s94, s90")
        for i in range(5): A(f"s_sub_u32 s{80+2*i}, s{80+2*i}, s90")
        A("s_mov_b64 exec, 1\nv_mov_b32 v0, s94\nv_mov_b32 v1, s92\nv_mov_b32 v2, s96\nv_mov_b32 v3, s80\nv_mov_b32 v4, s82\nv_mov_b32 v5, s84\nv_mov_b32 v6, s86\nv_mov_b32 v7, s88")
        srd(A, 76, ws_lo, 0x10000000)
        A(f"s_lshl_b32 s98, s2, 3\ns_add_u32 s98, s98, s{wave_s}\ns_lshl_b32 s98, s98, 5\ns_add_u32 s98, s98, {STAMP_OFF}\nv_mov_b32 v8, 0")
        A("buffer_store_dwordx4 v[0:3], v8, s[76:79], s98 offen\nbuffer_store_dwordx4 v[4:7], v8, s[76:79], s98 offen offset:16")

def gen_all(stamps=False):
    A = Asm(); T = Stamp(stamps)
    END = "A_END"
    sX, sWR, sW1, sB1, sW2, sWS, sDBG, sWI = 4, 6, 8, 10, 12, 14, 72, 74
    rX, rA, rB, rC, rF = 16, 20, 24, 28, 56
    sW, sR, sJ, sC0, sS2, sCol = 32, 33, 34, 35, 36, 37
    PTRS = set(range(4, 16)) | {0, 1, 2, 72, 73, 74, 75, 32, 33, 34, 35, 37, 40, 41, 42, 43, 44, 45, 47}
    SLOT = 36864; PS = 32768; FX = 3*PS
    GAP = 122880; CX = GAP; STAT = 126976; RPK = 129024; CW = 159744
    def poll(line_sreg, want, shift=0, first_issued=False):
        L, G, M = A.label(), A.label(), A.label()
        A("s_mov_b32 s61, 100000")
        if first_issued: A(f"s_branch {M}")
        A(f"{L}:\ns_mov_b32 s60, 0")
        A.raw(f"s_atomic_add s60, s[{rF}:{rF+1}], s{line_sreg} glc")
        A(f"{M}:\ns_waitcnt lgkmcnt(0)\ns_bfe_u32 s60, s60, {shift | (8 << 16)}\ns_cmp_eq_u32 s60, {want}\ns_cbranch_scc1 {G}")
        A(f"s_sub_u32 s61, s61, 1\ns_cmp_eq_u32 s61, 0\ns_cbranch_scc1 {G}\ns_sleep {optval('ps', 2)}\ns_branch {L}\n{G}:")
        A.lg = []
    def poll_issue(line_sreg):
        A("s_mov_b32 s60, 0"); A.raw(f"s_atomic_add s60, s[{rF}:{rF+1}], s{line_sreg} glc")
    def arrive(line_sreg, n=0):
        A(f"s_mov_b32 s66, 1\ns_waitcnt vmcnt({n})"); A.raw(f"s_atomic_add s66, s[{rF}:{rF+1}], s{line_sreg}")
    def signal2(line_expr, last, inc):
        L = A.label()
        A(f"{line_expr}\ns_lshl_b32 s46, s46, 8\ns_mov_b32 s66, 1\ns_waitcnt vmcnt(0)")
        A.raw(f"s_atomic_add s66, s[{rF}:{rF+1}], s46 glc")
        A(f"v_lshlrev_b32 v4, 8, v0\nv_mov_b32 v5, {inc}\ns_movk_i32 s46, {L_R*256}\ns_waitcnt lgkmcnt(0)\ns_cmp_lg_u32 s66, {last}\ns_cbranch_scc1 {L}")
        A(f"buffer_atomic_add v5, v4, s[{rF}:{rF+3}], s46 offen sc1\n{L}:")
        reset(A)
    def initcheck(wave):
        L, G = A.label(), A.label()
        A(f"s_cmp_lg_u32 s{sW}, {wave}\ns_cbranch_scc1 {G}")
        A(f"s_load_dword s60, s[{sDBG}:{sDBG+1}], 0\ns_mov_b32 s61, 200000\n{L}:\ns_waitcnt lgkmcnt(0)\ns_cmp_eq_u32 s60, 1\ns_cbranch_scc1 {G}")
        A(f"s_sub_u32 s61, s61, 1\ns_cmp_eq_u32 s61, 0\ns_cbranch_scc1 {G}\ns_sleep 64\ns_load_dword s60, s[{sDBG}:{sDBG+1}], 0 glc\ns_branch {L}\n{G}:")
        A.lg = []
    def div20(dst, i, stride, swz, t=(14, 15, 8)):
        A(f"v_add_u32 v{t[0]}, {64*i}, v0\nv_mul_hi_u32 v{t[1]}, v{t[0]}, s52\nv_mul_u32_u24 v{t[2]}, 20, v{t[1]}\nv_sub_u32 v{t[2]}, v{t[0]}, v{t[2]}")
        if swz: A(f"v_lshrrev_b32 v{t[0]}, 2, v{t[1]}\nv_and_b32 v{t[0]}, 2, v{t[0]}\nv_xor_b32 v{t[2]}, v{t[2]}, v{t[0]}")
        A(f"v_mul_u32_u24 v{t[1]}, {stride}, v{t[1]}\nv_lshl_add_u32 v{dst}, v{t[2]}, 4, v{t[1]}")
        if 0 < i < 4: A(f"v_subrev_u32 v{dst}, {1024*i}, v{dst}")
    def xfrag_addr(d):
        A(f"v_lshrrev_b32 v{d}, 1, v1\nv_xor_b32 v{d}, v{d}, v2\nv_lshlrev_b32 v{d}, 4, v{d}\nv_lshl_add_u32 v{d}, v1, 7, v{d}")
    def wfrag_addr(d, g32, t):
        A(f"v_lshrrev_b32 v{d}, 2, v1\nv_lshl_add_u32 v{d}, v2, 3, v{d}\nv_mul_u32_u24 v{d}, 320, v{d}\nv_and_b32 v{t}, 3, v1\nv_lshl_add_u32 v{d}, v{t}, 3, v{d}\nv_add_u32 v{d}, 16384, v{d}")
        A(f"v_and_b32 v{g32}, 1, v2\nv_lshlrev_b32 v{g32}, 5, v{g32}")
    def stats_fetch():
        srd(A, rC, sWS, SP_SZ, SP_OFF)
        A(f"s_mul_i32 s46, s{sR}, 5120\ns_add_u32 s62, s46, 4096")
        for c in range(5): A(f"buffer_load_dwordx4 {v(224+4*c,4)}, v3, s[{rC}:{rC+3}], s{46 if c < 4 else 62} offen offset:{1024*(c%4)} sc1")
    def stats_final():
        for c in range(1, 5):
            for i in range(4): A(f"v_add_f32 v{224+i}, v{224+i}, v{224+4*c+i}")
        for i in range(4): A(f"v_mul_f32 v{224+i}, {fbits(1/640)}, v{224+i}")
        for m in (224, 226): A(f"v_fma_f32 v{m+1}, -v{m}, v{m}, v{m+1}")
        for m in (224, 226): A(f"v_max_f32 v{m+1}, 0, v{m+1}")
        for m in (224, 226): bf16_round(A, m+1, m+1)
        for m in (224, 226): A(f"v_add_f32 v{m+1}, {fbits(1e-5)}, v{m+1}")
        for m in (224, 226): bf16_round(A, m+1, m+1)
        for m in (224, 226): A(f"v_sqrt_f32 v{m+1}, v{m+1}")
        for m in (224, 226): bf16_round(A, m+1, m+1)

    sKT, sU1, sJL, sPAR = 39, 71, 70, 68
    CF, SF = 16, 48; WR, WI = 80, 96; XA = 112; VF = 144; TA = 168; YF = 184; UA = 208
    rWR, rWI = rX, rA
    def job_wdma():
        A(f"""
        v_lshrrev_b32 v4, 2, v0
        v_mul_u32_u24 v4, 20544, v4
        v_and_b32 v5, 3, v0
        v_min_u32 v5, 2, v5
        v_lshl_add_u32 v4, v5, 4, v4
        s_mul_i32 s62, s{sU1}, 321
        s_lshl_b32 s63, s{sKT}, 4
        s_add_u32 s62, s62, s63
        s_add_u32 s62, s62, 1
        s_lshl_b32 s62, s62, 1
        s_and_b32 s63, s62, 2
        s_sub_u32 s62, s62, s63
        s_add_u32 s{sPAR}, s63, s{sJL}
        """)
        srd(A, rWR, sWR, 2048*642); srd(A, rWI, sWI, 2048*642)
        for q in range(4):
            A(f"s_add_u32 m0, s{sJL}, {1024*q}\nbuffer_load_dwordx4 v4, s[{rWR}:{rWR+3}], s62 offen lds")
            A(f"s_add_u32 m0, s{sJL}, {4096+1024*q}\nbuffer_load_dwordx4 v4, s[{rWI}:{rWI+3}], s62 offen lds")
            if q < 3: A(f"s_add_u32 s62, s62, {16*20544}")
    def lds_add():
        A(f"v_mov_b32 v4, {CW}\nv_mov_b32 v5, 1\ns_waitcnt lgkmcnt(0)\ns_mov_b64 exec, 1\nds_add_u32 v4, v5\ns_mov_b64 exec, -1")
    def lds_wait(n, t=(4, 5)):
        L, G = A.label(), A.label()
        A(f"v_mov_b32 v{t[0]}, {CW}\ns_mov_b32 s61, 4000000\n{L}:\nds_read_b32 v{t[1]}, v{t[0]}\ns_waitcnt lgkmcnt(0)\nv_readfirstlane_b32 s60, v{t[1]}\ns_cmp_ge_u32 s60, {n}\ns_cbranch_scc1 {G}")
        A(f"s_sub_u32 s61, s61, 1\ns_cmp_lg_u32 s61, 0\ns_sleep 1\ns_cbranch_scc1 {L}\n{G}:")
    def job_consts():
        A(f"v_lshlrev_b32 v5, 2, v2\nv_cvt_f32_u32 v5, v5\nv_cvt_f32_u32 v6, v1\nv_mul_f32 v6, {fbits(1/64)}, v6\nv_mul_f32 v7, v6, v5")
        TB = 192
        for j in range(8): A(f"v_fmamk_f32 v{TB+j}, v6, {fbits(16.0*(j>>2) + (j&3))}, v7")
        for j in range(8): A(f"v_sin_f32 v{TB+8+j}, v{TB+j}\nv_cos_f32 v{TB+j}, v{TB+j}")
        cf = lambda mt, t, p: CF+(mt*2+t)*4+p
        sf = lambda mt, t, p: SF+(mt*2+t)*4+p
        A("s_brev_b32 s67, 1")
        for p in range(4):
            c0, c1, s0, s1 = TB+2*p, TB+2*p+1, TB+8+2*p, TB+8+2*p+1
            A(f"v_cvt_pk_bf16_f32 v{cf(0,0,p)}, v{c0}, v{c1}\nv_cvt_pk_bf16_f32 v{sf(0,0,p)}, v{s0}, v{s1}")
            if p % 2 == 0: A(f"v_cvt_pk_bf16_f32 v{cf(1,0,p)}, v{c0}, -v{s1}\nv_cvt_pk_bf16_f32 v{sf(1,0,p)}, v{s0}, v{c1}")
            else: A(f"v_cvt_pk_bf16_f32 v{cf(1,0,p)}, -v{c0}, v{s1}\nv_cvt_pk_bf16_f32 v{sf(1,0,p)}, -v{s0}, -v{c1}")
        A("v_and_b32 v5, 1, v1\nv_mul_u32_u24 v5, 0x8000, v5\nv_lshl_or_b32 v5, v5, 16, v5")
        for f in (cf, sf):
            for mt in (2, 3):
                for p in range(4): A(f"v_xor_b32 v{f(mt,0,p)}, s67, v{f(mt-2,0,p)}")
            for mt in range(4):
                for p in range(4): A(f"v_xor_b32 v{f(mt,1,p)}, v5, v{f(mt,0,p)}")
        reset(A)

    A(f"s_cmp_ge_u32 s2, 256\ns_cbranch_scc1 {END}")
    T.start(A)
    A(f"""
    s_getpc_b64 s[70:71]
    A_PC:
    s_lshr_b32 s41, s2, 3
    s_lshl_b32 s46, s41, 11
    v_lshrrev_b32 v10, 5, v0
    v_lshl_add_u32 v10, v10, 7, s46
    v_min_u32 v10, CODE_END-A_PC-4, v10
    v_mov_b32 v11, s71
    v_add_co_u32 v10, vcc, s70, v10
    v_addc_co_u32 v11, vcc, 0, v11, vcc
    global_load_dword v255, v[10:11], off
    """)
    reset(A)
    A(f"""
    s_load_dwordx4 s[{sX}:{sX+3}], s[0:1], 0
    s_load_dwordx4 s[{sW1}:{sW1+3}], s[0:1], 32
    s_load_dwordx2 s[{sW2}:{sW2+1}], s[0:1], 48
    s_load_dwordx2 s[{sWS}:{sWS+1}], s[0:1], 80
    s_load_dwordx2 s[{sWI}:{sWI+1}], s[0:1], 16
    s_load_dwordx2 s[{sDBG}:{sDBG+1}], s[0:1], 72
    v_lshrrev_b32 v1, 6, v0
    v_and_b32 v0, 63, v0
    v_readfirstlane_b32 s{sW}, v1
    s_and_b32 s40, s2, 7
    s_xor_b32 s46, s{sW}, 7
    s_or_b32 s46, s2, s46
    s_cmp_lg_u32 s46, 0
    s_cbranch_scc1 A_NI
    v_lshlrev_b32 v4, 8, v0
    v_mov_b32 v5, 0
    s_movk_i32 s46, 16384
    s_mov_b32 s66, 1
    s_waitcnt lgkmcnt(0)
    """)
    srd(A, rF, sWS, FLG_SZ, FLG_OFF)
    A(f"buffer_store_dword v5, v4, s[{rF}:{rF+3}], 0 offen sc1\nbuffer_store_dword v5, v4, s[{rF}:{rF+3}], s46 offen sc1\ns_waitcnt vmcnt(0)")
    A.raw(f"s_atomic_add s66, s[{sDBG}:{sDBG+1}], 0")
    T.at(A, "mA", 4)
    reset(A)
    A(f"""
    A_NI:
    s_lshr_b32 s42, s40, 1
    s_and_b32 s43, s40, 1
    s_lshr_b32 s44, s41, 3
    s_and_b32 s45, s41, 7
    s_lshl_b32 s{sR}, s42, 2
    s_add_u32 s{sR}, s{sR}, s44
    s_add_u32 s46, s44, s45
    s_and_b32 s46, s46, 3
    s_mul_i32 s46, s46, 5
    s_add_u32 s46, s46, 1
    s_lshr_b32 s{sC0}, s46, 1
    {"s_add_u32 s35, s35, s42" if "rg" in OPT else ""}
    {"s_cmp_ge_u32 s35, 10" if "rg" in OPT else ""}
    {"s_cselect_b32 s46, 10, 0" if "rg" in OPT else ""}
    {"s_sub_u32 s35, s35, s46" if "rg" in OPT else ""}
    s_mul_i32 s{sJ}, s43, 5
    s_add_u32 s{sJ}, s{sJ}, s45
    s_mul_i32 s{sCol}, s{sJ}, 160
    s_min_u32 s{sCol}, s{sCol}, 1568
    s_lshl_b32 s46, s43, 1
    s_add_u32 s46, s46, s45
    s_sub_u32 s46, s46, 5
    s_cmp_ge_u32 s46, 3
    s_cselect_b32 s48, 3, 0
    s_add_u32 s47, s43, 5
    s_cmp_ge_u32 s45, s47
    s_cselect_b32 s{sJ}, s46, s{sJ}
    s_cselect_b32 s{sC0}, s48, s{sC0}
    v_and_b32 v1, 15, v0
    v_lshrrev_b32 v2, 4, v0
    v_lshlrev_b32 v3, 4, v0
    s_cmp_lg_u32 s{sW}, 4
    s_cbranch_scc1 A_NOTLD
    """)
    A.prot = set(PTRS)
    sCh, sSl, sXo, sWo, sIt = 49, 50, 51, 53, 54
    A(f"""
    s_setprio 3
    v_lshrrev_b32 v8, 3, v0
    v_mul_u32_u24 v8, 81920, v8
    v_and_b32 v4, 7, v0
    v_xor_b32 v4, v4, v2
    v_lshl_add_u32 v4, v4, 4, v8
    v_xor_b32 v5, 64, v4
    v_add_u32 v5, {655360-1024}, v5
    v_add_u32 v6, {2*(655360-1024)}, v4
    v_add_u32 v7, {2*(655360-1024)}, v5
    s_mul_i32 s52, s{sR}, 5120
    s_sub_u32 s52, s52, 1280
    s_mov_b32 s{sSl}, 0
    s_mov_b32 s{sIt}, 0
    s_mov_b32 s{sCh}, s{sC0}
    s_mov_b32 s{rX+2}, {2048*1280}
    s_mov_b32 s{rX+3}, 0x20000
    s_cmp_ge_u32 s45, s47
    s_waitcnt lgkmcnt(0)
    s_mov_b64 s[{rX}:{rX+1}], s[{sX}:{sX+1}]
    s_cbranch_scc1 A_LDD
    """)
    A.prot |= set(range(rX, rX+4))
    def xblock(base):
        for w in range(4):
            A(f"s_add_u32 m0, s{sSl}, {base+4096*w}\ns_add_u32 s{sXo}, s{sXo}, 1280")
            for i in range(4): A(f"buffer_load_dwordx4 v{4+i}, s[{rX}:{rX+3}], s{sXo} offen offset:{1024*i} lds")
    def ring_tail(lab, n, slot, nld, first=None):
        A(f"""
        s_add_u32 s{sCh}, s{sCh}, 1
        s_cmp_eq_u32 s{sCh}, 10
        s_cselect_b32 s{sCh}, 0, s{sCh}
        s_add_u32 s{sSl}, s{sSl}, {slot}
        s_cmp_eq_u32 s{sSl}, {3*slot}
        s_cselect_b32 s{sSl}, 0, s{sSl}
        s_add_u32 s{sIt}, s{sIt}, 1
        s_cmp_eq_u32 s{sIt}, 1
        s_cbranch_scc1 {first or lab}
        s_cmp_lt_u32 s{sIt}, {n}
        s_waitcnt vmcnt({nld})
        s_barrier
        s_cbranch_scc1 {lab}
        """)
        reset(A)
    A(f"A_LDMP:\ns_waitcnt vmcnt({optval('pace', 15)})\nA_LDM:\ns_lshl_b32 s{sXo}, s{sCh}, 7\ns_add_u32 s{sXo}, s{sXo}, s52")
    xblock(0)
    ring_tail("A_LDM", 10, SLOT, 16, "A_LDMP")
    A("s_waitcnt vmcnt(0)\ns_barrier\ns_barrier\ns_branch B_LH")
    A(f"A_LDD:\ns_lshl_b32 s{sXo}, s{sCh}, 7\ns_add_u32 s{sXo}, s{sXo}, s52")
    xblock(0)
    A(f"s_cmp_ge_u32 s{sCh}, 5\ns_cselect_b32 s58, 1280, 0\ns_sub_u32 s{sXo}, s{sXo}, s58\ns_sub_u32 s{sXo}, s{sXo}, {4*1280-640}")
    xblock(16384)
    A(f"s_cmp_lg_u32 s{sIt}, 4\ns_cbranch_scc1 A_LDD1\ns_waitcnt vmcnt(0)\nA_LDD1:")
    ring_tail("A_LDD", 5, PS, 32)
    A("s_setprio 0")
    srd(A, rF, sWS, FLG_SZ, FLG_OFF)
    A("s_branch A_D3w")

    reset(A); A.prot = set(PTRS)
    A(f"A_NOTLD:\ns_cmp_lt_u32 s{sW}, 4\ns_cbranch_scc1 A_COMPUTE\ns_cmp_ge_u32 s45, s47\ns_cbranch_scc1 A_DH0")
    A(f"s_cmp_lg_u32 s{sW}, 5\ns_cbranch_scc1 A_DH0\ns_setprio 3\ns_mov_b32 s52, {(1<<32)//20+1}")
    for i in range(5): div20(9+i, i, 3456, True)
    A(f"s_mov_b32 s{sCh}, s{sC0}\ns_lshl_b32 s52, s{sCol}, 1\ns_sub_u32 s52, s52, {16*3456}\ns_mov_b32 s{sSl}, 0\ns_mov_b32 s{sIt}, 0\ns_waitcnt lgkmcnt(0)")
    srd(A, rA, sW1, 640*3456)
    A(f"A_LDW:\ns_mul_i32 s{sWo}, s{sCh}, {64*3456}\ns_add_u32 s{sWo}, s{sWo}, s52")
    for q in range(4):
        A(f"s_add_u32 m0, s{sSl}, {16384+5120*q}\ns_add_u32 s{sWo}, s{sWo}, {16*3456}")
        for i in range(4): A(f"buffer_load_dwordx4 v{9+i}, s[{rA}:{rA+3}], s{sWo} offen offset:{1024*i} lds")
        A(f"s_add_u32 m0, s{sSl}, {16384+5120*q+4096}")
        A(f"buffer_load_dwordx4 v13, s[{rA}:{rA+3}], s{sWo} offen lds")
    ring_tail("A_LDW", 10, SLOT, 20)
    A("s_waitcnt vmcnt(0)\ns_barrier\ns_barrier\ns_branch B_LW")

    reset(A); A.prot = set(PTRS)
    A("A_MH:")
    A.prot |= set(range(rF, rF+4))
    A(f"""
    s_mul_i32 s46, s43, 20
    s_mul_i32 s{sKT}, s44, s47
    s_add_u32 s46, s46, s{sKT}
    s_add_u32 s55, s46, s45
    s_mul_i32 s{sU1}, s55, 26
    s_lshr_b32 s{sU1}, s{sU1}, 8
    s_mul_i32 s46, s{sU1}, 10
    s_sub_u32 s{sKT}, s55, s46
    s_lshl_b32 s{sKT}, s{sKT}, 1
    s_and_b32 s46, s{sW}, 1
    s_add_u32 s{sKT}, s{sKT}, s46
    s_lshl_b32 s{sJL}, s46, 13
    s_add_u32 s{sJL}, s{sJL}, {RPK}
    s_lshl_b32 s46, s42, 3
    s_add_u32 s{sU1}, s{sU1}, s46
    s_add_u32 s{sU1}, s{sU1}, 4
    v_mov_b32 v4, {CW}
    v_mov_b32 v5, 0
    ds_write_b32 v4, v5
    """)
    srd(A, rC, sB1, 1728*2)
    A(f"v_lshlrev_b32 v4, 3, v0\ns_lshl_b32 s46, s{sCol}, 1\nbuffer_load_dwordx2 v[160:161], v4, s[{rC}:{rC+3}], s46 offen")
    reset(A)
    wfrag_addr(4, 5, 6)
    srd(A, rB, sWS, CP_SZ, CP_OFF)
    A(f"""
    s_and_b32 s48, s{sW}, 1
    s_mul_i32 s46, s48, 160
    v_add_u32 v4, s46, v4
    s_lshl_b32 s46, s48, 1
    s_sub_u32 s46, 1, s46
    v_mul_i32_i24 v5, s46, v5
    v_add_u32 v6, v4, v5
    v_sub_u32 v7, v4, v5
    v_lshlrev_b32 v8, 2, v1
    v_lshl_add_u32 v8, v2, 28, v8
    s_mul_i32 s49, s{sJ}, 6400
    s_min_u32 s52, s42, {0 if 'rg' in OPT else 2}
    s_mul_i32 s46, s52, {SLOT}
    v_add_u32 v6, s46, v6
    v_add_u32 v7, s46, v7
    s_add_u32 s46, s{sC0}, s52
    s_cmp_eq_u32 s46, 10
    s_cselect_b32 s46, 0, s46
    s_mul_i32 s46, s46, 640
    s_add_u32 s50, s49, s46
    s_mul_i32 s46, s48, 320
    s_add_u32 s50, s50, s46
    s_add_u32 s51, s{sJ}, {L_C}
    s_lshl_b32 s51, s51, 8
    s_add_u32 s53, s{sR}, {L_S}
    s_lshl_b32 s53, s53, 8
    s_cmp_eq_u32 s48, 0
    s_cselect_b32 s53, s53, s51
    s_cselect_b32 s54, 15, 32
    """)
    for i in range(4): A(f"v_mov_b32 v{12+i}, 0x3f803f80")
    A("s_mov_b32 s62, 0\ns_waitcnt lgkmcnt(0)\nA_MH2:\ns_barrier\ns_cmp_lg_u32 s62, s52\ns_cbranch_scc1 A_MH3")
    for t in range(2):
        for q in range(5):
            for jh in range(2): A(f"ds_read_b64_tr_b16 {v(80+20*t+4*q+2*jh,2)}, v{6 if q%2==0 else 7} offset:{t*10240+jh*1280+q*32}")
    for t in range(2):
        for q in range(5): A(mfma(124+4*q, 12, 80+20*t+4*q, None if t else 0))
    for q in range(5): A(f"buffer_store_dword v{124+4*q}, v8, s[{rB}:{rB+3}], s50 offen offset:{64*q} sc1")
    A("A_MH3:\ns_add_u32 s62, s62, 1\ns_cmp_lt_u32 s62, 3\ns_cbranch_scc1 A_MH2\ns_barrier")
    initcheck(6)
    A("s_barrier")
    arrive(51)
    for _ in range(5, 8): A("s_barrier")
    A("s_waitcnt lgkmcnt(0)")
    poll_issue(53)
    A("s_barrier")
    poll(53, "s54", 0, True)
    T.at(A, "mD", 0)
    A("s_cmp_eq_u32 s48, 0\ns_cbranch_scc0 A_MH7")
    stats_fetch()
    A("s_sleep 2\ns_branch A_MH7b")
    A("A_MH7:\ns_mov_b32 exec_hi, 0xff\ns_add_u32 s50, s49, 3200")
    for c in range(10): A(f"buffer_load_dwordx4 {v(80+4*c,4)}, v3, s[{rB}:{rB+3}], s{49 if c < 5 else 50} offen offset:{640*(c%5)} sc1")
    A("s_mov_b64 exec, -1\nA_MH7b:")
    reset(A)
    job_wdma()
    A("s_barrier\ns_waitcnt vmcnt(8)\ns_cmp_eq_u32 s48, 0\ns_cbranch_scc0 A_MH7c")
    reset(A)
    stats_final()
    for m, o in ((224, 232), (226, 236)):
        A(f"v_rcp_f32 v5, v{m+1}\nv_cvt_pk_bf16_f32 v{o}, -v{m}, -v{m}\nv_mov_b32 v{o+3}, v{m+1}\nv_mul_f32 v{o+2}, {fbits(K0)}, v5\nv_mul_f32 v5, v5, v5\nv_mul_f32 v5, v5, v{o+2}\nv_mul_f32 v{o+1}, {fbits(0.044715)}, v5")
    A(f"v_lshlrev_b32 v4, 5, v0\nv_add_u32 v4, {STAT}, v4\nds_write_b128 v4, v[232:235]\nds_write_b128 v4, v[236:239] offset:16\ns_branch A_MH8")
    A("A_MH7c:\ns_mov_b32 s69, 0xffff0000")
    for c in range(1, 10):
        for i in range(4): A(f"v_add_f32 v{80+i}, v{80+i}, v{80+4*c+i}")
    for i in range(4):
        A(f"v_and_b32 v5, s69, v{80+i}\nv_sub_f32 v5, v{80+i}, v5\nv_cvt_pk_bf16_f32 v5, v5, v5\nv_alignbit_b32 v{124+2*i}, v5, v{80+i}, 16")
        A(f"v_lshrrev_b32 v{125+2*i}, 16, v{160+i//2}" if i % 2 else f"v_and_b32 v{125+2*i}, 0xffff, v{160+i//2}")
    A(f"v_lshlrev_b32 v4, 5, v0\nv_add_u32 v4, {CX}, v4\ns_mov_b32 exec_hi, 0xff\nds_write_b128 v4, v[124:127]\nds_write_b128 v4, v[128:131] offset:16\ns_mov_b64 exec, -1")
    A("A_MH8:\ns_waitcnt lgkmcnt(0)")
    T.at(A, "mD", 1)
    A(f"s_barrier\ns_mov_b32 s38, {optval('gate', 4)}\ns_cmp_lt_u32 s55, 40\ns_cbranch_scc1 A_JOB\ns_waitcnt vmcnt(0)")
    T.end(A, sW, sWS)
    A("s_endpgm")

    reset(A); A.prot = set(PTRS)
    sH = 36
    A(f"""
    A_DH1:
    s_sub_u32 s{sH}, s{sW}, 5
    s_mul_i32 s50, s{sR}, 5
    s_add_u32 s50, s50, s{sJ}
    s_lshl_b32 s50, s50, 10
    s_lshl_b32 s46, s{sH}, 7
    s_add_u32 s50, s50, s46
    s_add_u32 s53, s{sR}, {L_S}
    s_lshl_b32 s53, s53, 8
    """)
    xfrag_addr(4)
    A(f"""
    s_sub_u32 s54, s{sJ}, s{sC0}
    s_lshl_b32 s46, s54, 4
    s_add_u32 s46, s46, s{sH}
    s_lshl_b32 s46, s46, 11
    v_add_u32 v4, s46, v4
    v_xor_b32 v5, 64, v4
    v_and_b32 v6, 1, v1
    v_cmp_eq_u32 s[62:63], 1, v6
    v_and_b32 v6, 2, v1
    v_cmp_eq_u32 s[64:65], 2, v6
    v_lshrrev_b32 v6, 2, v1
    v_xor_b32 v6, v6, v2
    v_lshlrev_b32 v7, 3, v1
    v_lshl_add_u32 v7, v6, 28, v7
    s_cmp_eq_u32 s{sH}, 2
    s_cselect_b32 s51, 0x40000000, s50
    """)
    for i in range(4): A(f"v_mov_b32 v{80+i}, 0x3f803f80")
    A.prot |= set(range(rF, rF+4)); srd(A, rB, sWS, SP_SZ, SP_OFF)
    sE, sL = 55, 38
    A(f"""
    s_mul_i32 s{sE}, s{sR}, 5
    s_add_u32 s{sE}, s{sE}, s{sJ}
    s_mul_i32 s{sE}, s{sE}, 3
    s_add_u32 s{sE}, s{sE}, s{sH}
    s_mul_i32 s{sL}, s{sH}, 10240
    s_add_u32 s{sL}, s{sL}, {RPK}
    s_lshr_b32 s67, s{sE}, 2
    s_mul_i32 s67, s67, 40960
    s_and_b32 s52, s{sE}, 3
    s_mul_i32 s52, s52, 320
    s_add_u32 s67, s67, s52
    s_mov_b32 s52, {(1<<32)//20+1}
    """)
    for i in range(5): div20(9+i, i, 1280, False)
    srd(A, rA, sW2, 1728*1280)
    def rp_load():
        for q in range(2):
            A(f"s_add_u32 m0, s{sL}, {5120*q}")
            for i in range(4): A(f"buffer_load_dwordx4 v{9+i}, s[{rA}:{rA+3}], s67 offen offset:{1024*i} lds")
            A(f"s_add_u32 m0, s{sL}, {5120*q+4096}\nbuffer_load_dwordx4 v13, s[{rA}:{rA+3}], s67 offen lds")
            if q == 0: A(f"s_add_u32 s67, s67, {16*1280}")
    A("s_mov_b32 s49, 0\nA_D0:\ns_barrier\ns_cmp_lg_u32 s49, s54\ns_cbranch_scc1 A_D1")
    for e in range(3):
        for f in range(4): A(f"ds_read_b128 {v(84+16*e+4*f,4)}, v{4+(f&1)} offset:{6144*e+16384*(f>>1)}")
    for e in range(3):
        for f in range(4):
            x = 84+16*e+4*f
            A(mfma(132+8*e, 80, x, None if f else 0)); A(mfma(136+8*e, x, x, None if f else 0))
    for e in range(3):
        s_, g_ = 132+8*e, 136+8*e
        A(f"v_cndmask_b32 v{g_}, v{g_}, v{g_+1}, s[62:63]\nv_cndmask_b32 v{g_+2}, v{g_+2}, v{g_+3}, s[62:63]\nv_cndmask_b32 v{s_+1}, v{g_}, v{g_+2}, s[64:65]")
        A(f"buffer_store_dwordx2 {v(s_,2)}, v7, s[{rB}:{rB+3}], s{50 if e < 2 else 51} offen offset:{384*e} sc1")
    A("A_D1:\ns_cmp_lg_u32 s49, 1\ns_cbranch_scc1 A_D1b")
    initcheck(7)
    A("A_D1b:\ns_add_u32 s49, s49, 1\ns_cmp_lt_u32 s49, 3\ns_cbranch_scc1 A_D0")
    T.at(A, "mD", 0)
    A("s_barrier")
    T.at(A, "mD", 1)
    arrive(53)
    reset(A)
    A(f"s_cmp_lg_u32 s{sW}, 7\ns_cbranch_scc1 A_D2")
    poll(53, 15)
    stats_fetch()
    lds_add()
    A("A_D2:")
    lds_wait(1)
    reset(A)
    rp_load()
    A("s_branch A_D3\nA_D3w:")
    lds_wait(1)
    A("A_D3:")
    A(f"""
    s_mul_i32 s46, s43, 12
    s_sub_u32 s{sKT}, 8, s47
    s_mul_i32 s{sKT}, s{sKT}, s44
    s_add_u32 s46, s46, s{sKT}
    s_add_u32 s46, s46, s45
    s_sub_u32 s46, s46, s47
    s_mul_i32 s{sU1}, s46, 52
    s_lshr_b32 s{sU1}, s{sU1}, 8
    s_mul_i32 s{sKT}, s{sU1}, 5
    s_sub_u32 s{sKT}, s46, s{sKT}
    s_lshl_b32 s{sKT}, s{sKT}, 2
    s_and_b32 s46, s{sW}, 3
    s_add_u32 s{sKT}, s{sKT}, s46
    s_lshl_b32 s{sJL}, s46, 13
    s_add_u32 s{sJL}, s{sJL}, 73728
    s_cmp_eq_u32 s46, 3
    s_cselect_b32 s{sJL}, 114688, s{sJL}
    s_lshl_b32 s46, s42, 3
    s_add_u32 s{sU1}, s{sU1}, s46
    """)
    job_wdma()
    reset(A)
    A(f"s_cmp_eq_u32 s{sW}, 4\ns_cbranch_scc1 A_DH\ns_cmp_lg_u32 s{sW}, 7\ns_cbranch_scc1 A_D2b\ns_waitcnt vmcnt(18)")
    stats_final()
    A(f"v_rcp_f32 v224, v225\nv_rcp_f32 v225, v227\nv_lshlrev_b32 v4, 3, v0\nv_add_u32 v4, {STAT}, v4\nv_mul_f32 v224, {fbits(2.0/(2048*640))}, v224\nv_mul_f32 v225, {fbits(2.0/(2048*640))}, v225\nds_write_b64 v4, v[224:225]")
    lds_add()
    A(f"A_D2b:\ns_cmp_ge_u32 s{sE}, 216\ns_cbranch_scc1 A_DW")
    reset(A)
    srd(A, rB, sWS, W2P_SZ, W2P_OFF)
    A(f"""
    v_lshrrev_b32 v5, 2, v1
    v_lshl_add_u32 v5, v2, 2, v5
    v_mul_u32_u24 v5, 320, v5
    v_and_b32 v6, 3, v1
    v_lshl_add_u32 v5, v6, 3, v5
    v_add_u32 v5, s{sL}, v5
    v_add_u32 v6, 4096, v3
    s_and_b32 s46, s{sE}, 3
    s_mul_i32 s46, s46, 108
    s_lshr_b32 s52, s{sE}, 2
    s_add_u32 s46, s46, s52
    s_mul_i32 s46, s46, 5120
    s_waitcnt vmcnt(8)
    """)
    T.at(A, "mD", 2)
    for nt in range(10):
        for jh in range(2): A(f"ds_read_b64_tr_b16 {v(YF+4*nt+2*jh,2)}, v5 offset:{jh*5120 + nt*32}")
    for nt in range(10):
        q = nt % 5
        if q < 4: A(f"buffer_store_dwordx4 {v(YF+4*nt,4)}, v3, s[{rB}:{rB+3}], s46 offen offset:{1024*q} sc1")
        else: A(f"buffer_store_dwordx4 {v(YF+4*nt,4)}, v6, s[{rB}:{rB+3}], s46 offen sc1\ns_add_u32 s46, s46, {54*5120}")
    T.at(A, "mD", 3)
    signal2(f"s_and_b32 s46, s{sE}, 7\ns_add_u32 s46, s46, {L_W}", 26, 1 << 16)
    T.at(A, "mD", 4)
    A("s_branch A_DW\nA_DH0:\ns_waitcnt lgkmcnt(0)")
    srd(A, rF, sWS, FLG_SZ, FLG_OFF)
    A("A_DH:")
    job_consts()
    A(f"s_cmp_lt_u32 s45, s47\ns_cbranch_scc1 A_MH\ns_cmp_gt_u32 s{sW}, 4\ns_cbranch_scc1 A_DH1")
    A("A_DW:\ns_mov_b32 s38, 0")
    A("A_JOB:\ns_setprio 3")
    T.at(A, "mJ", 0)
    rV, rU = rC, rB
    srd(A, rV, sWS, V_SZ, V_OFF); srd(A, rU, sWS, U_SZ, U_OFF)
    for i in range(32): A(f"v_mov_b32 v{WR+i}, 0")
    A(f"""
    v_lshrrev_b32 v5, 2, v1
    v_lshl_add_u32 v5, v2, 2, v5
    v_lshlrev_b32 v5, 6, v5
    v_and_b32 v6, 3, v1
    v_lshl_add_u32 v5, v6, 4, v5
    v_add_u32 v5, s{sJL}, v5
    v_lshlrev_b32 v6, 8, v2
    v_lshl_add_u32 v6, v1, 1, v6
    v_add_u32 v6, s{sPAR}, v6
    s_mov_b32 s65, 0x80008000
    s_mul_i32 s50, s{sU1}, 20
    s_add_u32 s50, s50, s{sKT}
    s_lshl_b32 s50, s50, 12
    s_lshl_b32 s51, s{sKT}, 8
    s_mov_b32 m0, s{sJL}
    s_waitcnt vmcnt(0)
    """)
    for mt in range(4):
        for r in range(4):
            for ar in range(2): A(f"ds_read_u16_d16_hi v{(WR,WI)[ar]+4*mt+r}, v6 offset:{4096*ar+(16*mt+r)*64}")
    A("s_cmp_lt_u32 s45, s47\ns_cbranch_scc1 A_J1")
    lds_wait(10, (10, 11))
    A("A_J1:")
    T.at(A, "mJ", 1)
    poll(51, 16)
    T.at(A, "mJ", 2)
    for i in range(4): A(f"buffer_load_dwordx4 v3, s[{rV}:{rV+3}], s50 offen offset:{1024*i} sc1 lds")
    A(f"""
    v_lshrrev_b32 v9, 1, v1
    v_and_b32 v9, 3, v9
    v_xor_b32 v9, v9, v2
    v_lshlrev_b32 v9, 4, v9
    v_lshl_add_u32 v9, v1, 6, v9
    v_add_u32 v9, s{sJL}, v9
    v_lshrrev_b32 v6, 3, v0
    v_and_b32 v7, 3, v6
    v_lshlrev_b32 v7, 4, v7
    v_xor_b32 v7, v7, v3
    v_add_u32 v7, s{sJL}, v7
    v_mul_u32_u24 v6, 81920, v6
    v_and_b32 v8, 7, v0
    v_lshl_add_u32 v6, v8, 4, v6
    s_lshl_b32 s50, s{sKT}, 12
    s_lshl_b32 s46, s{sU1}, 7
    s_add_u32 s50, s50, s46
    s_cmp_eq_u32 s{sKT}, 19
    s_cselect_b32 s46, 0.5, 1.0
    v_cmp_eq_u32 vcc, 3, v2
    v_mov_b32 v8, s46
    v_cndmask_b32 v8, 1.0, v8, vcc
    s_waitcnt vmcnt(0)
    """)
    lds_wait("s38", (10, 11))
    T.at(A, "mJ", 3)
    for t in range(2):
        for rho in range(2):
            for jh in range(2): A(f"ds_read_b64_tr_b16 {v(VF+12*t+4*rho+2*jh,2)}, v5 offset:{2048*t+1024*jh+8*rho}")
    for t in range(2):
        for p in range(4): A(f"v_xor_b32 v{VF+12*t+8+p}, s65, v{VF+12*t+p}")
    def fwd(mt):
        m = []
        for t in range(2):
            re, im = XA+8*mt, XA+8*mt+4
            C, S = CF+(mt*2+t)*4, SF+(mt*2+t)*4
            m += [mfma(re, C, VF+12*t, None if t else 0), mfma(im, C, VF+12*t+4, None if t else 0), mfma(re, S, VF+12*t+4), mfma(im, S, VF+12*t+8)]
        return m
    def filt(mt):
        f = []
        tb = TA + 8*(mt & 1)
        for r in range(4):
            xr, xi, w_r, w_i = XA+8*mt+r, XA+8*mt+4+r, WR+4*mt+r, WI+4*mt+r
            f += [f"v_mul_f32 v{tb+r}, v{xi}, v{w_i}", f"v_mul_f32 v{tb+4+r}, v{xr}, v{w_i}", f"v_fma_f32 v{tb+r}, v{xr}, v{w_r}, -v{tb+r}", f"v_fmac_f32 v{tb+4+r}, v{xi}, v{w_r}"]
        t, jh = mt >> 1, mt & 1
        for p in range(2):
            f += [f"v_cvt_pk_bf16_f32 v{YF+12*t+2*jh+p}, v{tb+2*p}, v{tb+2*p+1}", f"v_cvt_pk_bf16_f32 v{YF+12*t+4+2*jh+p}, v{tb+4+2*p}, v{tb+4+2*p+1}",
                  f"v_xor_b32 v{YF+12*t+8+2*jh+p}, s65, v{YF+12*t+4+2*jh+p}"]
        return f
    def inv(t):
        m = []
        for nt in range(4):
            re, im = UA+8*nt, UA+8*nt+4
            C, S = CF+(nt*2+t)*4, SF+(nt*2+t)*4
            m += [mfma(re, YF+12*t, C, None if t else 0), mfma(im, YF+12*t+4, C, None if t else 0), mfma(re, YF+12*t+8, S), mfma(im, YF+12*t, S)]
        return m
    for x in fwd(0) + fwd(1)[:4]: A(x)
    weave(A, fwd(1)[4:] + fwd(2) + fwd(3), filt(0) + filt(1))
    weave(A, inv(0), filt(2) + filt(3))
    def outp(nt):
        d = UA+8*nt
        return [f"v_mul_f32 v{d+3}, v{d+3}, v8", f"v_mul_f32 v{d+7}, v{d+7}, v8"] + [f"v_cvt_pk_bf16_f32 v{TA+4*nt+p}, v{d+2*p}, v{d+2*p+1}" for p in range(4)] + [f"ds_write_b128 v9, {v(TA+4*nt,4)} offset:{1024*nt}"]
    i1 = inv(1)
    for x in i1[:9]: A(x)
    weave(A, i1[9:], outp(0) + outp(1))
    for x in outp(2) + outp(3): A(x)
    A("s_waitcnt lgkmcnt(0)")
    for q in range(4): A(f"ds_read_b128 {v(VF+4*q,4)}, v7 offset:{1024*q}")
    for q in range(4):
        A(f"buffer_store_dwordx4 {v(VF+4*q,4)}, v6, s[{rU}:{rU+3}], s50 offen sc1\ns_add_u32 s50, s50, {8*81920}")
    T.at(A, "mJ", 4)
    lds_add()
    signal2(f"s_add_u32 s46, s{sKT}, {L_U}", 31, 1 << 8)
    A(f"s_cmp_eq_u32 s{sW}, 4\ns_cbranch_scc1 B_LHD\ns_cmp_eq_u32 s{sW}, 5\ns_cbranch_scc1 B_LW")
    T.end(A, sW, sWS)
    A("s_endpgm")

    reset(A); A.prot = set(PTRS)
    A(f"A_COMPUTE:\ns_lshl_b32 s{sS2}, s{sR}, 2\ns_add_u32 s{sS2}, s{sS2}, s{sW}")
    xfrag_addr(8)
    A(f"s_mov_b32 s{sSl}, 0\ns_waitcnt lgkmcnt(0)\ns_cmp_ge_u32 s45, s47\ns_cbranch_scc1 A_DFT")
    rH = rA
    srd(A, rH, sWS, H_SZ, H_OFF)
    ACC = 20; AF = 100; XF = 180; AUG = 196; ST4 = 236; KC = 244
    vXA0, vXA1, vWE, vWO, vXB, vWB, vG32 = 10, 11, 12, 13, 14, 15, 16
    wfrag_addr(vWB, vG32, 18)
    A(f"""
    s_lshl_b32 s46, s{sW}, 12
    v_add_u32 v{vXB}, s46, v8
    v_lshlrev_b32 v18, 3, v1
    v_add_u32 v18, {CX}, v18
    s_lshl_b32 s46, s{sW}, 9
    s_add_u32 s46, s46, {STAT}
    v_lshl_add_u32 v9, v1, 4, s46
    s_lshr_b32 s38, s{sS2}, 1
    s_mul_i32 s46, s38, 54
    s_lshr_b32 s52, s{sCol}, 5
    s_add_u32 s46, s46, s52
    s_lshl_b32 s46, s46, 2
    s_and_b32 s52, s{sS2}, 1
    s_lshl_b32 s52, s52, 1
    s_add_u32 s46, s46, s52
    s_lshl_b32 s57, s46, 10
    s_cmp_eq_u32 s{sJ}, 10
    s_cselect_b32 s58, 0x40000000, s57
    s_add_u32 s38, s38, {L_R}
    v_cmp_eq_u32 s[64:65], 0, v2
    s_mov_b32 s{sIt}, 10
    """)
    for i in range(4): A(f"v_mov_b32 v{4+i}, 0")
    for r in [ACC+16*i for i in range(5)] + [AUG, AUG+16, AUG+32]: A(f"v_mfma_f32_32x32x16_bf16 {v(r,16)}, v[4:7], v[4:7], 0")
    addr_upd = [f"v_add_u32 v{vXA0}, s{sSl}, v{vXB}", f"v_add_u32 v{vWO}, s{sSl}, v{vWB}", f"v_add_u32 v{vWE}, v{vWO}, v{vG32}", f"v_sub_u32 v{vWO}, v{vWO}, v{vG32}", f"v_xor_b32 v{vXA1}, 64, v{vXA0}"]
    def reads(t):
        r = [f"ds_read_b128 {v(XF+8*t+4*mt,4)}, v{vXA0+t} offset:{2048*mt}" for mt in range(2)]
        for ft in range(10):
            for jh in range(2): r.append(f"ds_read_b64_tr_b16 {v(AF+40*t+4*ft+2*jh,2)}, v{vWE if ft%2==0 else vWO} offset:{t*10240+jh*1280+ft*32}")
        return r
    allm = [mfma(ACC+(ft*2+mt)*4, AF+40*t+4*ft, XF+8*t+4*mt) for t in range(2) for ft in range(10) for mt in range(2)]
    for x in addr_upd: A(x)
    T.at(A, "mA", 0)
    A("s_barrier")
    T.at(A, "mA", 1)
    for x in reads(0): A(x)
    st0 = A.state()
    A("A_ML:")
    slotadv = [f"s_add_u32 s{sSl}, s{sSl}, {SLOT}", f"s_cmp_eq_u32 s{sSl}, {3*SLOT}", f"s_cselect_b32 s{sSl}, 0, s{sSl}", f"s_sub_u32 s{sIt}, s{sIt}, 1"]
    R1 = optval("r1", 15); R0 = optval("r0", 36)
    weave(A, allm[:R1], reads(1)); weave(A, allm[R1:20], slotadv + addr_upd)
    A("s_waitcnt lgkmcnt(0)\ns_barrier")
    weave(A, allm[20:R0], reads(0) + [f"s_cmp_lg_u32 s{sIt}, 0"])
    for x in allm[R0:]: A(x)
    assert A.state()[0] == st0[0]
    A("s_cbranch_scc1 A_ML\nA_MLE:\ns_waitcnt vmcnt(0)")
    T.at(A, "mA", 2)
    for mt in range(2): A(f"ds_read_b128 {v(ST4+4*mt,4)}, v9 offset:{256*mt}")
    for ft in range(10): A(f"ds_read_b64 {v(AUG+4*ft,2)}, v18 offset:{128*ft}")
    BA = (4, 10)
    A("v_mov_b32 v12, 0\nv_mov_b32 v13, 0")
    for mt in range(2):
        b = BA[mt]
        A(f"v_lshrrev_b32 v{b+1}, 16, v{ST4+4*mt+3}\nv_cndmask_b32 v{b}, 0, v{ST4+4*mt}, s[64:65]\nv_cndmask_b32 v{b+1}, 0, v{b+1}, s[64:65]")
    dup = [f"v_mov_b32 v{KC+4*k+2*mt+h}, v{ST4+4*mt+1+k}" for mt in range(2) for k in range(3) for h in range(2)]
    weave(A, [mfma(ACC+(ft*2+mt)*4, AUG+4*ft, BA[mt]) for ft in range(10) for mt in range(2)], dup, per=1)
    T.at(A, "mA", 3)
    TMP = AF
    def grp(n):
        q, mt = n >> 1, n & 1
        tm = TMP + 8*(n % 3); o = TMP + 24 + 4*(n % 4)
        prs = [ACC + ((2*q+h)*2+mt)*4 + 2*p for h in range(2) for p in range(2)]
        s1 = [f"v_pk_mul_f32 {v(tm+2*i,2)}, {v(c,2)}, {v(c,2)}" for i, c in enumerate(prs)]
        s1 += [f"v_pk_fma_f32 {v(tm+2*i,2)}, {v(tm+2*i,2)}, {v(KC+2*mt,2)}, {v(KC+4+2*mt,2)}" for i in range(4)]
        s1 += [f"v_pk_mul_f32 {v(tm+2*i,2)}, {v(tm+2*i,2)}, {v(c,2)}" for i, c in enumerate(prs)]
        e = [f"v_exp_f32 v{tm+i}, v{tm+i}" for i in range(8)]
        s2 = [f"v_pk_fma_f32 {v(tm+2*i,2)}, {v(tm+2*i,2)}, {v(KC+8+2*mt,2)}, {v(KC+8+2*mt,2)}" for i in range(4)]
        r = [f"v_rcp_f32 v{tm+i}, v{tm+i}" for i in range(8)]
        s3 = [f"v_pk_mul_f32 {v(tm+2*i,2)}, {v(tm+2*i,2)}, {v(c,2)}" for i, c in enumerate(prs)]
        s3 += [f"v_cvt_pk_bf16_f32 v{o+i}, v{tm+2*i}, v{tm+2*i+1}" for i in range(4)]
        s3 += [f"buffer_store_dwordx4 {v(o,4)}, v3, s[{rH}:{rH+3}], s{57 if q else 58} offen offset:{1024*mt} sc1" + ("\ns_add_u32 s57, s57, 4096" if mt else "")]
        return s1, e, s2, r, s3
    G = [grp(n) for n in range(10)]
    for x in G[0][0]: A(x)
    for n in range(10):
        weave(A, G[n][1], G[n-1][4] if n else [])
        for x in G[n][2]: A(x)
        weave(A, G[n][3], G[n+1][0] if n < 9 else [])
    for x in G[9][4]: A(x)
    T.at(A, "mA", 4)
    lds_add()
    A("s_branch B_COMPUTE")

    reset(A); A.prot = set(PTRS)
    A("A_DFT:")
    rV = rC
    srd(A, rV, sWS, V_SZ, V_OFF); srd(A, rF, sWS, FLG_SZ, FLG_OFF)
    sK = 39
    ACC = 28; XF = 156; BF = 188; SQ = 204; TA = 220
    vSIG, vTQ = 252, 4
    vXA = 10; vXB = 18
    A(f"""
    s_lshl_b32 s{sK}, s{sJ}, 2
    s_add_u32 s{sK}, s{sK}, s{sW}
    s_mov_b32 s38, s{sK}
    v_add_u32 v22, 1, v1
    v_lshlrev_b32 v22, 31, v22
    v_or_b32 v{vSIG}, 1.0, v22
    v_or_b32 v{vSIG+1}, 1.0, v22
    v_lshlrev_b32 v22, 8, v2
    v_add_u32 v22, s{sS2}, v22
    v_cvt_f32_u32 v22, v22
    s_lshl_b32 s46, s{sW}, 12
    s_add_u32 s46, s46, {FX}
    v_add_u32 v9, s46, v3
    v_and_b32 v5, 1, v1
    v_mul_u32_u24 v5, 0x8000, v5
    v_lshl_or_b32 v5, v5, 16, v5
    """)
    for ut in range(2):
        A(f"v_add_u32 v23, {16*ut}, v1\nv_cvt_f32_u32 v23, v23\nv_mul_f32 v23, {fbits(1/2048)}, v23\nv_mul_f32 v{TA}, v23, v22\nv_mul_f32 v23, {fbits(64.0)}, v23")
        for j in range(1, 4): A(f"v_add_f32 v{TA+j}, v23, v{TA+j-1}")
        for j in range(4): A(f"v_sin_f32 v{TA+4+j}, v{TA+j}\nv_cos_f32 v{TA+j}, v{TA+j}")
        o = XF + 8*ut
        for p in range(2): A(f"v_cvt_pk_bf16_f32 v{o+p}, v{TA+2*p}, v{TA+2*p+1}\nv_cvt_pk_bf16_f32 v{o+4+p}, v{TA+4+2*p}, v{TA+4+2*p+1}")
        for p in range(2): A(f"v_xor_b32 v{o+2+p}, v5, v{o+p}\nv_xor_b32 v{o+6+p}, v5, v{o+4+p}")
        A(f"ds_write_b128 v9, {v(o,4)} offset:{2048*ut}\nds_write_b128 v9, {v(o+4,4)} offset:{2048*ut+1024}")
    A(f"""
    s_lshl_b32 s46, s{sK}, 4
    s_add_u32 s46, s46, 1
    v_add_u32 v5, s46, v1
    v_mul_u32_u24 v6, s{sC0}, v5
    v_mul_u32_u24 v7, 6554, v6
    v_lshrrev_b32 v7, 16, v7
    v_mul_u32_u24 v7, 10, v7
    v_sub_u32 v6, v6, v7
    v_cvt_f32_u32 v6, v6
    v_mul_f32 v6, {fbits(-0.1)}, v6
    v_cvt_f32_u32 v5, v5
    v_mul_f32 v5, {fbits(-1/640)}, v5
    v_lshlrev_b32 v7, 3, v2
    v_cvt_f32_u32 v7, v7
    v_add_f32 v7, 0.5, v7
    v_fma_f32 v{SQ}, v5, v7, v6
    v_mul_f32 v7, {fbits(32.0)}, v5
    v_cos_f32 v{vTQ}, v7
    """)
    for j in range(1, 8): A(f"v_add_f32 v{SQ+j}, v5, v{SQ+j-1}")
    for j in range(8): A(f"v_sub_f32 v{SQ+16+j}, v{SQ+j}, v7")
    A(f"v_add_f32 v{vTQ}, v{vTQ}, v{vTQ}")
    for sd in range(2):
        for j in range(8): A(f"v_sin_f32 v{SQ+16*sd+8+j}, v{SQ+16*sd+j}\nv_cos_f32 v{SQ+16*sd+j}, v{SQ+16*sd+j}")
    def bcv(t): return [f"v_cvt_pk_bf16_f32 v{BF+8*t+p}, v{SQ+16*t+2*p}, v{SQ+16*t+2*p+1}" for p in range(8)]
    def bstep(t): return [f"v_fma_f32 v{SQ+16*t+j}, v{vTQ}, v{SQ+16*(t^1)+j}, -v{SQ+16*t+j}" for j in range(16)] + bcv(t)
    for x in bcv(0): A(x)
    for i in range(4): A(f"v_mov_b32 v{BF+8+i}, 0")
    for r in [ACC+16*i for i in range(8)]: A(f"v_mfma_f32_32x32x16_bf16 {v(r,16)}, {v(BF+8,4)}, {v(BF+8,4)}, 0")
    dupd = [f"v_add_u32 v{vXA}, s{sSl}, v8", f"v_xor_b32 v{vXA+1}, 64, v{vXA}"]
    frs = [(h, t, m) for t in range(2) for h in range(2) for m in range(8)]
    def rd(i):
        h, t, m = frs[i % 32]
        return f"ds_read_b128 {v(XF+4*(i%8),4)}, v{vXA+t} offset:{h*16384+2048*m}"
    AH = 6
    A(f"s_mov_b32 s{sIt}, 5")
    for x in dupd: A(x)
    A(f"""
    v_lshlrev_b32 v12, 4, v2
    v_add_u32 v12, {STAT}, v12
    v_add_u32 v13, {FX}, v3
    s_lshl_b32 s46, s{sW}, 13
    v_and_b32 v5, 7, v1
    v_xor_b32 v5, v5, v2
    v_lshlrev_b32 v5, 4, v5
    v_lshl_add_u32 v5, v1, 8, v5
    v_add_u32 v14, s46, v5
    v_xor_b32 v15, 64, v14
    v_xor_b32 v18, v1, v2
    v_lshlrev_b32 v18, 4, v18
    v_lshl_add_u32 v18, v2, 8, v18
    v_add_u32 v18, s46, v18
    v_xor_b32 v19, 64, v18
    v_mul_u32_u24 v20, {20*4096}, v2
    v_lshl_add_u32 v20, v1, 4, v20
    s_lshl_b32 s65, s{sK}, 12
    s_lshl_b32 s52, s{sR}, 8
    s_add_u32 s65, s65, s52
    s_mov_b32 s70, 0x80008000
    v_mov_b32 v16, {CW}
    v_mov_b32 v17, 0
    ds_write_b32 v16, v17
    v_mov_b32 v21, 1
    s_waitcnt lgkmcnt(0)
    """)
    T.at(A, "mA", 0)
    A("s_barrier")
    T.at(A, "mA", 1)
    for i in range(AH): A(rd(i))
    st0 = A.state()
    A("A_DL:")
    pr, pv = [], []
    for i, (h, t, m) in enumerate(frs):
        x = XF + 4*(i % 8)
        ms = [mfma(ACC+((h*8+m)*2+rho)*4, x, BF+8*t+4*rho) for rho in range(2)]
        if i == 0: pv += bstep(1) + [f"s_add_u32 s{sSl}, s{sSl}, {PS}", f"s_cmp_eq_u32 s{sSl}, {3*PS}", f"s_cselect_b32 s{sSl}, 0, s{sSl}", f"s_sub_u32 s{sIt}, s{sIt}, 1"]
        if i == 16:
            assert not pv
            pv += bstep(0)
        if i % 2 == 0 and i + AH < 32: pr += [rd(i + AH), rd(i + AH + 1)]
        if i == 26: pv = dupd + pv
        if i == 28:
            A(f"s_cmp_lt_u32 s{sIt}, 2\ns_waitcnt lgkmcnt(0)\ns_cbranch_scc1 A_DL1\ns_barrier\nA_DL1:")
            pr += [rd(32+k) for k in range(4)]
        if i == 30: pr += [rd(36), rd(37)]; pv += [f"s_cmp_lg_u32 s{sIt}, 0"]
        for mm in ms:
            A(mm)
            n = 2
            if pr: A(pr.pop(0)); n -= 1
            if mm is ms[-1] and i < 27: n -= 1
            while n > 0 and pv: A(pv.pop(0)); n -= 1
    assert not pr and not pv
    assert A.state()[0] == st0[0]
    A("s_cbranch_scc1 A_DL\nA_DLE:")
    T.at(A, "mA", 2)
    RR = TA; TF = ACC + 64
    A("s_mov_b64 exec, 1\nds_add_u32 v16, v21\ns_mov_b64 exec, -1\ns_waitcnt lgkmcnt(1)")
    for q in range(16): A(f"ds_read_b128 {v(XF+4*q,4)}, v13 offset:{1024*q}")
    for i in range(32): A(f"v_pk_fma_f32 {v(ACC+2*i,2)}, {v(ACC+64+2*i,2)}, {v(vSIG,2)}, {v(ACC+2*i,2)}")
    A("s_mov_b32 s61, 4000000\nA_DS:\nds_read_b32 v17, v16")
    for m in range(8): A(f"ds_read_b128 {v(RR+4*m,4)}, v12 offset:{64*m}")
    A("s_waitcnt lgkmcnt(8)\nv_readfirstlane_b32 s60, v17\ns_cmp_ge_u32 s60, 6\ns_cbranch_scc1 A_DS1\ns_sub_u32 s61, s61, 1\ns_cmp_lg_u32 s61, 0\ns_waitcnt lgkmcnt(0)\ns_cbranch_scc1 A_DS\nA_DS1:")
    A.lg = [regs_of(v(RR+4*m,4)) for m in range(8)]
    def comb(gq):
        f = []
        for jh in range(2):
            for rho in range(2):
                c = ACC + ((2*gq+jh)*2+rho)*4
                f += [f"v_pk_mul_f32 {v(c+2*p,2)}, {v(c+2*p,2)}, {v(RR+8*gq+4*jh+2*p,2)}" for p in range(2)]
        return f
    def tcv(gq):
        f = []
        for rho in range(2):
            for jh in range(2):
                c = ACC + ((2*gq+jh)*2+rho)*4
                for p in range(2): f.append(f"v_cvt_pk_bf16_f32 v{TF+12*gq+4*rho+2*jh+p}, v{c+2*p}, v{c+2*p+1}")
        f += [f"v_xor_b32 v{TF+12*gq+8+p}, s70, v{TF+12*gq+p}" for p in range(4)]
        return f
    def sta(gq):
        m = []
        for ut in range(2):
            Cf, Sf = XF+16*gq+8*ut, XF+16*gq+8*ut+4
            re, im, nre = TF+12*gq, TF+12*gq+4, TF+12*gq+8
            dre, dim = ACC+(gq*2+ut)*8, ACC+(gq*2+ut)*8+4
            m += [mfma(dre, re, Cf, 0), mfma(dim, im, Cf, 0), mfma(dre, im, Sf), mfma(dim, nre, Sf)]
        return m
    def outv(gq):
        f = []
        for ut in range(2):
            d = ACC+(gq*2+ut)*8; o = TA + 4*(gq*2+ut)
            f += [f"v_cvt_pk_bf16_f32 v{o+p}, v{d+2*p}, v{d+2*p+1}" for p in range(4)] + [f"ds_write_b128 v{14+(gq&1)}, {v(o,4)} offset:{4096*ut+128*(gq>>1)}"]
        return f
    for gq in range(4):
        for x in comb(gq): A(x)
    for x in tcv(0): A(x)
    weave(A, sta(0), tcv(1)); weave(A, sta(1), tcv(2)); weave(A, sta(2), tcv(3) + outv(0)); weave(A, sta(3), outv(1) + outv(2))
    for x in outv(3): A(x)
    A("s_waitcnt lgkmcnt(0)")
    for n in range(8): A(f"ds_read_b128 {v(XF+4*n,4)}, v{18 + (n&1)} offset:{1024*n}")
    for n in range(8):
        A(f"buffer_store_dwordx4 {v(XF+4*n,4)}, v20, s[{rV}:{rV+3}], s65 offen sc1\ns_add_u32 s65, s65, {4*20*4096}")
    T.at(A, "mA", 3)
    A("s_mov_b64 exec, 1\nds_add_u32 v16, v21\ns_mov_b64 exec, -1")

    sRB, sCB = 33, 34
    WP = 20480; HB = 4*WP; HP = 24576
    XT0 = HB + 16384; XT3 = GAP + 1280; BO = XT0 + 7680
    PTRB = {0, 1, 2, 4, 5, 14, 15, 32, 40, 41}
    def brole():
        A.prot = set(PTRB)
        A(f"s_lshr_b32 s42, s41, 3\ns_lshl_b32 s{sRB}, s40, 2\ns_add_u32 s{sRB}, s{sRB}, s42\ns_and_b32 s{sCB}, s41, 7\nv_lshlrev_b32 v3, 4, v0")
        A.prot |= {sRB, sCB}
    def itemoff(OF):
        A(f"s_mov_b32 s52, {(1<<32)//10+1}")
        for q in range(3):
            A(f"""
            v_add_u32 v9, {64*q}, v0
            v_mul_hi_u32 v10, v9, s52
            v_mul_u32_u24 v11, 10, v10
            v_sub_u32 v11, v9, v11
            v_mul_u32_u24 v10, 81920, v10
            v_lshl_add_u32 v{OF+q}, v11, 4, v10
            """)
    rH, rW, rU, rXb = 16, 28, 24, 28
    sO, sO2, sM = 62, 63, 64
    def bsrd(d, mul, sreg, off):
        A.prot -= set(range(d, d+4))
        A(f"s_mul_i32 s50, s{sreg}, {mul}\ns_add_u32 s50, s50, {off}\ns_add_u32 s{d}, s{sWS}, s50\ns_addc_u32 s{d+1}, s{sWS+1}, 0\ns_mov_b32 s{d+2}, {mul}\ns_mov_b32 s{d+3}, 0x20000")
        A.prot |= set(range(d, d+4))
    def ld(srdr, so, step, groups, base, o):
        for k, (vr, n, lo) in enumerate(groups):
            A(f"s_mov_b32 m0, {o+lo}" if base is None else f"s_add_u32 m0, s{base}, {o+lo}")
            for i in range(n): A(f"buffer_load_dwordx4 v{vr}, s[{srdr}:{srdr+3}], s{so} offen offset:{1024*i} sc1 lds")
        A(f"s_add_u32 s{so}, s{so}, {step}")
    def ldW(base, o, so): ld(rW, so, 10240, [(3, 4, 0), (4, 4, 4096), (5, 2, 8192)], base, o)
    def ldH(base, o): ld(rH, sO, 8192, [(3, 4, 0), (4, 4, 4096)], base, o)
    def ldU(base, o): ld(rU, sO2, 8192, [(6, 4, 0), (7, 4, 4096)], base, o)
    def preload(lab):
        A(f"v_add_u32 v4, 4096, v3\nv_add_u32 v5, 8192, v3\ns_mov_b32 s{sO}, 0\ns_mov_b32 s{sM}, 0\ns_add_u32 s65, s{sRB}, {L_R}\ns_lshl_b32 s65, s65, 8")
        bsrd(rW, 54*5120, sCB, W2P_OFF)
        poll(65, 8, 16)
        T.at(A, "mB", 1)
        A(f"{lab}:")
        ldW(sM, 0, sO)
        A(f"s_add_u32 s{sM}, s{sM}, 10240\ns_cmp_lt_u32 s{sM}, {7*10240}\ns_waitcnt vmcnt({optval('thr', 20)})\ns_cbranch_scc1 {lab}")
        reset(A)
    reset(A)
    A(f"B_COMPUTE:\ns_cmp_ge_u32 s45, s47\ns_cselect_b32 s53, 1, 9")
    T.at(A, "mB", 0)
    brole()
    sP, sKP, sUW, sUH, sIt = 44, 45, 46, 47, 48
    FP = 12; ACC = 28; HF = 68; UF = 124; ZA = 136; FI = 152; SQ = 164; TQ = 244; OF = 249; TC = 228
    vH, vW, vT, vWB, vTB, vHB = 4, 5, 6, 7, 8, 252
    rO = 20
    A(f"""
    s_load_dwordx2 s[8:9], s[0:1], 64
    s_add_u32 s56, s{sWS}, {FLG_OFF}
    s_addc_u32 s57, s{sWS+1}, 0
    s_lshl_b32 s38, s38, 8
    s_and_b32 s{sP}, s{sW}, 1
    s_lshr_b32 s{sKP}, s{sW}, 1
    s_lshl_b32 s55, s{sRB}, 1
    s_add_u32 s55, s55, s{sP}
    s_lshl_b32 s49, s{sKP}, 10
    s_add_u32 s49, s55, s49
    s_brev_b32 s67, 1
    """)
    A(f"v_lshlrev_b32 v9, 3, v2\nv_cvt_f32_u32 v9, v9\nv_lshl_add_u32 v10, v1, 6, s49\nv_cvt_f32_u32 v10, v10\nv_mul_f32 v10, {fbits(1/2048)}, v10\nv_mul_f32 v{TC}, v10, v9")
    for j in range(1, 8): A(f"v_add_f32 v{TC+j}, v10, v{TC+j-1}")
    for j in range(8): A(f"v_sin_f32 v{TC+8+j}, v{TC+j}\nv_cos_f32 v{TC+j}, v{TC+j}")
    for q in range(4): A(f"v_cvt_pk_bf16_f32 v{FP+q}, v{TC+2*q}, v{TC+2*q+1}\nv_cvt_pk_bf16_f32 v{FP+4+q}, v{TC+8+2*q}, v{TC+8+2*q+1}")
    for q in range(8): A(f"v_xor_b32 v{FP+8+q}, s67, v{FP+q}")
    itemoff(OF)
    A(f"""
    s_mul_i32 s50, s{sKP}, 5120
    v_add_u32 v{vWB}, s50, v3
    s_lshl_b32 s50, s{sKP}, 12
    s_lshl_b32 s51, s{sP}, 11
    s_add_u32 s51, s51, s50
    s_lshl_b32 s52, s{sKP}, 10
    s_add_u32 s51, s51, s52
    s_add_u32 s51, s51, {HB}
    v_add_u32 v{vHB}, s51, v3
    v_lshrrev_b32 v9, 2, v1
    v_lshl_add_u32 v9, v2, 3, v9
    v_lshlrev_b32 v9, 7, v9
    v_and_b32 v10, 3, v1
    v_lshl_add_u32 v9, v10, 4, v9
    s_lshl_b32 s51, s{sP}, 6
    v_add_u32 v9, s51, v9
    v_and_b32 v10, 8, v1
    v_lshlrev_b32 v10, 3, v10
    v_xor_b32 v9, v9, v10
    s_add_u32 s50, s50, {HB + 16384}
    v_add_u32 v{vTB}, s50, v9
    s_mul_i32 s54, s{sCB}, 160
    s_mul_i32 s59, s49, 1280
    s_add_u32 s59, s59, s54
    s_mul_i32 s58, s{sW}, 2560
    s_add_u32 s58, s58, {XT0}
    s_cmp_eq_u32 s{sW}, 3
    s_cselect_b32 s58, {XT3}, s58
    s_mov_b32 s70, 0x80008000
    s_mov_b32 s69, 0xffff0000
    s_mov_b32 s66, 1
    s_waitcnt vmcnt(0) lgkmcnt(0)
    """)
    A.raw("s_atomic_add s66, s[56:57], s38")
    T.at(A, "mB", 1)
    srd(A, rO, 8, 2048*1280)
    A(f"""
    s_mul_i32 s50, s{sCB}, 80
    s_cmp_ge_u32 s{sCB}, 4
    s_cselect_b32 s51, 640, 0
    s_sub_i32 s50, s50, s51
    s_lshl_b32 s51, s{sKP}, 4
    v_lshl_add_u32 v{HF}, v2, 2, s51
    v_cvt_f32_u32 v{HF}, v{HF}
    v_add_u32 v{HF+1}, s50, v1
    v_cvt_f32_i32 v{HF+1}, v{HF+1}
    """)
    for e in range(5):
        A(f"v_add_f32 v9, {fbits(16.0*e + 0.5)}, v{HF+1}\nv_mul_f32 v9, {fbits(-1/640)}, v9\nv_mul_f32 v10, v{HF}, v9\nv_mul_f32 v{TQ+e}, {fbits(32.0)}, v9\nv_cos_f32 v{TQ+e}, v{TQ+e}")
        for sd in range(2):
            for r in range(4): A(f"v_fmamk_f32 v{SQ+16*e+8*sd+r}, v9, {fbits(r + 1.0 - 32.0*(sd+1))}, v10")
        A(f"v_add_f32 v{TQ+e}, v{TQ+e}, v{TQ+e}")
        for sd in range(2):
            o = SQ + 16*e + 8*sd
            for r in range(4): A(f"v_sin_f32 v{o+4+r}, v{o+r}\nv_cos_f32 v{o+r}, v{o+r}")
    for nt in range(5):
        for i in range(4): A(f"v_mov_b32 v{ACC+(nt*2+1)*4+i}, 0")
    BT = ZA; XT = UF
    A(f"v_mul_u32_u24 v11, 160, v1\nv_lshl_add_u32 v11, v2, 3, v11\nv_add_u32 v253, s58, v11\nv_lshlrev_b32 v10, 3, v2\nv_add_u32 v10, {BO}, v10\ns_mov_b32 s{sUW}, 0\ns_mov_b32 s{sUH}, 0")
    adv = [f"s_add_u32 s{sUW}, s{sUW}, {WP}", f"s_cmp_eq_u32 s{sUW}, {4*WP}\ns_cselect_b32 s{sUW}, 0, s{sUW}", f"s_add_u32 s{sUH}, s{sUH}, {HP}", f"s_cmp_eq_u32 s{sUH}, {3*HP}\ns_cselect_b32 s{sUH}, 0, s{sUH}"]
    upd = [f"v_add_u32 v{vW}, s{sUW}, v{vWB}", f"v_add_u32 v{vH}, s{sUH}, v{vHB}", f"v_xor_b32 v9, 1024, v{vH}", f"v_add_u32 v{vT}, s{sUH}, v{vTB}"]
    def hrd(b): return [f"ds_read_b128 {v(HF+28*b,4)}, v{vH} offset:{8192*b}", f"ds_read_b128 {v(HF+28*b+8,4)}, v{vW} offset:{10240*b}", f"ds_read_b128 {v(HF+28*b+4,4)}, v9 offset:{8192*b}"] + \
                       [f"ds_read_b128 {v(HF+28*b+8+4*nt,4)}, v{vW} offset:{10240*b+1024*nt}" for nt in range(1, 5)]
    def hmm(b): return [mfma(ACC+(nt*2+l)*4, HF+28*b+8+4*nt, HF+28*b+4*l) for nt in range(5) for l in range(2)]
    trr = [f"ds_read_b64_tr_b16 {v(UF+4*rho+2*jh,2)}, v{vT} offset:{512*jh+8*rho}" for rho in (1, 0) for jh in range(2)]
    neg = [f"v_xor_b32 v{UF+8+q}, s70, v{UF+4+q}" for q in range(4)]
    sa = []
    for l in range(2):
        C, S = FP+8*l, FP+8*l+4; re, im = ZA+8*l, ZA+8*l+4
        sa += [mfma(re, UF, C, 0), mfma(im, UF+4, C, 0), mfma(im, UF, S), mfma(re, UF+8, S)]
    cv = [f"v_cvt_pk_bf16_f32 v{ZA+8*l+r}, v{ZA+8*l+r}, v{ZA+8*l+4+r}" for l in range(2) for r in range(4)]
    def fst(par): return [f"v_fma_f32 v{SQ+16*e+8*(par^1)+j}, v{TQ+e}, v{SQ+16*e+8*par+j}, -v{SQ+16*e+8*(par^1)+j}" for e in range(5) for j in range(8)]
    def fcv(par, e): return [f"v_cvt_pk_bf16_f32 v{FI+4*(e%3)+r}, v{SQ+16*e+8*(par^1)+r}, v{SQ+16*e+8*(par^1)+4+r}" for r in range(4)]
    def zmm(e): return [mfma(ACC+(e*2+l)*4, FI+4*(e%3), ZA+8*l) for l in range(2)]
    def mix(main, reads, valu):
        reads, valu = list(reads), list(valu); n = len(main)
        for i, mm in enumerate(main):
            A(mm)
            left = n - i
            nr = max(-(-len(reads) // left), 1) if reads else 0
            for _ in range(nr): A(reads.pop(0))
            nv = max(-(-len(valu) // left), min(len(valu), 2 - nr))
            for _ in range(nv): A(valu.pop(0))
    A(f"s_cmp_lg_u32 s{sW}, s53\ns_cbranch_scc1 B_NP")
    lds_wait(10)
    preload("B_PWD")
    A("s_waitcnt vmcnt(0)\nB_NP:")
    for x in upd: A(x)
    T.at(A, "mB", 2)
    A("s_barrier")
    T.at(A, "mB", 3)
    for nt in range(5): A(f"ds_read_b64 {v(XT+2*nt,2)}, v253 offset:{32*nt}\nds_read_b64 {v(BT+2*nt,2)}, v10 offset:{32*nt}")
    for x in hrd(0): A(x)
    for nt in range(5):
        for h in range(2):
            c = ACC + nt*8 + 2*h
            A(f"v_lshlrev_b32 v{c}, 16, v{XT+2*nt+h}\nv_lshlrev_b32 v10, 16, v{BT+2*nt+h}\nv_and_b32 v{c+1}, s69, v{XT+2*nt+h}\nv_and_b32 v{FI}, s69, v{BT+2*nt+h}")
            A(f"v_add_f32 v{c}, v{c}, v10\nv_add_f32 v{c+1}, v{c+1}, v{FI}")
    A(f"s_mov_b32 s{sIt}, 3\nB_C0:\ns_waitcnt lgkmcnt(0)\ns_barrier")
    m = hmm(0); mix(m[:7], hrd(1), adv); mix(m[7:], [], upd + [f"s_sub_u32 s{sIt}, s{sIt}, 1"])
    A(f"s_waitcnt lgkmcnt(0)\ns_barrier\ns_cmp_lg_u32 s{sIt}, 0")
    mix(hmm(1), hrd(0), [])
    A("s_cbranch_scc1 B_C0")
    for x in adv + upd: A(x)
    for x in hmm(0): A(x)
    A(f"s_mov_b32 s{sIt}, 5\ns_waitcnt lgkmcnt(0)\ns_barrier")
    for x in trr + hrd(0) + fst(0)[:20] + neg: A(x)
    def half2(par):
        f = fst(par)
        A("s_waitcnt lgkmcnt(0)\ns_barrier")
        mix(sa, hrd(1), f[20:28])
        mix(hmm(0), [], f[28:] + adv + upd + cv)
    def half1(par, nxt, extra):
        if nxt: A("s_waitcnt lgkmcnt(0)\ns_barrier")
        mix(hmm(1), (trr + hrd(0)[:6]) if nxt else [], fcv(par, 0) + fcv(par, 1))
        f = fst(par ^ 1)[:20] if nxt else []
        mix(zmm(0), hrd(0)[6:] if nxt else [], fcv(par, 2)); mix(zmm(1), [], fcv(par, 3) + f[:2]); mix(zmm(2), [], fcv(par, 4) + f[2:4])
        mix(zmm(3) + zmm(4), [], f[4:] + (neg if nxt else []) + extra)
    A("B_CL:")
    half2(0); half1(0, True, [])
    half2(1)
    A(f"s_sub_u32 s{sIt}, s{sIt}, 1\ns_cmp_eq_u32 s{sIt}, 0\ns_cbranch_scc1 B_CE")
    stE = A.state()
    half1(1, True, [])
    A("s_branch B_CL\nB_CE:")
    A.lg = [set(x) for x in stE[0]]
    EX = 2*WP; RL = 3*WP
    half1(1, False, [f"s_xor_b32 s50, s{sW}, 2", "s_mul_i32 s50, s50, 5120", "v_add_u32 v9, s50, v3", f"s_mul_i32 s50, s{sW}, 5120", "v_add_u32 v10, s50, v3", "v_add_u32 v11, s50, v11"])
    T.at(A, "mB", 4)
    for nt in range(5): A(f"ds_write_b128 v9, {v(ACC+(nt*2+1)*4,4)} offset:{EX+1024*nt}")
    A("s_waitcnt lgkmcnt(0)\ns_barrier")
    P = HF
    for nt in range(5): A(f"ds_read_b128 {v(P+4*nt,4)}, v10 offset:{EX+1024*nt}")
    for nt in range(5):
        c = ACC + nt*8
        A(f"v_pk_add_f32 {v(c,2)}, {v(c,2)}, {v(P+4*nt,2)}\nv_pk_add_f32 {v(c+2,2)}, {v(c+2,2)}, {v(P+4*nt+2,2)}")
        A(f"v_cvt_pk_bf16_f32 v{c+4}, v{c}, v{c+1}\nv_cvt_pk_bf16_f32 v{c+5}, v{c+2}, v{c+3}\nds_write_b64 v11, {v(c+4,2)} offset:{RL+32*nt}")
    A("s_waitcnt lgkmcnt(0)")
    for q in range(3): A(f"ds_read_b128 {v(P+20+4*q,4)}, v10 offset:{RL+1024*q}")
    for q in range(3):
        if q == 2: A("s_mov_b32 exec_hi, 0")
        A(f"buffer_store_dwordx4 {v(P+20+4*q,4)}, v{OF+q}, s[{rO}:{rO+3}], s59 offen {'sc1' if 'osc1' in OPT else ''}")
    T.end(A, sW, sWS)
    A("s_endpgm")

    sIt = 48
    reset(A)
    A("B_LHD:")
    lds_wait(14)
    A("B_LH:\ns_setprio 0")
    T.at(A, "mB", 0)
    brole()
    A(f"""
    s_load_dwordx2 s[8:9], s[0:1], 56
    s_add_u32 s56, s{sWS}, {FLG_OFF}
    s_addc_u32 s57, s{sWS+1}, 0
    s_add_u32 s58, s{sRB}, {L_R}
    s_lshl_b32 s58, s58, 8
    v_add_u32 v4, 4096, v3
    v_add_u32 v5, 8192, v3
    v_and_b32 v6, 16, v0
    v_lshlrev_b32 v6, 2, v6
    v_xor_b32 v6, v6, v3
    v_add_u32 v7, 4096, v6
    s_mul_i32 s54, s{sCB}, 160
    s_mul_i32 s53, s{sRB}, 2560
    s_add_u32 s53, s53, s54
    """)
    A.prot |= {56, 57, 58}
    itemoff(12)
    A("s_waitcnt lgkmcnt(0)")
    srd(A, rXb, sX, 2048*1280); srd(A, rU, 8, 1280)
    for w in range(4):
        A(f"s_add_u32 s55, s53, {((w & 1) + 1024*(w >> 1))*1280}")
        for q in range(3):
            A(f"s_mov_b32 m0, {(XT0+2560*w if w < 3 else XT3)+1024*q}" + ("\ns_mov_b32 exec_hi, 0" if q == 2 else "") + f"\nbuffer_load_dwordx4 v{12+q}, s[{rXb}:{rXb+3}], s55 offen lds")
        A("s_mov_b64 exec, -1")
    A(f"s_mov_b32 m0, {BO}\ns_mov_b64 exec, 0x3ff\nbuffer_load_dwordx4 v3, s[{rU}:{rU+3}], s54 offen lds\ns_mov_b64 exec, -1")
    bsrd(rH, 54*4096, sRB, H_OFF); bsrd(rU, 20*4096, sRB, U_OFF)
    A(f"s_mov_b32 s{sO}, 0\ns_mov_b32 s{sO2}, 0")
    T.at(A, "mB", 2)
    poll(58, 22, 0)
    T.at(A, "mB", 3)
    ldH(None, HB); ldH(None, HB + 8192); ldH(None, HB + HP); ldH(None, HB + HP + 8192)
    A("s_waitcnt vmcnt(24)\ns_barrier\ns_setprio 3")
    ldH(None, HB + 2*HP); A("s_waitcnt vmcnt(24)\ns_barrier")
    ldH(None, HB + 2*HP + 8192); A("s_waitcnt vmcnt(24)\ns_barrier")
    ldH(None, HB); A("s_waitcnt vmcnt(24)\ns_barrier")
    ldH(None, HB + HP); A("s_waitcnt vmcnt(24)\ns_barrier")
    ldH(None, HB + HP + 8192); A("s_waitcnt vmcnt(24)\ns_barrier")
    poll(58, 20, 8)
    T.at(A, "mB", 4)
    ldU(None, HB + HP + 16384)
    ldH(None, HB + 2*HP); ldU(None, HB + 2*HP + 16384)
    A("s_waitcnt vmcnt(40)\ns_barrier")
    A(f"s_mov_b32 s{sM}, {HB + 2*HP}\ns_mov_b32 s{sIt}, 9\nB_LL:")
    ldH(sM, 8192)
    A(f"s_add_u32 s{sM}, s{sM}, {HP}\ns_cmp_eq_u32 s{sM}, {HB + 3*HP}\ns_cselect_b32 s{sM}, {HB}, s{sM}\ns_sub_u32 s{sIt}, s{sIt}, 1\ns_cmp_eq_u32 s{sIt}, 0\ns_waitcnt vmcnt(24)\ns_barrier\ns_cbranch_scc1 B_LE")
    ldH(sM, 0); ldU(sM, 16384)
    A("s_waitcnt vmcnt(40)\ns_barrier\ns_branch B_LL\nB_LE:")
    A("s_barrier\ns_waitcnt vmcnt(8)\ns_barrier\ns_waitcnt vmcnt(0)\ns_barrier")
    T.end(A, sW, sWS)
    A("s_endpgm")
    reset(A)
    A("B_LW:\ns_setprio 0\ns_cmp_ge_u32 s45, s47\ns_cselect_b32 s53, 1, 0")
    T.at(A, "mB", 0)
    brole()
    A(f"s_add_u32 s56, s{sWS}, {FLG_OFF}\ns_addc_u32 s57, s{sWS+1}, 0\ns_cmp_eq_u32 s53, 1\ns_cbranch_scc1 B_LW1")
    A.prot |= {56, 57}
    preload("B_PW")
    A("B_LW1:")
    bsrd(rW, 54*5120, sCB, W2P_OFF)
    A(f"v_add_u32 v4, 4096, v3\nv_add_u32 v5, 8192, v3\ns_mov_b32 s{sO}, {7*10240}\ns_mov_b32 s{sM}, 0\ns_mov_b32 s{sIt}, 20")
    T.at(A, "mB", 2)
    WL = optval("wl", 3)
    for k in range(WL): A(f"s_waitcnt vmcnt({60-10*k})\ns_barrier")
    A("s_setprio 3\nB_LWL:")
    ldW(sM, 0, sO)
    A(f"s_add_u32 s{sM}, s{sM}, 10240\ns_cmp_eq_u32 s{sM}, {4*WP}\ns_cselect_b32 s{sM}, 0, s{sM}\ns_sub_u32 s{sIt}, s{sIt}, 1\ns_cmp_lg_u32 s{sIt}, 0\ns_waitcnt vmcnt({10*(7-WL)})\ns_barrier\ns_cbranch_scc1 B_LWL")
    for k in range(7 - WL): A(f"s_waitcnt vmcnt({10*(6-WL-k)})\ns_barrier")
    T.end(A, sW, sWS)
    A(f"{END}:\nCODE_END:")
    return dict(label=NAME + "_kernel", body=A.text(), vgpr=256, grid=256, block=512, lds=160*1024)

def groups(i, shape):
    import numpy as np
    w = np.arange(shape[1])
    b = np.arange(256); i8 = (b >> 3) & 7; ch = b & 1
    mlp = i8 < 5 + ch
    return [("mlp", np.ix_(mlp, w < 4)), ("mlp-ld", np.ix_(mlp, w == 4)), ("mlp-l5", np.ix_(mlp, w == 5)), ("mlp-h6", np.ix_(mlp, w == 6)), ("mlp-h7", np.ix_(mlp, w == 7)), ("dft", np.ix_(~mlp, w < 4)), ("dft-ld", np.ix_(~mlp, w == 4)), ("dft-l5", np.ix_(~mlp, w == 5)), ("dft-6", np.ix_(~mlp, w == 6)), ("dft-7", np.ix_(~mlp, w == 7))]

if __name__ == "__main__":
    st = "stamps" in sys.argv
    OPT.update(sys.argv[2:])
    ks = [gen_all(st)]
    for x in sys.argv:
        if x.startswith("abl:"):
            _, ki, l0, l1, pre = x.split(":")
            out = []; on = False
            for l in ks[int(ki)]["body"].split("\n"):
                t = l.strip()
                if t == l0 + ":": on = True
                if t == l1 + ":": on = False
                if on and any(t.startswith(p) for p in pre.split(",")): continue
                out.append(l)
            ks[int(ki)]["body"] = "\n".join(out)
    for x in sys.argv:
        if x.startswith("diag:"):
            import diag
            p = x.split(":")[1:]
            ks.append(diag.gen_diag(tuple([p[0]] + [int(y) for y in p[1:]]), STAMP_OFF))
    txt = file_text(ks)
    if len(ks) == 1 and "aslist" not in OPT: txt = txt.replace(f"; @launch kernel={NAME}_kernel grid", "; @launch grid")
    open(sys.argv[1], "w").write(txt)
```

```python
from asmlib import *
def gen_diag(metric, STAMP_OFF, mult=10):
    A = Asm()
    A(f"""
    s_cmp_ge_u32 s2, 1
    s_cbranch_scc1 D_END
    s_load_dwordx2 s[14:15], s[0:1], 80
    v_lshlrev_b32 v1, 8, v0
    v_mov_b32 v2, 0
    v_mov_b32 v3, -1
    v_mov_b32 v4, 0
    ds_write_b32 v2, v3
    ds_write_b32 v2, v4 offset:4
    ds_write_b32 v2, v4 offset:8
    s_waitcnt lgkmcnt(0)
    s_mov_b32 s16, s14
    s_mov_b32 s17, s15
    s_mov_b32 s18, 0x10000000
    s_mov_b32 s19, 0x20000
    s_barrier
    """)
    def ld(dst, k, wave, field): A(f"s_mov_b32 s20, {STAMP_OFF + k*131072 + wave*32 + field*4}\nbuffer_load_dword v{dst}, v1, s[16:19], s20 offen")
    if metric[0] == "span":
        k, nw = metric[1], metric[2]
        for w in range(nw):
            ld(5, k, w, 1); ld(6, k, w, 2); A("ds_min_u32 v2, v5\nds_max_u32 v2, v6 offset:4")
    elif metric[0] == "skew":
        ld(5, 0, metric[1], 1); A("ds_min_u32 v2, v5\nds_max_u32 v2, v5 offset:4")
    elif metric[0] == "avgm":
        k, w, f, sel = metric[1:5]
        ld(5, k, w, f)
        A("v_bfe_u32 v6, v0, 3, 3\nv_and_b32 v7, 1, v0\nv_add_u32 v7, 5, v7")
        A(("v_cmp_lt_u32" if sel == 0 else "v_cmp_ge_u32") + " vcc, v6, v7\nv_cndmask_b32 v5, 0, v5, vcc\nds_add_u32 v2, v5 offset:8")
    elif metric[0] == "gap":
        for w in range(metric[1]):
            ld(6, 0, w, 2); A("v_not_b32 v6, v6\nds_min_u32 v2, v6")
        ld(5, 1, 0, 1); A("v_not_b32 v5, v5\nds_max_u32 v2, v5 offset:4")
    elif metric[0] == "avg":
        k, w, f = metric[1:4]
        ld(5, k, w, f); A("ds_add_u32 v2, v5 offset:8")
    A("s_waitcnt vmcnt(0) lgkmcnt(0)\ns_barrier\nds_read_b96 v[8:10], v2\ns_waitcnt lgkmcnt(0)")
    A("v_readfirstlane_b32 s21, v8\nv_readfirstlane_b32 s22, v9\nv_readfirstlane_b32 s23, v10")
    if metric[0] == "avgm": A(f"s_mul_i32 s24, s23, {93 if metric[4] == 0 else 205}\ns_lshr_b32 s24, s24, 15")
    elif metric[0] == "skew": A(f"s_sub_u32 s24, s22, s21\ns_mul_i32 s24, s24, 50")
    elif metric[0] == "span": A(f"s_sub_u32 s24, s22, s21\ns_mul_i32 s24, s24, {mult}")
    elif metric[0] == "gap": A(f"s_sub_u32 s24, s21, s22\ns_mul_i32 s24, s24, {mult}")
    elif metric[0] == "avg": A("s_lshr_b32 s24, s23, 9")
    else: A("s_mov_b32 s24, 0")
    A("""
    s_min_u32 s24, s24, 60000
    s_memrealtime s[26:27]
    s_waitcnt lgkmcnt(0)
    D_L:
    s_memrealtime s[28:29]
    s_waitcnt lgkmcnt(0)
    s_sub_u32 s30, s28, s26
    s_cmp_lt_u32 s30, s24
    s_cbranch_scc1 D_L
    D_END:
    """)
    return dict(label="diag_kernel", body=A.text(), vgpr=16, grid=1, block=256, lds=64)
```

```python
import struct, math, sys
from asmlib import *

def fbits(x): return "0x%08x" % struct.unpack("<I", struct.pack("<f", x))[0]

H_OFF = 0;            H_SZ = 32*54*4096
W2P_OFF = 8 << 20;    W2P_SZ = 8*54*5120
V_OFF = 12 << 20;     V_SZ = 32*20*64*64
U_OFF = 16 << 20;     U_SZ = V_SZ
FLG_OFF = 20 << 20
L_V, L_U, L_W, L_S, L_C, L_R = 0, 20, 40, 48, 64, 80
FLG_SZ = 112*256
SP_OFF = 21 << 20;    SP_SZ = 16*1024
CP_OFF = 22 << 20;    CP_SZ = 11*10*640
STAMP_OFF = 64 << 20
OPT = set()
K0 = -2.0*math.sqrt(2.0/math.pi)*math.log2(math.e)
MF = "v_mfma_f32_16x16x32_bf16"

def optval(name, default):
    for x in OPT:
        if x.startswith(name + "="): return int(x[len(name)+1:])
    return default
def mfma(d, x, y, c=None): return f"{MF} {v(d,4)}, {v(x,4)}, {v(y,4)}, {v(d,4) if c is None else c}"
def srd(A, d, lo, nbytes, add=0):
    A.prot -= set(range(d, d+4))
    if add: A(f"s_add_u32 s{d}, s{lo}, {add}\ns_addc_u32 s{d+1}, s{lo+1}, 0")
    else: A(f"s_mov_b64 s[{d}:{d+1}], s[{lo}:{lo+1}]")
    A(f"s_mov_b32 s{d+2}, {nbytes}\ns_mov_b32 s{d+3}, 0x20000")
    A.prot |= set(range(d, d+4))
def bf16_round(A, dst, src): A(f"v_cvt_pk_bf16_f32 v{dst}, v{src}, v{src}\nv_lshlrev_b32 v{dst}, 16, v{dst}")
def weave(A, main, fill, per=None, start=0):
    fill = list(fill); n = len(main) - start; done = 0
    for i, m in enumerate(main):
        A(m)
        if i < start: continue
        want = min(len(fill), int(math.ceil((i - start + 1) * per))) if per else (len(fill) * (i - start + 1) + n - 1) // n
        while done < want: A(fill[done]); done += 1
    while done < len(fill): A(fill[done]); done += 1
def reset(A): A.lg = []; A.vm = []

class Stamp:
    def __init__(self, on): self.on = on
    def start(self, A):
        if self.on: A("s_memtime s[90:91]\ns_memrealtime s[92:93]\ns_mov_b32 s80, 0\ns_mov_b32 s82, 0\ns_mov_b32 s84, 0\ns_mov_b32 s86, 0\ns_mov_b32 s88, 0")
    def at(self, A, mode, i):
        if self.on and (mode in OPT or (mode == "mB" and not OPT & {"mA", "mJ", "mD", "mE"})):
            A(f"s_memtime s[{80+2*i}:{81+2*i}]"); A.lg.pop()
    def end(self, A, wave_s, ws_lo):
        if not self.on: return
        A("s_waitcnt vmcnt(0)\ns_memtime s[94:95]\ns_memrealtime s[96:97]\ns_waitcnt lgkmcnt(0)\ns_sub_u32 s94, s94, s90")
        for i in range(5): A(f"s_sub_u32 s{80+2*i}, s{80+2*i}, s90")
        A("s_mov_b64 exec, 1\nv_mov_b32 v0, s94\nv_mov_b32 v1, s92\nv_mov_b32 v2, s96\nv_mov_b32 v3, s80\nv_mov_b32 v4, s82\nv_mov_b32 v5, s84\nv_mov_b32 v6, s86\nv_mov_b32 v7, s88")
        srd(A, 76, ws_lo, 0x10000000)
        A(f"s_lshl_b32 s98, s2, 3\ns_add_u32 s98, s98, s{wave_s}\ns_lshl_b32 s98, s98, 5\ns_add_u32 s98, s98, {STAMP_OFF}\nv_mov_b32 v8, 0")
        A("buffer_store_dwordx4 v[0:3], v8, s[76:79], s98 offen\nbuffer_store_dwordx4 v[4:7], v8, s[76:79], s98 offen offset:16")

def gen_all(stamps=False):
    A = Asm(); T = Stamp(stamps)
    END = "A_END"
    OPT.add("rg")
    sX, sWR, sW1, sB1, sW2, sWS, sDBG, sWI = 4, 6, 8, 10, 12, 14, 72, 74
    rX, rA, rB, rC, rF = 16, 20, 24, 28, 56
    sW, sR, sJ, sC0, sS2, sCol = 32, 33, 34, 35, 36, 37
    PTRS = set(range(4, 16)) | {0, 1, 2, 72, 73, 74, 75, 32, 33, 34, 35, 37, 40, 41, 42, 43, 44, 45, 47}
    SLOT = 36864; PS = 32768; FX = 3*PS
    GAP = 122880; CX = GAP; STAT = 126976; RPK = 129024; CW = 159744
    def poll(line_sreg, want, shift=0, first_issued=False, ps=None):
        L, G, M = A.label(), A.label(), A.label()
        A("s_mov_b32 s61, 100000")
        if first_issued: A(f"s_branch {M}")
        A(f"{L}:\ns_mov_b32 s60, 0")
        A.raw(f"s_atomic_add s60, s[{rF}:{rF+1}], s{line_sreg} glc")
        A(f"{M}:\ns_waitcnt lgkmcnt(0)\ns_bfe_u32 s60, s60, {shift | (8 << 16)}\ns_cmp_eq_u32 s60, {want}\ns_cbranch_scc1 {G}")
        A(f"s_sub_u32 s61, s61, 1\ns_cmp_eq_u32 s61, 0\ns_cbranch_scc1 {G}\ns_sleep {ps or optval('ps', 2)}\ns_branch {L}\n{G}:")
        A.lg = []
    def poll_issue(line_sreg):
        A("s_mov_b32 s60, 0"); A.raw(f"s_atomic_add s60, s[{rF}:{rF+1}], s{line_sreg} glc")
    def arrive(line_sreg, n=0):
        A(f"s_mov_b32 s66, 1\ns_waitcnt vmcnt({n})"); A.raw(f"s_atomic_add s66, s[{rF}:{rF+1}], s{line_sreg}")
    def signal2(line_expr, last, inc):
        L = A.label()
        A(f"{line_expr}\ns_lshl_b32 s46, s46, 8\ns_mov_b32 s66, 1\ns_waitcnt vmcnt(0)")
        A.raw(f"s_atomic_add s66, s[{rF}:{rF+1}], s46 glc")
        A(f"v_lshlrev_b32 v4, 8, v0\nv_mov_b32 v5, {inc}\ns_movk_i32 s46, {L_R*256}\ns_waitcnt lgkmcnt(0)\ns_cmp_lg_u32 s66, {last}\ns_cbranch_scc1 {L}")
        A(f"buffer_atomic_add v5, v4, s[{rF}:{rF+3}], s46 offen sc1\n{L}:")
        reset(A)
    def initcheck(wave):
        L, G = A.label(), A.label()
        A(f"s_cmp_lg_u32 s{sW}, {wave}\ns_cbranch_scc1 {G}")
        A(f"s_load_dword s60, s[{sDBG}:{sDBG+1}], 0\ns_mov_b32 s61, 200000\n{L}:\ns_waitcnt lgkmcnt(0)\ns_cmp_eq_u32 s60, 1\ns_cbranch_scc1 {G}")
        A(f"s_sub_u32 s61, s61, 1\ns_cmp_eq_u32 s61, 0\ns_cbranch_scc1 {G}\ns_sleep 16\ns_load_dword s60, s[{sDBG}:{sDBG+1}], 0 glc\ns_branch {L}\n{G}:")
        A.lg = []
    def div20(dst, i, stride, swz, t=(14, 15, 8)):
        A(f"v_add_u32 v{t[0]}, {64*i}, v0\nv_mul_hi_u32 v{t[1]}, v{t[0]}, s52\nv_mul_u32_u24 v{t[2]}, 20, v{t[1]}\nv_sub_u32 v{t[2]}, v{t[0]}, v{t[2]}")
        if swz: A(f"v_lshrrev_b32 v{t[0]}, 2, v{t[1]}\nv_and_b32 v{t[0]}, 2, v{t[0]}\nv_xor_b32 v{t[2]}, v{t[2]}, v{t[0]}")
        A(f"v_mul_u32_u24 v{t[1]}, {stride}, v{t[1]}\nv_lshl_add_u32 v{dst}, v{t[2]}, 4, v{t[1]}")
        if 0 < i < 4: A(f"v_subrev_u32 v{dst}, {1024*i}, v{dst}")
    def xfrag_addr(d):
        A(f"v_lshrrev_b32 v{d}, 1, v1\nv_xor_b32 v{d}, v{d}, v2\nv_lshlrev_b32 v{d}, 4, v{d}\nv_lshl_add_u32 v{d}, v1, 7, v{d}")
    def wfrag_addr(d, g32, t):
        A(f"v_lshrrev_b32 v{d}, 2, v1\nv_lshl_add_u32 v{d}, v2, 3, v{d}\nv_mul_u32_u24 v{d}, 320, v{d}\nv_and_b32 v{t}, 3, v1\nv_lshl_add_u32 v{d}, v{t}, 3, v{d}\nv_add_u32 v{d}, 16384, v{d}")
        A(f"v_and_b32 v{g32}, 1, v2\nv_lshlrev_b32 v{g32}, 5, v{g32}")
    def stats_fetch():
        srd(A, rC, sWS, SP_SZ, SP_OFF)
        A(f"s_lshl_b32 s46, s{sR}, 10\nbuffer_load_dwordx4 v[224:227], v3, s[{rC}:{rC+3}], s46 offen sc1")

    sKT, sU1, sJL, sPAR = 39, 71, 70, 68
    CF, SF = 16, 48; WR, WI = 80, 96; XA = 112; VF = 144; TA = 168; YF = 184; UA = 208
    rWR, rWI = rX, rA
    def job_wdma():
        A(f"""
        v_lshrrev_b32 v4, 2, v0
        v_mul_u32_u24 v4, 20544, v4
        v_and_b32 v5, 3, v0
        v_min_u32 v5, 2, v5
        v_lshl_add_u32 v4, v5, 4, v4
        s_mul_i32 s62, s{sU1}, 321
        s_lshl_b32 s63, s{sKT}, 4
        s_add_u32 s62, s62, s63
        s_add_u32 s62, s62, 1
        s_lshl_b32 s62, s62, 1
        s_and_b32 s63, s62, 2
        s_sub_u32 s62, s62, s63
        s_add_u32 s{sPAR}, s63, s{sJL}
        """)
        srd(A, rWR, sWR, 2048*642); srd(A, rWI, sWI, 2048*642)
        for q in range(4):
            A(f"s_add_u32 m0, s{sJL}, {1024*q}\nbuffer_load_dwordx4 v4, s[{rWR}:{rWR+3}], s62 offen lds")
            A(f"s_add_u32 m0, s{sJL}, {4096+1024*q}\nbuffer_load_dwordx4 v4, s[{rWI}:{rWI+3}], s62 offen lds")
            if q < 3: A(f"s_add_u32 s62, s62, {16*20544}")
    def lds_add(n=1, t=(4, 5)):
        A(f"v_mov_b32 v{t[0]}, {CW}\nv_mov_b32 v{t[1]}, {n}\ns_waitcnt lgkmcnt(0)\ns_mov_b64 exec, 1\nds_add_u32 v{t[0]}, v{t[1]}\ns_mov_b64 exec, -1")
    def lds_wait(n, t=(4, 5), sh=0):
        L, G = A.label(), A.label()
        A(f"v_mov_b32 v{t[0]}, {CW}\ns_mov_b32 s61, 4000000\n{L}:\nds_read_b32 v{t[1]}, v{t[0]}\ns_waitcnt lgkmcnt(0)\nv_readfirstlane_b32 s60, v{t[1]}\ns_bfe_u32 s60, s60, {sh | (8 << 16)}\ns_cmp_ge_u32 s60, {n}\ns_cbranch_scc1 {G}")
        A(f"s_sub_u32 s61, s61, 1\ns_cmp_lg_u32 s61, 0\ns_sleep 1\ns_cbranch_scc1 {L}\n{G}:")
    FQ = 84
    def fprime_pre():
        A(f"s_and_b32 s54, s{sW}, 3\ns_lshl_b32 s46, s{sR}, 2\ns_add_u32 s46, s46, s54\nv_lshlrev_b32 v14, 8, v2\nv_add_u32 v14, s46, v14\nv_cvt_f32_u32 v14, v14")
        for ut in range(2):
            A(f"v_add_u32 v15, {16*ut}, v1\nv_cvt_f32_u32 v15, v15\nv_mul_f32 v15, {fbits(1/2048)}, v15\nv_mul_f32 v{FQ+8*ut}, v15, v14\nv_mul_f32 v15, {fbits(64.0)}, v15")
            for j in range(1, 4): A(f"v_add_f32 v{FQ+8*ut+j}, v15, v{FQ+8*ut+j-1}")
            for j in range(4): A(f"v_sin_f32 v{FQ+8*ut+4+j}, v{FQ+8*ut+j}\nv_cos_f32 v{FQ+8*ut+j}, v{FQ+8*ut+j}")
    def job_consts():
        A(f"v_lshlrev_b32 v5, 2, v2\nv_cvt_f32_u32 v5, v5\nv_cvt_f32_u32 v6, v1\nv_mul_f32 v6, {fbits(1/64)}, v6\nv_mul_f32 v7, v6, v5")
        TB = 192
        for j in range(8): A(f"v_fmamk_f32 v{TB+j}, v6, {fbits(16.0*(j>>2) + (j&3))}, v7")
        for j in range(8): A(f"v_sin_f32 v{TB+8+j}, v{TB+j}\nv_cos_f32 v{TB+j}, v{TB+j}")
        cf = lambda mt, t, p: CF+(mt*2+t)*4+p
        sf = lambda mt, t, p: SF+(mt*2+t)*4+p
        A("s_brev_b32 s67, 1")
        for p in range(4):
            c0, c1, s0, s1 = TB+2*p, TB+2*p+1, TB+8+2*p, TB+8+2*p+1
            A(f"v_cvt_pk_bf16_f32 v{cf(0,0,p)}, v{c0}, v{c1}\nv_cvt_pk_bf16_f32 v{sf(0,0,p)}, v{s0}, v{s1}")
            if p % 2 == 0: A(f"v_cvt_pk_bf16_f32 v{cf(1,0,p)}, v{c0}, -v{s1}\nv_cvt_pk_bf16_f32 v{sf(1,0,p)}, v{s0}, v{c1}")
            else: A(f"v_cvt_pk_bf16_f32 v{cf(1,0,p)}, -v{c0}, v{s1}\nv_cvt_pk_bf16_f32 v{sf(1,0,p)}, -v{s0}, -v{c1}")
        A("v_and_b32 v5, 1, v1\nv_mul_u32_u24 v5, 0x8000, v5\nv_lshl_or_b32 v5, v5, 16, v5")
        for f in (cf, sf):
            for mt in (2, 3):
                for p in range(4): A(f"v_xor_b32 v{f(mt,0,p)}, s67, v{f(mt-2,0,p)}")
            for mt in range(4):
                for p in range(4): A(f"v_xor_b32 v{f(mt,1,p)}, v5, v{f(mt,0,p)}")
        reset(A)

    A(f"s_cmp_ge_u32 s2, 256\ns_cbranch_scc1 {END}")
    T.start(A)
    A(f"""
    s_getpc_b64 s[70:71]
    A_PC:
    s_lshr_b32 s41, s2, 3
    s_lshl_b32 s46, s41, 11
    v_lshrrev_b32 v10, 5, v0
    v_lshl_add_u32 v10, v10, 7, s46
    v_min_u32 v10, CODE_END-A_PC-4, v10
    v_mov_b32 v11, s71
    v_add_co_u32 v10, vcc, s70, v10
    v_addc_co_u32 v11, vcc, 0, v11, vcc
    global_load_dword v255, v[10:11], off
    """)
    reset(A)
    A(f"""
    s_load_dwordx4 s[{sX}:{sX+3}], s[0:1], 0
    s_load_dwordx4 s[{sW1}:{sW1+3}], s[0:1], 32
    s_load_dwordx2 s[{sW2}:{sW2+1}], s[0:1], 48
    s_load_dwordx2 s[{sWS}:{sWS+1}], s[0:1], 80
    s_load_dwordx2 s[{sWI}:{sWI+1}], s[0:1], 16
    s_load_dwordx2 s[{sDBG}:{sDBG+1}], s[0:1], 72
    v_lshrrev_b32 v1, 6, v0
    v_and_b32 v0, 63, v0
    v_readfirstlane_b32 s{sW}, v1
    s_and_b32 s40, s2, 7
    s_xor_b32 s46, s{sW}, 7
    s_or_b32 s46, s2, s46
    s_cmp_lg_u32 s46, 0
    s_cbranch_scc1 A_NI
    v_lshlrev_b32 v4, 8, v0
    v_mov_b32 v5, 0
    s_movk_i32 s46, 16384
    s_mov_b32 s66, 1
    s_waitcnt lgkmcnt(0)
    """)
    srd(A, rF, sWS, FLG_SZ, FLG_OFF)
    A(f"buffer_store_dword v5, v4, s[{rF}:{rF+3}], 0 offen sc1\nbuffer_store_dword v5, v4, s[{rF}:{rF+3}], s46 offen sc1\ns_waitcnt vmcnt(0)")
    A.raw(f"s_atomic_add s66, s[{sDBG}:{sDBG+1}], 0")
    T.at(A, "mA", 4)
    reset(A)
    A(f"""
    A_NI:
    s_lshr_b32 s42, s40, 1
    s_and_b32 s43, s40, 1
    s_lshr_b32 s44, s41, 3
    s_and_b32 s45, s41, 7
    s_lshl_b32 s{sR}, s42, 2
    s_add_u32 s{sR}, s{sR}, s44
    s_mul_i32 s{sJ}, s43, 5
    s_add_u32 s{sJ}, s{sJ}, s45
    s_add_u32 s46, s44, s45
    s_and_b32 s46, s46, 3
    s_mul_i32 s46, s46, 5
    s_add_u32 s46, s46, 1
    s_lshr_b32 s46, s46, 1
    s_add_u32 s{sC0}, s46, s42
    s_cmp_ge_u32 s{sC0}, 10
    s_cselect_b32 s46, 10, 0
    s_sub_u32 s{sC0}, s{sC0}, s46
    s_mul_i32 s{sCol}, s{sJ}, 160
    s_min_u32 s{sCol}, s{sCol}, 1568
    s_lshl_b32 s46, s43, 1
    s_add_u32 s46, s46, s45
    s_sub_u32 s46, s46, 5
    {"s_mov_b32 s48, s42" if optval("dm", 8) == 8 else "s_and_b32 s48, s46, %d" % optval("dm", 8)}
    s_add_u32 s47, s43, 5
    s_cmp_ge_u32 s45, s47
    s_cselect_b32 s{sJ}, s46, s{sJ}
    s_cselect_b32 s{sC0}, s48, s{sC0}
    v_and_b32 v1, 15, v0
    v_lshrrev_b32 v2, 4, v0
    v_lshlrev_b32 v3, 4, v0
    s_cmp_lg_u32 s{sW}, 4
    s_cbranch_scc1 A_NOTLD
    """)
    A.prot = set(PTRS)
    sCh, sSl, sXo, sWo, sIt = 49, 50, 51, 53, 54
    A(f"""
    s_setprio 3
    v_lshrrev_b32 v8, 3, v0
    v_mul_u32_u24 v8, 81920, v8
    v_and_b32 v4, 7, v0
    v_xor_b32 v4, v4, v2
    v_lshl_add_u32 v4, v4, 4, v8
    v_xor_b32 v5, 64, v4
    v_add_u32 v5, {655360-1024}, v5
    v_add_u32 v6, {2*(655360-1024)}, v4
    v_add_u32 v7, {2*(655360-1024)}, v5
    s_mul_i32 s52, s{sR}, 5120
    s_sub_u32 s52, s52, 1280
    s_mov_b32 s{sSl}, 0
    s_mov_b32 s{sIt}, 0
    s_mov_b32 s{sCh}, s{sC0}
    s_mov_b32 s{rX+2}, {2048*1280}
    s_mov_b32 s{rX+3}, 0x20000
    s_cmp_ge_u32 s45, s47
    s_waitcnt lgkmcnt(0)
    s_mov_b64 s[{rX}:{rX+1}], s[{sX}:{sX+1}]
    s_cbranch_scc1 A_LDD
    """)
    A.prot |= set(range(rX, rX+4))
    def xblock(base):
        for w in range(4):
            A(f"s_add_u32 m0, s{sSl}, {base+4096*w}\ns_add_u32 s{sXo}, s{sXo}, 1280")
            for i in range(4): A(f"buffer_load_dwordx4 v{4+i}, s[{rX}:{rX+3}], s{sXo} offen offset:{1024*i} lds")
    def ring_tail(lab, n, slot, nld, first=None):
        A(f"""
        s_add_u32 s{sCh}, s{sCh}, 1
        s_cmp_eq_u32 s{sCh}, 10
        s_cselect_b32 s{sCh}, 0, s{sCh}
        s_add_u32 s{sSl}, s{sSl}, {slot}
        s_cmp_eq_u32 s{sSl}, {3*slot}
        s_cselect_b32 s{sSl}, 0, s{sSl}
        s_add_u32 s{sIt}, s{sIt}, 1
        s_cmp_eq_u32 s{sIt}, 1
        s_cbranch_scc1 {first or lab}
        s_cmp_lt_u32 s{sIt}, {n}
        s_waitcnt vmcnt({nld})
        s_barrier
        s_cbranch_scc1 {lab}
        """)
        reset(A)
    A(f"A_LDMP:\ns_waitcnt vmcnt({optval('pace', 15)})\nA_LDM:\ns_lshl_b32 s{sXo}, s{sCh}, 7\ns_add_u32 s{sXo}, s{sXo}, s52")
    xblock(0)
    ring_tail("A_LDM", 10, SLOT, 16, "A_LDMP")
    A("s_waitcnt vmcnt(0)\ns_barrier\ns_barrier\ns_branch B_LH")
    A(f"A_LDD:\ns_lshl_b32 s{sXo}, s{sCh}, 7\ns_add_u32 s{sXo}, s{sXo}, s52")
    xblock(0)
    A(f"s_cmp_ge_u32 s{sCh}, 5\ns_cselect_b32 s58, 1280, 0\ns_sub_u32 s{sXo}, s{sXo}, s58\ns_sub_u32 s{sXo}, s{sXo}, {4*1280-640}")
    xblock(16384)
    A(f"s_cmp_lg_u32 s{sIt}, 0\ns_cbranch_scc1 A_LDD0")
    fprime_pre()
    A(f"s_mov_b32 s{sIt}, 0\nA_LDD0:")
    A(f"s_cmp_lg_u32 s{sIt}, 4\ns_cbranch_scc1 A_LDD1\ns_waitcnt vmcnt(0)\nA_LDD1:")
    ring_tail("A_LDD", 5, PS, 32)
    A("s_setprio 0")
    srd(A, rF, sWS, FLG_SZ, FLG_OFF)
    srd(A, rA, sW2, 1728*1280)
    for i in range(5): A(f"v_mov_b32 v{9+i}, v3")
    A("s_branch A_D3w")

    reset(A); A.prot = set(PTRS)
    A(f"A_NOTLD:\ns_cmp_lt_u32 s{sW}, 4\ns_cbranch_scc1 A_COMPUTE\ns_cmp_ge_u32 s45, s47\ns_cbranch_scc1 A_DH0")
    A(f"s_cmp_lg_u32 s{sW}, 5\ns_cbranch_scc1 A_DH0\ns_setprio 3\ns_mov_b32 s52, {(1<<32)//20+1}")
    for i in range(5): div20(9+i, i, 3456, True)
    A(f"s_mov_b32 s{sCh}, s{sC0}\ns_lshl_b32 s52, s{sCol}, 1\ns_sub_u32 s52, s52, {16*3456}\ns_mov_b32 s{sSl}, 0\ns_mov_b32 s{sIt}, 0\ns_waitcnt lgkmcnt(0)")
    srd(A, rA, sW1, 640*3456)
    A(f"A_LDW:\ns_mul_i32 s{sWo}, s{sCh}, {64*3456}\ns_add_u32 s{sWo}, s{sWo}, s52")
    for q in range(4):
        A(f"s_add_u32 m0, s{sSl}, {16384+5120*q}\ns_add_u32 s{sWo}, s{sWo}, {16*3456}")
        for i in range(4): A(f"buffer_load_dwordx4 v{9+i}, s[{rA}:{rA+3}], s{sWo} offen offset:{1024*i} lds")
        A(f"s_add_u32 m0, s{sSl}, {16384+5120*q+4096}")
        A(f"buffer_load_dwordx4 v13, s[{rA}:{rA+3}], s{sWo} offen lds")
    ring_tail("A_LDW", 10, SLOT, 20)
    A("s_waitcnt vmcnt(0)\ns_barrier\ns_barrier\ns_branch B_LW")

    reset(A); A.prot = set(PTRS)
    A("A_MH:")
    A.prot |= set(range(rF, rF+4))
    A(f"""
    s_mul_i32 s46, s43, 20
    s_mul_i32 s{sKT}, s44, s47
    s_add_u32 s46, s46, s{sKT}
    s_add_u32 s55, s46, s45
    s_mul_i32 s{sU1}, s55, 26
    s_lshr_b32 s{sU1}, s{sU1}, 8
    s_mul_i32 s46, s{sU1}, 10
    s_sub_u32 s{sKT}, s55, s46
    s_lshl_b32 s{sKT}, s{sKT}, 1
    s_and_b32 s46, s{sW}, 1
    s_add_u32 s{sKT}, s{sKT}, s46
    s_lshl_b32 s{sJL}, s46, 13
    s_add_u32 s{sJL}, s{sJL}, {RPK}
    s_lshl_b32 s46, s42, 3
    s_add_u32 s{sU1}, s{sU1}, s46
    s_add_u32 s{sU1}, s{sU1}, 4
    v_mov_b32 v4, {CW}
    v_mov_b32 v5, 0
    ds_write_b32 v4, v5
    """)
    srd(A, rC, sB1, 1728*2)
    A(f"v_lshlrev_b32 v4, 3, v0\ns_lshl_b32 s46, s{sCol}, 1\nbuffer_load_dwordx2 v[160:161], v4, s[{rC}:{rC+3}], s46 offen")
    reset(A)
    wfrag_addr(4, 5, 6)
    srd(A, rB, sWS, CP_SZ, CP_OFF)
    A(f"""
    s_and_b32 s48, s{sW}, 1
    s_mul_i32 s46, s48, 160
    v_add_u32 v4, s46, v4
    s_lshl_b32 s46, s48, 1
    s_sub_u32 s46, 1, s46
    v_mul_i32_i24 v5, s46, v5
    v_add_u32 v6, v4, v5
    v_sub_u32 v7, v4, v5
    v_lshlrev_b32 v8, 2, v1
    v_lshl_add_u32 v8, v2, 28, v8
    s_mul_i32 s49, s{sJ}, 6400
    s_mul_i32 s46, s{sC0}, 640
    s_add_u32 s50, s49, s46
    s_mul_i32 s46, s48, 320
    s_add_u32 s50, s50, s46
    s_add_u32 s51, s{sJ}, {L_C}
    s_lshl_b32 s51, s51, 8
    s_add_u32 s53, s{sR}, {L_S}
    s_lshl_b32 s53, s53, 8
    s_cmp_eq_u32 s48, 0
    s_mov_b32 s52, s53
    s_cselect_b32 s53, s53, s51
    s_cselect_b32 s54, 16, 32
    """)
    srd(A, rA, sWS, SP_SZ, SP_OFF)
    for i in range(4): A(f"v_mov_b32 v{12+i}, 0x3f803f80")
    def rowstats():
        L = A.label()
        A(f"s_cmp_ge_u32 s36, 16\ns_cbranch_scc1 {L}\nv_mov_b32 v164, 0\nv_mov_b32 v165, 0\nv_mov_b32 v166, 0\nv_mov_b32 v167, 0\ns_waitcnt vmcnt(1)")
        for i in range(40): A(f"v_dot2c_f32_bf16 v{164+2*(i&1)}, v{212+i}, v12\nv_dot2c_f32_bf16 v{165+2*(i&1)}, v{212+i}, v{212+i}")
        A("v_add_f32 v164, v164, v166\nv_add_f32 v165, v165, v167")
        for dp in ("quad_perm:[1,0,3,2]", "quad_perm:[2,3,0,1]", "row_half_mirror"):
            for r in (164, 165): A(f"v_add_f32_dpp v{r}, v{r}, v{r} {dp} row_mask:0xf bank_mask:0xf")
        A(f"v_mul_f32 v164, {fbits(1/640)}, v164\nv_mul_f32 v165, {fbits(1/640)}, v165\nv_fma_f32 v165, -v164, v164, v165\nv_max_f32 v165, 0, v165")
        bf16_round(A, 165, 165); A(f"v_add_f32 v165, {fbits(1e-5)}, v165"); bf16_round(A, 165, 165); A("v_sqrt_f32 v165, v165"); bf16_round(A, 165, 165)
        A(f"v_and_b32 v9, 7, v0\nv_lshl_add_u32 v9, v9, 28, v0\ns_lshl_b32 s46, s{sR}, 4\ns_add_u32 s46, s46, s36\ns_lshl_b32 s46, s46, 6")
        A(f"buffer_store_dwordx2 v[164:165], v9, s[{rA}:{rA+3}], s46 offen sc1\n{L}:")
        reset(A)
    if "slate" not in OPT: rowstats()
    T.at(A, "mD", 3)
    initcheck(7)
    A("s_waitcnt lgkmcnt(0)\ns_barrier")
    if "slate" in OPT: rowstats()
    for t in range(2):
        for q in range(5):
            for jh in range(2): A(f"ds_read_b64_tr_b16 {v(80+20*t+4*q+2*jh,2)}, v{6 if q%2==0 else 7} offset:{t*10240+jh*1280+q*32}")
    for t in range(2):
        for q in range(5): A(mfma(124+4*q, 12, 80+20*t+4*q, None if t else 0))
    A("s_cmp_ge_u32 s36, 16\ns_cbranch_scc1 A_MH2")
    arrive(52)
    T.at(A, "mD", 2)
    A("A_MH2:")
    for q in range(5): A(f"buffer_store_dword v{124+4*q}, v8, s[{rB}:{rB+3}], s50 offen offset:{64*q} sc1")
    A("s_barrier")
    A("s_barrier\ns_barrier")
    arrive(51)
    for _ in range(4, 8): A("s_barrier")
    A("s_waitcnt lgkmcnt(0)")
    poll_issue(53)
    A("s_barrier")
    poll(53, "s54", 0, True)
    T.at(A, "mD", 0)
    A("s_cmp_eq_u32 s48, 0\ns_cbranch_scc0 A_MH7")
    stats_fetch()
    A("s_sleep 2\ns_branch A_MH7b")
    A("A_MH7:\ns_mov_b32 exec_hi, 0xff\ns_add_u32 s50, s49, 3200")
    for c in range(10): A(f"buffer_load_dwordx4 {v(80+4*c,4)}, v3, s[{rB}:{rB+3}], s{49 if c < 5 else 50} offen offset:{640*(c%5)} sc1")
    A("s_mov_b64 exec, -1\nA_MH7b:")
    reset(A)
    job_wdma()
    A("s_barrier\ns_waitcnt vmcnt(8)\ns_cmp_eq_u32 s48, 0\ns_cbranch_scc0 A_MH7c")
    reset(A)
    for m, o in ((224, 232), (226, 236)):
        A(f"v_rcp_f32 v5, v{m+1}\nv_cvt_pk_bf16_f32 v{o}, -v{m}, -v{m}\nv_mov_b32 v{o+3}, v{m+1}\nv_mul_f32 v{o+2}, {fbits(K0)}, v5\nv_mul_f32 v5, v5, v5\nv_mul_f32 v5, v5, v{o+2}\nv_mul_f32 v{o+1}, {fbits(0.044715)}, v5")
    A(f"v_lshlrev_b32 v4, 5, v0\nv_add_u32 v4, {STAT}, v4\nds_write_b128 v4, v[232:235]\nds_write_b128 v4, v[236:239] offset:16\ns_branch A_MH8")
    A("A_MH7c:\ns_mov_b32 s69, 0xffff0000")
    for c in range(1, 10):
        for i in range(4): A(f"v_add_f32 v{80+i}, v{80+i}, v{80+4*c+i}")
    for i in range(4):
        A(f"v_and_b32 v5, s69, v{80+i}\nv_sub_f32 v5, v{80+i}, v5\nv_cvt_pk_bf16_f32 v5, v5, v5\nv_alignbit_b32 v{124+2*i}, v5, v{80+i}, 16")
        A(f"v_lshrrev_b32 v{125+2*i}, 16, v{160+i//2}" if i % 2 else f"v_and_b32 v{125+2*i}, 0xffff, v{160+i//2}")
    A(f"v_lshlrev_b32 v4, 5, v0\nv_add_u32 v4, {CX}, v4\ns_mov_b32 exec_hi, 0xff\nds_write_b128 v4, v[124:127]\nds_write_b128 v4, v[128:131] offset:16\ns_mov_b64 exec, -1")
    A("A_MH8:\ns_waitcnt lgkmcnt(0)")
    T.at(A, "mD", 1)
    A(f"s_barrier\ns_mov_b32 s38, {optval('gate', 4)}\ns_cmp_lt_u32 s55, 40\ns_cbranch_scc1 A_JOB\ns_waitcnt vmcnt(0)")
    T.end(A, sW, sWS)
    A("s_endpgm")

    reset(A); A.prot = set(PTRS)
    sH = 36
    A(f"A_DH1:\ns_sub_u32 s{sH}, s{sW}, 5\ns_add_u32 s53, s{sR}, {L_S}\ns_lshl_b32 s53, s53, 8")
    A.prot |= set(range(rF, rF+4))
    sE, sL = 55, 38
    A(f"""
    s_mul_i32 s{sE}, s{sR}, 5
    s_add_u32 s{sE}, s{sE}, s{sJ}
    s_mul_i32 s{sE}, s{sE}, 3
    s_add_u32 s{sE}, s{sE}, s{sH}
    s_mul_i32 s{sL}, s{sH}, 10240
    s_add_u32 s{sL}, s{sL}, {RPK}
    s_lshr_b32 s67, s{sE}, 2
    s_mul_i32 s67, s67, 40960
    s_and_b32 s52, s{sE}, 3
    s_mul_i32 s52, s52, 320
    s_add_u32 s67, s67, s52
    s_mov_b32 s52, {(1<<32)//20+1}
    """)
    for i in range(5): div20(9+i, i, 1280, False)
    srd(A, rA, sW2, 1728*1280)
    def rp_load():
        for q in range(2):
            A(f"s_add_u32 m0, s{sL}, {5120*q}")
            for i in range(4): A(f"buffer_load_dwordx4 v{9+i}, s[{rA}:{rA+3}], s67 offen offset:{1024*i} lds")
            A(f"s_add_u32 m0, s{sL}, {5120*q+4096}\nbuffer_load_dwordx4 v13, s[{rA}:{rA+3}], s67 offen lds")
            if q == 0: A(f"s_add_u32 s67, s67, {16*1280}")
    fprime_pre()
    A("s_barrier")
    initcheck(5)
    A("s_barrier")
    A(f"s_cmp_lg_u32 s{sW}, 7\ns_cbranch_scc1 A_D1\ns_sleep {optval('sd', 6)}")
    poll_issue(53)
    A(f"A_D1:\ns_barrier\ns_cmp_lg_u32 s{sW}, 7\ns_cbranch_scc1 A_D2")
    T.at(A, "mD", 0)
    poll(53, 16, 0, True)
    stats_fetch()
    A(f"v_rcp_f32 v224, v225\nv_rcp_f32 v225, v227\nv_lshlrev_b32 v4, 3, v0\nv_add_u32 v4, {STAT}, v4\nv_mul_f32 v224, {fbits(2.0/(2048*640))}, v224\nv_mul_f32 v225, {fbits(2.0/(2048*640))}, v225\nds_write_b64 v4, v[224:225]")
    A("s_waitcnt lgkmcnt(0)")
    T.at(A, "mD", 1)
    A(f"""
    A_D2:
    s_barrier
    A_D3w:
    s_and_b32 s54, s{sW}, 3
    s_lshl_b32 s46, s54, 7
    s_add_u32 s46, s46, {STAT}
    v_lshl_add_u32 v7, v2, 4, s46
    s_lshl_b32 s46, s54, 12
    s_add_u32 s46, s46, {FX}
    v_add_u32 v6, s46, v3
    v_and_b32 v8, 1, v1
    v_lshlrev_b32 v8, 31, v8
    """)
    T.at(A, "mD", 2)
    A("ds_read_b128 v[228:231], v7\nds_read_b128 v[232:235], v7 offset:64")
    A(f"s_cmp_eq_u32 s{sW}, 4\ns_cbranch_scc1 A_D2a")
    rp_load()
    A("A_D2a:")
    A.vm = []
    for j in range(4): A(f"v_xor_b32 v{232+j}, v8, v{232+j}")
    for ut in range(2):
        for cs in range(2):
            o = 104 + 4*(2*ut+cs); src = FQ+8*ut+4*cs
            for jh in range(2):
                for j in range(4): A(f"v_mul_f32 v{236+4*jh+j}, v{src+j}, v{228+4*jh+j}")
            for p in range(4): A(f"v_cvt_pk_bf16_f32 v{o+p}, v{236+2*p}, v{236+2*p+1}")
            A(f"ds_write_b128 v6, {v(o,4)} offset:{1024*(2*ut+cs)}")
    lds_add()
    T.at(A, "mD", 3)
    A(f"s_cmp_eq_u32 s{sW}, 4\ns_cbranch_scc1 A_D3")
    A(f"s_cmp_ge_u32 s{sE}, 216\ns_cbranch_scc1 A_D3")
    reset(A)
    srd(A, rB, sWS, W2P_SZ, W2P_OFF)
    A(f"""
    v_lshrrev_b32 v5, 2, v1
    v_lshl_add_u32 v5, v2, 2, v5
    v_mul_u32_u24 v5, 320, v5
    v_and_b32 v6, 3, v1
    v_lshl_add_u32 v5, v6, 3, v5
    v_add_u32 v5, s{sL}, v5
    v_add_u32 v6, 4096, v3
    s_and_b32 s46, s{sE}, 3
    s_mul_i32 s46, s46, 108
    s_lshr_b32 s52, s{sE}, 2
    s_add_u32 s46, s46, s52
    s_mul_i32 s46, s46, 5120
    s_waitcnt vmcnt(0)
    """)
    for nt in range(10):
        for jh in range(2): A(f"ds_read_b64_tr_b16 {v(YF+4*nt+2*jh,2)}, v5 offset:{jh*5120 + nt*32}")
    for nt in range(10):
        q = nt % 5
        if q < 4: A(f"buffer_store_dwordx4 {v(YF+4*nt,4)}, v3, s[{rB}:{rB+3}], s46 offen offset:{1024*q} sc1")
        else: A(f"buffer_store_dwordx4 {v(YF+4*nt,4)}, v6, s[{rB}:{rB+3}], s46 offen sc1\ns_add_u32 s46, s46, {54*5120}")
    A("A_D3:")
    A(f"""
    s_mul_i32 s46, s43, 12
    s_sub_u32 s{sKT}, 8, s47
    s_mul_i32 s{sKT}, s{sKT}, s44
    s_add_u32 s46, s46, s{sKT}
    s_add_u32 s46, s46, s45
    s_sub_u32 s46, s46, s47
    s_mul_i32 s{sU1}, s46, 52
    s_lshr_b32 s{sU1}, s{sU1}, 8
    s_mul_i32 s{sKT}, s{sU1}, 5
    s_sub_u32 s{sKT}, s46, s{sKT}
    s_lshl_b32 s{sKT}, s{sKT}, 2
    s_and_b32 s46, s{sW}, 3
    s_add_u32 s{sKT}, s{sKT}, s46
    s_mul_i32 s{sJL}, s46, 10240
    s_add_u32 s{sJL}, s{sJL}, {RPK - 10240}
    s_cmp_eq_u32 s46, 0
    s_cselect_b32 s{sJL}, 71680, s{sJL}
    s_lshl_b32 s46, s42, 3
    s_add_u32 s{sU1}, s{sU1}, s46
    """)
    if optval("wg", 0): lds_wait(optval("wg", 0))
    job_wdma()
    reset(A)
    A(f"s_cmp_eq_u32 s{sW}, 4\ns_cbranch_scc1 A_DH\ns_cmp_ge_u32 s{sE}, 216\ns_cbranch_scc1 A_DW")
    signal2(f"s_and_b32 s46, s{sE}, 7\ns_add_u32 s46, s46, {L_W}", 26, 1 << 16)
    T.at(A, "mD", 4)
    A("s_branch A_DW\nA_DH0:\ns_waitcnt lgkmcnt(0)")
    srd(A, rF, sWS, FLG_SZ, FLG_OFF)
    srd(A, rX, sX, 2048*1280)
    A(f"""
    s_and_b32 s46, s{sW}, 1
    s_xor_b32 s46, s46, 1
    s_mul_i32 s46, s46, 11
    s_add_u32 s36, s46, s{sJ}
    s_cmp_ge_u32 s45, s47
    s_cselect_b32 s36, 99, s36
    s_cmp_ge_u32 s36, 16
    s_cbranch_scc1 A_DH
    s_and_b32 s46, s36, 3
    s_lshl_b32 s46, s46, 9
    s_lshr_b32 s52, s36, 2
    s_add_u32 s46, s46, s52
    s_lshl_b32 s52, s{sR}, 2
    s_add_u32 s46, s46, s52
    s_mul_i32 s46, s46, 1280
    v_lshrrev_b32 v4, 3, v0
    v_mul_u32_u24 v4, 81920, v4
    v_and_b32 v5, 7, v0
    v_lshl_add_u32 v4, v5, 4, v4
    """)
    for c in range(10): A(f"buffer_load_dwordx4 {v(212+4*c,4)}, v4, s[{rX}:{rX+3}], s46 offen offset:{128*c}")
    reset(A)
    A("A_DH:")
    job_consts()
    A(f"s_cmp_lt_u32 s45, s47\ns_cbranch_scc1 A_MH\ns_cmp_gt_u32 s{sW}, 4\ns_cbranch_scc1 A_DH1")
    A("A_DW:\ns_mov_b32 s38, 0")
    A("A_JOB:\ns_setprio 3")
    T.at(A, "mJ", 0)
    rV, rU = rC, rB
    srd(A, rV, sWS, V_SZ, V_OFF); srd(A, rU, sWS, U_SZ, U_OFF)
    for i in range(32): A(f"v_mov_b32 v{WR+i}, 0")
    A(f"""
    v_lshrrev_b32 v5, 2, v1
    v_lshl_add_u32 v5, v2, 2, v5
    v_lshlrev_b32 v5, 6, v5
    v_and_b32 v6, 3, v1
    v_lshl_add_u32 v5, v6, 4, v5
    v_add_u32 v5, s{sJL}, v5
    v_lshlrev_b32 v6, 8, v2
    v_lshl_add_u32 v6, v1, 1, v6
    v_add_u32 v6, s{sPAR}, v6
    s_mov_b32 s65, 0x80008000
    s_mul_i32 s50, s{sU1}, 20
    s_add_u32 s50, s50, s{sKT}
    s_lshl_b32 s50, s50, 12
    s_lshl_b32 s51, s{sKT}, 8
    s_mov_b32 m0, s{sJL}
    s_waitcnt vmcnt(0)
    """)
    for mt in range(4):
        for r in range(4):
            for ar in range(2): A(f"ds_read_u16_d16_hi v{(WR,WI)[ar]+4*mt+r}, v6 offset:{4096*ar+(16*mt+r)*64}")
    A("s_cmp_lt_u32 s45, s47\ns_cbranch_scc1 A_J1")
    lds_wait(12, (10, 11))
    if optval("vd", 0): A(f"s_sleep {optval('vd', 0)}")
    A("s_branch A_J1b\nA_J1:")
    if optval("vm", 0): A(f"s_sleep {optval('vm', 0)}")
    A("A_J1b:")
    T.at(A, "mJ", 1)
    poll(51, 16, ps=optval('pv', 2))
    T.at(A, "mJ", 2)
    for i in range(4): A(f"buffer_load_dwordx4 v3, s[{rV}:{rV+3}], s50 offen offset:{1024*i} sc1 lds")
    A(f"""
    v_lshrrev_b32 v9, 1, v1
    v_and_b32 v9, 3, v9
    v_xor_b32 v9, v9, v2
    v_lshlrev_b32 v9, 4, v9
    v_lshl_add_u32 v9, v1, 6, v9
    v_add_u32 v9, s{sJL}, v9
    v_lshrrev_b32 v6, 3, v0
    v_and_b32 v7, 3, v6
    v_lshlrev_b32 v7, 4, v7
    v_xor_b32 v7, v7, v3
    v_add_u32 v7, s{sJL}, v7
    v_mul_u32_u24 v6, 81920, v6
    v_and_b32 v8, 7, v0
    v_lshl_add_u32 v6, v8, 4, v6
    s_lshl_b32 s50, s{sKT}, 12
    s_lshl_b32 s46, s{sU1}, 7
    s_add_u32 s50, s50, s46
    s_cmp_eq_u32 s{sKT}, 19
    s_cselect_b32 s46, 0.5, 1.0
    v_cmp_eq_u32 vcc, 3, v2
    v_mov_b32 v8, s46
    v_cndmask_b32 v8, 1.0, v8, vcc
    s_waitcnt vmcnt(0)
    """)
    lds_wait("s38", (10, 11))
    T.at(A, "mJ", 3)
    for t in range(2):
        for rho in range(2):
            for jh in range(2): A(f"ds_read_b64_tr_b16 {v(VF+12*t+4*rho+2*jh,2)}, v5 offset:{2048*t+1024*jh+8*rho}")
    for t in range(2):
        for p in range(4): A(f"v_xor_b32 v{VF+12*t+8+p}, s65, v{VF+12*t+p}")
    def fwd(mt):
        m = []
        for t in range(2):
            re, im = XA+8*mt, XA+8*mt+4
            C, S = CF+(mt*2+t)*4, SF+(mt*2+t)*4
            m += [mfma(re, C, VF+12*t, None if t else 0), mfma(im, C, VF+12*t+4, None if t else 0), mfma(re, S, VF+12*t+4), mfma(im, S, VF+12*t+8)]
        return m
    def filt(mt):
        f = []
        tb = TA + 8*(mt & 1)
        for r in range(4):
            xr, xi, w_r, w_i = XA+8*mt+r, XA+8*mt+4+r, WR+4*mt+r, WI+4*mt+r
            f += [f"v_mul_f32 v{tb+r}, v{xi}, v{w_i}", f"v_mul_f32 v{tb+4+r}, v{xr}, v{w_i}", f"v_fma_f32 v{tb+r}, v{xr}, v{w_r}, -v{tb+r}", f"v_fmac_f32 v{tb+4+r}, v{xi}, v{w_r}"]
        t, jh = mt >> 1, mt & 1
        for p in range(2):
            f += [f"v_cvt_pk_bf16_f32 v{YF+12*t+2*jh+p}, v{tb+2*p}, v{tb+2*p+1}", f"v_cvt_pk_bf16_f32 v{YF+12*t+4+2*jh+p}, v{tb+4+2*p}, v{tb+4+2*p+1}",
                  f"v_xor_b32 v{YF+12*t+8+2*jh+p}, s65, v{YF+12*t+4+2*jh+p}"]
        return f
    def inv(t):
        m = []
        for nt in range(4):
            re, im = UA+8*nt, UA+8*nt+4
            C, S = CF+(nt*2+t)*4, SF+(nt*2+t)*4
            m += [mfma(re, YF+12*t, C, None if t else 0), mfma(im, YF+12*t+4, C, None if t else 0), mfma(re, YF+12*t+8, S), mfma(im, YF+12*t, S)]
        return m
    for x in fwd(0) + fwd(1)[:4]: A(x)
    weave(A, fwd(1)[4:] + fwd(2) + fwd(3), filt(0) + filt(1))
    weave(A, inv(0), filt(2) + filt(3))
    def outp(nt):
        d = UA+8*nt
        return [f"v_mul_f32 v{d+3}, v{d+3}, v8", f"v_mul_f32 v{d+7}, v{d+7}, v8"] + [f"v_cvt_pk_bf16_f32 v{TA+4*nt+p}, v{d+2*p}, v{d+2*p+1}" for p in range(4)] + [f"ds_write_b128 v9, {v(TA+4*nt,4)} offset:{1024*nt}"]
    i1 = inv(1)
    for x in i1[:9]: A(x)
    weave(A, i1[9:], outp(0) + outp(1))
    for x in outp(2) + outp(3): A(x)
    A("s_waitcnt lgkmcnt(0)")
    for q in range(4): A(f"ds_read_b128 {v(VF+4*q,4)}, v7 offset:{1024*q}")
    for q in range(4):
        A(f"buffer_store_dwordx4 {v(VF+4*q,4)}, v6, s[{rU}:{rU+3}], s50 offen sc1\ns_add_u32 s50, s50, {8*81920}")
    T.at(A, "mJ", 4)
    A(f"s_mov_b32 s55, 0\ns_cmp_lt_u32 s{sW}, {6 if 'bfirst' in OPT else 9}\ns_cbranch_scc1 A_J2")
    A(f"v_mov_b32 v4, {CW}\nds_read_b32 v5, v4\ns_waitcnt lgkmcnt(0)\nv_readfirstlane_b32 s55, v5\ns_bfe_u32 s55, s55, {8 | (8 << 16)}\ns_cmp_eq_u32 s55, 0\ns_cbranch_scc1 A_J2")
    A("s_barrier\ns_barrier\ns_barrier\nA_J2:")
    A(f"s_add_u32 s46, s{sKT}, {L_U}\ns_lshl_b32 s46, s46, 8\ns_mov_b32 s66, 1\ns_waitcnt vmcnt(0)")
    A.raw(f"s_atomic_add s66, s[{rF}:{rF+1}], s46 glc")
    A("s_cmp_eq_u32 s55, 0\ns_cbranch_scc1 A_J3\ns_barrier\ns_barrier\nA_J3:")
    A(f"v_lshlrev_b32 v4, 8, v0\nv_mov_b32 v5, 256\ns_movk_i32 s46, {L_R*256}\ns_waitcnt lgkmcnt(0)\ns_cmp_lg_u32 s66, 31\ns_cbranch_scc1 A_J4")
    A(f"buffer_atomic_add v5, v4, s[{rF}:{rF+3}], s46 offen sc1\nA_J4:")
    reset(A)
    A(f"s_cmp_eq_u32 s{sW}, 4\ns_cbranch_scc1 B_LH\ns_cmp_eq_u32 s{sW}, 5\ns_cbranch_scc1 B_LW")
    T.end(A, sW, sWS)
    A("s_endpgm")

    reset(A); A.prot = set(PTRS)
    A(f"A_COMPUTE:\ns_lshl_b32 s{sS2}, s{sR}, 2\ns_add_u32 s{sS2}, s{sS2}, s{sW}")
    xfrag_addr(8)
    A(f"s_mov_b32 s{sSl}, 0\ns_waitcnt lgkmcnt(0)\ns_cmp_ge_u32 s45, s47\ns_cbranch_scc1 A_DFT")
    rH = rA
    srd(A, rH, sWS, H_SZ, H_OFF)
    ACC = 20; AF = 100; XF = 180; AUG = 196; ST4 = 236; KC = 244
    vXA0, vXA1, vWE, vWO, vXB, vWB, vG32 = 10, 11, 12, 13, 14, 15, 16
    wfrag_addr(vWB, vG32, 18)
    A(f"""
    s_lshl_b32 s46, s{sW}, 12
    v_add_u32 v{vXB}, s46, v8
    v_lshlrev_b32 v18, 3, v1
    v_add_u32 v18, {CX}, v18
    s_lshl_b32 s46, s{sW}, 9
    s_add_u32 s46, s46, {STAT}
    v_lshl_add_u32 v9, v1, 4, s46
    s_lshr_b32 s38, s{sS2}, 1
    s_mul_i32 s46, s38, 54
    s_lshr_b32 s52, s{sCol}, 5
    s_add_u32 s46, s46, s52
    s_lshl_b32 s46, s46, 2
    s_and_b32 s52, s{sS2}, 1
    s_lshl_b32 s52, s52, 1
    s_add_u32 s46, s46, s52
    s_lshl_b32 s57, s46, 10
    s_cmp_eq_u32 s{sJ}, 10
    s_cselect_b32 s58, 0x40000000, s57
    s_add_u32 s38, s38, {L_R}
    v_cmp_eq_u32 s[64:65], 0, v2
    s_mov_b32 s{sIt}, 10
    """)
    for i in range(4): A(f"v_mov_b32 v{4+i}, 0")
    for r in [ACC+16*i for i in range(5)] + [AUG, AUG+16, AUG+32]: A(f"v_mfma_f32_32x32x16_bf16 {v(r,16)}, v[4:7], v[4:7], 0")
    addr_upd = [f"v_add_u32 v{vXA0}, s{sSl}, v{vXB}", f"v_add_u32 v{vWO}, s{sSl}, v{vWB}", f"v_add_u32 v{vWE}, v{vWO}, v{vG32}", f"v_sub_u32 v{vWO}, v{vWO}, v{vG32}", f"v_xor_b32 v{vXA1}, 64, v{vXA0}"]
    def reads(t):
        r = [f"ds_read_b128 {v(XF+8*t+4*mt,4)}, v{vXA0+t} offset:{2048*mt}" for mt in range(2)]
        for ft in range(10):
            for jh in range(2): r.append(f"ds_read_b64_tr_b16 {v(AF+40*t+4*ft+2*jh,2)}, v{vWE if ft%2==0 else vWO} offset:{t*10240+jh*1280+ft*32}")
        return r
    allm = [mfma(ACC+(ft*2+mt)*4, AF+40*t+4*ft, XF+8*t+4*mt) for t in range(2) for ft in range(10) for mt in range(2)]
    for x in addr_upd: A(x)
    T.at(A, "mA", 0)
    A("s_barrier")
    T.at(A, "mA", 1)
    for x in reads(0): A(x)
    st0 = A.state()
    A("A_ML:")
    slotadv = [f"s_add_u32 s{sSl}, s{sSl}, {SLOT}", f"s_cmp_eq_u32 s{sSl}, {3*SLOT}", f"s_cselect_b32 s{sSl}, 0, s{sSl}", f"s_sub_u32 s{sIt}, s{sIt}, 1"]
    R1 = optval("r1", 15); R0 = optval("r0", 36)
    weave(A, allm[:R1], reads(1)); weave(A, allm[R1:20], slotadv + addr_upd)
    A("s_waitcnt lgkmcnt(0)\ns_barrier")
    weave(A, allm[20:R0], reads(0) + [f"s_cmp_lg_u32 s{sIt}, 0"])
    for x in allm[R0:]: A(x)
    assert A.state()[0] == st0[0]
    A("s_cbranch_scc1 A_ML\nA_MLE:\ns_waitcnt vmcnt(0)")
    T.at(A, "mA", 2)
    for mt in range(2): A(f"ds_read_b128 {v(ST4+4*mt,4)}, v9 offset:{256*mt}")
    for ft in range(10): A(f"ds_read_b64 {v(AUG+4*ft,2)}, v18 offset:{128*ft}")
    BA = (4, 10)
    A("v_mov_b32 v12, 0\nv_mov_b32 v13, 0")
    for mt in range(2):
        b = BA[mt]
        A(f"v_lshrrev_b32 v{b+1}, 16, v{ST4+4*mt+3}\nv_cndmask_b32 v{b}, 0, v{ST4+4*mt}, s[64:65]\nv_cndmask_b32 v{b+1}, 0, v{b+1}, s[64:65]")
    dup = [f"v_mov_b32 v{KC+4*k+2*mt+h}, v{ST4+4*mt+1+k}" for mt in range(2) for k in range(3) for h in range(2)]
    weave(A, [mfma(ACC+(ft*2+mt)*4, AUG+4*ft, BA[mt]) for ft in range(10) for mt in range(2)], dup, per=1)
    T.at(A, "mA", 3)
    TMP = AF
    def grp(n):
        q, mt = n >> 1, n & 1
        tm = TMP + 8*(n % 3); o = TMP + 24 + 4*(n % 4)
        prs = [ACC + ((2*q+h)*2+mt)*4 + 2*p for h in range(2) for p in range(2)]
        s1 = [f"v_pk_mul_f32 {v(tm+2*i,2)}, {v(c,2)}, {v(c,2)}" for i, c in enumerate(prs)]
        s1 += [f"v_pk_fma_f32 {v(tm+2*i,2)}, {v(tm+2*i,2)}, {v(KC+2*mt,2)}, {v(KC+4+2*mt,2)}" for i in range(4)]
        s1 += [f"v_pk_mul_f32 {v(tm+2*i,2)}, {v(tm+2*i,2)}, {v(c,2)}" for i, c in enumerate(prs)]
        e = [f"v_exp_f32 v{tm+i}, v{tm+i}" for i in range(8)]
        s2 = [f"v_pk_fma_f32 {v(tm+2*i,2)}, {v(tm+2*i,2)}, {v(KC+8+2*mt,2)}, {v(KC+8+2*mt,2)}" for i in range(4)]
        r = [f"v_rcp_f32 v{tm+i}, v{tm+i}" for i in range(8)]
        s3 = [f"v_pk_mul_f32 {v(tm+2*i,2)}, {v(tm+2*i,2)}, {v(c,2)}" for i, c in enumerate(prs)]
        s3 += [f"v_cvt_pk_bf16_f32 v{o+i}, v{tm+2*i}, v{tm+2*i+1}" for i in range(4)]
        s3 += [f"buffer_store_dwordx4 {v(o,4)}, v3, s[{rH}:{rH+3}], s{57 if q else 58} offen offset:{1024*mt} sc1" + ("\ns_add_u32 s57, s57, 4096" if mt else "")]
        return s1, e, s2, r, s3
    G = [grp(n) for n in range(10)]
    for x in G[0][0]: A(x)
    for n in range(10):
        weave(A, G[n][1], G[n-1][4] if n else [])
        for x in G[n][2]: A(x)
        weave(A, G[n][3], G[n+1][0] if n < 9 else [])
    for x in G[9][4]: A(x)
    T.at(A, "mA", 4)
    lds_add()
    A("s_branch B_COMPUTE")

    reset(A); A.prot = set(PTRS)
    A("A_DFT:")
    rV = rC
    srd(A, rV, sWS, V_SZ, V_OFF); srd(A, rF, sWS, FLG_SZ, FLG_OFF)
    sK = 39
    ACC = 28; XF = 156; BF = 188; SQ = 204; TA = 220
    vSIG, vTQ = 252, 4
    vXA = 10; vXB = 18
    A(f"""
    s_lshl_b32 s{sK}, s{sJ}, 2
    s_add_u32 s{sK}, s{sK}, s{sW}
    s_lshl_b32 s64, s{sK}, 8
    v_add_u32 v22, 1, v1
    v_lshlrev_b32 v22, 31, v22
    v_or_b32 v{vSIG}, 1.0, v22
    v_or_b32 v{vSIG+1}, 1.0, v22
    """)
    A(f"""
    s_lshl_b32 s46, s{sK}, 4
    s_add_u32 s46, s46, 1
    v_add_u32 v5, s46, v1
    v_mul_u32_u24 v6, s{sC0}, v5
    v_mul_u32_u24 v7, 6554, v6
    v_lshrrev_b32 v7, 16, v7
    v_mul_u32_u24 v7, 10, v7
    v_sub_u32 v6, v6, v7
    v_cvt_f32_u32 v6, v6
    v_mul_f32 v6, {fbits(-0.1)}, v6
    v_cvt_f32_u32 v5, v5
    v_mul_f32 v5, {fbits(-1/640)}, v5
    v_lshlrev_b32 v7, 3, v2
    v_cvt_f32_u32 v7, v7
    v_add_f32 v7, 0.5, v7
    v_fma_f32 v{SQ}, v5, v7, v6
    v_mul_f32 v7, {fbits(32.0)}, v5
    v_cos_f32 v{vTQ}, v7
    """)
    for j in range(1, 8): A(f"v_add_f32 v{SQ+j}, v5, v{SQ+j-1}")
    for j in range(8): A(f"v_sub_f32 v{SQ+16+j}, v{SQ+j}, v7")
    A(f"v_add_f32 v{vTQ}, v{vTQ}, v{vTQ}")
    for sd in range(2):
        for j in range(8): A(f"v_sin_f32 v{SQ+16*sd+8+j}, v{SQ+16*sd+j}\nv_cos_f32 v{SQ+16*sd+j}, v{SQ+16*sd+j}")
    def bcv(t): return [f"v_cvt_pk_bf16_f32 v{BF+8*t+p}, v{SQ+16*t+2*p}, v{SQ+16*t+2*p+1}" for p in range(8)]
    def bstep(t): return [f"v_fma_f32 v{SQ+16*t+j}, v{vTQ}, v{SQ+16*(t^1)+j}, -v{SQ+16*t+j}" for j in range(16)] + bcv(t)
    for x in bcv(0): A(x)
    for i in range(4): A(f"v_mov_b32 v{BF+8+i}, 0")
    for r in [ACC+16*i for i in range(8)]: A(f"v_mfma_f32_32x32x16_bf16 {v(r,16)}, {v(BF+8,4)}, {v(BF+8,4)}, 0")
    dupd = [f"v_add_u32 v{vXA}, s{sSl}, v8", f"v_xor_b32 v{vXA+1}, 64, v{vXA}"]
    frs = [(h, t, m) for t in range(2) for h in range(2) for m in range(8)]
    def rd(i):
        h, t, m = frs[i % 32]
        return f"ds_read_b128 {v(XF+4*(i%8),4)}, v{vXA+t} offset:{h*16384+2048*m}"
    AH = 6
    A(f"s_mov_b32 s{sIt}, 5")
    for x in dupd: A(x)
    A(f"""
    v_add_u32 v13, {FX}, v3
    s_lshl_b32 s46, s{sW}, 13
    v_and_b32 v5, 7, v1
    v_xor_b32 v5, v5, v2
    v_lshlrev_b32 v5, 4, v5
    v_lshl_add_u32 v5, v1, 8, v5
    v_add_u32 v14, s46, v5
    v_xor_b32 v15, 64, v14
    v_xor_b32 v18, v1, v2
    v_lshlrev_b32 v18, 4, v18
    v_lshl_add_u32 v18, v2, 8, v18
    v_add_u32 v18, s46, v18
    v_xor_b32 v19, 64, v18
    v_mul_u32_u24 v20, {20*4096}, v2
    v_lshl_add_u32 v20, v1, 4, v20
    s_lshl_b32 s65, s{sK}, 12
    s_lshl_b32 s52, s{sR}, 8
    s_add_u32 s65, s65, s52
    s_mov_b32 s70, 0x80008000
    v_mov_b32 v16, {CW}
    v_mov_b32 v17, 0
    ds_write_b32 v16, v17
    v_mov_b32 v21, 1
    s_waitcnt lgkmcnt(0)
    """)
    T.at(A, "mA", 0)
    A("s_barrier")
    T.at(A, "mA", 1)
    for i in range(AH): A(rd(i))
    st0 = A.state()
    A("A_DL:")
    pr, pv = [], []
    for i, (h, t, m) in enumerate(frs):
        x = XF + 4*(i % 8)
        ms = [mfma(ACC+((h*8+m)*2+rho)*4, x, BF+8*t+4*rho) for rho in range(2)]
        if i == 0: pv += bstep(1) + [f"s_add_u32 s{sSl}, s{sSl}, {PS}", f"s_cmp_eq_u32 s{sSl}, {3*PS}", f"s_cselect_b32 s{sSl}, 0, s{sSl}", f"s_sub_u32 s{sIt}, s{sIt}, 1"]
        if i == 16:
            assert not pv
            pv += bstep(0)
        if i % 2 == 0 and i + AH < 32: pr += [rd(i + AH), rd(i + AH + 1)]
        if i == 26: pv = dupd + pv
        if i == 28:
            A(f"s_cmp_lt_u32 s{sIt}, 2\ns_waitcnt lgkmcnt(0)\ns_cbranch_scc1 A_DL1\ns_barrier\nA_DL1:")
            pr += [rd(32+k) for k in range(4)]
        if i == 30: pr += [rd(36), rd(37)]; pv += [f"s_cmp_lg_u32 s{sIt}, 0"]
        for mm in ms:
            A(mm)
            n = 2
            if pr: A(pr.pop(0)); n -= 1
            if mm is ms[-1] and i < 27: n -= 1
            while n > 0 and pv: A(pv.pop(0)); n -= 1
    assert not pr and not pv
    assert A.state()[0] == st0[0]
    A("s_cbranch_scc1 A_DL\nA_DLE:")
    T.at(A, "mA", 2)
    RR = TA; TF = ACC + 64
    def tcv(gq):
        f = []
        for rho in range(2):
            for jh in range(2):
                c = ACC + ((2*gq+jh)*2+rho)*4
                for p in range(2): f.append(f"v_cvt_pk_bf16_f32 v{TF+12*gq+4*rho+2*jh+p}, v{c+2*p}, v{c+2*p+1}")
        f += [f"v_xor_b32 v{TF+12*gq+8+p}, s70, v{TF+12*gq+p}" for p in range(4)]
        return f
    def sta(gq):
        m = []
        for ut in range(2):
            Cf, Sf = XF+16*gq+8*ut, XF+16*gq+8*ut+4
            re, im, nre = TF+12*gq, TF+12*gq+4, TF+12*gq+8
            dre, dim = ACC+(gq*2+ut)*8, ACC+(gq*2+ut)*8+4
            m += [mfma(dre, re, Cf, 0), mfma(dim, im, Cf, 0), mfma(dre, im, Sf), mfma(dim, nre, Sf)]
        return m
    def outv(gq):
        f = []
        for ut in range(2):
            d = ACC+(gq*2+ut)*8; o = TA + 4*(gq*2+ut)
            f += [f"v_cvt_pk_bf16_f32 v{o+p}, v{d+2*p}, v{d+2*p+1}" for p in range(4)] + [f"ds_write_b128 v{14+(gq&1)}, {v(o,4)} offset:{4096*ut+128*(gq>>1)}"]
        return f
    A("s_mov_b64 exec, 1\nds_add_u32 v16, v21\ns_mov_b64 exec, -1")
    for i in range(32): A(f"v_pk_fma_f32 {v(ACC+2*i,2)}, {v(ACC+64+2*i,2)}, {v(vSIG,2)}, {v(ACC+2*i,2)}")
    A.lg = []
    A("s_mov_b32 s61, 4000000\nA_DS:\nds_read_b32 v17, v16")
    for q in range(16): A(f"ds_read_b128 {v(XF+4*q,4)}, v13 offset:{1024*q}")
    for x in tcv(0) + tcv(1): A(x)
    A("s_waitcnt lgkmcnt(15)\nv_readfirstlane_b32 s60, v17\ns_and_b32 s60, s60, 255\ns_cmp_ge_u32 s60, 8\ns_cbranch_scc1 A_DS1\ns_sub_u32 s61, s61, 1\ns_cmp_lg_u32 s61, 0\ns_waitcnt lgkmcnt(0)\ns_sleep 2\ns_cbranch_scc1 A_DS\nA_DS1:")
    A.lg = [regs_of(v(XF+4*q,4)) for q in range(16)]
    weave(A, sta(0), tcv(2)); weave(A, sta(1), tcv(3)); weave(A, sta(2), outv(0) + outv(1)[:5]); weave(A, sta(3), outv(1)[5:] + outv(2))
    for x in outv(3): A(x)
    A("s_waitcnt lgkmcnt(0)")
    for n in range(8): A(f"ds_read_b128 {v(XF+4*n,4)}, v{18 + (n&1)} offset:{1024*n}")
    for n in range(8):
        A(f"buffer_store_dwordx4 {v(XF+4*n,4)}, v20, s[{rV}:{rV+3}], s65 offen sc1\ns_add_u32 s65, s65, {4*20*4096}")
    T.at(A, "mA", 3)
    A("s_mov_b64 exec, 1\nds_add_u32 v16, v21\ns_mov_b64 exec, -1\ns_mov_b32 s38, 0")
    arrive(64)
    T.at(A, "mA", 4)

    sRB, sCB = 33, 34
    WP = 20480; HB = 4*WP; HP = 24576
    XT0 = HB + 16384; XT3 = GAP + 1280; BO = XT0 + 7680
    PTRB = {0, 1, 2, 4, 5, 14, 15, 32, 40, 41}
    def brole():
        A.prot = set(PTRB)
        A(f"s_lshr_b32 s42, s41, 3\ns_lshl_b32 s{sRB}, s40, 2\ns_add_u32 s{sRB}, s{sRB}, s42\ns_and_b32 s{sCB}, s41, 7\nv_lshlrev_b32 v3, 4, v0")
        A.prot |= {sRB, sCB}
    def itemoff(OF):
        A(f"s_mov_b32 s52, {(1<<32)//10+1}")
        for q in range(3):
            A(f"""
            v_add_u32 v9, {64*q}, v0
            v_mul_hi_u32 v10, v9, s52
            v_mul_u32_u24 v11, 10, v10
            v_sub_u32 v11, v9, v11
            v_mul_u32_u24 v10, 81920, v10
            v_lshl_add_u32 v{OF+q}, v11, 4, v10
            """)
    rH, rW, rU, rXb = 16, 28, 24, 28
    sO, sO2, sM = 62, 63, 64
    def bsrd(d, mul, sreg, off):
        A.prot -= set(range(d, d+4))
        A(f"s_mul_i32 s50, s{sreg}, {mul}\ns_add_u32 s50, s50, {off}\ns_add_u32 s{d}, s{sWS}, s50\ns_addc_u32 s{d+1}, s{sWS+1}, 0\ns_mov_b32 s{d+2}, {mul}\ns_mov_b32 s{d+3}, 0x20000")
        A.prot |= set(range(d, d+4))
    def ld(srdr, so, step, groups, base, o):
        for k, (vr, n, lo) in enumerate(groups):
            A(f"s_mov_b32 m0, {o+lo}" if base is None else f"s_add_u32 m0, s{base}, {o+lo}")
            for i in range(n): A(f"buffer_load_dwordx4 v{vr}, s[{srdr}:{srdr+3}], s{so} offen offset:{1024*i} sc1 lds")
        A(f"s_add_u32 s{so}, s{so}, {step}")
    def ldW(base, o, so): ld(rW, so, 10240, [(3, 4, 0), (4, 4, 4096), (5, 2, 8192)], base, o)
    def ldH(base, o): ld(rH, sO, 8192, [(3, 4, 0), (4, 4, 4096)], base, o)
    def ldU(base, o): ld(rU, sO2, 8192, [(6, 4, 0), (7, 4, 4096)], base, o)
    def hstart(OFr, gate):
        A(f"s_load_dwordx2 s[10:11], s[0:1], 56\ns_mul_i32 s54, s{sCB}, 160\ns_mul_i32 s63, s{sRB}, 2560\ns_add_u32 s63, s63, s54\ns_add_u32 s65, s{sRB}, {L_R}\ns_lshl_b32 s65, s65, 8\ns_waitcnt lgkmcnt(0)")
        srd(A, rXb, sX, 2048*1280); srd(A, rU, 10, 1280)
        for w in range(4):
            A(f"s_add_u32 s64, s63, {((w & 1) + 1024*(w >> 1))*1280}")
            for q in range(3):
                A(f"s_mov_b32 m0, {(XT0+2560*w if w < 3 else XT3)+1024*q}" + ("\ns_mov_b32 exec_hi, 0" if q == 2 else "") + f"\nbuffer_load_dwordx4 v{OFr+q}, s[{rXb}:{rXb+3}], s64 offen lds")
            A("s_mov_b64 exec, -1")
        A(f"s_mov_b32 m0, {BO}\ns_mov_b64 exec, 0x3ff\nbuffer_load_dwordx4 v3, s[{rU}:{rU+3}], s54 offen lds\ns_mov_b64 exec, -1")
        bsrd(rH, 54*4096, sRB, H_OFF)
        if gate: lds_wait(4)
        A(f"v_add_u32 v4, 4096, v3\ns_mov_b32 s{sO}, 0")
        T.at(A, "mB", 2)
        poll(65, 22, 0)
        T.at(A, "mB", 3)
        ldH(None, HB); ldH(None, HB + 8192); ldH(None, HB + HP); ldH(None, HB + HP + 8192)
        lds_add(256, (5, 6))
        reset(A)
    def preload(lab, gate=False):
        A(f"v_add_u32 v4, 4096, v3\nv_add_u32 v5, 8192, v3\ns_mov_b32 s{sO}, 0\ns_mov_b32 s{sM}, 0\ns_add_u32 s65, s{sRB}, {L_R}\ns_lshl_b32 s65, s65, 8")
        bsrd(rW, 54*5120, sCB, W2P_OFF)
        if gate:
            poll_issue(65)
            A(f"s_waitcnt lgkmcnt(0)\ns_bfe_u32 s60, s60, {16 | (8 << 16)}\ns_cmp_eq_u32 s60, {8 if 'pearly' in OPT else 99}\ns_cbranch_scc1 {lab}G")
            lds_wait(4, (6, 7))
        poll(65, 8, 16)
        A(f"{lab}G:")
        T.at(A, "mB", 1)
        A(f"{lab}:")
        ldW(sM, 0, sO)
        A(f"s_add_u32 s{sM}, s{sM}, 10240\ns_cmp_lt_u32 s{sM}, {7*10240}\ns_waitcnt vmcnt({optval('thr', 60)})\ns_cbranch_scc1 {lab}")
        reset(A)
    reset(A)
    A(f"B_COMPUTE:\ns_cmp_ge_u32 s45, s47\ns_cselect_b32 s53, 1, 9")
    T.at(A, "mB", 0)
    brole()
    sP, sKP, sUW, sUH, sIt = 44, 45, 46, 47, 48
    FP = 12; ACC = 28; HF = 68; UF = 124; ZA = 136; FI = 152; SQ = 164; TQ = 244; OF = 249; TC = 228
    vH, vW, vT, vWB, vTB, vHB = 4, 5, 6, 7, 8, 252
    rO = 20
    A(f"""
    s_load_dwordx2 s[8:9], s[0:1], 64
    s_add_u32 s56, s{sWS}, {FLG_OFF}
    s_addc_u32 s57, s{sWS+1}, 0
    s_lshl_b32 s38, s38, 8
    s_and_b32 s{sP}, s{sW}, 1
    s_lshr_b32 s{sKP}, s{sW}, 1
    s_lshl_b32 s55, s{sRB}, 1
    s_add_u32 s55, s55, s{sP}
    s_lshl_b32 s49, s{sKP}, 10
    s_add_u32 s49, s55, s49
    s_brev_b32 s67, 1
    """)
    A(f"v_lshlrev_b32 v9, 3, v2\nv_cvt_f32_u32 v9, v9\nv_lshl_add_u32 v10, v1, 6, s49\nv_cvt_f32_u32 v10, v10\nv_mul_f32 v10, {fbits(1/2048)}, v10\nv_mul_f32 v{TC}, v10, v9")
    for j in range(1, 8): A(f"v_add_f32 v{TC+j}, v10, v{TC+j-1}")
    for j in range(8): A(f"v_sin_f32 v{TC+8+j}, v{TC+j}\nv_cos_f32 v{TC+j}, v{TC+j}")
    for q in range(4): A(f"v_cvt_pk_bf16_f32 v{FP+q}, v{TC+2*q}, v{TC+2*q+1}\nv_cvt_pk_bf16_f32 v{FP+4+q}, v{TC+8+2*q}, v{TC+8+2*q+1}")
    for q in range(8): A(f"v_xor_b32 v{FP+8+q}, s67, v{FP+q}")
    itemoff(OF)
    A(f"""
    s_mul_i32 s50, s{sKP}, 5120
    v_add_u32 v{vWB}, s50, v3
    s_lshl_b32 s50, s{sKP}, 12
    s_lshl_b32 s51, s{sP}, 11
    s_add_u32 s51, s51, s50
    s_lshl_b32 s52, s{sKP}, 10
    s_add_u32 s51, s51, s52
    s_add_u32 s51, s51, {HB}
    v_add_u32 v{vHB}, s51, v3
    v_lshrrev_b32 v9, 2, v1
    v_lshl_add_u32 v9, v2, 3, v9
    v_lshlrev_b32 v9, 7, v9
    v_and_b32 v10, 3, v1
    v_lshl_add_u32 v9, v10, 4, v9
    s_lshl_b32 s51, s{sP}, 6
    v_add_u32 v9, s51, v9
    v_and_b32 v10, 8, v1
    v_lshlrev_b32 v10, 3, v10
    v_xor_b32 v9, v9, v10
    s_add_u32 s50, s50, {HB + 16384}
    v_add_u32 v{vTB}, s50, v9
    s_mul_i32 s54, s{sCB}, 160
    s_mul_i32 s59, s49, 1280
    s_add_u32 s59, s59, s54
    s_mul_i32 s58, s{sW}, 2560
    s_add_u32 s58, s58, {XT0}
    s_cmp_eq_u32 s{sW}, 3
    s_cselect_b32 s58, {XT3}, s58
    s_mov_b32 s70, 0x80008000
    s_mov_b32 s69, 0xffff0000
    s_mov_b32 s66, 1
    s_waitcnt vmcnt(0) lgkmcnt(0)
    """)
    A("s_cmp_eq_u32 s38, 0\ns_cbranch_scc1 B_NA")
    A.raw("s_atomic_add s66, s[56:57], s38")
    A("B_NA:")
    T.at(A, "mB", 1)
    srd(A, rO, 8, 2048*1280)
    A(f"""
    s_mul_i32 s50, s{sCB}, 80
    s_cmp_ge_u32 s{sCB}, 4
    s_cselect_b32 s51, 640, 0
    s_sub_i32 s50, s50, s51
    s_lshl_b32 s51, s{sKP}, 4
    v_lshl_add_u32 v{HF}, v2, 2, s51
    v_cvt_f32_u32 v{HF}, v{HF}
    v_add_u32 v{HF+1}, s50, v1
    v_cvt_f32_i32 v{HF+1}, v{HF+1}
    """)
    for e in range(5):
        A(f"v_add_f32 v9, {fbits(16.0*e + 0.5)}, v{HF+1}\nv_mul_f32 v9, {fbits(-1/640)}, v9\nv_mul_f32 v10, v{HF}, v9\nv_mul_f32 v{TQ+e}, {fbits(32.0)}, v9\nv_cos_f32 v{TQ+e}, v{TQ+e}")
        for sd in range(2):
            for r in range(4): A(f"v_fmamk_f32 v{SQ+16*e+8*sd+r}, v9, {fbits(r + 1.0 - 32.0*(sd+1))}, v10")
        A(f"v_add_f32 v{TQ+e}, v{TQ+e}, v{TQ+e}")
        for sd in range(2):
            o = SQ + 16*e + 8*sd
            for r in range(4): A(f"v_sin_f32 v{o+4+r}, v{o+r}\nv_cos_f32 v{o+r}, v{o+r}")
    for nt in range(5):
        for i in range(4): A(f"v_mov_b32 v{ACC+(nt*2+1)*4+i}, 0")
    BT = ZA; XT = UF
    A(f"v_mul_u32_u24 v11, 160, v1\nv_lshl_add_u32 v11, v2, 3, v11\nv_add_u32 v253, s58, v11\nv_lshlrev_b32 v10, 3, v2\nv_add_u32 v10, {BO}, v10\ns_mov_b32 s{sUW}, 0\ns_mov_b32 s{sUH}, 0")
    adv = [f"s_add_u32 s{sUW}, s{sUW}, {WP}", f"s_cmp_eq_u32 s{sUW}, {4*WP}\ns_cselect_b32 s{sUW}, 0, s{sUW}", f"s_add_u32 s{sUH}, s{sUH}, {HP}", f"s_cmp_eq_u32 s{sUH}, {3*HP}\ns_cselect_b32 s{sUH}, 0, s{sUH}"]
    upd = [f"v_add_u32 v{vW}, s{sUW}, v{vWB}", f"v_add_u32 v{vH}, s{sUH}, v{vHB}", f"v_xor_b32 v9, 1024, v{vH}", f"v_add_u32 v{vT}, s{sUH}, v{vTB}"]
    def hrd(b): return [f"ds_read_b128 {v(HF+28*b,4)}, v{vH} offset:{8192*b}", f"ds_read_b128 {v(HF+28*b+8,4)}, v{vW} offset:{10240*b}", f"ds_read_b128 {v(HF+28*b+4,4)}, v9 offset:{8192*b}"] + \
                       [f"ds_read_b128 {v(HF+28*b+8+4*nt,4)}, v{vW} offset:{10240*b+1024*nt}" for nt in range(1, 5)]
    def hmm(b): return [mfma(ACC+(nt*2+l)*4, HF+28*b+8+4*nt, HF+28*b+4*l) for nt in range(5) for l in range(2)]
    trr = [f"ds_read_b64_tr_b16 {v(UF+4*rho+2*jh,2)}, v{vT} offset:{512*jh+8*rho}" for rho in (1, 0) for jh in range(2)]
    neg = [f"v_xor_b32 v{UF+8+q}, s70, v{UF+4+q}" for q in range(4)]
    sa = []
    for l in range(2):
        C, S = FP+8*l, FP+8*l+4; re, im = ZA+8*l, ZA+8*l+4
        sa += [mfma(re, UF, C, 0), mfma(im, UF+4, C, 0), mfma(im, UF, S), mfma(re, UF+8, S)]
    cv = [f"v_cvt_pk_bf16_f32 v{ZA+8*l+r}, v{ZA+8*l+r}, v{ZA+8*l+4+r}" for l in range(2) for r in range(4)]
    def fst(par): return [f"v_fma_f32 v{SQ+16*e+8*(par^1)+j}, v{TQ+e}, v{SQ+16*e+8*par+j}, -v{SQ+16*e+8*(par^1)+j}" for e in range(5) for j in range(8)]
    def fcv(par, e): return [f"v_cvt_pk_bf16_f32 v{FI+4*(e%3)+r}, v{SQ+16*e+8*(par^1)+r}, v{SQ+16*e+8*(par^1)+4+r}" for r in range(4)]
    def zmm(e): return [mfma(ACC+(e*2+l)*4, FI+4*(e%3), ZA+8*l) for l in range(2)]
    def mix(main, reads, valu):
        reads, valu = list(reads), list(valu); n = len(main)
        for i, mm in enumerate(main):
            A(mm)
            left = n - i
            nr = max(-(-len(reads) // left), 1) if reads else 0
            for _ in range(nr): A(reads.pop(0))
            nv = max(-(-len(valu) // left), min(len(valu), 2 - nr))
            for _ in range(nv): A(valu.pop(0))
    A(f"s_cmp_gt_u32 s{sW}, 1\ns_cbranch_scc1 B_NP\ns_cmp_lg_u32 s53, 1\ns_cbranch_scc1 B_NP")
    lds_wait(12)
    A(f"s_cmp_eq_u32 s{sW}, 0\ns_cbranch_scc1 B_P0")
    on = T.on; T.on = False
    preload("B_PWD")
    A("s_branch B_P1\nB_P0:")
    hstart(OF, False)
    T.on = on
    A("B_P1:\ns_waitcnt vmcnt(0) lgkmcnt(0)\nB_NP:")
    for x in upd: A(x)
    T.at(A, "mB", 2)
    A("s_barrier")
    T.at(A, "mB", 3)
    for nt in range(5): A(f"ds_read_b64 {v(XT+2*nt,2)}, v253 offset:{32*nt}\nds_read_b64 {v(BT+2*nt,2)}, v10 offset:{32*nt}")
    for x in hrd(0): A(x)
    for nt in range(5):
        for h in range(2):
            c = ACC + nt*8 + 2*h
            A(f"v_lshlrev_b32 v{c}, 16, v{XT+2*nt+h}\nv_lshlrev_b32 v10, 16, v{BT+2*nt+h}\nv_and_b32 v{c+1}, s69, v{XT+2*nt+h}\nv_and_b32 v{FI}, s69, v{BT+2*nt+h}")
            A(f"v_add_f32 v{c}, v{c}, v10\nv_add_f32 v{c+1}, v{c+1}, v{FI}")
    A(f"s_mov_b32 s{sIt}, 3\nB_C0:\ns_waitcnt lgkmcnt(0)\ns_barrier")
    m = hmm(0); mix(m[:7], hrd(1), adv); mix(m[7:], [], upd + [f"s_sub_u32 s{sIt}, s{sIt}, 1"])
    A(f"s_waitcnt lgkmcnt(0)\ns_barrier\ns_cmp_lg_u32 s{sIt}, 0")
    mix(hmm(1), hrd(0), [])
    A("s_cbranch_scc1 B_C0")
    for x in adv + upd: A(x)
    for x in hmm(0): A(x)
    A(f"s_mov_b32 s{sIt}, 5\ns_waitcnt lgkmcnt(0)\ns_barrier")
    for x in trr + hrd(0) + fst(0)[:20] + neg: A(x)
    def half2(par):
        f = fst(par)
        A("s_waitcnt lgkmcnt(0)\ns_barrier")
        mix(sa, hrd(1), f[20:28])
        mix(hmm(0), [], f[28:] + adv + upd + cv)
    def half1(par, nxt, extra):
        if nxt: A("s_waitcnt lgkmcnt(0)\ns_barrier")
        mix(hmm(1), (trr + hrd(0)[:6]) if nxt else [], fcv(par, 0) + fcv(par, 1))
        f = fst(par ^ 1)[:20] if nxt else []
        mix(zmm(0), hrd(0)[6:] if nxt else [], fcv(par, 2)); mix(zmm(1), [], fcv(par, 3) + f[:2]); mix(zmm(2), [], fcv(par, 4) + f[2:4])
        mix(zmm(3) + zmm(4), [], f[4:] + (neg if nxt else []) + extra)
    A("B_CL:")
    half2(0); half1(0, True, [])
    half2(1)
    A(f"s_sub_u32 s{sIt}, s{sIt}, 1\ns_cmp_eq_u32 s{sIt}, 0\ns_cbranch_scc1 B_CE")
    stE = A.state()
    half1(1, True, [])
    A("s_branch B_CL\nB_CE:")
    A.lg = [set(x) for x in stE[0]]
    EX = 2*WP; RL = 3*WP
    half1(1, False, [f"s_xor_b32 s50, s{sW}, 2", "s_mul_i32 s50, s50, 5120", "v_add_u32 v9, s50, v3", f"s_mul_i32 s50, s{sW}, 5120", "v_add_u32 v10, s50, v3", "v_add_u32 v11, s50, v11"])
    T.at(A, "mB", 4)
    for nt in range(5): A(f"ds_write_b128 v9, {v(ACC+(nt*2+1)*4,4)} offset:{EX+1024*nt}")
    A("s_waitcnt lgkmcnt(0)\ns_barrier")
    P = HF
    for nt in range(5): A(f"ds_read_b128 {v(P+4*nt,4)}, v10 offset:{EX+1024*nt}")
    for nt in range(5):
        c = ACC + nt*8
        A(f"v_pk_add_f32 {v(c,2)}, {v(c,2)}, {v(P+4*nt,2)}\nv_pk_add_f32 {v(c+2,2)}, {v(c+2,2)}, {v(P+4*nt+2,2)}")
        A(f"v_cvt_pk_bf16_f32 v{c+4}, v{c}, v{c+1}\nv_cvt_pk_bf16_f32 v{c+5}, v{c+2}, v{c+3}\nds_write_b64 v11, {v(c+4,2)} offset:{RL+32*nt}")
    A("s_waitcnt lgkmcnt(0)")
    for q in range(3): A(f"ds_read_b128 {v(P+20+4*q,4)}, v10 offset:{RL+1024*q}")
    for q in range(3):
        if q == 2: A("s_mov_b32 exec_hi, 0")
        A(f"buffer_store_dwordx4 {v(P+20+4*q,4)}, v{OF+q}, s[{rO}:{rO+3}], s59 offen {'sc1' if 'osc1' in OPT else ''}")
    T.end(A, sW, sWS)
    A("s_endpgm")

    sIt = 48
    reset(A)
    A("B_LH:\ns_setprio 0\ns_cmp_ge_u32 s45, s47\ns_cselect_b32 s53, 1, 0")
    T.at(A, "mB", 0)
    brole()
    A(f"s_add_u32 s56, s{sWS}, {FLG_OFF}\ns_addc_u32 s57, s{sWS+1}, 0\ns_cmp_eq_u32 s53, 1\ns_cbranch_scc1 B_LH1")
    A.prot |= {56, 57}
    itemoff(12)
    hstart(12, True)
    A(f"""
    B_LH1:
    s_add_u32 s65, s{sRB}, {L_R}
    s_lshl_b32 s65, s65, 8
    v_add_u32 v4, 4096, v3
    v_and_b32 v6, 16, v0
    v_lshlrev_b32 v6, 2, v6
    v_xor_b32 v6, v6, v3
    v_add_u32 v7, 4096, v6
    s_mov_b32 s{sO}, {4*8192}
    s_mov_b32 s{sO2}, 0
    """)
    bsrd(rH, 54*4096, sRB, H_OFF); bsrd(rU, 20*4096, sRB, U_OFF)
    A("s_waitcnt vmcnt(24)\ns_barrier\ns_setprio 3")
    ldH(None, HB + 2*HP); A("s_waitcnt vmcnt(24)\ns_barrier")
    ldH(None, HB + 2*HP + 8192); A("s_waitcnt vmcnt(24)\ns_barrier")
    ldH(None, HB); A("s_waitcnt vmcnt(24)\ns_barrier")
    ldH(None, HB + HP); A("s_waitcnt vmcnt(24)\ns_barrier")
    ldH(None, HB + HP + 8192); A("s_waitcnt vmcnt(24)\ns_barrier")
    poll(65, 20, 8)
    T.at(A, "mB", 4)
    ldU(None, HB + HP + 16384)
    ldH(None, HB + 2*HP); ldU(None, HB + 2*HP + 16384)
    A("s_waitcnt vmcnt(40)\ns_barrier")
    A(f"s_mov_b32 s{sM}, {HB + 2*HP}\ns_mov_b32 s{sIt}, 9\nB_LL:")
    ldH(sM, 8192)
    A(f"s_add_u32 s{sM}, s{sM}, {HP}\ns_cmp_eq_u32 s{sM}, {HB + 3*HP}\ns_cselect_b32 s{sM}, {HB}, s{sM}\ns_sub_u32 s{sIt}, s{sIt}, 1\ns_cmp_eq_u32 s{sIt}, 0\ns_waitcnt vmcnt(24)\ns_barrier\ns_cbranch_scc1 B_LE")
    ldH(sM, 0); ldU(sM, 16384)
    A("s_waitcnt vmcnt(40)\ns_barrier\ns_branch B_LL\nB_LE:")
    A("s_barrier\ns_waitcnt vmcnt(8)\ns_barrier\ns_waitcnt vmcnt(0)\ns_barrier")
    T.end(A, sW, sWS)
    A("s_endpgm")
    reset(A)
    A("B_LW:\ns_setprio 0\ns_cmp_ge_u32 s45, s47\ns_cselect_b32 s53, 1, 0")
    T.at(A, "mB", 0)
    brole()
    A(f"s_add_u32 s56, s{sWS}, {FLG_OFF}\ns_addc_u32 s57, s{sWS+1}, 0\ns_cmp_eq_u32 s53, 1\ns_cbranch_scc1 B_LW1")
    A.prot |= {56, 57}
    preload("B_PW", True)
    A("B_LW1:")
    bsrd(rW, 54*5120, sCB, W2P_OFF)
    A(f"v_add_u32 v4, 4096, v3\nv_add_u32 v5, 8192, v3\ns_mov_b32 s{sO}, {7*10240}\ns_mov_b32 s{sM}, 0\ns_mov_b32 s{sIt}, 20")
    T.at(A, "mB", 2)
    WL = optval("wl", 3)
    for k in range(WL): A(f"s_waitcnt vmcnt({60-10*k})\ns_barrier")
    A("s_setprio 3\nB_LWL:")
    ldW(sM, 0, sO)
    A(f"s_add_u32 s{sM}, s{sM}, 10240\ns_cmp_eq_u32 s{sM}, {4*WP}\ns_cselect_b32 s{sM}, 0, s{sM}\ns_sub_u32 s{sIt}, s{sIt}, 1\ns_cmp_lg_u32 s{sIt}, 0\ns_waitcnt vmcnt({10*(7-WL)})\ns_barrier\ns_cbranch_scc1 B_LWL")
    for k in range(7 - WL): A(f"s_waitcnt vmcnt({10*(6-WL-k)})\ns_barrier")
    T.end(A, sW, sWS)
    A(f"{END}:\nCODE_END:")
    return dict(label=NAME + "_kernel", body=A.text(), vgpr=256, grid=256, block=512, lds=160*1024)

def groups(i, shape):
    import numpy as np
    w = np.arange(shape[1])
    b = np.arange(256); i8 = (b >> 3) & 7; ch = b & 1
    mlp = i8 < 5 + ch
    return [("mlp", np.ix_(mlp, w < 4)), ("mlp-ld", np.ix_(mlp, w == 4)), ("mlp-l5", np.ix_(mlp, w == 5)), ("mlp-h6", np.ix_(mlp, w == 6)), ("mlp-h7", np.ix_(mlp, w == 7)), ("dft", np.ix_(~mlp, w < 4)), ("dft-ld", np.ix_(~mlp, w == 4)), ("dft-l5", np.ix_(~mlp, w == 5)), ("dft-6", np.ix_(~mlp, w == 6)), ("dft-7", np.ix_(~mlp, w == 7))]

if __name__ == "__main__":
    st = "stamps" in sys.argv
    OPT.update(sys.argv[2:])
    ks = [gen_all(st)]
    for x in sys.argv:
        if x.startswith("abl:"):
            _, ki, l0, l1, pre = x.split(":")
            out = []; on = False
            for l in ks[int(ki)]["body"].split("\n"):
                t = l.strip()
                if t == l0 + ":": on = True
                if t == l1 + ":": on = False
                if on and any(t.startswith(p) for p in pre.split(",")): continue
                out.append(l)
            ks[int(ki)]["body"] = "\n".join(out)
    for x in sys.argv:
        if x.startswith("diag:"):
            import diag
            p = x.split(":")[1:]
            ks.append(diag.gen_diag(tuple([p[0]] + [int(y) for y in p[1:]]), STAMP_OFF))
    txt = file_text(ks)
    if len(ks) == 1 and "aslist" not in OPT: txt = txt.replace(f"; @launch kernel={NAME}_kernel grid", "; @launch grid")
    open(sys.argv[1], "w").write(txt)
```

```python
from asmlib import *
def gen_diag(metric, STAMP_OFF, mult=10):
    A = Asm()
    A(f"""
    s_cmp_ge_u32 s2, 1
    s_cbranch_scc1 D_END
    s_load_dwordx2 s[14:15], s[0:1], 80
    v_lshlrev_b32 v1, 8, v0
    v_mov_b32 v2, 0
    v_mov_b32 v3, -1
    v_mov_b32 v4, 0
    ds_write_b32 v2, v3
    ds_write_b32 v2, v4 offset:4
    ds_write_b32 v2, v4 offset:8
    s_waitcnt lgkmcnt(0)
    s_mov_b32 s16, s14
    s_mov_b32 s17, s15
    s_mov_b32 s18, 0x10000000
    s_mov_b32 s19, 0x20000
    s_barrier
    """)
    def ld(dst, k, wave, field): A(f"s_mov_b32 s20, {STAMP_OFF + k*131072 + wave*32 + field*4}\nbuffer_load_dword v{dst}, v1, s[16:19], s20 offen")
    if metric[0] == "span":
        k, nw = metric[1], metric[2]
        for w in range(nw):
            ld(5, k, w, 1); ld(6, k, w, 2); A("ds_min_u32 v2, v5\nds_max_u32 v2, v6 offset:4")
    elif metric[0] == "skew":
        ld(5, 0, metric[1], 1); A("ds_min_u32 v2, v5\nds_max_u32 v2, v5 offset:4")
    elif metric[0] == "one":
        ld(5, 0, metric[1], metric[2]); A("v_cmp_eq_u32 vcc, 0, v0\nv_cndmask_b32 v5, 0, v5, vcc\nv_lshlrev_b32 v5, 8, v5\nds_add_u32 v2, v5 offset:8")
    elif metric[0] == "late0":
        ld(5, 0, 0, 1); A(f"ds_min_u32 v2, v5\nv_cmp_eq_u32 vcc, {metric[1]}, v0\nv_cndmask_b32 v5, 0, v5, vcc\nds_max_u32 v2, v5 offset:4")
    elif metric[0] == "avgm":
        k, w, f, sel = metric[1:5]
        ld(5, k, w, f)
        A("v_bfe_u32 v6, v0, 3, 3\nv_and_b32 v7, 1, v0\nv_add_u32 v7, 5, v7")
        A(("v_cmp_lt_u32" if sel == 0 else "v_cmp_ge_u32") + " vcc, v6, v7\nv_cndmask_b32 v5, 0, v5, vcc\nds_add_u32 v2, v5 offset:8")
    elif metric[0] == "gap":
        for w in range(metric[1]):
            ld(6, 0, w, 2); A("v_not_b32 v6, v6\nds_min_u32 v2, v6")
        ld(5, 1, 0, 1); A("v_not_b32 v5, v5\nds_max_u32 v2, v5 offset:4")
    elif metric[0] == "avg":
        k, w, f = metric[1:4]
        ld(5, k, w, f); A("ds_add_u32 v2, v5 offset:8")
    A("s_waitcnt vmcnt(0) lgkmcnt(0)\ns_barrier\nds_read_b96 v[8:10], v2\ns_waitcnt lgkmcnt(0)")
    A("v_readfirstlane_b32 s21, v8\nv_readfirstlane_b32 s22, v9\nv_readfirstlane_b32 s23, v10")
    if metric[0] == "avgm": A(f"s_mul_i32 s24, s23, {93 if metric[4] == 0 else 205}\ns_lshr_b32 s24, s24, 15")
    elif metric[0] in ("skew", "late0"): A(f"s_sub_u32 s24, s22, s21\ns_mul_i32 s24, s24, 50")
    elif metric[0] == "span": A(f"s_sub_u32 s24, s22, s21\ns_mul_i32 s24, s24, {mult}")
    elif metric[0] == "gap": A(f"s_sub_u32 s24, s21, s22\ns_mul_i32 s24, s24, {mult}")
    elif metric[0] in ("avg", "one"): A("s_lshr_b32 s24, s23, 9")
    else: A("s_mov_b32 s24, 0")
    A("""
    s_min_u32 s24, s24, 60000
    s_memrealtime s[26:27]
    s_waitcnt lgkmcnt(0)
    D_L:
    s_memrealtime s[28:29]
    s_waitcnt lgkmcnt(0)
    s_sub_u32 s30, s28, s26
    s_cmp_lt_u32 s30, s24
    s_cbranch_scc1 D_L
    D_END:
    """)
    return dict(label="diag_kernel", body=A.text(), vgpr=16, grid=1, block=256, lds=64)
```

```python
import struct, math, sys
from asmlib import *

def fbits(x): return "0x%08x" % struct.unpack("<I", struct.pack("<f", x))[0]

H_OFF = 0;            H_SZ = 32*54*4096
W2P_OFF = 8 << 20;    W2P_SZ = 8*54*5120
V_OFF = 12 << 20;     V_SZ = 32*20*64*64
U_OFF = 16 << 20;     U_SZ = V_SZ
FLG_OFF = 20 << 20
L_V, L_U, L_W, L_S, L_C, L_R = 0, 20, 40, 48, 64, 80
FLG_SZ = 112*256
SP_OFF = 21 << 20;    SP_SZ = 16*1024
CP_OFF = 22 << 20;    CP_SZ = 11*10*640
STAMP_OFF = 64 << 20
OPT = set()
K0 = -2.0*math.sqrt(2.0/math.pi)*math.log2(math.e)
MF = "v_mfma_f32_16x16x32_bf16"

def optval(name, default):
    for x in OPT:
        if x.startswith(name + "="): return int(x[len(name)+1:])
    return default
def mfma(d, x, y, c=None): return f"{MF} {v(d,4)}, {v(x,4)}, {v(y,4)}, {v(d,4) if c is None else c}"
def srd(A, d, lo, nbytes, add=0):
    A.prot -= set(range(d, d+4))
    if add: A(f"s_add_u32 s{d}, s{lo}, {add}\ns_addc_u32 s{d+1}, s{lo+1}, 0")
    else: A(f"s_mov_b64 s[{d}:{d+1}], s[{lo}:{lo+1}]")
    A(f"s_mov_b32 s{d+2}, {nbytes}\ns_mov_b32 s{d+3}, 0x20000")
    A.prot |= set(range(d, d+4))
def bf16_round(A, dst, src): A(f"v_cvt_pk_bf16_f32 v{dst}, v{src}, v{src}\nv_lshlrev_b32 v{dst}, 16, v{dst}")
def weave(A, main, fill, per=None, start=0):
    fill = list(fill); n = len(main) - start; done = 0
    for i, m in enumerate(main):
        A(m)
        if i < start: continue
        want = min(len(fill), int(math.ceil((i - start + 1) * per))) if per else (len(fill) * (i - start + 1) + n - 1) // n
        while done < want: A(fill[done]); done += 1
    while done < len(fill): A(fill[done]); done += 1
def reset(A): A.lg = []; A.vm = []

class Stamp:
    def __init__(self, on): self.on = on
    def start(self, A):
        if self.on: A("s_memtime s[90:91]\ns_memrealtime s[92:93]\ns_mov_b32 s80, 0\ns_mov_b32 s82, 0\ns_mov_b32 s84, 0\ns_mov_b32 s86, 0\ns_mov_b32 s88, 0")
    def at(self, A, mode, i):
        if self.on and (mode in OPT or (mode == "mB" and not OPT & {"mA", "mJ", "mD", "mE"})):
            A(f"s_memtime s[{80+2*i}:{81+2*i}]"); A.lg.pop()
    def end(self, A, wave_s, ws_lo):
        if not self.on: return
        A("s_waitcnt vmcnt(0)\ns_memtime s[94:95]\ns_memrealtime s[96:97]\ns_waitcnt lgkmcnt(0)\ns_sub_u32 s94, s94, s90")
        for i in range(5): A(f"s_sub_u32 s{80+2*i}, s{80+2*i}, s90")
        A("s_mov_b64 exec, 1\nv_mov_b32 v0, s94\nv_mov_b32 v1, s92\nv_mov_b32 v2, s96\nv_mov_b32 v3, s80\nv_mov_b32 v4, s82\nv_mov_b32 v5, s84\nv_mov_b32 v6, s86\nv_mov_b32 v7, s88")
        srd(A, 76, ws_lo, 0x10000000)
        A(f"s_lshl_b32 s98, s2, 3\ns_add_u32 s98, s98, s{wave_s}\ns_lshl_b32 s98, s98, 5\ns_add_u32 s98, s98, {STAMP_OFF}\nv_mov_b32 v8, 0")
        A("buffer_store_dwordx4 v[0:3], v8, s[76:79], s98 offen\nbuffer_store_dwordx4 v[4:7], v8, s[76:79], s98 offen offset:16")

def gen_all(stamps=False):
    A = Asm(); T = Stamp(stamps)
    END = "A_END"
    OPT.add("rg")
    sX, sWR, sW1, sB1, sW2, sWS, sDBG, sWI = 4, 6, 8, 10, 12, 14, 72, 74
    rX, rA, rB, rC, rF = 16, 20, 24, 28, 56
    sW, sR, sJ, sC0, sS2, sCol = 32, 33, 34, 35, 36, 37
    PTRS = set(range(4, 16)) | {0, 1, 2, 72, 73, 74, 75, 32, 33, 34, 35, 37, 40, 41, 42, 43, 44, 45, 47}
    SLOT = 36864; PS = 32768; FX = 3*PS
    GAP = 122880; CX = GAP; STAT = 126976; RPK = 129024; CW = 159744
    def poll(line_sreg, want, shift=0, first_issued=False, ps=None):
        L, G, M = A.label(), A.label(), A.label()
        A("s_mov_b32 s61, 100000")
        if first_issued: A(f"s_branch {M}")
        A(f"{L}:\ns_mov_b32 s60, 0")
        A.raw(f"s_atomic_add s60, s[{rF}:{rF+1}], s{line_sreg} glc")
        A(f"{M}:\ns_waitcnt lgkmcnt(0)\ns_bfe_u32 s60, s60, {shift | (8 << 16)}\ns_cmp_eq_u32 s60, {want}\ns_cbranch_scc1 {G}")
        A(f"s_sub_u32 s61, s61, 1\ns_cmp_eq_u32 s61, 0\ns_cbranch_scc1 {G}\ns_sleep {ps or optval('ps', 2)}\ns_branch {L}\n{G}:")
        A.lg = []
    def poll_issue(line_sreg):
        A("s_mov_b32 s60, 0"); A.raw(f"s_atomic_add s60, s[{rF}:{rF+1}], s{line_sreg} glc")
    def arrive(line_sreg, n=0):
        A(f"s_mov_b32 s66, 1\ns_waitcnt vmcnt({n})"); A.raw(f"s_atomic_add s66, s[{rF}:{rF+1}], s{line_sreg}")
    def signal2(line_expr, last, inc):
        L = A.label()
        A(f"{line_expr}\ns_lshl_b32 s46, s46, 8\ns_mov_b32 s66, 1\ns_waitcnt vmcnt(0)")
        A.raw(f"s_atomic_add s66, s[{rF}:{rF+1}], s46 glc")
        A(f"v_lshlrev_b32 v4, 8, v0\nv_mov_b32 v5, {inc}\ns_movk_i32 s46, {L_R*256}\ns_waitcnt lgkmcnt(0)\ns_cmp_lg_u32 s66, {last}\ns_cbranch_scc1 {L}")
        A(f"buffer_atomic_add v5, v4, s[{rF}:{rF+3}], s46 offen sc1\n{L}:")
        reset(A)
    def init_issue(): A.raw(f"s_load_dword s69, s[{sDBG}:{sDBG+1}], 0")
    def initcheck():
        L, G = A.label(), A.label()
        A(f"s_waitcnt lgkmcnt(0)\ns_cmp_lg_u32 s69, 0\ns_cbranch_scc1 {G}\ns_mov_b32 s61, 50000\nv_mov_b32 v252, 0\n{L}:\ns_sleep 8")
        A(f"global_load_dword v253, v252, s[{sDBG}:{sDBG+1}] sc1\ns_waitcnt vmcnt(0)\nv_readfirstlane_b32 s69, v253\ns_cmp_lg_u32 s69, 0\ns_cbranch_scc1 {G}")
        A(f"s_sub_u32 s61, s61, 1\ns_cmp_lg_u32 s61, 0\ns_cbranch_scc1 {L}\n{G}:")
        reset(A)
    def div20(dst, i, stride, swz, t=(14, 15, 8)):
        A(f"v_add_u32 v{t[0]}, {64*i}, v0\nv_mul_hi_u32 v{t[1]}, v{t[0]}, s52\nv_mul_u32_u24 v{t[2]}, 20, v{t[1]}\nv_sub_u32 v{t[2]}, v{t[0]}, v{t[2]}")
        if swz: A(f"v_lshrrev_b32 v{t[0]}, 2, v{t[1]}\nv_and_b32 v{t[0]}, 2, v{t[0]}\nv_xor_b32 v{t[2]}, v{t[2]}, v{t[0]}")
        A(f"v_mul_u32_u24 v{t[1]}, {stride}, v{t[1]}\nv_lshl_add_u32 v{dst}, v{t[2]}, 4, v{t[1]}")
        if 0 < i < 4: A(f"v_subrev_u32 v{dst}, {1024*i}, v{dst}")
    def xfrag_addr(d):
        A(f"v_lshrrev_b32 v{d}, 1, v1\nv_xor_b32 v{d}, v{d}, v2\nv_lshlrev_b32 v{d}, 4, v{d}\nv_lshl_add_u32 v{d}, v1, 7, v{d}")
    def wfrag_addr(d, g32, t):
        A(f"v_lshrrev_b32 v{d}, 2, v1\nv_lshl_add_u32 v{d}, v2, 3, v{d}\nv_mul_u32_u24 v{d}, 320, v{d}\nv_and_b32 v{t}, 3, v1\nv_lshl_add_u32 v{d}, v{t}, 3, v{d}\nv_add_u32 v{d}, 16384, v{d}")
        A(f"v_and_b32 v{g32}, 1, v2\nv_lshlrev_b32 v{g32}, 5, v{g32}")
    def stats_fetch():
        srd(A, rC, sWS, SP_SZ, SP_OFF)
        A(f"s_lshl_b32 s46, s{sR}, 10\nbuffer_load_dwordx4 v[224:227], v3, s[{rC}:{rC+3}], s46 offen sc1")

    sKT, sU1, sJL, sPAR = 39, 71, 70, 68
    CF, SF = 16, 48; WR, WI = 80, 96; XA = 112; VF = 144; TA = 168; YF = 184; UA = 208
    rWR, rWI = rX, rA
    def job_wdma():
        A(f"""
        v_lshrrev_b32 v4, 2, v0
        v_mul_u32_u24 v4, 20544, v4
        v_and_b32 v5, 3, v0
        v_min_u32 v5, 2, v5
        v_lshl_add_u32 v4, v5, 4, v4
        s_mul_i32 s62, s{sU1}, 321
        s_lshl_b32 s63, s{sKT}, 4
        s_add_u32 s62, s62, s63
        s_add_u32 s62, s62, 1
        s_lshl_b32 s62, s62, 1
        s_and_b32 s63, s62, 2
        s_sub_u32 s62, s62, s63
        s_add_u32 s{sPAR}, s63, s{sJL}
        """)
        srd(A, rWR, sWR, 2048*642); srd(A, rWI, sWI, 2048*642)
        for q in range(4):
            A(f"s_add_u32 m0, s{sJL}, {1024*q}\nbuffer_load_dwordx4 v4, s[{rWR}:{rWR+3}], s62 offen lds")
            A(f"s_add_u32 m0, s{sJL}, {4096+1024*q}\nbuffer_load_dwordx4 v4, s[{rWI}:{rWI+3}], s62 offen lds")
            if q < 3: A(f"s_add_u32 s62, s62, {16*20544}")
    def lds_add(n=1, t=(4, 5)):
        A(f"v_mov_b32 v{t[0]}, {CW}\nv_mov_b32 v{t[1]}, {n}\ns_waitcnt lgkmcnt(0)\ns_mov_b64 exec, 1\nds_add_u32 v{t[0]}, v{t[1]}\ns_mov_b64 exec, -1")
    def lds_wait(n, t=(4, 5), sh=0):
        L, G = A.label(), A.label()
        A(f"v_mov_b32 v{t[0]}, {CW}\ns_mov_b32 s61, 4000000\n{L}:\nds_read_b32 v{t[1]}, v{t[0]}\ns_waitcnt lgkmcnt(0)\nv_readfirstlane_b32 s60, v{t[1]}\ns_bfe_u32 s60, s60, {sh | (8 << 16)}\ns_cmp_ge_u32 s60, {n}\ns_cbranch_scc1 {G}")
        A(f"s_sub_u32 s61, s61, 1\ns_cmp_lg_u32 s61, 0\ns_sleep 1\ns_cbranch_scc1 {L}\n{G}:")
    FQ = 84
    def fprime_pre():
        A(f"s_and_b32 s54, s{sW}, 3\ns_lshl_b32 s46, s{sR}, 2\ns_add_u32 s46, s46, s54\nv_lshlrev_b32 v14, 8, v2\nv_add_u32 v14, s46, v14\nv_cvt_f32_u32 v14, v14")
        for ut in range(2):
            A(f"v_add_u32 v15, {16*ut}, v1\nv_cvt_f32_u32 v15, v15\nv_mul_f32 v15, {fbits(1/2048)}, v15\nv_mul_f32 v{FQ+8*ut}, v15, v14\nv_mul_f32 v15, {fbits(64.0)}, v15")
            for j in range(1, 4): A(f"v_add_f32 v{FQ+8*ut+j}, v15, v{FQ+8*ut+j-1}")
            for j in range(4): A(f"v_sin_f32 v{FQ+8*ut+4+j}, v{FQ+8*ut+j}\nv_cos_f32 v{FQ+8*ut+j}, v{FQ+8*ut+j}")
    def job_consts():
        A(f"v_lshlrev_b32 v5, 2, v2\nv_cvt_f32_u32 v5, v5\nv_cvt_f32_u32 v6, v1\nv_mul_f32 v6, {fbits(1/64)}, v6\nv_mul_f32 v7, v6, v5")
        TB = 192
        for j in range(8): A(f"v_fmamk_f32 v{TB+j}, v6, {fbits(16.0*(j>>2) + (j&3))}, v7")
        for j in range(8): A(f"v_sin_f32 v{TB+8+j}, v{TB+j}\nv_cos_f32 v{TB+j}, v{TB+j}")
        cf = lambda mt, t, p: CF+(mt*2+t)*4+p
        sf = lambda mt, t, p: SF+(mt*2+t)*4+p
        A("s_brev_b32 s67, 1")
        for p in range(4):
            c0, c1, s0, s1 = TB+2*p, TB+2*p+1, TB+8+2*p, TB+8+2*p+1
            A(f"v_cvt_pk_bf16_f32 v{cf(0,0,p)}, v{c0}, v{c1}\nv_cvt_pk_bf16_f32 v{sf(0,0,p)}, v{s0}, v{s1}")
            if p % 2 == 0: A(f"v_cvt_pk_bf16_f32 v{cf(1,0,p)}, v{c0}, -v{s1}\nv_cvt_pk_bf16_f32 v{sf(1,0,p)}, v{s0}, v{c1}")
            else: A(f"v_cvt_pk_bf16_f32 v{cf(1,0,p)}, -v{c0}, v{s1}\nv_cvt_pk_bf16_f32 v{sf(1,0,p)}, -v{s0}, -v{c1}")
        A("v_and_b32 v5, 1, v1\nv_mul_u32_u24 v5, 0x8000, v5\nv_lshl_or_b32 v5, v5, 16, v5")
        for f in (cf, sf):
            for mt in (2, 3):
                for p in range(4): A(f"v_xor_b32 v{f(mt,0,p)}, s67, v{f(mt-2,0,p)}")
            for mt in range(4):
                for p in range(4): A(f"v_xor_b32 v{f(mt,1,p)}, v5, v{f(mt,0,p)}")
        reset(A)

    A(f"s_cmp_ge_u32 s2, 256\ns_cbranch_scc1 {END}")
    T.start(A)
    A(f"""
    s_load_dwordx2 s[{sWS}:{sWS+1}], s[0:1], 80
    s_load_dwordx2 s[{sDBG}:{sDBG+1}], s[0:1], 72
    s_load_dwordx4 s[{sX}:{sX+3}], s[0:1], 0
    s_load_dwordx4 s[{sW1}:{sW1+3}], s[0:1], 32
    s_load_dwordx2 s[{sW2}:{sW2+1}], s[0:1], 48
    s_load_dwordx2 s[{sWI}:{sWI+1}], s[0:1], 16
    s_getpc_b64 s[70:71]
    A_PC:
    v_lshrrev_b32 v1, 6, v0
    s_lshr_b32 s41, s2, 3
    v_readfirstlane_b32 s{sW}, v1
    s_lshl_b32 s46, s41, 11
    v_lshrrev_b32 v10, 5, v0
    v_lshl_add_u32 v10, v10, 7, s46
    v_min_u32 v10, CODE_END-A_PC-4, v10
    v_mov_b32 v11, s71
    v_add_co_u32 v10, vcc, s70, v10
    v_addc_co_u32 v11, vcc, 0, v11, vcc
    v_and_b32 v0, 63, v0
    s_and_b32 s40, s2, 7
    s_xor_b32 s46, s{sW}, 6
    s_xor_b32 s48, s2, {optval("iw", 1)}
    s_or_b32 s46, s48, s46
    s_cmp_lg_u32 s46, 0
    s_cbranch_scc1 A_NI0
    v_lshlrev_b32 v4, 8, v0
    v_mov_b32 v5, 0
    s_movk_i32 s46, 16384
    s_mov_b32 s66, 1
    s_waitcnt lgkmcnt(0)
    """)
    srd(A, rF, sWS, FLG_SZ, FLG_OFF)
    A(f"buffer_store_dword v5, v4, s[{rF}:{rF+3}], 0 offen sc1\nbuffer_store_dword v5, v4, s[{rF}:{rF+3}], s46 offen sc1\ns_waitcnt vmcnt(0)")
    A.raw(f"s_atomic_or s66, s[{sDBG}:{sDBG+1}], 0")
    T.at(A, "mA", 4)
    A("A_NI0:\nglobal_load_dword v255, v[10:11], off")
    reset(A)
    A(f"""
    A_NI:
    s_lshr_b32 s42, s40, 1
    s_and_b32 s43, s40, 1
    s_lshr_b32 s44, s41, 3
    s_and_b32 s45, s41, 7
    s_lshl_b32 s{sR}, s42, 2
    s_add_u32 s{sR}, s{sR}, s44
    s_mul_i32 s{sJ}, s43, 5
    s_add_u32 s{sJ}, s{sJ}, s45
    s_add_u32 s46, s44, s45
    s_and_b32 s46, s46, 3
    s_mul_i32 s46, s46, 5
    s_add_u32 s46, s46, 1
    s_lshr_b32 s46, s46, 1
    s_add_u32 s{sC0}, s46, s42
    s_cmp_ge_u32 s{sC0}, 10
    s_cselect_b32 s46, 10, 0
    s_sub_u32 s{sC0}, s{sC0}, s46
    s_mul_i32 s{sCol}, s{sJ}, 160
    s_min_u32 s{sCol}, s{sCol}, 1568
    s_lshl_b32 s46, s43, 1
    s_add_u32 s46, s46, s45
    s_sub_u32 s46, s46, 5
    {"s_mov_b32 s48, s42" if optval("dm", 0) == 8 else "s_and_b32 s48, s46, %d" % optval("dm", 0)}
    s_add_u32 s47, s43, 5
    s_cmp_ge_u32 s45, s47
    s_cselect_b32 s{sJ}, s46, s{sJ}
    s_cselect_b32 s{sC0}, s48, s{sC0}
    v_and_b32 v1, 15, v0
    v_lshrrev_b32 v2, 4, v0
    v_lshlrev_b32 v3, 4, v0
    s_cmp_lg_u32 s{sW}, 4
    s_cbranch_scc1 A_NOTLD
    """)
    A.prot = set(PTRS)
    sCh, sSl, sXo, sWo, sIt = 49, 50, 51, 53, 54
    A(f"""
    s_setprio 3
    v_lshrrev_b32 v8, 3, v0
    v_mul_u32_u24 v8, 81920, v8
    v_and_b32 v4, 7, v0
    v_xor_b32 v4, v4, v2
    v_lshl_add_u32 v4, v4, 4, v8
    v_xor_b32 v5, 64, v4
    v_add_u32 v5, {655360-1024}, v5
    v_add_u32 v6, {2*(655360-1024)}, v4
    v_add_u32 v7, {2*(655360-1024)}, v5
    s_mul_i32 s52, s{sR}, 5120
    s_sub_u32 s52, s52, 1280
    s_mov_b32 s{sSl}, 0
    s_mov_b32 s{sIt}, 0
    s_mov_b32 s{sCh}, s{sC0}
    s_mov_b32 s{rX+2}, {2048*1280}
    s_mov_b32 s{rX+3}, 0x20000
    s_cmp_ge_u32 s45, s47
    s_waitcnt lgkmcnt(0)
    s_mov_b64 s[{rX}:{rX+1}], s[{sX}:{sX+1}]
    s_cbranch_scc1 A_LDD
    """)
    A.prot |= set(range(rX, rX+4))
    def xblock(base):
        for w in range(4):
            A(f"s_add_u32 m0, s{sSl}, {base+4096*w}\ns_add_u32 s{sXo}, s{sXo}, 1280")
            for i in range(4): A(f"buffer_load_dwordx4 v{4+i}, s[{rX}:{rX+3}], s{sXo} offen offset:{1024*i} lds")
    def ring_tail(lab, n, slot, nld, first=None):
        A(f"""
        s_add_u32 s{sCh}, s{sCh}, 1
        s_cmp_eq_u32 s{sCh}, 10
        s_cselect_b32 s{sCh}, 0, s{sCh}
        s_add_u32 s{sSl}, s{sSl}, {slot}
        s_cmp_eq_u32 s{sSl}, {3*slot}
        s_cselect_b32 s{sSl}, 0, s{sSl}
        s_add_u32 s{sIt}, s{sIt}, 1
        s_cmp_eq_u32 s{sIt}, 1
        s_cbranch_scc1 {first or lab}
        s_cmp_lt_u32 s{sIt}, {n}
        s_waitcnt vmcnt({nld})
        s_barrier
        s_cbranch_scc1 {lab}
        """)
        reset(A)
    A(f"A_LDMP:\ns_waitcnt vmcnt({optval('pace', 15)})\nA_LDM:\ns_lshl_b32 s{sXo}, s{sCh}, 7\ns_add_u32 s{sXo}, s{sXo}, s52")
    xblock(0)
    ring_tail("A_LDM", 10, SLOT, 16, "A_LDMP")
    A("s_waitcnt vmcnt(0)\ns_barrier\ns_barrier\ns_branch B_LH")
    A(f"A_LDD:\ns_lshl_b32 s{sXo}, s{sCh}, 7\ns_add_u32 s{sXo}, s{sXo}, s52")
    xblock(0)
    A(f"s_cmp_ge_u32 s{sCh}, 5\ns_cselect_b32 s58, 1280, 0\ns_sub_u32 s{sXo}, s{sXo}, s58\ns_sub_u32 s{sXo}, s{sXo}, {4*1280-640}")
    xblock(16384)
    A(f"s_cmp_lg_u32 s{sIt}, 0\ns_cbranch_scc1 A_LDD0")
    fprime_pre()
    A(f"s_mov_b32 s{sIt}, 0\nA_LDD0:")
    A(f"s_cmp_lg_u32 s{sIt}, 4\ns_cbranch_scc1 A_LDD1\ns_waitcnt vmcnt(0)\nA_LDD1:")
    ring_tail("A_LDD", 5, PS, 32)
    A("s_setprio 0")
    srd(A, rF, sWS, FLG_SZ, FLG_OFF)
    srd(A, rA, sW2, 1728*1280)
    for i in range(5): A(f"v_mov_b32 v{9+i}, v3")
    A("s_branch A_D3w")

    reset(A); A.prot = set(PTRS)
    A(f"A_NOTLD:\ns_cmp_lt_u32 s{sW}, 4\ns_cbranch_scc1 A_COMPUTE\ns_cmp_ge_u32 s45, s47\ns_cbranch_scc1 A_DH0")
    A(f"s_cmp_lg_u32 s{sW}, 5\ns_cbranch_scc1 A_DH0\ns_setprio 3\ns_mov_b32 s52, {(1<<32)//20+1}")
    for i in range(5): div20(9+i, i, 3456, True)
    A(f"s_mov_b32 s{sCh}, s{sC0}\ns_lshl_b32 s52, s{sCol}, 1\ns_sub_u32 s52, s52, {16*3456}\ns_mov_b32 s{sSl}, 0\ns_mov_b32 s{sIt}, 0\ns_waitcnt lgkmcnt(0)")
    srd(A, rA, sW1, 640*3456)
    A(f"A_LDW:\ns_mul_i32 s{sWo}, s{sCh}, {64*3456}\ns_add_u32 s{sWo}, s{sWo}, s52")
    for q in range(4):
        A(f"s_add_u32 m0, s{sSl}, {16384+5120*q}\ns_add_u32 s{sWo}, s{sWo}, {16*3456}")
        for i in range(4): A(f"buffer_load_dwordx4 v{9+i}, s[{rA}:{rA+3}], s{sWo} offen offset:{1024*i} lds")
        A(f"s_add_u32 m0, s{sSl}, {16384+5120*q+4096}")
        A(f"buffer_load_dwordx4 v13, s[{rA}:{rA+3}], s{sWo} offen lds")
    ring_tail("A_LDW", 10, SLOT, 20)
    A("s_waitcnt vmcnt(0)\ns_barrier\ns_barrier\ns_branch B_LW")

    reset(A); A.prot = set(PTRS)
    A("A_MH:")
    A.prot |= set(range(rF, rF+4))
    A(f"""
    s_mul_i32 s46, s43, 20
    s_mul_i32 s{sKT}, s44, s47
    s_add_u32 s46, s46, s{sKT}
    s_add_u32 s55, s46, s45
    s_mul_i32 s{sU1}, s55, 26
    s_lshr_b32 s{sU1}, s{sU1}, 8
    s_mul_i32 s46, s{sU1}, 10
    s_sub_u32 s{sKT}, s55, s46
    s_lshl_b32 s{sKT}, s{sKT}, 1
    s_and_b32 s46, s{sW}, 1
    s_add_u32 s{sKT}, s{sKT}, s46
    s_lshl_b32 s{sJL}, s46, 13
    s_add_u32 s{sJL}, s{sJL}, {RPK}
    s_lshl_b32 s46, s42, 3
    s_add_u32 s{sU1}, s{sU1}, s46
    s_add_u32 s{sU1}, s{sU1}, 4
    v_mov_b32 v4, {CW}
    v_mov_b32 v5, 0
    ds_write_b32 v4, v5
    """)
    srd(A, rC, sB1, 1728*2)
    A(f"v_lshlrev_b32 v4, 3, v0\ns_lshl_b32 s46, s{sCol}, 1\nbuffer_load_dwordx2 v[160:161], v4, s[{rC}:{rC+3}], s46 offen")
    reset(A)
    wfrag_addr(4, 5, 6)
    srd(A, rB, sWS, CP_SZ, CP_OFF)
    A(f"""
    s_and_b32 s48, s{sW}, 1
    s_mul_i32 s46, s48, 160
    v_add_u32 v4, s46, v4
    s_lshl_b32 s46, s48, 1
    s_sub_u32 s46, 1, s46
    v_mul_i32_i24 v5, s46, v5
    v_add_u32 v6, v4, v5
    v_sub_u32 v7, v4, v5
    v_lshlrev_b32 v8, 2, v1
    v_lshl_add_u32 v8, v2, 28, v8
    s_mul_i32 s49, s{sJ}, 6400
    s_mul_i32 s46, s{sC0}, 640
    s_add_u32 s50, s49, s46
    s_mul_i32 s46, s48, 320
    s_add_u32 s50, s50, s46
    s_add_u32 s51, s{sJ}, {L_C}
    s_lshl_b32 s51, s51, 8
    s_add_u32 s53, s{sR}, {L_S}
    s_lshl_b32 s53, s53, 8
    s_cmp_eq_u32 s48, 0
    s_mov_b32 s52, s53
    s_cselect_b32 s53, s53, s51
    s_cselect_b32 s54, 16, 32
    """)
    srd(A, rA, sWS, SP_SZ, SP_OFF)
    for i in range(4): A(f"v_mov_b32 v{12+i}, 0x3f803f80")
    def rowstats():
        L = A.label()
        A(f"s_cmp_ge_u32 s36, 16\ns_cbranch_scc1 {L}\nv_mov_b32 v164, 0\nv_mov_b32 v165, 0\nv_mov_b32 v166, 0\nv_mov_b32 v167, 0\ns_waitcnt vmcnt(1)")
        for i in range(40): A(f"v_dot2c_f32_bf16 v{164+2*(i&1)}, v{212+i}, v12\nv_dot2c_f32_bf16 v{165+2*(i&1)}, v{212+i}, v{212+i}")
        A("v_add_f32 v164, v164, v166\nv_add_f32 v165, v165, v167")
        for dp in ("quad_perm:[1,0,3,2]", "quad_perm:[2,3,0,1]", "row_half_mirror"):
            for r in (164, 165): A(f"v_add_f32_dpp v{r}, v{r}, v{r} {dp} row_mask:0xf bank_mask:0xf")
        A(f"v_mul_f32 v164, {fbits(1/640)}, v164\nv_mul_f32 v165, {fbits(1/640)}, v165\nv_fma_f32 v165, -v164, v164, v165\nv_max_f32 v165, 0, v165")
        bf16_round(A, 165, 165); A(f"v_add_f32 v165, {fbits(1e-5)}, v165"); bf16_round(A, 165, 165); A("v_sqrt_f32 v165, v165"); bf16_round(A, 165, 165)
        A(f"v_and_b32 v9, 7, v0\nv_lshl_add_u32 v9, v9, 28, v0\ns_lshl_b32 s46, s{sR}, 4\ns_add_u32 s46, s46, s36\ns_lshl_b32 s46, s46, 6")
        A(f"buffer_store_dwordx2 v[164:165], v9, s[{rA}:{rA+3}], s46 offen sc1\n{L}:")
        reset(A)
    rowstats()
    T.at(A, "mD", 3)
    A("s_waitcnt lgkmcnt(0)\ns_barrier")
    init_issue()
    for t in range(2):
        for q in range(5):
            for jh in range(2): A(f"ds_read_b64_tr_b16 {v(80+20*t+4*q+2*jh,2)}, v{6 if q%2==0 else 7} offset:{t*10240+jh*1280+q*32}")
    for t in range(2):
        for q in range(5): A(mfma(124+4*q, 12, 80+20*t+4*q, None if t else 0))
    initcheck()
    A("s_cmp_ge_u32 s36, 16\ns_cbranch_scc1 A_MH2")
    arrive(52)
    T.at(A, "mD", 2)
    A("A_MH2:")
    for q in range(5): A(f"buffer_store_dword v{124+4*q}, v8, s[{rB}:{rB+3}], s50 offen offset:{64*q} sc1")
    A("s_barrier")
    A("s_barrier\ns_barrier")
    arrive(51)
    for _ in range(4, 8): A("s_barrier")
    A("s_waitcnt lgkmcnt(0)")
    poll_issue(53)
    A("s_barrier")
    poll(53, "s54", 0, True)
    T.at(A, "mD", 0)
    A("s_cmp_eq_u32 s48, 0\ns_cbranch_scc0 A_MH7")
    stats_fetch()
    A("s_sleep 2\ns_branch A_MH7b")
    A("A_MH7:\ns_mov_b32 exec_hi, 0xff\ns_add_u32 s50, s49, 3200")
    for c in range(10): A(f"buffer_load_dwordx4 {v(80+4*c,4)}, v3, s[{rB}:{rB+3}], s{49 if c < 5 else 50} offen offset:{640*(c%5)} sc1")
    A("s_mov_b64 exec, -1\nA_MH7b:")
    reset(A)
    job_wdma()
    A("s_barrier\ns_waitcnt vmcnt(8)\ns_cmp_eq_u32 s48, 0\ns_cbranch_scc0 A_MH7c")
    reset(A)
    for m, o in ((224, 232), (226, 236)):
        A(f"v_rcp_f32 v5, v{m+1}\nv_cvt_pk_bf16_f32 v{o}, -v{m}, -v{m}\nv_mov_b32 v{o+3}, v{m+1}\nv_mul_f32 v{o+2}, {fbits(K0)}, v5\nv_mul_f32 v5, v5, v5\nv_mul_f32 v5, v5, v{o+2}\nv_mul_f32 v{o+1}, {fbits(0.044715)}, v5")
    A(f"v_lshlrev_b32 v4, 5, v0\nv_add_u32 v4, {STAT}, v4\nds_write_b128 v4, v[232:235]\nds_write_b128 v4, v[236:239] offset:16\ns_branch A_MH8")
    A("A_MH7c:\ns_mov_b32 s69, 0xffff0000")
    for c in range(1, 10):
        for i in range(4): A(f"v_add_f32 v{80+i}, v{80+i}, v{80+4*c+i}")
    for i in range(4):
        A(f"v_and_b32 v5, s69, v{80+i}\nv_sub_f32 v5, v{80+i}, v5\nv_cvt_pk_bf16_f32 v5, v5, v5\nv_alignbit_b32 v{124+2*i}, v5, v{80+i}, 16")
        A(f"v_lshrrev_b32 v{125+2*i}, 16, v{160+i//2}" if i % 2 else f"v_and_b32 v{125+2*i}, 0xffff, v{160+i//2}")
    A(f"v_lshlrev_b32 v4, 5, v0\nv_add_u32 v4, {CX}, v4\ns_mov_b32 exec_hi, 0xff\nds_write_b128 v4, v[124:127]\nds_write_b128 v4, v[128:131] offset:16\ns_mov_b64 exec, -1")
    A("A_MH8:\ns_waitcnt lgkmcnt(0)")
    T.at(A, "mD", 1)
    A(f"s_barrier\ns_mov_b32 s38, {optval('gate', 4)}\ns_cmp_lt_u32 s55, 40\ns_cbranch_scc1 A_JOB\ns_waitcnt vmcnt(0)")
    T.end(A, sW, sWS)
    A("s_endpgm")

    reset(A); A.prot = set(PTRS)
    sH = 36
    A(f"A_DH1:\ns_sub_u32 s{sH}, s{sW}, 5\ns_add_u32 s53, s{sR}, {L_S}\ns_lshl_b32 s53, s53, 8")
    A.prot |= set(range(rF, rF+4))
    sE, sL = 55, 38
    A(f"""
    s_mul_i32 s{sE}, s{sR}, 5
    s_add_u32 s{sE}, s{sE}, s{sJ}
    s_mul_i32 s{sE}, s{sE}, 3
    s_add_u32 s{sE}, s{sE}, s{sH}
    s_mul_i32 s{sL}, s{sH}, 10240
    s_add_u32 s{sL}, s{sL}, {RPK}
    s_lshr_b32 s67, s{sE}, 2
    s_mul_i32 s67, s67, 40960
    s_and_b32 s52, s{sE}, 3
    s_mul_i32 s52, s52, 320
    s_add_u32 s67, s67, s52
    s_mov_b32 s52, {(1<<32)//20+1}
    """)
    for i in range(5): div20(9+i, i, 1280, False)
    srd(A, rA, sW2, 1728*1280)
    def rp_load():
        for q in range(2):
            A(f"s_add_u32 m0, s{sL}, {5120*q}")
            for i in range(4): A(f"buffer_load_dwordx4 v{9+i}, s[{rA}:{rA+3}], s67 offen offset:{1024*i} lds")
            A(f"s_add_u32 m0, s{sL}, {5120*q+4096}\nbuffer_load_dwordx4 v13, s[{rA}:{rA+3}], s67 offen lds")
            if q == 0: A(f"s_add_u32 s67, s67, {16*1280}")
    fprime_pre()
    A("s_barrier\ns_barrier")
    A(f"s_cmp_lg_u32 s{sW}, 7\ns_cbranch_scc1 A_D1")
    init_issue()
    initcheck()
    poll_issue(53)
    A(f"A_D1:\ns_barrier\ns_cmp_lg_u32 s{sW}, 7\ns_cbranch_scc1 A_D2")
    T.at(A, "mD", 0)
    poll(53, 16, 0, True)
    stats_fetch()
    A(f"v_rcp_f32 v224, v225\nv_rcp_f32 v225, v227\nv_lshlrev_b32 v4, 3, v0\nv_add_u32 v4, {STAT}, v4\nv_mul_f32 v224, {fbits(2.0/(2048*640))}, v224\nv_mul_f32 v225, {fbits(2.0/(2048*640))}, v225\nds_write_b64 v4, v[224:225]")
    A("s_waitcnt lgkmcnt(0)")
    T.at(A, "mD", 1)
    A(f"""
    A_D2:
    s_barrier
    A_D3w:
    s_and_b32 s54, s{sW}, 3
    s_lshl_b32 s46, s54, 7
    s_add_u32 s46, s46, {STAT}
    v_lshl_add_u32 v7, v2, 4, s46
    s_lshl_b32 s46, s54, 12
    s_add_u32 s46, s46, {FX}
    v_add_u32 v6, s46, v3
    v_and_b32 v8, 1, v1
    v_lshlrev_b32 v8, 31, v8
    """)
    T.at(A, "mD", 2)
    A("ds_read_b128 v[228:231], v7\nds_read_b128 v[232:235], v7 offset:64")
    A(f"s_cmp_eq_u32 s{sW}, 4\ns_cbranch_scc1 A_D2a")
    rp_load()
    A("A_D2a:")
    A.vm = []
    for j in range(4): A(f"v_xor_b32 v{232+j}, v8, v{232+j}")
    for ut in range(2):
        for cs in range(2):
            o = 104 + 4*(2*ut+cs); src = FQ+8*ut+4*cs
            for jh in range(2):
                for j in range(4): A(f"v_mul_f32 v{236+4*jh+j}, v{src+j}, v{228+4*jh+j}")
            for p in range(4): A(f"v_cvt_pk_bf16_f32 v{o+p}, v{236+2*p}, v{236+2*p+1}")
            A(f"ds_write_b128 v6, {v(o,4)} offset:{1024*(2*ut+cs)}")
    lds_add()
    T.at(A, "mD", 3)
    A(f"s_cmp_eq_u32 s{sW}, 4\ns_cbranch_scc1 A_D3")
    A(f"s_cmp_ge_u32 s{sE}, 216\ns_cbranch_scc1 A_D3")
    reset(A)
    srd(A, rB, sWS, W2P_SZ, W2P_OFF)
    A(f"""
    v_lshrrev_b32 v5, 2, v1
    v_lshl_add_u32 v5, v2, 2, v5
    v_mul_u32_u24 v5, 320, v5
    v_and_b32 v6, 3, v1
    v_lshl_add_u32 v5, v6, 3, v5
    v_add_u32 v5, s{sL}, v5
    v_add_u32 v6, 4096, v3
    s_and_b32 s46, s{sE}, 3
    s_mul_i32 s46, s46, 108
    s_lshr_b32 s52, s{sE}, 2
    s_add_u32 s46, s46, s52
    s_mul_i32 s46, s46, 5120
    s_waitcnt vmcnt(0)
    """)
    for nt in range(10):
        for jh in range(2): A(f"ds_read_b64_tr_b16 {v(YF+4*nt+2*jh,2)}, v5 offset:{jh*5120 + nt*32}")
    for nt in range(10):
        q = nt % 5
        if q < 4: A(f"buffer_store_dwordx4 {v(YF+4*nt,4)}, v3, s[{rB}:{rB+3}], s46 offen offset:{1024*q} sc1")
        else: A(f"buffer_store_dwordx4 {v(YF+4*nt,4)}, v6, s[{rB}:{rB+3}], s46 offen sc1\ns_add_u32 s46, s46, {54*5120}")
    A("A_D3:")
    A(f"""
    s_mul_i32 s46, s43, 12
    s_sub_u32 s{sKT}, 8, s47
    s_mul_i32 s{sKT}, s{sKT}, s44
    s_add_u32 s46, s46, s{sKT}
    s_add_u32 s46, s46, s45
    s_sub_u32 s46, s46, s47
    s_mul_i32 s{sU1}, s46, 52
    s_lshr_b32 s{sU1}, s{sU1}, 8
    s_mul_i32 s{sKT}, s{sU1}, 5
    s_sub_u32 s{sKT}, s46, s{sKT}
    s_lshl_b32 s{sKT}, s{sKT}, 2
    s_and_b32 s46, s{sW}, 3
    s_add_u32 s{sKT}, s{sKT}, s46
    s_mul_i32 s{sJL}, s46, 10240
    s_add_u32 s{sJL}, s{sJL}, {RPK - 10240}
    s_cmp_eq_u32 s46, 0
    s_cselect_b32 s{sJL}, 71680, s{sJL}
    s_lshl_b32 s46, s42, 3
    s_add_u32 s{sU1}, s{sU1}, s46
    """)
    if optval("wg", 0): lds_wait(optval("wg", 0))
    job_wdma()
    reset(A)
    A(f"s_cmp_eq_u32 s{sW}, 4\ns_cbranch_scc1 A_DH\ns_cmp_ge_u32 s{sE}, 216\ns_cbranch_scc1 A_DW")
    signal2(f"s_and_b32 s46, s{sE}, 7\ns_add_u32 s46, s46, {L_W}", 26, 1 << 16)
    T.at(A, "mD", 4)
    A("s_branch A_DW\nA_DH0:\ns_waitcnt lgkmcnt(0)")
    srd(A, rF, sWS, FLG_SZ, FLG_OFF)
    srd(A, rX, sX, 2048*1280)
    A(f"""
    s_and_b32 s46, s{sW}, 1
    s_xor_b32 s46, s46, 1
    s_mul_i32 s46, s46, 11
    s_add_u32 s36, s46, s{sJ}
    s_cmp_ge_u32 s45, s47
    s_cselect_b32 s36, 99, s36
    s_cmp_ge_u32 s36, 16
    s_cbranch_scc1 A_DH
    s_and_b32 s46, s36, 3
    s_lshl_b32 s46, s46, 9
    s_lshr_b32 s52, s36, 2
    s_add_u32 s46, s46, s52
    s_lshl_b32 s52, s{sR}, 2
    s_add_u32 s46, s46, s52
    s_mul_i32 s46, s46, 1280
    v_lshrrev_b32 v4, 3, v0
    v_mul_u32_u24 v4, 81920, v4
    v_and_b32 v5, 7, v0
    v_lshl_add_u32 v4, v5, 4, v4
    """)
    for c in range(10): A(f"buffer_load_dwordx4 {v(212+4*c,4)}, v4, s[{rX}:{rX+3}], s46 offen offset:{128*c}")
    reset(A)
    A("A_DH:")
    job_consts()
    A(f"s_cmp_lt_u32 s45, s47\ns_cbranch_scc1 A_MH\ns_cmp_gt_u32 s{sW}, 4\ns_cbranch_scc1 A_DH1")
    A("A_DW:\ns_mov_b32 s38, 0")
    A("A_JOB:\ns_setprio 3")
    T.at(A, "mJ", 0)
    rV, rU = rC, rB
    srd(A, rV, sWS, V_SZ, V_OFF); srd(A, rU, sWS, U_SZ, U_OFF)
    for i in range(32): A(f"v_mov_b32 v{WR+i}, 0")
    A(f"""
    v_lshrrev_b32 v5, 2, v1
    v_lshl_add_u32 v5, v2, 2, v5
    v_lshlrev_b32 v5, 6, v5
    v_and_b32 v6, 3, v1
    v_lshl_add_u32 v5, v6, 4, v5
    v_add_u32 v5, s{sJL}, v5
    v_lshlrev_b32 v6, 8, v2
    v_lshl_add_u32 v6, v1, 1, v6
    v_add_u32 v6, s{sPAR}, v6
    s_mov_b32 s65, 0x80008000
    s_mul_i32 s50, s{sU1}, 20
    s_add_u32 s50, s50, s{sKT}
    s_lshl_b32 s50, s50, 12
    s_lshl_b32 s51, s{sKT}, 8
    s_mov_b32 m0, s{sJL}
    s_waitcnt vmcnt(0)
    """)
    for mt in range(4):
        for r in range(4):
            for ar in range(2): A(f"ds_read_u16_d16_hi v{(WR,WI)[ar]+4*mt+r}, v6 offset:{4096*ar+(16*mt+r)*64}")
    A("s_cmp_lt_u32 s45, s47\ns_cbranch_scc1 A_J1")
    lds_wait(12, (10, 11))
    if optval("vd", 0): A(f"s_sleep {optval('vd', 0)}")
    A("s_branch A_J1b\nA_J1:")
    if optval("vm", 0): A(f"s_sleep {optval('vm', 0)}")
    A("A_J1b:")
    T.at(A, "mJ", 1)
    poll(51, 16, ps=optval('pv', 2))
    T.at(A, "mJ", 2)
    for i in range(4): A(f"buffer_load_dwordx4 v3, s[{rV}:{rV+3}], s50 offen offset:{1024*i} sc1 lds")
    A(f"""
    v_lshrrev_b32 v9, 1, v1
    v_and_b32 v9, 3, v9
    v_xor_b32 v9, v9, v2
    v_lshlrev_b32 v9, 4, v9
    v_lshl_add_u32 v9, v1, 6, v9
    v_add_u32 v9, s{sJL}, v9
    v_lshrrev_b32 v6, 3, v0
    v_and_b32 v7, 3, v6
    v_lshlrev_b32 v7, 4, v7
    v_xor_b32 v7, v7, v3
    v_add_u32 v7, s{sJL}, v7
    v_mul_u32_u24 v6, 81920, v6
    v_and_b32 v8, 7, v0
    v_lshl_add_u32 v6, v8, 4, v6
    s_lshl_b32 s50, s{sKT}, 12
    s_lshl_b32 s46, s{sU1}, 7
    s_add_u32 s50, s50, s46
    s_cmp_eq_u32 s{sKT}, 19
    s_cselect_b32 s46, 0.5, 1.0
    v_cmp_eq_u32 vcc, 3, v2
    v_mov_b32 v8, s46
    v_cndmask_b32 v8, 1.0, v8, vcc
    s_waitcnt vmcnt(0)
    """)
    lds_wait("s38", (10, 11))
    T.at(A, "mJ", 3)
    for t in range(2):
        for rho in range(2):
            for jh in range(2): A(f"ds_read_b64_tr_b16 {v(VF+12*t+4*rho+2*jh,2)}, v5 offset:{2048*t+1024*jh+8*rho}")
    for t in range(2):
        for p in range(4): A(f"v_xor_b32 v{VF+12*t+8+p}, s65, v{VF+12*t+p}")
    def fwd(mt):
        m = []
        for t in range(2):
            re, im = XA+8*mt, XA+8*mt+4
            C, S = CF+(mt*2+t)*4, SF+(mt*2+t)*4
            m += [mfma(re, C, VF+12*t, None if t else 0), mfma(im, C, VF+12*t+4, None if t else 0), mfma(re, S, VF+12*t+4), mfma(im, S, VF+12*t+8)]
        return m
    def filt(mt):
        f = []
        tb = TA + 8*(mt & 1)
        for r in range(4):
            xr, xi, w_r, w_i = XA+8*mt+r, XA+8*mt+4+r, WR+4*mt+r, WI+4*mt+r
            f += [f"v_mul_f32 v{tb+r}, v{xi}, v{w_i}", f"v_mul_f32 v{tb+4+r}, v{xr}, v{w_i}", f"v_fma_f32 v{tb+r}, v{xr}, v{w_r}, -v{tb+r}", f"v_fmac_f32 v{tb+4+r}, v{xi}, v{w_r}"]
        t, jh = mt >> 1, mt & 1
        for p in range(2):
            f += [f"v_cvt_pk_bf16_f32 v{YF+12*t+2*jh+p}, v{tb+2*p}, v{tb+2*p+1}", f"v_cvt_pk_bf16_f32 v{YF+12*t+4+2*jh+p}, v{tb+4+2*p}, v{tb+4+2*p+1}",
                  f"v_xor_b32 v{YF+12*t+8+2*jh+p}, s65, v{YF+12*t+4+2*jh+p}"]
        return f
    def inv(t):
        m = []
        for nt in range(4):
            re, im = UA+8*nt, UA+8*nt+4
            C, S = CF+(nt*2+t)*4, SF+(nt*2+t)*4
            m += [mfma(re, YF+12*t, C, None if t else 0), mfma(im, YF+12*t+4, C, None if t else 0), mfma(re, YF+12*t+8, S), mfma(im, YF+12*t, S)]
        return m
    for x in fwd(0) + fwd(1)[:4]: A(x)
    weave(A, fwd(1)[4:] + fwd(2) + fwd(3), filt(0) + filt(1))
    weave(A, inv(0), filt(2) + filt(3))
    def outp(nt):
        d = UA+8*nt
        return [f"v_mul_f32 v{d+3}, v{d+3}, v8", f"v_mul_f32 v{d+7}, v{d+7}, v8"] + [f"v_cvt_pk_bf16_f32 v{TA+4*nt+p}, v{d+2*p}, v{d+2*p+1}" for p in range(4)] + [f"ds_write_b128 v9, {v(TA+4*nt,4)} offset:{1024*nt}"]
    i1 = inv(1)
    for x in i1[:9]: A(x)
    weave(A, i1[9:], outp(0) + outp(1))
    for x in outp(2) + outp(3): A(x)
    A("s_waitcnt lgkmcnt(0)")
    for q in range(4): A(f"ds_read_b128 {v(VF+4*q,4)}, v7 offset:{1024*q}")
    for q in range(4):
        A(f"buffer_store_dwordx4 {v(VF+4*q,4)}, v6, s[{rU}:{rU+3}], s50 offen sc1\ns_add_u32 s50, s50, {8*81920}")
    T.at(A, "mJ", 4)
    A(f"s_mov_b32 s55, 0\ns_cmp_lt_u32 s{sW}, {6 if 'bfirst' in OPT else 9}\ns_cbranch_scc1 A_J2")
    A(f"v_mov_b32 v4, {CW}\nds_read_b32 v5, v4\ns_waitcnt lgkmcnt(0)\nv_readfirstlane_b32 s55, v5\ns_bfe_u32 s55, s55, {8 | (8 << 16)}\ns_cmp_eq_u32 s55, 0\ns_cbranch_scc1 A_J2")
    A("s_barrier\ns_barrier\ns_barrier\nA_J2:")
    A(f"s_add_u32 s46, s{sKT}, {L_U}\ns_lshl_b32 s46, s46, 8\ns_mov_b32 s66, 1\ns_waitcnt vmcnt(0)")
    A.raw(f"s_atomic_add s66, s[{rF}:{rF+1}], s46 glc")
    A("s_cmp_eq_u32 s55, 0\ns_cbranch_scc1 A_J3\ns_barrier\ns_barrier\nA_J3:")
    A(f"v_lshlrev_b32 v4, 8, v0\nv_mov_b32 v5, 256\ns_movk_i32 s46, {L_R*256}\ns_waitcnt lgkmcnt(0)\ns_cmp_lg_u32 s66, 31\ns_cbranch_scc1 A_J4")
    A(f"buffer_atomic_add v5, v4, s[{rF}:{rF+3}], s46 offen sc1\nA_J4:")
    reset(A)
    A(f"s_cmp_eq_u32 s{sW}, 4\ns_cbranch_scc1 B_LH\ns_cmp_eq_u32 s{sW}, 5\ns_cbranch_scc1 B_LW")
    T.end(A, sW, sWS)
    A("s_endpgm")

    reset(A); A.prot = set(PTRS)
    A(f"A_COMPUTE:\ns_lshl_b32 s{sS2}, s{sR}, 2\ns_add_u32 s{sS2}, s{sS2}, s{sW}")
    xfrag_addr(8)
    A(f"s_mov_b32 s{sSl}, 0\ns_waitcnt lgkmcnt(0)\ns_cmp_ge_u32 s45, s47\ns_cbranch_scc1 A_DFT")
    rH = rA
    srd(A, rH, sWS, H_SZ, H_OFF)
    ACC = 20; AF = 100; XF = 180; AUG = 196; ST4 = 236; KC = 244
    vXA0, vXA1, vWE, vWO, vXB, vWB, vG32 = 10, 11, 12, 13, 14, 15, 16
    wfrag_addr(vWB, vG32, 18)
    A(f"""
    s_lshl_b32 s46, s{sW}, 12
    v_add_u32 v{vXB}, s46, v8
    v_lshlrev_b32 v18, 3, v1
    v_add_u32 v18, {CX}, v18
    s_lshl_b32 s46, s{sW}, 9
    s_add_u32 s46, s46, {STAT}
    v_lshl_add_u32 v9, v1, 4, s46
    s_lshr_b32 s38, s{sS2}, 1
    s_mul_i32 s46, s38, 54
    s_lshr_b32 s52, s{sCol}, 5
    s_add_u32 s46, s46, s52
    s_lshl_b32 s46, s46, 2
    s_and_b32 s52, s{sS2}, 1
    s_lshl_b32 s52, s52, 1
    s_add_u32 s46, s46, s52
    s_lshl_b32 s57, s46, 10
    s_cmp_eq_u32 s{sJ}, 10
    s_cselect_b32 s58, 0x40000000, s57
    s_add_u32 s38, s38, {L_R}
    v_cmp_eq_u32 s[64:65], 0, v2
    s_mov_b32 s{sIt}, 10
    """)
    for i in range(4): A(f"v_mov_b32 v{4+i}, 0")
    for r in [ACC+16*i for i in range(5)] + [AUG, AUG+16, AUG+32]: A(f"v_mfma_f32_32x32x16_bf16 {v(r,16)}, v[4:7], v[4:7], 0")
    addr_upd = [f"v_add_u32 v{vXA0}, s{sSl}, v{vXB}", f"v_add_u32 v{vWO}, s{sSl}, v{vWB}", f"v_add_u32 v{vWE}, v{vWO}, v{vG32}", f"v_sub_u32 v{vWO}, v{vWO}, v{vG32}", f"v_xor_b32 v{vXA1}, 64, v{vXA0}"]
    def reads(t):
        r = [f"ds_read_b128 {v(XF+8*t+4*mt,4)}, v{vXA0+t} offset:{2048*mt}" for mt in range(2)]
        for ft in range(10):
            for jh in range(2): r.append(f"ds_read_b64_tr_b16 {v(AF+40*t+4*ft+2*jh,2)}, v{vWE if ft%2==0 else vWO} offset:{t*10240+jh*1280+ft*32}")
        return r
    allm = [mfma(ACC+(ft*2+mt)*4, AF+40*t+4*ft, XF+8*t+4*mt) for t in range(2) for ft in range(10) for mt in range(2)]
    for x in addr_upd: A(x)
    T.at(A, "mA", 0)
    A("s_barrier")
    T.at(A, "mA", 1)
    for x in reads(0): A(x)
    st0 = A.state()
    A("A_ML:")
    slotadv = [f"s_add_u32 s{sSl}, s{sSl}, {SLOT}", f"s_cmp_eq_u32 s{sSl}, {3*SLOT}", f"s_cselect_b32 s{sSl}, 0, s{sSl}", f"s_sub_u32 s{sIt}, s{sIt}, 1"]
    R1 = optval("r1", 15); R0 = optval("r0", 36)
    weave(A, allm[:R1], reads(1)); weave(A, allm[R1:20], slotadv + addr_upd)
    A("s_waitcnt lgkmcnt(0)\ns_barrier")
    weave(A, allm[20:R0], reads(0) + [f"s_cmp_lg_u32 s{sIt}, 0"])
    for x in allm[R0:]: A(x)
    assert A.state()[0] == st0[0]
    A("s_cbranch_scc1 A_ML\nA_MLE:\ns_waitcnt vmcnt(0)")
    T.at(A, "mA", 2)
    for mt in range(2): A(f"ds_read_b128 {v(ST4+4*mt,4)}, v9 offset:{256*mt}")
    for ft in range(10): A(f"ds_read_b64 {v(AUG+4*ft,2)}, v18 offset:{128*ft}")
    BA = (4, 10)
    A("v_mov_b32 v12, 0\nv_mov_b32 v13, 0")
    for mt in range(2):
        b = BA[mt]
        A(f"v_lshrrev_b32 v{b+1}, 16, v{ST4+4*mt+3}\nv_cndmask_b32 v{b}, 0, v{ST4+4*mt}, s[64:65]\nv_cndmask_b32 v{b+1}, 0, v{b+1}, s[64:65]")
    dup = [f"v_mov_b32 v{KC+4*k+2*mt+h}, v{ST4+4*mt+1+k}" for mt in range(2) for k in range(3) for h in range(2)]
    weave(A, [mfma(ACC+(ft*2+mt)*4, AUG+4*ft, BA[mt]) for ft in range(10) for mt in range(2)], dup, per=1)
    T.at(A, "mA", 3)
    TMP = AF
    def grp(n):
        q, mt = n >> 1, n & 1
        tm = TMP + 8*(n % 3); o = TMP + 24 + 4*(n % 4)
        prs = [ACC + ((2*q+h)*2+mt)*4 + 2*p for h in range(2) for p in range(2)]
        s1 = [f"v_pk_mul_f32 {v(tm+2*i,2)}, {v(c,2)}, {v(c,2)}" for i, c in enumerate(prs)]
        s1 += [f"v_pk_fma_f32 {v(tm+2*i,2)}, {v(tm+2*i,2)}, {v(KC+2*mt,2)}, {v(KC+4+2*mt,2)}" for i in range(4)]
        s1 += [f"v_pk_mul_f32 {v(tm+2*i,2)}, {v(tm+2*i,2)}, {v(c,2)}" for i, c in enumerate(prs)]
        e = [f"v_exp_f32 v{tm+i}, v{tm+i}" for i in range(8)]
        s2 = [f"v_pk_fma_f32 {v(tm+2*i,2)}, {v(tm+2*i,2)}, {v(KC+8+2*mt,2)}, {v(KC+8+2*mt,2)}" for i in range(4)]
        r = [f"v_rcp_f32 v{tm+i}, v{tm+i}" for i in range(8)]
        s3 = [f"v_pk_mul_f32 {v(tm+2*i,2)}, {v(tm+2*i,2)}, {v(c,2)}" for i, c in enumerate(prs)]
        s3 += [f"v_cvt_pk_bf16_f32 v{o+i}, v{tm+2*i}, v{tm+2*i+1}" for i in range(4)]
        s3 += [f"buffer_store_dwordx4 {v(o,4)}, v3, s[{rH}:{rH+3}], s{57 if q else 58} offen offset:{1024*mt} sc1" + ("\ns_add_u32 s57, s57, 4096" if mt else "")]
        return s1, e, s2, r, s3
    G = [grp(n) for n in range(10)]
    for x in G[0][0]: A(x)
    for n in range(10):
        weave(A, G[n][1], G[n-1][4] if n else [])
        for x in G[n][2]: A(x)
        weave(A, G[n][3], G[n+1][0] if n < 9 else [])
    for x in G[9][4]: A(x)
    T.at(A, "mA", 4)
    lds_add()
    A("s_branch B_COMPUTE")

    reset(A); A.prot = set(PTRS)
    A("A_DFT:")
    rV = rC
    srd(A, rV, sWS, V_SZ, V_OFF); srd(A, rF, sWS, FLG_SZ, FLG_OFF)
    sK = 39
    ACC = 28; XF = 156; BF = 188; SQ = 204; TA = 220
    vSIG, vTQ = 252, 4
    vXA = 10; vXB = 18
    A(f"""
    s_lshl_b32 s{sK}, s{sJ}, 2
    s_add_u32 s{sK}, s{sK}, s{sW}
    s_lshl_b32 s64, s{sK}, 8
    v_add_u32 v22, 1, v1
    v_lshlrev_b32 v22, 31, v22
    v_or_b32 v{vSIG}, 1.0, v22
    v_or_b32 v{vSIG+1}, 1.0, v22
    """)
    A(f"""
    s_lshl_b32 s46, s{sK}, 4
    s_add_u32 s46, s46, 1
    v_add_u32 v5, s46, v1
    v_mul_u32_u24 v6, s{sC0}, v5
    v_mul_u32_u24 v7, 6554, v6
    v_lshrrev_b32 v7, 16, v7
    v_mul_u32_u24 v7, 10, v7
    v_sub_u32 v6, v6, v7
    v_cvt_f32_u32 v6, v6
    v_mul_f32 v6, {fbits(-0.1)}, v6
    v_cvt_f32_u32 v5, v5
    v_mul_f32 v5, {fbits(-1/640)}, v5
    v_lshlrev_b32 v7, 3, v2
    v_cvt_f32_u32 v7, v7
    v_add_f32 v7, 0.5, v7
    v_fma_f32 v{SQ}, v5, v7, v6
    v_mul_f32 v7, {fbits(32.0)}, v5
    v_cos_f32 v{vTQ}, v7
    """)
    for j in range(1, 8): A(f"v_add_f32 v{SQ+j}, v5, v{SQ+j-1}")
    for j in range(8): A(f"v_sub_f32 v{SQ+16+j}, v{SQ+j}, v7")
    A(f"v_add_f32 v{vTQ}, v{vTQ}, v{vTQ}")
    for sd in range(2):
        for j in range(8): A(f"v_sin_f32 v{SQ+16*sd+8+j}, v{SQ+16*sd+j}\nv_cos_f32 v{SQ+16*sd+j}, v{SQ+16*sd+j}")
    def bcv(t): return [f"v_cvt_pk_bf16_f32 v{BF+8*t+p}, v{SQ+16*t+2*p}, v{SQ+16*t+2*p+1}" for p in range(8)]
    def bstep(t): return [f"v_fma_f32 v{SQ+16*t+j}, v{vTQ}, v{SQ+16*(t^1)+j}, -v{SQ+16*t+j}" for j in range(16)] + bcv(t)
    for x in bcv(0): A(x)
    for i in range(4): A(f"v_mov_b32 v{BF+8+i}, 0")
    for r in [ACC+16*i for i in range(8)]: A(f"v_mfma_f32_32x32x16_bf16 {v(r,16)}, {v(BF+8,4)}, {v(BF+8,4)}, 0")
    dupd = [f"v_add_u32 v{vXA}, s{sSl}, v8", f"v_xor_b32 v{vXA+1}, 64, v{vXA}"]
    frs = [(h, t, m) for t in range(2) for h in range(2) for m in range(8)]
    def rd(i):
        h, t, m = frs[i % 32]
        return f"ds_read_b128 {v(XF+4*(i%8),4)}, v{vXA+t} offset:{h*16384+2048*m}"
    AH = 6
    A(f"s_mov_b32 s{sIt}, 5")
    for x in dupd: A(x)
    A(f"""
    v_add_u32 v13, {FX}, v3
    s_lshl_b32 s46, s{sW}, 13
    v_and_b32 v5, 7, v1
    v_xor_b32 v5, v5, v2
    v_lshlrev_b32 v5, 4, v5
    v_lshl_add_u32 v5, v1, 8, v5
    v_add_u32 v14, s46, v5
    v_xor_b32 v15, 64, v14
    v_xor_b32 v18, v1, v2
    v_lshlrev_b32 v18, 4, v18
    v_lshl_add_u32 v18, v2, 8, v18
    v_add_u32 v18, s46, v18
    v_xor_b32 v19, 64, v18
    v_mul_u32_u24 v20, {20*4096}, v2
    v_lshl_add_u32 v20, v1, 4, v20
    s_lshl_b32 s65, s{sK}, 12
    s_lshl_b32 s52, s{sR}, 8
    s_add_u32 s65, s65, s52
    s_mov_b32 s70, 0x80008000
    v_mov_b32 v16, {CW}
    v_mov_b32 v17, 0
    ds_write_b32 v16, v17
    v_mov_b32 v21, 1
    s_waitcnt lgkmcnt(0)
    """)
    T.at(A, "mA", 0)
    A("s_barrier")
    T.at(A, "mA", 1)
    for i in range(AH): A(rd(i))
    st0 = A.state()
    A("A_DL:")
    pr, pv = [], []
    for i, (h, t, m) in enumerate(frs):
        x = XF + 4*(i % 8)
        ms = [mfma(ACC+((h*8+m)*2+rho)*4, x, BF+8*t+4*rho) for rho in range(2)]
        if i == 0: pv += bstep(1) + [f"s_add_u32 s{sSl}, s{sSl}, {PS}", f"s_cmp_eq_u32 s{sSl}, {3*PS}", f"s_cselect_b32 s{sSl}, 0, s{sSl}", f"s_sub_u32 s{sIt}, s{sIt}, 1"]
        if i == 16:
            assert not pv
            pv += bstep(0)
        if i % 2 == 0 and i + AH < 32: pr += [rd(i + AH), rd(i + AH + 1)]
        if i == 26: pv = dupd + pv
        if i == 28:
            A(f"s_cmp_lt_u32 s{sIt}, 2\ns_waitcnt lgkmcnt(0)\ns_cbranch_scc1 A_DL1\ns_barrier\nA_DL1:")
            pr += [rd(32+k) for k in range(4)]
        if i == 30: pr += [rd(36), rd(37)]; pv += [f"s_cmp_lg_u32 s{sIt}, 0"]
        for mm in ms:
            A(mm)
            n = 2
            if pr: A(pr.pop(0)); n -= 1
            if mm is ms[-1] and i < 27: n -= 1
            while n > 0 and pv: A(pv.pop(0)); n -= 1
    assert not pr and not pv
    assert A.state()[0] == st0[0]
    A("s_cbranch_scc1 A_DL\nA_DLE:")
    T.at(A, "mA", 2)
    RR = TA; TF = ACC + 64
    def tcv(gq):
        f = []
        for rho in range(2):
            for jh in range(2):
                c = ACC + ((2*gq+jh)*2+rho)*4
                for p in range(2): f.append(f"v_cvt_pk_bf16_f32 v{TF+12*gq+4*rho+2*jh+p}, v{c+2*p}, v{c+2*p+1}")
        f += [f"v_xor_b32 v{TF+12*gq+8+p}, s70, v{TF+12*gq+p}" for p in range(4)]
        return f
    def sta(gq):
        m = []
        for ut in range(2):
            Cf, Sf = XF+16*gq+8*ut, XF+16*gq+8*ut+4
            re, im, nre = TF+12*gq, TF+12*gq+4, TF+12*gq+8
            dre, dim = ACC+(gq*2+ut)*8, ACC+(gq*2+ut)*8+4
            m += [mfma(dre, re, Cf, 0), mfma(dim, im, Cf, 0), mfma(dre, im, Sf), mfma(dim, nre, Sf)]
        return m
    def outv(gq):
        f = []
        for ut in range(2):
            d = ACC+(gq*2+ut)*8; o = TA + 4*(gq*2+ut)
            f += [f"v_cvt_pk_bf16_f32 v{o+p}, v{d+2*p}, v{d+2*p+1}" for p in range(4)] + [f"ds_write_b128 v{14+(gq&1)}, {v(o,4)} offset:{4096*ut+128*(gq>>1)}"]
        return f
    A("s_mov_b64 exec, 1\nds_add_u32 v16, v21\ns_mov_b64 exec, -1")
    for i in range(32): A(f"v_pk_fma_f32 {v(ACC+2*i,2)}, {v(ACC+64+2*i,2)}, {v(vSIG,2)}, {v(ACC+2*i,2)}")
    A.lg = []
    A("s_mov_b32 s61, 4000000\nA_DS:\nds_read_b32 v17, v16")
    for q in range(16): A(f"ds_read_b128 {v(XF+4*q,4)}, v13 offset:{1024*q}")
    for x in tcv(0) + tcv(1): A(x)
    A("s_waitcnt lgkmcnt(15)\nv_readfirstlane_b32 s60, v17\ns_and_b32 s60, s60, 255\ns_cmp_ge_u32 s60, 8\ns_cbranch_scc1 A_DS1\ns_sub_u32 s61, s61, 1\ns_cmp_lg_u32 s61, 0\ns_waitcnt lgkmcnt(0)\ns_sleep 2\ns_cbranch_scc1 A_DS\nA_DS1:")
    A.lg = [regs_of(v(XF+4*q,4)) for q in range(16)]
    weave(A, sta(0), tcv(2)); weave(A, sta(1), tcv(3)); weave(A, sta(2), outv(0) + outv(1)[:5]); weave(A, sta(3), outv(1)[5:] + outv(2))
    for x in outv(3): A(x)
    A("s_waitcnt lgkmcnt(0)")
    for n in range(8): A(f"ds_read_b128 {v(XF+4*n,4)}, v{18 + (n&1)} offset:{1024*n}")
    for n in range(8):
        A(f"buffer_store_dwordx4 {v(XF+4*n,4)}, v20, s[{rV}:{rV+3}], s65 offen sc1\ns_add_u32 s65, s65, {4*20*4096}")
    T.at(A, "mA", 3)
    A("s_mov_b64 exec, 1\nds_add_u32 v16, v21\ns_mov_b64 exec, -1\ns_mov_b32 s38, 0")
    arrive(64)
    T.at(A, "mA", 4)

    sRB, sCB = 33, 34
    WP = 20480; HB = 4*WP; HP = 24576
    XT0 = HB + 16384; XT3 = GAP + 1280; BO = XT0 + 7680
    PTRB = {0, 1, 2, 4, 5, 14, 15, 32, 40, 41}
    def brole():
        A.prot = set(PTRB)
        A(f"s_lshr_b32 s42, s41, 3\ns_lshl_b32 s{sRB}, s40, 2\ns_add_u32 s{sRB}, s{sRB}, s42\ns_and_b32 s{sCB}, s41, 7\nv_lshlrev_b32 v3, 4, v0")
        A.prot |= {sRB, sCB}
    def itemoff(OF):
        A(f"s_mov_b32 s52, {(1<<32)//10+1}")
        for q in range(3):
            A(f"""
            v_add_u32 v9, {64*q}, v0
            v_mul_hi_u32 v10, v9, s52
            v_mul_u32_u24 v11, 10, v10
            v_sub_u32 v11, v9, v11
            v_mul_u32_u24 v10, 81920, v10
            v_lshl_add_u32 v{OF+q}, v11, 4, v10
            """)
    rH, rW, rU, rXb = 16, 28, 24, 28
    sO, sO2, sM = 62, 63, 64
    def bsrd(d, mul, sreg, off):
        A.prot -= set(range(d, d+4))
        A(f"s_mul_i32 s50, s{sreg}, {mul}\ns_add_u32 s50, s50, {off}\ns_add_u32 s{d}, s{sWS}, s50\ns_addc_u32 s{d+1}, s{sWS+1}, 0\ns_mov_b32 s{d+2}, {mul}\ns_mov_b32 s{d+3}, 0x20000")
        A.prot |= set(range(d, d+4))
    def ld(srdr, so, step, groups, base, o):
        for k, (vr, n, lo) in enumerate(groups):
            A(f"s_mov_b32 m0, {o+lo}" if base is None else f"s_add_u32 m0, s{base}, {o+lo}")
            for i in range(n): A(f"buffer_load_dwordx4 v{vr}, s[{srdr}:{srdr+3}], s{so} offen offset:{1024*i} sc1 lds")
        A(f"s_add_u32 s{so}, s{so}, {step}")
    def ldW(base, o, so): ld(rW, so, 10240, [(3, 4, 0), (4, 4, 4096), (5, 2, 8192)], base, o)
    def ldH(base, o): ld(rH, sO, 8192, [(3, 4, 0), (4, 4, 4096)], base, o)
    def ldU(base, o): ld(rU, sO2, 8192, [(6, 4, 0), (7, 4, 4096)], base, o)
    def hstart(OFr, gate):
        A(f"s_load_dwordx2 s[10:11], s[0:1], 56\ns_mul_i32 s54, s{sCB}, 160\ns_mul_i32 s63, s{sRB}, 2560\ns_add_u32 s63, s63, s54\ns_add_u32 s65, s{sRB}, {L_R}\ns_lshl_b32 s65, s65, 8\ns_waitcnt lgkmcnt(0)")
        srd(A, rXb, sX, 2048*1280); srd(A, rU, 10, 1280)
        for w in range(4):
            A(f"s_add_u32 s64, s63, {((w & 1) + 1024*(w >> 1))*1280}")
            for q in range(3):
                A(f"s_mov_b32 m0, {(XT0+2560*w if w < 3 else XT3)+1024*q}" + ("\ns_mov_b32 exec_hi, 0" if q == 2 else "") + f"\nbuffer_load_dwordx4 v{OFr+q}, s[{rXb}:{rXb+3}], s64 offen lds")
            A("s_mov_b64 exec, -1")
        A(f"s_mov_b32 m0, {BO}\ns_mov_b64 exec, 0x3ff\nbuffer_load_dwordx4 v3, s[{rU}:{rU+3}], s54 offen lds\ns_mov_b64 exec, -1")
        bsrd(rH, 54*4096, sRB, H_OFF)
        if gate: lds_wait(4)
        A(f"v_add_u32 v4, 4096, v3\ns_mov_b32 s{sO}, 0")
        T.at(A, "mB", 2)
        poll(65, 22, 0)
        T.at(A, "mB", 3)
        ldH(None, HB); ldH(None, HB + 8192); ldH(None, HB + HP); ldH(None, HB + HP + 8192)
        lds_add(256, (5, 6))
        reset(A)
    def preload(lab, gate=False):
        A(f"v_add_u32 v4, 4096, v3\nv_add_u32 v5, 8192, v3\ns_mov_b32 s{sO}, 0\ns_mov_b32 s{sM}, 0\ns_add_u32 s65, s{sRB}, {L_R}\ns_lshl_b32 s65, s65, 8")
        bsrd(rW, 54*5120, sCB, W2P_OFF)
        if gate:
            poll_issue(65)
            A(f"s_waitcnt lgkmcnt(0)\ns_bfe_u32 s60, s60, {16 | (8 << 16)}\ns_cmp_eq_u32 s60, {8 if 'pearly' in OPT else 99}\ns_cbranch_scc1 {lab}G")
            lds_wait(4, (6, 7))
        poll(65, 8, 16)
        A(f"{lab}G:")
        T.at(A, "mB", 1)
        A(f"{lab}:")
        ldW(sM, 0, sO)
        A(f"s_add_u32 s{sM}, s{sM}, 10240\ns_cmp_lt_u32 s{sM}, {7*10240}\ns_waitcnt vmcnt({optval('thr', 60)})\ns_cbranch_scc1 {lab}")
        reset(A)
    reset(A)
    A(f"B_COMPUTE:\ns_cmp_ge_u32 s45, s47\ns_cselect_b32 s53, 1, 9")
    T.at(A, "mB", 0)
    brole()
    sP, sKP, sUW, sUH, sIt = 44, 45, 46, 47, 48
    FP = 12; ACC = 28; HF = 68; UF = 124; ZA = 136; FI = 152; SQ = 164; TQ = 244; OF = 249; TC = 228
    vH, vW, vT, vWB, vTB, vHB = 4, 5, 6, 7, 8, 252
    rO = 20
    A(f"""
    s_load_dwordx2 s[8:9], s[0:1], 64
    s_add_u32 s56, s{sWS}, {FLG_OFF}
    s_addc_u32 s57, s{sWS+1}, 0
    s_lshl_b32 s38, s38, 8
    s_and_b32 s{sP}, s{sW}, 1
    s_lshr_b32 s{sKP}, s{sW}, 1
    s_lshl_b32 s55, s{sRB}, 1
    s_add_u32 s55, s55, s{sP}
    s_lshl_b32 s49, s{sKP}, 10
    s_add_u32 s49, s55, s49
    s_brev_b32 s67, 1
    """)
    A(f"v_lshlrev_b32 v9, 3, v2\nv_cvt_f32_u32 v9, v9\nv_lshl_add_u32 v10, v1, 6, s49\nv_cvt_f32_u32 v10, v10\nv_mul_f32 v10, {fbits(1/2048)}, v10\nv_mul_f32 v{TC}, v10, v9")
    for j in range(1, 8): A(f"v_add_f32 v{TC+j}, v10, v{TC+j-1}")
    for j in range(8): A(f"v_sin_f32 v{TC+8+j}, v{TC+j}\nv_cos_f32 v{TC+j}, v{TC+j}")
    for q in range(4): A(f"v_cvt_pk_bf16_f32 v{FP+q}, v{TC+2*q}, v{TC+2*q+1}\nv_cvt_pk_bf16_f32 v{FP+4+q}, v{TC+8+2*q}, v{TC+8+2*q+1}")
    for q in range(8): A(f"v_xor_b32 v{FP+8+q}, s67, v{FP+q}")
    itemoff(OF)
    A(f"""
    s_mul_i32 s50, s{sKP}, 5120
    v_add_u32 v{vWB}, s50, v3
    s_lshl_b32 s50, s{sKP}, 12
    s_lshl_b32 s51, s{sP}, 11
    s_add_u32 s51, s51, s50
    s_lshl_b32 s52, s{sKP}, 10
    s_add_u32 s51, s51, s52
    s_add_u32 s51, s51, {HB}
    v_add_u32 v{vHB}, s51, v3
    v_lshrrev_b32 v9, 2, v1
    v_lshl_add_u32 v9, v2, 3, v9
    v_lshlrev_b32 v9, 7, v9
    v_and_b32 v10, 3, v1
    v_lshl_add_u32 v9, v10, 4, v9
    s_lshl_b32 s51, s{sP}, 6
    v_add_u32 v9, s51, v9
    v_and_b32 v10, 8, v1
    v_lshlrev_b32 v10, 3, v10
    v_xor_b32 v9, v9, v10
    s_add_u32 s50, s50, {HB + 16384}
    v_add_u32 v{vTB}, s50, v9
    s_mul_i32 s54, s{sCB}, 160
    s_mul_i32 s59, s49, 1280
    s_add_u32 s59, s59, s54
    s_mul_i32 s58, s{sW}, 2560
    s_add_u32 s58, s58, {XT0}
    s_cmp_eq_u32 s{sW}, 3
    s_cselect_b32 s58, {XT3}, s58
    s_mov_b32 s70, 0x80008000
    s_mov_b32 s69, 0xffff0000
    s_mov_b32 s66, 1
    s_waitcnt vmcnt(0) lgkmcnt(0)
    """)
    A("s_cmp_eq_u32 s38, 0\ns_cbranch_scc1 B_NA")
    A.raw("s_atomic_add s66, s[56:57], s38")
    A("B_NA:")
    T.at(A, "mB", 1)
    srd(A, rO, 8, 2048*1280)
    A(f"""
    s_mul_i32 s50, s{sCB}, 80
    s_cmp_ge_u32 s{sCB}, 4
    s_cselect_b32 s51, 640, 0
    s_sub_i32 s50, s50, s51
    s_lshl_b32 s51, s{sKP}, 4
    v_lshl_add_u32 v{HF}, v2, 2, s51
    v_cvt_f32_u32 v{HF}, v{HF}
    v_add_u32 v{HF+1}, s50, v1
    v_cvt_f32_i32 v{HF+1}, v{HF+1}
    """)
    for e in range(5):
        A(f"v_add_f32 v9, {fbits(16.0*e + 0.5)}, v{HF+1}\nv_mul_f32 v9, {fbits(-1/640)}, v9\nv_mul_f32 v10, v{HF}, v9\nv_mul_f32 v{TQ+e}, {fbits(32.0)}, v9\nv_cos_f32 v{TQ+e}, v{TQ+e}")
        for sd in range(2):
            for r in range(4): A(f"v_fmamk_f32 v{SQ+16*e+8*sd+r}, v9, {fbits(r + 1.0 - 32.0*(sd+1))}, v10")
        A(f"v_add_f32 v{TQ+e}, v{TQ+e}, v{TQ+e}")
        for sd in range(2):
            o = SQ + 16*e + 8*sd
            for r in range(4): A(f"v_sin_f32 v{o+4+r}, v{o+r}\nv_cos_f32 v{o+r}, v{o+r}")
    for nt in range(5):
        for i in range(4): A(f"v_mov_b32 v{ACC+(nt*2+1)*4+i}, 0")
    BT = ZA; XT = UF
    A(f"v_mul_u32_u24 v11, 160, v1\nv_lshl_add_u32 v11, v2, 3, v11\nv_add_u32 v253, s58, v11\nv_lshlrev_b32 v10, 3, v2\nv_add_u32 v10, {BO}, v10\ns_mov_b32 s{sUW}, 0\ns_mov_b32 s{sUH}, 0")
    adv = [f"s_add_u32 s{sUW}, s{sUW}, {WP}", f"s_cmp_eq_u32 s{sUW}, {4*WP}\ns_cselect_b32 s{sUW}, 0, s{sUW}", f"s_add_u32 s{sUH}, s{sUH}, {HP}", f"s_cmp_eq_u32 s{sUH}, {3*HP}\ns_cselect_b32 s{sUH}, 0, s{sUH}"]
    upd = [f"v_add_u32 v{vW}, s{sUW}, v{vWB}", f"v_add_u32 v{vH}, s{sUH}, v{vHB}", f"v_xor_b32 v9, 1024, v{vH}", f"v_add_u32 v{vT}, s{sUH}, v{vTB}"]
    def hrd(b): return [f"ds_read_b128 {v(HF+28*b,4)}, v{vH} offset:{8192*b}", f"ds_read_b128 {v(HF+28*b+8,4)}, v{vW} offset:{10240*b}", f"ds_read_b128 {v(HF+28*b+4,4)}, v9 offset:{8192*b}"] + \
                       [f"ds_read_b128 {v(HF+28*b+8+4*nt,4)}, v{vW} offset:{10240*b+1024*nt}" for nt in range(1, 5)]
    def hmm(b): return [mfma(ACC+(nt*2+l)*4, HF+28*b+8+4*nt, HF+28*b+4*l) for nt in range(5) for l in range(2)]
    trr = [f"ds_read_b64_tr_b16 {v(UF+4*rho+2*jh,2)}, v{vT} offset:{512*jh+8*rho}" for rho in (1, 0) for jh in range(2)]
    neg = [f"v_xor_b32 v{UF+8+q}, s70, v{UF+4+q}" for q in range(4)]
    sa = []
    for l in range(2):
        C, S = FP+8*l, FP+8*l+4; re, im = ZA+8*l, ZA+8*l+4
        sa += [mfma(re, UF, C, 0), mfma(im, UF+4, C, 0), mfma(im, UF, S), mfma(re, UF+8, S)]
    cv = [f"v_cvt_pk_bf16_f32 v{ZA+8*l+r}, v{ZA+8*l+r}, v{ZA+8*l+4+r}" for l in range(2) for r in range(4)]
    def fst(par): return [f"v_fma_f32 v{SQ+16*e+8*(par^1)+j}, v{TQ+e}, v{SQ+16*e+8*par+j}, -v{SQ+16*e+8*(par^1)+j}" for e in range(5) for j in range(8)]
    def fcv(par, e): return [f"v_cvt_pk_bf16_f32 v{FI+4*(e%3)+r}, v{SQ+16*e+8*(par^1)+r}, v{SQ+16*e+8*(par^1)+4+r}" for r in range(4)]
    def zmm(e): return [mfma(ACC+(e*2+l)*4, FI+4*(e%3), ZA+8*l) for l in range(2)]
    def mix(main, reads, valu):
        reads, valu = list(reads), list(valu); n = len(main)
        for i, mm in enumerate(main):
            A(mm)
            left = n - i
            nr = max(-(-len(reads) // left), 1) if reads else 0
            for _ in range(nr): A(reads.pop(0))
            nv = max(-(-len(valu) // left), min(len(valu), 2 - nr))
            for _ in range(nv): A(valu.pop(0))
    A(f"s_cmp_gt_u32 s{sW}, 1\ns_cbranch_scc1 B_NP\ns_cmp_lg_u32 s53, 1\ns_cbranch_scc1 B_NP")
    lds_wait(12)
    A(f"s_cmp_eq_u32 s{sW}, 0\ns_cbranch_scc1 B_P0")
    on = T.on; T.on = False
    preload("B_PWD")
    A("s_branch B_P1\nB_P0:")
    hstart(OF, False)
    T.on = on
    A("B_P1:\ns_waitcnt vmcnt(0) lgkmcnt(0)\nB_NP:")
    for x in upd: A(x)
    T.at(A, "mB", 2)
    A("s_barrier")
    T.at(A, "mB", 3)
    for nt in range(5): A(f"ds_read_b64 {v(XT+2*nt,2)}, v253 offset:{32*nt}\nds_read_b64 {v(BT+2*nt,2)}, v10 offset:{32*nt}")
    for x in hrd(0): A(x)
    for nt in range(5):
        for h in range(2):
            c = ACC + nt*8 + 2*h
            A(f"v_lshlrev_b32 v{c}, 16, v{XT+2*nt+h}\nv_lshlrev_b32 v10, 16, v{BT+2*nt+h}\nv_and_b32 v{c+1}, s69, v{XT+2*nt+h}\nv_and_b32 v{FI}, s69, v{BT+2*nt+h}")
            A(f"v_add_f32 v{c}, v{c}, v10\nv_add_f32 v{c+1}, v{c+1}, v{FI}")
    A(f"s_mov_b32 s{sIt}, 3\nB_C0:\ns_waitcnt lgkmcnt(0)\ns_barrier")
    m = hmm(0); mix(m[:7], hrd(1), adv); mix(m[7:], [], upd + [f"s_sub_u32 s{sIt}, s{sIt}, 1"])
    A(f"s_waitcnt lgkmcnt(0)\ns_barrier\ns_cmp_lg_u32 s{sIt}, 0")
    mix(hmm(1), hrd(0), [])
    A("s_cbranch_scc1 B_C0")
    for x in adv + upd: A(x)
    for x in hmm(0): A(x)
    A(f"s_mov_b32 s{sIt}, 5\ns_waitcnt lgkmcnt(0)\ns_barrier")
    for x in trr + hrd(0) + fst(0)[:20] + neg: A(x)
    def half2(par):
        f = fst(par)
        A("s_waitcnt lgkmcnt(0)\ns_barrier")
        mix(sa, hrd(1), f[20:28])
        mix(hmm(0), [], f[28:] + adv + upd + cv)
    def half1(par, nxt, extra):
        if nxt: A("s_waitcnt lgkmcnt(0)\ns_barrier")
        mix(hmm(1), (trr + hrd(0)[:6]) if nxt else [], fcv(par, 0) + fcv(par, 1))
        f = fst(par ^ 1)[:20] if nxt else []
        mix(zmm(0), hrd(0)[6:] if nxt else [], fcv(par, 2)); mix(zmm(1), [], fcv(par, 3) + f[:2]); mix(zmm(2), [], fcv(par, 4) + f[2:4])
        mix(zmm(3) + zmm(4), [], f[4:] + (neg if nxt else []) + extra)
    A("B_CL:")
    half2(0); half1(0, True, [])
    half2(1)
    A(f"s_sub_u32 s{sIt}, s{sIt}, 1\ns_cmp_eq_u32 s{sIt}, 0\ns_cbranch_scc1 B_CE")
    stE = A.state()
    half1(1, True, [])
    A("s_branch B_CL\nB_CE:")
    A.lg = [set(x) for x in stE[0]]
    EX = 2*WP; RL = 3*WP
    half1(1, False, [f"s_xor_b32 s50, s{sW}, 2", "s_mul_i32 s50, s50, 5120", "v_add_u32 v9, s50, v3", f"s_mul_i32 s50, s{sW}, 5120", "v_add_u32 v10, s50, v3", "v_add_u32 v11, s50, v11"])
    T.at(A, "mB", 4)
    for nt in range(5): A(f"ds_write_b128 v9, {v(ACC+(nt*2+1)*4,4)} offset:{EX+1024*nt}")
    A("s_waitcnt lgkmcnt(0)\ns_barrier")
    P = HF
    for nt in range(5): A(f"ds_read_b128 {v(P+4*nt,4)}, v10 offset:{EX+1024*nt}")
    for nt in range(5):
        c = ACC + nt*8
        A(f"v_pk_add_f32 {v(c,2)}, {v(c,2)}, {v(P+4*nt,2)}\nv_pk_add_f32 {v(c+2,2)}, {v(c+2,2)}, {v(P+4*nt+2,2)}")
        A(f"v_cvt_pk_bf16_f32 v{c+4}, v{c}, v{c+1}\nv_cvt_pk_bf16_f32 v{c+5}, v{c+2}, v{c+3}\nds_write_b64 v11, {v(c+4,2)} offset:{RL+32*nt}")
    A("s_waitcnt lgkmcnt(0)")
    for q in range(3): A(f"ds_read_b128 {v(P+20+4*q,4)}, v10 offset:{RL+1024*q}")
    for q in range(3):
        if q == 2: A("s_mov_b32 exec_hi, 0")
        A(f"buffer_store_dwordx4 {v(P+20+4*q,4)}, v{OF+q}, s[{rO}:{rO+3}], s59 offen {'sc1' if 'osc1' in OPT else ''}")
    T.end(A, sW, sWS)
    A("s_endpgm")

    sIt = 48
    reset(A)
    A("B_LH:\ns_setprio 0\ns_cmp_ge_u32 s45, s47\ns_cselect_b32 s53, 1, 0")
    T.at(A, "mB", 0)
    brole()
    A(f"s_add_u32 s56, s{sWS}, {FLG_OFF}\ns_addc_u32 s57, s{sWS+1}, 0\ns_cmp_eq_u32 s53, 1\ns_cbranch_scc1 B_LH1")
    A.prot |= {56, 57}
    itemoff(12)
    hstart(12, True)
    A(f"""
    B_LH1:
    s_add_u32 s65, s{sRB}, {L_R}
    s_lshl_b32 s65, s65, 8
    v_add_u32 v4, 4096, v3
    v_and_b32 v6, 16, v0
    v_lshlrev_b32 v6, 2, v6
    v_xor_b32 v6, v6, v3
    v_add_u32 v7, 4096, v6
    s_mov_b32 s{sO}, {4*8192}
    s_mov_b32 s{sO2}, 0
    """)
    bsrd(rH, 54*4096, sRB, H_OFF); bsrd(rU, 20*4096, sRB, U_OFF)
    A("s_waitcnt vmcnt(24)\ns_barrier\ns_setprio 3")
    ldH(None, HB + 2*HP); A("s_waitcnt vmcnt(24)\ns_barrier")
    ldH(None, HB + 2*HP + 8192); A("s_waitcnt vmcnt(24)\ns_barrier")
    ldH(None, HB); A("s_waitcnt vmcnt(24)\ns_barrier")
    ldH(None, HB + HP); A("s_waitcnt vmcnt(24)\ns_barrier")
    ldH(None, HB + HP + 8192); A("s_waitcnt vmcnt(24)\ns_barrier")
    poll(65, 20, 8)
    T.at(A, "mB", 4)
    ldU(None, HB + HP + 16384)
    ldH(None, HB + 2*HP); ldU(None, HB + 2*HP + 16384)
    A("s_waitcnt vmcnt(40)\ns_barrier")
    A(f"s_mov_b32 s{sM}, {HB + 2*HP}\ns_mov_b32 s{sIt}, 9\nB_LL:")
    ldH(sM, 8192)
    A(f"s_add_u32 s{sM}, s{sM}, {HP}\ns_cmp_eq_u32 s{sM}, {HB + 3*HP}\ns_cselect_b32 s{sM}, {HB}, s{sM}\ns_sub_u32 s{sIt}, s{sIt}, 1\ns_cmp_eq_u32 s{sIt}, 0\ns_waitcnt vmcnt(24)\ns_barrier\ns_cbranch_scc1 B_LE")
    ldH(sM, 0); ldU(sM, 16384)
    A("s_waitcnt vmcnt(40)\ns_barrier\ns_branch B_LL\nB_LE:")
    A("s_barrier\ns_waitcnt vmcnt(8)\ns_barrier\ns_waitcnt vmcnt(0)\ns_barrier")
    T.end(A, sW, sWS)
    A("s_endpgm")
    reset(A)
    A("B_LW:\ns_setprio 0\ns_cmp_ge_u32 s45, s47\ns_cselect_b32 s53, 1, 0")
    T.at(A, "mB", 0)
    brole()
    A(f"s_add_u32 s56, s{sWS}, {FLG_OFF}\ns_addc_u32 s57, s{sWS+1}, 0\ns_cmp_eq_u32 s53, 1\ns_cbranch_scc1 B_LW1")
    A.prot |= {56, 57}
    preload("B_PW", True)
    A("B_LW1:")
    bsrd(rW, 54*5120, sCB, W2P_OFF)
    A(f"v_add_u32 v4, 4096, v3\nv_add_u32 v5, 8192, v3\ns_mov_b32 s{sO}, {7*10240}\ns_mov_b32 s{sM}, 0\ns_mov_b32 s{sIt}, 20")
    T.at(A, "mB", 2)
    WL = optval("wl", 3)
    for k in range(WL): A(f"s_waitcnt vmcnt({60-10*k})\ns_barrier")
    A("s_setprio 3\nB_LWL:")
    ldW(sM, 0, sO)
    A(f"s_add_u32 s{sM}, s{sM}, 10240\ns_cmp_eq_u32 s{sM}, {4*WP}\ns_cselect_b32 s{sM}, 0, s{sM}\ns_sub_u32 s{sIt}, s{sIt}, 1\ns_cmp_lg_u32 s{sIt}, 0\ns_waitcnt vmcnt({10*(7-WL)})\ns_barrier\ns_cbranch_scc1 B_LWL")
    for k in range(7 - WL): A(f"s_waitcnt vmcnt({10*(6-WL-k)})\ns_barrier")
    T.end(A, sW, sWS)
    A(f"{END}:\nCODE_END:")
    return dict(label=NAME + "_kernel", body=A.text(), vgpr=256, grid=256, block=512, lds=160*1024)

def groups(i, shape):
    import numpy as np
    w = np.arange(shape[1])
    b = np.arange(256); i8 = (b >> 3) & 7; ch = b & 1
    mlp = i8 < 5 + ch
    return [("mlp", np.ix_(mlp, w < 4)), ("mlp-ld", np.ix_(mlp, w == 4)), ("mlp-l5", np.ix_(mlp, w == 5)), ("mlp-h6", np.ix_(mlp, w == 6)), ("mlp-h7", np.ix_(mlp, w == 7)), ("dft", np.ix_(~mlp, w < 4)), ("dft-ld", np.ix_(~mlp, w == 4)), ("dft-l5", np.ix_(~mlp, w == 5)), ("dft-6", np.ix_(~mlp, w == 6)), ("dft-7", np.ix_(~mlp, w == 7))]

if __name__ == "__main__":
    st = "stamps" in sys.argv
    OPT.update(sys.argv[2:])
    ks = [gen_all(st)]
    for x in sys.argv:
        if x.startswith("abl:"):
            _, ki, l0, l1, pre = x.split(":")
            out = []; on = False
            for l in ks[int(ki)]["body"].split("\n"):
                t = l.strip()
                if t == l0 + ":": on = True
                if t == l1 + ":": on = False
                if on and any(t.startswith(p) for p in pre.split(",")): continue
                out.append(l)
            ks[int(ki)]["body"] = "\n".join(out)
    for x in sys.argv:
        if x.startswith("diag:"):
            import diag
            p = x.split(":")[1:]
            ks.append(diag.gen_diag(tuple([p[0]] + [int(y) for y in p[1:]]), STAMP_OFF))
    txt = file_text(ks)
    if len(ks) == 1 and "aslist" not in OPT: txt = txt.replace(f"; @launch kernel={NAME}_kernel grid", "; @launch grid")
    open(sys.argv[1], "w").write(txt)
```

```python
import struct, math, sys
from asmlib import *

def fbits(x): return "0x%08x" % struct.unpack("<I", struct.pack("<f", x))[0]

H_OFF = 0;            H_SZ = 32*54*4096
W2P_OFF = 8 << 20;    W2P_SZ = 8*54*5120
V_OFF = 12 << 20;     V_SZ = 32*20*64*64
U_OFF = 16 << 20;     U_SZ = V_SZ
FLG_OFF = 20 << 20
L_V, L_U, L_W, L_S, L_C, L_R = 0, 20, 40, 48, 64, 80
FLG_SZ = 112*256
SP_OFF = 21 << 20;    SP_SZ = 16*1024
CP_OFF = 22 << 20;    CP_SZ = 11*10*640
STAMP_OFF = 64 << 20
OPT = set()
K0 = -2.0*math.sqrt(2.0/math.pi)*math.log2(math.e)
MF = "v_mfma_f32_16x16x32_bf16"

def optval(name, default):
    for x in OPT:
        if x.startswith(name + "="): return int(x[len(name)+1:])
    return default
def mfma(d, x, y, c=None): return f"{MF} {v(d,4)}, {v(x,4)}, {v(y,4)}, {v(d,4) if c is None else c}"
def srd(A, d, lo, nbytes, add=0):
    A.prot -= set(range(d, d+4))
    if add: A(f"s_add_u32 s{d}, s{lo}, {add}\ns_addc_u32 s{d+1}, s{lo+1}, 0")
    else: A(f"s_mov_b64 s[{d}:{d+1}], s[{lo}:{lo+1}]")
    A(f"s_mov_b32 s{d+2}, {nbytes}\ns_mov_b32 s{d+3}, 0x20000")
    A.prot |= set(range(d, d+4))
def bf16_round(A, dst, src): A(f"v_cvt_pk_bf16_f32 v{dst}, v{src}, v{src}\nv_lshlrev_b32 v{dst}, 16, v{dst}")
def weave(A, main, fill, per=None, start=0):
    fill = list(fill); n = len(main) - start; done = 0
    for i, m in enumerate(main):
        A(m)
        if i < start: continue
        want = min(len(fill), int(math.ceil((i - start + 1) * per))) if per else (len(fill) * (i - start + 1) + n - 1) // n
        while done < want: A(fill[done]); done += 1
    while done < len(fill): A(fill[done]); done += 1
def reset(A): A.lg = []; A.vm = []

class Stamp:
    def __init__(self, on): self.on = on
    def start(self, A):
        if self.on: A("s_memtime s[90:91]\ns_memrealtime s[92:93]\ns_mov_b32 s80, 0\ns_mov_b32 s82, 0\ns_mov_b32 s84, 0\ns_mov_b32 s86, 0\ns_mov_b32 s88, 0")
    def at(self, A, mode, i):
        if self.on and (mode in OPT or (mode == "mB" and not OPT & {"mA", "mJ", "mD", "mE"})):
            A(f"s_memtime s[{80+2*i}:{81+2*i}]"); A.lg.pop()
    def end(self, A, wave_s, ws_lo):
        if not self.on: return
        A("s_waitcnt vmcnt(0)\ns_memtime s[94:95]\ns_memrealtime s[96:97]\ns_waitcnt lgkmcnt(0)\ns_sub_u32 s94, s94, s90")
        for i in range(5): A(f"s_sub_u32 s{80+2*i}, s{80+2*i}, s90")
        A("s_mov_b64 exec, 1\nv_mov_b32 v0, s94\nv_mov_b32 v1, s92\nv_mov_b32 v2, s96\nv_mov_b32 v3, s80\nv_mov_b32 v4, s82\nv_mov_b32 v5, s84\nv_mov_b32 v6, s86\nv_mov_b32 v7, s88")
        srd(A, 76, ws_lo, 0x10000000)
        A(f"s_lshl_b32 s98, s2, 3\ns_add_u32 s98, s98, s{wave_s}\ns_lshl_b32 s98, s98, 5\ns_add_u32 s98, s98, {STAMP_OFF}\nv_mov_b32 v8, 0")
        A("buffer_store_dwordx4 v[0:3], v8, s[76:79], s98 offen\nbuffer_store_dwordx4 v[4:7], v8, s[76:79], s98 offen offset:16")

def gen_all(stamps=False):
    global H_OFF, W2P_OFF, V_OFF, U_OFF, FLG_OFF, SP_OFF, CP_OFF
    base = optval("base", 0) << 20
    if "packed" in OPT:
        H_OFF = 0; W2P_OFF = H_SZ; V_OFF = W2P_OFF + W2P_SZ; U_OFF = V_OFF + V_SZ; FLG_OFF = U_OFF + U_SZ; SP_OFF = FLG_OFF + 65536; CP_OFF = SP_OFF + 65536
    if "wide" in OPT:
        H_OFF = 0; W2P_OFF = 37 << 20; V_OFF = 71 << 20; U_OFF = 109 << 20; FLG_OFF = 143 << 20; SP_OFF = 144 << 20; CP_OFF = 145 << 20
    H_OFF += base; W2P_OFF += base; V_OFF += base; U_OFF += base; FLG_OFF += base; SP_OFF += base; CP_OFF += base
    A = Asm(); T = Stamp(stamps)
    END = "A_END"
    OPT.add("rg")
    sX, sWR, sW1, sB1, sW2, sWS, sDBG, sWI = 4, 6, 8, 10, 12, 14, 72, 74
    rX, rA, rB, rC, rF = 16, 20, 24, 28, 56
    sW, sR, sJ, sC0, sS2, sCol = 32, 33, 34, 35, 36, 37
    PTRS = set(range(4, 16)) | {0, 1, 2, 72, 73, 74, 75, 32, 33, 34, 35, 37, 40, 41, 42, 43, 44, 45, 47}
    SLOT = 36864; PS = 32768; FX = 3*PS
    GAP = 122880; CX = GAP; STAT = 126976; RPK = 129024; CW = 159744
    def poll(line_sreg, want, shift=0, first_issued=False, ps=None):
        L, G, M = A.label(), A.label(), A.label()
        A("s_mov_b32 s61, 100000")
        if first_issued: A(f"s_branch {M}")
        A(f"{L}:\ns_mov_b32 s60, 0")
        A.raw(f"s_atomic_add s60, s[{rF}:{rF+1}], s{line_sreg} glc")
        A(f"{M}:\ns_waitcnt lgkmcnt(0)\ns_bfe_u32 s60, s60, {shift | (8 << 16)}\ns_cmp_eq_u32 s60, {want}\ns_cbranch_scc1 {G}")
        A(f"s_sub_u32 s61, s61, 1\ns_cmp_eq_u32 s61, 0\ns_cbranch_scc1 {G}\ns_sleep {ps or optval('ps', 2)}\ns_branch {L}\n{G}:")
        A.lg = []
    def poll_issue(line_sreg):
        A("s_mov_b32 s60, 0"); A.raw(f"s_atomic_add s60, s[{rF}:{rF+1}], s{line_sreg} glc")
    def arrive(line_sreg, n=0):
        A(f"s_mov_b32 s66, 1\ns_waitcnt vmcnt({n})"); A.raw(f"s_atomic_add s66, s[{rF}:{rF+1}], s{line_sreg}")
    def signal2(line_expr, last, inc, vm=0):
        L = A.label()
        A(f"{line_expr}\ns_lshl_b32 s46, s46, 8\ns_mov_b32 s66, 1\ns_waitcnt vmcnt({vm})")
        A.raw(f"s_atomic_add s66, s[{rF}:{rF+1}], s46 glc")
        A(f"v_lshlrev_b32 v4, 8, v0\nv_mov_b32 v5, {inc}\ns_movk_i32 s46, {L_R*256}\ns_waitcnt lgkmcnt(0)\ns_cmp_lg_u32 s66, {last}\ns_cbranch_scc1 {L}")
        A(f"buffer_atomic_add v5, v4, s[{rF}:{rF+3}], s46 offen sc1\n{L}:")
        reset(A)
    def init_issue(): A.raw(f"s_load_dword s69, s[{sDBG}:{sDBG+1}], 0")
    def initcheck():
        L, G = A.label(), A.label()
        A(f"s_waitcnt lgkmcnt(0)\ns_cmp_lg_u32 s69, 0\ns_cbranch_scc1 {G}\ns_mov_b32 s61, 50000\nv_mov_b32 v252, 0\n{L}:\ns_sleep 8")
        A(f"global_load_dword v253, v252, s[{sDBG}:{sDBG+1}] sc1\ns_waitcnt vmcnt(0)\nv_readfirstlane_b32 s69, v253\ns_cmp_lg_u32 s69, 0\ns_cbranch_scc1 {G}")
        A(f"s_sub_u32 s61, s61, 1\ns_cmp_lg_u32 s61, 0\ns_cbranch_scc1 {L}\n{G}:")
        reset(A)
    def div20(dst, i, stride, swz, t=(14, 15, 8), seg=False):
        A(f"v_add_u32 v{t[0]}, {64*i}, v0\nv_mul_hi_u32 v{t[1]}, v{t[0]}, s52\nv_mul_u32_u24 v{t[2]}, 20, v{t[1]}\nv_sub_u32 v{t[2]}, v{t[0]}, v{t[2]}")
        if swz: A(f"v_lshrrev_b32 v{t[0]}, 2, v{t[1]}\nv_and_b32 v{t[0]}, 2, v{t[0]}\nv_xor_b32 v{t[2]}, v{t[2]}, v{t[0]}")
        if seg: A(f"v_cmp_le_u32 vcc, 10, v{t[2]}\nv_add_u32 v{t[0]}, 30, v{t[2]}\nv_cndmask_b32 v{t[2]}, v{t[2]}, v{t[0]}, vcc")
        A(f"v_mul_u32_u24 v{t[1]}, {stride}, v{t[1]}\nv_lshl_add_u32 v{dst}, v{t[2]}, 4, v{t[1]}")
        if 0 < i < 4: A(f"v_subrev_u32 v{dst}, {1024*i}, v{dst}")
    def xfrag_addr(d):
        A(f"v_lshrrev_b32 v{d}, 1, v1\nv_xor_b32 v{d}, v{d}, v2\nv_lshlrev_b32 v{d}, 4, v{d}\nv_lshl_add_u32 v{d}, v1, 7, v{d}")
    def wfrag_addr(d, g32, t):
        A(f"v_lshrrev_b32 v{d}, 2, v1\nv_lshl_add_u32 v{d}, v2, 3, v{d}\nv_mul_u32_u24 v{d}, 320, v{d}\nv_and_b32 v{t}, 3, v1\nv_lshl_add_u32 v{d}, v{t}, 3, v{d}\nv_add_u32 v{d}, 16384, v{d}")
        A(f"v_and_b32 v{g32}, 1, v2\nv_lshlrev_b32 v{g32}, 5, v{g32}")
    def stats_fetch():
        srd(A, rC, sWS, SP_SZ, SP_OFF)
        A(f"s_lshl_b32 s46, s{sR}, 10\nbuffer_load_dwordx4 v[224:227], v3, s[{rC}:{rC+3}], s46 offen sc1")

    sKT, sU1, sJL, sPAR = 39, 71, 70, 68
    CF, SF = 16, 48; WR, WI = 80, 96; XA = 112; VF = 144; TA = 168; YF = 184; UA = 208
    rWR, rWI = rX, rA
    def job_wdma():
        A(f"""
        v_lshrrev_b32 v4, 2, v0
        v_mul_u32_u24 v4, 20544, v4
        v_and_b32 v5, 3, v0
        v_lshl_add_u32 v4, v5, 4, v4
        s_mul_i32 s62, s{sU1}, 321
        s_lshr_b32 s63, s{sKT}, 1
        s_lshl_b32 s63, s63, 5
        s_add_u32 s62, s62, s63
        s_and_b32 s63, s{sKT}, 1
        s_add_u32 s62, s62, s63
        s_add_u32 s62, s62, 1
        s_lshl_b32 s62, s62, 1
        s_and_b32 s63, s62, 2
        s_sub_u32 s62, s62, s63
        s_add_u32 s{sPAR}, s63, s{sJL}
        """)
        srd(A, rWR, sWR, 2048*642); srd(A, rWI, sWI, 2048*642)
        for q in range(4):
            A(f"s_add_u32 m0, s{sJL}, {1024*q}\nbuffer_load_dwordx4 v4, s[{rWR}:{rWR+3}], s62 offen lds")
            A(f"s_add_u32 m0, s{sJL}, {4096+1024*q}\nbuffer_load_dwordx4 v4, s[{rWI}:{rWI+3}], s62 offen lds")
            if q < 3: A(f"s_add_u32 s62, s62, {16*20544}")
    def lds_add(n=1, t=(4, 5)):
        A(f"v_mov_b32 v{t[0]}, {CW}\nv_mov_b32 v{t[1]}, {n}\ns_waitcnt lgkmcnt(0)\ns_mov_b64 exec, 1\nds_add_u32 v{t[0]}, v{t[1]}\ns_mov_b64 exec, -1")
    def lds_wait(n, t=(4, 5), sh=0):
        L, G = A.label(), A.label()
        A(f"v_mov_b32 v{t[0]}, {CW}\ns_mov_b32 s61, 4000000\n{L}:\nds_read_b32 v{t[1]}, v{t[0]}\ns_waitcnt lgkmcnt(0)\nv_readfirstlane_b32 s60, v{t[1]}\ns_bfe_u32 s60, s60, {sh | (8 << 16)}\ns_cmp_ge_u32 s60, {n}\ns_cbranch_scc1 {G}")
        A(f"s_sub_u32 s61, s61, 1\ns_cmp_lg_u32 s61, 0\ns_sleep 1\ns_cbranch_scc1 {L}\n{G}:")
    FQ = 84
    def fprime_pre():
        A(f"s_and_b32 s54, s{sW}, 3\ns_lshl_b32 s46, s{sR}, 2\ns_add_u32 s46, s46, s54\nv_lshlrev_b32 v14, 8, v2\nv_add_u32 v14, s46, v14\nv_cvt_f32_u32 v14, v14")
        for ut in range(2):
            A(f"v_add_u32 v15, {16*ut}, v1\nv_cvt_f32_u32 v15, v15\nv_mul_f32 v15, {fbits(1/2048)}, v15\nv_mul_f32 v{FQ+8*ut}, v15, v14\nv_mul_f32 v15, {fbits(64.0)}, v15")
            for j in range(1, 4): A(f"v_add_f32 v{FQ+8*ut+j}, v15, v{FQ+8*ut+j-1}")
            for j in range(4): A(f"v_sin_f32 v{FQ+8*ut+4+j}, v{FQ+8*ut+j}\nv_cos_f32 v{FQ+8*ut+j}, v{FQ+8*ut+j}")
    def job_consts():
        A(f"v_lshlrev_b32 v5, 2, v2\nv_cvt_f32_u32 v5, v5\nv_cvt_f32_u32 v6, v1\nv_mul_f32 v6, {fbits(1/64)}, v6\nv_mul_f32 v7, v6, v5")
        TB = 192
        for j in range(8): A(f"v_fmamk_f32 v{TB+j}, v6, {fbits(16.0*(j>>2) + (j&3))}, v7")
        for j in range(8): A(f"v_sin_f32 v{TB+8+j}, v{TB+j}\nv_cos_f32 v{TB+j}, v{TB+j}")
        cf = lambda mt, t, p: CF+(mt*2+t)*4+p
        sf = lambda mt, t, p: SF+(mt*2+t)*4+p
        A("s_brev_b32 s67, 1")
        for p in range(4):
            c0, c1, s0, s1 = TB+2*p, TB+2*p+1, TB+8+2*p, TB+8+2*p+1
            A(f"v_cvt_pk_bf16_f32 v{cf(0,0,p)}, v{c0}, v{c1}\nv_cvt_pk_bf16_f32 v{sf(0,0,p)}, v{s0}, v{s1}")
            if p % 2 == 0: A(f"v_cvt_pk_bf16_f32 v{cf(1,0,p)}, v{c0}, -v{s1}\nv_cvt_pk_bf16_f32 v{sf(1,0,p)}, v{s0}, v{c1}")
            else: A(f"v_cvt_pk_bf16_f32 v{cf(1,0,p)}, -v{c0}, v{s1}\nv_cvt_pk_bf16_f32 v{sf(1,0,p)}, -v{s0}, -v{c1}")
        A("v_and_b32 v5, 1, v1\nv_mul_u32_u24 v5, 0x8000, v5\nv_lshl_or_b32 v5, v5, 16, v5")
        for f in (cf, sf):
            for mt in (2, 3):
                for p in range(4): A(f"v_xor_b32 v{f(mt,0,p)}, s67, v{f(mt-2,0,p)}")
            for mt in range(4):
                for p in range(4): A(f"v_xor_b32 v{f(mt,1,p)}, v5, v{f(mt,0,p)}")
        reset(A)

    A(f"s_cmp_ge_u32 s2, 256\ns_cbranch_scc1 {END}")
    T.start(A)
    A(f"""
    s_getpc_b64 s[70:71]
    A_PC:
    v_readfirstlane_b32 s{sW}, v0
    s_lshr_b32 s41, s2, 3
    v_lshlrev_b32 v10, 2, v0
    s_lshl_b32 s46, s41, 11
    v_add_u32 v10, s46, v10
    v_min_u32 v10, CODE_END-A_PC-4, v10
    v_mov_b32 v11, s71
    v_add_co_u32 v10, vcc, s70, v10
    s_lshr_b32 s{sW}, s{sW}, 6
    s_lshl_b32 s48, s2, 3
    v_addc_co_u32 v11, vcc, 0, v11, vcc
    s_add_u32 s48, s48, s{sW}
    s_cmp_eq_u32 s48, 14
    s_cbranch_scc1 A_NT
    global_load_dword v255, v[10:11], off
    A_NT:
    s_load_dwordx2 s[{sWS}:{sWS+1}], s[0:1], 80
    s_load_dwordx4 s[{sX}:{sX+3}], s[0:1], 0
    s_load_dwordx4 s[{sW1}:{sW1+3}], s[0:1], 32
    s_load_dwordx2 s[{sDBG}:{sDBG+1}], s[0:1], 72
    s_load_dwordx2 s[{sW2}:{sW2+1}], s[0:1], 48
    s_load_dwordx2 s[{sWI}:{sWI+1}], s[0:1], 16
    v_and_b32 v0, 63, v0
    s_cbranch_scc0 A_NI
    v_lshlrev_b32 v4, 8, v0
    v_mov_b32 v5, 0
    s_movk_i32 s46, 16384
    s_mov_b32 s66, 1
    s_waitcnt lgkmcnt(0)
    """)
    reset(A)
    srd(A, rF, sWS, FLG_SZ, FLG_OFF)
    A(f"buffer_store_dword v5, v4, s[{rF}:{rF+3}], 0 offen sc1\nbuffer_store_dword v5, v4, s[{rF}:{rF+3}], s46 offen sc1\ns_waitcnt vmcnt(0)")
    A.raw(f"s_atomic_or s66, s[{sDBG}:{sDBG+1}], 0")
    T.at(A, "mA", 4)
    A("global_load_dword v255, v[10:11], off")
    reset(A)
    A(f"""
    A_NI:
    s_and_b32 s40, s2, 7
    s_lshr_b32 s42, s40, 1
    s_and_b32 s43, s40, 1
    s_lshr_b32 s44, s41, 3
    s_and_b32 s45, s41, 7
    s_lshl_b32 s{sR}, s42, 2
    s_add_u32 s{sR}, s{sR}, s44
    s_mul_i32 s{sJ}, s43, 5
    s_add_u32 s{sJ}, s{sJ}, s45
    s_add_u32 s46, s44, s45
    s_and_b32 s46, s46, 3
    s_mul_i32 s46, s46, 5
    s_add_u32 s46, s46, 1
    s_lshr_b32 s46, s46, 1
    s_add_u32 s{sC0}, s46, s42
    s_cmp_ge_u32 s{sC0}, 10
    s_cselect_b32 s46, 10, 0
    s_sub_u32 s{sC0}, s{sC0}, s46
    s_mul_i32 s{sCol}, s{sJ}, 160
    s_min_u32 s{sCol}, s{sCol}, 1568
    s_lshl_b32 s46, s43, 1
    s_add_u32 s46, s46, s45
    s_sub_u32 s46, s46, 5
    {"s_mov_b32 s48, s42" if optval("dm", 0) == 8 else "s_and_b32 s48, s46, %d" % optval("dm", 0)}
    s_add_u32 s47, s43, 5
    s_cmp_ge_u32 s45, s47
    s_cselect_b32 s{sJ}, s46, s{sJ}
    s_cselect_b32 s{sC0}, s48, s{sC0}
    v_and_b32 v1, 15, v0
    v_lshrrev_b32 v2, 4, v0
    v_lshlrev_b32 v3, 4, v0
    s_cmp_lg_u32 s{sW}, 4
    s_cbranch_scc1 A_NOTLD
    """)
    A.prot = set(PTRS)
    sCh, sSl, sXo, sWo, sIt = 49, 50, 51, 53, 54
    A(f"""
    s_setprio 3
    v_lshrrev_b32 v8, 3, v0
    v_mul_u32_u24 v8, 81920, v8
    v_and_b32 v4, 7, v0
    v_xor_b32 v4, v4, v2
    v_lshl_add_u32 v4, v4, 4, v8
    v_xor_b32 v5, 64, v4
    v_add_u32 v5, {655360-1024}, v5
    v_add_u32 v6, {2*(655360-1024)}, v4
    v_add_u32 v7, {2*(655360-1024)}, v5
    s_mul_i32 s52, s{sR}, 5120
    s_sub_u32 s52, s52, 1280
    s_mov_b32 s{sSl}, 0
    s_mov_b32 s{sIt}, 0
    s_mov_b32 s{sCh}, s{sC0}
    s_mov_b32 s{rX+2}, {2048*1280}
    s_mov_b32 s{rX+3}, 0x20000
    s_cmp_ge_u32 s45, s47
    s_waitcnt lgkmcnt(0)
    s_mov_b64 s[{rX}:{rX+1}], s[{sX}:{sX+1}]
    s_cbranch_scc1 A_LDD
    """)
    A.prot |= set(range(rX, rX+4))
    def xblock(base):
        for w in range(4):
            A(f"s_add_u32 m0, s{sSl}, {base+4096*w}\ns_add_u32 s{sXo}, s{sXo}, 1280")
            for i in range(4): A(f"buffer_load_dwordx4 v{4+i}, s[{rX}:{rX+3}], s{sXo} offen offset:{1024*i} lds")
    def ring_tail(lab, n, slot, nld, first=None):
        A(f"""
        s_add_u32 s{sCh}, s{sCh}, 1
        s_cmp_eq_u32 s{sCh}, 10
        s_cselect_b32 s{sCh}, 0, s{sCh}
        s_add_u32 s{sSl}, s{sSl}, {slot}
        s_cmp_eq_u32 s{sSl}, {3*slot}
        s_cselect_b32 s{sSl}, 0, s{sSl}
        s_add_u32 s{sIt}, s{sIt}, 1
        s_cmp_eq_u32 s{sIt}, 1
        s_cbranch_scc1 {first or lab}
        s_cmp_lt_u32 s{sIt}, {n}
        s_waitcnt vmcnt({nld})
        s_barrier
        s_cbranch_scc1 {lab}
        """)
        reset(A)
    A(f"A_LDMP:\ns_waitcnt vmcnt({optval('pace', 15)})\nA_LDM:\ns_lshl_b32 s{sXo}, s{sCh}, 7\ns_add_u32 s{sXo}, s{sXo}, s52")
    xblock(0)
    ring_tail("A_LDM", 10, SLOT, 16, "A_LDMP")
    A("s_waitcnt vmcnt(0)\ns_barrier\ns_barrier\ns_branch B_LH")
    A(f"A_LDD:\ns_lshl_b32 s{sXo}, s{sCh}, 7\ns_add_u32 s{sXo}, s{sXo}, s52")
    xblock(0)
    A(f"s_cmp_ge_u32 s{sCh}, 5\ns_cselect_b32 s58, 1280, 0\ns_sub_u32 s{sXo}, s{sXo}, s58\ns_sub_u32 s{sXo}, s{sXo}, {4*1280-640}")
    xblock(16384)
    A(f"s_cmp_lg_u32 s{sIt}, 0\ns_cbranch_scc1 A_LDD0")
    fprime_pre()
    A(f"s_mov_b32 s{sIt}, 0\nA_LDD0:")
    A(f"s_cmp_lg_u32 s{sIt}, 4\ns_cbranch_scc1 A_LDD1\ns_waitcnt vmcnt(0)\nA_LDD1:")
    ring_tail("A_LDD", 5, PS, 32)
    A("s_setprio 0")
    srd(A, rF, sWS, FLG_SZ, FLG_OFF)
    srd(A, rA, sW2, 1728*1280)
    for i in range(5): A(f"v_mov_b32 v{9+i}, v3")
    A("s_branch A_D3w")

    reset(A); A.prot = set(PTRS)
    A(f"A_NOTLD:\ns_cmp_lt_u32 s{sW}, 4\ns_cbranch_scc1 A_COMPUTE\ns_cmp_ge_u32 s45, s47\ns_cbranch_scc1 A_DH0")
    A(f"s_cmp_lg_u32 s{sW}, 5\ns_cbranch_scc1 A_DH0\ns_setprio 3\ns_mov_b32 s52, {(1<<32)//20+1}")
    for i in range(5): div20(9+i, i, 3456, True)
    A(f"s_mov_b32 s{sCh}, s{sC0}\ns_lshl_b32 s52, s{sCol}, 1\ns_sub_u32 s52, s52, {16*3456}\ns_mov_b32 s{sSl}, 0\ns_mov_b32 s{sIt}, 0\ns_waitcnt lgkmcnt(0)")
    srd(A, rA, sW1, 640*3456)
    A(f"A_LDW:\ns_mul_i32 s{sWo}, s{sCh}, {64*3456}\ns_add_u32 s{sWo}, s{sWo}, s52")
    for q in range(4):
        A(f"s_add_u32 m0, s{sSl}, {16384+5120*q}\ns_add_u32 s{sWo}, s{sWo}, {16*3456}")
        for i in range(4): A(f"buffer_load_dwordx4 v{9+i}, s[{rA}:{rA+3}], s{sWo} offen offset:{1024*i} lds")
        A(f"s_add_u32 m0, s{sSl}, {16384+5120*q+4096}")
        A(f"buffer_load_dwordx4 v13, s[{rA}:{rA+3}], s{sWo} offen lds")
    ring_tail("A_LDW", 10, SLOT, 20)
    A("s_waitcnt vmcnt(0)\ns_barrier\ns_barrier\ns_branch B_LW")

    reset(A); A.prot = set(PTRS)
    A("A_MH:")
    A.prot |= set(range(rF, rF+4))
    A(f"""
    s_mul_i32 s46, s43, 20
    s_mul_i32 s{sKT}, s44, s47
    s_add_u32 s46, s46, s{sKT}
    s_add_u32 s55, s46, s45
    s_mul_i32 s{sU1}, s55, 26
    s_lshr_b32 s{sU1}, s{sU1}, 8
    s_mul_i32 s46, s{sU1}, 10
    s_sub_u32 s{sKT}, s55, s46
    s_lshl_b32 s{sKT}, s{sKT}, 1
    s_and_b32 s46, s{sW}, 1
    s_add_u32 s{sKT}, s{sKT}, s46
    s_lshl_b32 s{sJL}, s46, 13
    s_add_u32 s{sJL}, s{sJL}, {RPK}
    s_lshl_b32 s46, s42, 3
    s_add_u32 s{sU1}, s{sU1}, s46
    s_add_u32 s{sU1}, s{sU1}, 4
    v_mov_b32 v4, {CW}
    v_mov_b32 v5, 0
    ds_write_b32 v4, v5
    """)
    srd(A, rC, sB1, 1728*2)
    A(f"v_lshlrev_b32 v4, 3, v0\ns_lshl_b32 s46, s{sCol}, 1\nbuffer_load_dwordx2 v[160:161], v4, s[{rC}:{rC+3}], s46 offen")
    reset(A)
    wfrag_addr(4, 5, 6)
    srd(A, rB, sWS, CP_SZ, CP_OFF)
    A(f"""
    s_and_b32 s48, s{sW}, 1
    s_mul_i32 s46, s48, 160
    v_add_u32 v4, s46, v4
    s_lshl_b32 s46, s48, 1
    s_sub_u32 s46, 1, s46
    v_mul_i32_i24 v5, s46, v5
    v_add_u32 v6, v4, v5
    v_sub_u32 v7, v4, v5
    v_lshlrev_b32 v8, 2, v1
    v_lshl_add_u32 v8, v2, 28, v8
    s_mul_i32 s49, s{sJ}, 6400
    s_mul_i32 s46, s{sC0}, 640
    s_add_u32 s50, s49, s46
    s_mul_i32 s46, s48, 320
    s_add_u32 s50, s50, s46
    s_add_u32 s51, s{sJ}, {L_C}
    s_lshl_b32 s51, s51, 8
    s_add_u32 s53, s{sR}, {L_S}
    s_lshl_b32 s53, s53, 8
    s_cmp_eq_u32 s48, 0
    s_mov_b32 s52, s53
    s_cselect_b32 s53, s53, s51
    s_cselect_b32 s54, 16, 32
    """)
    srd(A, rA, sWS, SP_SZ, SP_OFF)
    for i in range(4): A(f"v_mov_b32 v{12+i}, 0x3f803f80")
    A("s_waitcnt lgkmcnt(0)")
    def rowstats():
        L = A.label()
        A(f"s_cmp_ge_u32 s36, 16\ns_cbranch_scc1 {L}\nv_mov_b32 v164, 0\nv_mov_b32 v165, 0\nv_mov_b32 v166, 0\nv_mov_b32 v167, 0\ns_waitcnt vmcnt(1)")
        init_issue()
        for i in range(40): A(f"v_dot2c_f32_bf16 v{164+2*(i&1)}, v{212+i}, v12\nv_dot2c_f32_bf16 v{165+2*(i&1)}, v{212+i}, v{212+i}")
        A("v_add_f32 v164, v164, v166\nv_add_f32 v165, v165, v167")
        for dp in ("quad_perm:[1,0,3,2]", "quad_perm:[2,3,0,1]", "row_half_mirror"):
            for r in (164, 165): A(f"v_add_f32_dpp v{r}, v{r}, v{r} {dp} row_mask:0xf bank_mask:0xf")
        A(f"v_mul_f32 v164, {fbits(1/640)}, v164\nv_mul_f32 v165, {fbits(1/640)}, v165\nv_fma_f32 v165, -v164, v164, v165\nv_max_f32 v165, 0, v165")
        bf16_round(A, 165, 165); A(f"v_add_f32 v165, {fbits(1e-5)}, v165"); bf16_round(A, 165, 165); A("v_sqrt_f32 v165, v165"); bf16_round(A, 165, 165)
        A(f"v_and_b32 v9, 7, v0\nv_lshl_add_u32 v9, v9, 28, v0\ns_lshl_b32 s46, s{sR}, 4\ns_add_u32 s46, s46, s36\ns_lshl_b32 s46, s46, 6")
        A(f"buffer_store_dwordx2 v[164:165], v9, s[{rA}:{rA+3}], s46 offen sc1\n{L}:")
        reset(A)
    rowstats()
    T.at(A, "mD", 3)
    A("s_barrier\ns_cmp_lt_u32 s36, 16\ns_cbranch_scc1 A_MH1")
    init_issue()
    A("A_MH1:")
    for t in range(2):
        for q in range(5):
            for jh in range(2): A(f"ds_read_b64_tr_b16 {v(80+20*t+4*q+2*jh,2)}, v{6 if q%2==0 else 7} offset:{t*10240+jh*1280+q*32}")
    for t in range(2):
        for q in range(5): A(mfma(124+4*q, 12, 80+20*t+4*q, None if t else 0))
    initcheck()
    A("s_cmp_ge_u32 s36, 16\ns_cbranch_scc1 A_MH2")
    arrive(52)
    T.at(A, "mD", 2)
    A("A_MH2:")
    for q in range(5): A(f"buffer_store_dword v{124+4*q}, v8, s[{rB}:{rB+3}], s50 offen offset:{64*q} sc1")
    A("s_barrier")
    A("s_barrier\ns_barrier")
    arrive(51)
    for _ in range(4, 8): A("s_barrier")
    A("s_waitcnt lgkmcnt(0)")
    poll_issue(53)
    A("s_barrier")
    poll(53, "s54", 0, True)
    T.at(A, "mD", 0)
    A("s_cmp_eq_u32 s48, 0\ns_cbranch_scc0 A_MH7")
    stats_fetch()
    A("s_sleep 2\ns_branch A_MH7b")
    A("A_MH7:\ns_mov_b32 exec_hi, 0xff\ns_add_u32 s50, s49, 3200")
    for c in range(10): A(f"buffer_load_dwordx4 {v(80+4*c,4)}, v3, s[{rB}:{rB+3}], s{49 if c < 5 else 50} offen offset:{640*(c%5)} sc1")
    A("s_mov_b64 exec, -1\nA_MH7b:")
    reset(A)
    job_wdma()
    A("s_barrier\ns_waitcnt vmcnt(8)\ns_cmp_eq_u32 s48, 0\ns_cbranch_scc0 A_MH7c")
    reset(A)
    for m, o in ((224, 232), (226, 236)):
        A(f"v_rcp_f32 v5, v{m+1}\nv_cvt_pk_bf16_f32 v{o}, -v{m}, -v{m}\nv_mov_b32 v{o+3}, v{m+1}\nv_mul_f32 v{o+2}, {fbits(K0)}, v5\nv_mul_f32 v5, v5, v5\nv_mul_f32 v5, v5, v{o+2}\nv_mul_f32 v{o+1}, {fbits(0.044715)}, v5")
    A(f"v_lshlrev_b32 v4, 5, v0\nv_add_u32 v4, {STAT}, v4\nds_write_b128 v4, v[232:235]\nds_write_b128 v4, v[236:239] offset:16\ns_branch A_MH8")
    A("A_MH7c:\ns_mov_b32 s69, 0xffff0000")
    for c in range(1, 10):
        for i in range(4): A(f"v_add_f32 v{80+i}, v{80+i}, v{80+4*c+i}")
    for i in range(4):
        A(f"v_and_b32 v5, s69, v{80+i}\nv_sub_f32 v5, v{80+i}, v5\nv_cvt_pk_bf16_f32 v5, v5, v5\nv_alignbit_b32 v{124+2*i}, v5, v{80+i}, 16")
        A(f"v_lshrrev_b32 v{125+2*i}, 16, v{160+i//2}" if i % 2 else f"v_and_b32 v{125+2*i}, 0xffff, v{160+i//2}")
    A(f"v_lshlrev_b32 v4, 5, v0\nv_add_u32 v4, {CX}, v4\ns_mov_b32 exec_hi, 0xff\nds_write_b128 v4, v[124:127]\nds_write_b128 v4, v[128:131] offset:16\ns_mov_b64 exec, -1")
    A("A_MH8:\ns_waitcnt lgkmcnt(0)")
    T.at(A, "mD", 1)
    A(f"s_barrier\ns_mov_b32 s38, {optval('gate', 0)}\ns_cmp_lt_u32 s55, 40\ns_cbranch_scc1 A_JOB\ns_waitcnt vmcnt(0)")
    T.end(A, sW, sWS)
    A("s_endpgm")

    reset(A); A.prot = set(PTRS)
    sH = 36
    A(f"A_DH1:\ns_sub_u32 s{sH}, s{sW}, 5\ns_add_u32 s53, s{sR}, {L_S}\ns_lshl_b32 s53, s53, 8")
    A.prot |= set(range(rF, rF+4))
    sE, sL = 55, 38
    A(f"""
    s_mul_i32 s{sE}, s{sR}, 5
    s_add_u32 s{sE}, s{sE}, s{sJ}
    s_mul_i32 s{sE}, s{sE}, 3
    s_add_u32 s{sE}, s{sE}, s{sH}
    s_mul_i32 s{sL}, s{sH}, 10240
    s_add_u32 s{sL}, s{sL}, {RPK}
    s_lshr_b32 s67, s{sE}, 2
    s_mul_i32 s67, s67, 40960
    s_and_b32 s52, s{sE}, 3
    s_mul_i32 s52, s52, 160
    s_add_u32 s67, s67, s52
    s_mov_b32 s52, {(1<<32)//20+1}
    """)
    for i in range(5): div20(9+i, i, 1280, False, seg=True)
    srd(A, rA, sW2, 1728*1280)
    def rp_load():
        for q in range(2):
            A(f"s_add_u32 m0, s{sL}, {5120*q}")
            for i in range(4): A(f"buffer_load_dwordx4 v{9+i}, s[{rA}:{rA+3}], s67 offen offset:{1024*i} lds")
            A(f"s_add_u32 m0, s{sL}, {5120*q+4096}\nbuffer_load_dwordx4 v13, s[{rA}:{rA+3}], s67 offen lds")
            if q == 0: A(f"s_add_u32 s67, s67, {16*1280}")
    fprime_pre()
    A(f"s_barrier\ns_cmp_lg_u32 s{sW}, 7\ns_cbranch_scc1 A_D0")
    init_issue()
    A("A_D0:\ns_barrier")
    if "rearly" in OPT: A(f"s_sleep {optval('rs', 4)}"); rp_load(); reset(A)
    A(f"s_cmp_lg_u32 s{sW}, 7\ns_cbranch_scc1 A_D1")
    initcheck()
    A(f"s_sleep {optval('sd', 0 if 'rearly' in OPT else 6)}")
    poll_issue(53)
    A(f"A_D1:\ns_barrier\ns_cmp_lg_u32 s{sW}, 7\ns_cbranch_scc1 A_D2")
    T.at(A, "mD", 0)
    poll(53, 16, 0, True)
    stats_fetch()
    A(f"v_rcp_f32 v224, v225\nv_rcp_f32 v225, v227\nv_lshlrev_b32 v4, 3, v0\nv_add_u32 v4, {STAT}, v4\nv_mul_f32 v224, {fbits(2.0/(2048*640))}, v224\nv_mul_f32 v225, {fbits(2.0/(2048*640))}, v225\nds_write_b64 v4, v[224:225]")
    A("s_waitcnt lgkmcnt(0)")
    T.at(A, "mD", 1)
    A(f"""
    A_D2:
    s_barrier
    A_D3w:
    s_and_b32 s54, s{sW}, 3
    s_lshl_b32 s46, s54, 7
    s_add_u32 s46, s46, {STAT}
    v_lshl_add_u32 v7, v2, 4, s46
    s_lshl_b32 s46, s54, 12
    s_add_u32 s46, s46, {FX}
    v_add_u32 v6, s46, v3
    v_and_b32 v8, 1, v1
    v_lshlrev_b32 v8, 31, v8
    """)
    T.at(A, "mD", 2)
    A("ds_read_b128 v[228:231], v7\nds_read_b128 v[232:235], v7 offset:64")
    A(f"s_cmp_eq_u32 s{sW}, 4\ns_cbranch_scc1 A_D2a")
    if "rearly" not in OPT: rp_load()
    A("A_D2a:")
    A.vm = []
    for j in range(4): A(f"v_xor_b32 v{232+j}, v8, v{232+j}")
    for ut in range(2):
        for cs in range(2):
            o = 104 + 4*(2*ut+cs); src = FQ+8*ut+4*cs
            for jh in range(2):
                for j in range(4): A(f"v_mul_f32 v{236+4*jh+j}, v{src+j}, v{228+4*jh+j}")
            for p in range(4): A(f"v_cvt_pk_bf16_f32 v{o+p}, v{236+2*p}, v{236+2*p+1}")
            A(f"ds_write_b128 v6, {v(o,4)} offset:{1024*(2*ut+cs)}")
    lds_add()
    T.at(A, "mD", 3)
    A(f"s_cmp_eq_u32 s{sW}, 4\ns_cbranch_scc1 A_D3")
    A(f"s_cmp_ge_u32 s{sE}, 216\ns_cbranch_scc1 A_D3")
    reset(A)
    srd(A, rB, sWS, W2P_SZ, W2P_OFF)
    A(f"""
    v_lshrrev_b32 v5, 2, v1
    v_lshl_add_u32 v5, v2, 2, v5
    v_mul_u32_u24 v5, 320, v5
    v_and_b32 v6, 3, v1
    v_lshl_add_u32 v5, v6, 3, v5
    v_add_u32 v5, s{sL}, v5
    v_and_b32 v6, 2, v1
    v_mul_u32_u24 v6, 72, v6
    v_add_u32 v7, v5, v6
    v_add_u32 v6, 4096, v3
    s_and_b32 s46, s{sE}, 3
    s_mul_i32 s46, s46, 108
    s_lshr_b32 s52, s{sE}, 2
    s_add_u32 s46, s46, s52
    s_mul_i32 s46, s46, 5120
    s_waitcnt vmcnt(0)
    """)
    for nt in range(10):
        for jh in range(2): A(f"ds_read_b64_tr_b16 {v(YF+4*nt+2*jh,2)}, v{7 if nt % 5 == 2 else 5} offset:{jh*5120 + (nt//5)*80 + (0, 32, 64, 160, 192)[nt % 5]}")
    for nt in range(10):
        q = nt % 5
        if q < 4: A(f"buffer_store_dwordx4 {v(YF+4*nt,4)}, v3, s[{rB}:{rB+3}], s46 offen offset:{1024*q} sc1")
        else: A(f"buffer_store_dwordx4 {v(YF+4*nt,4)}, v6, s[{rB}:{rB+3}], s46 offen sc1\ns_add_u32 s46, s46, {54*5120}")
    A("A_D3:")
    A(f"""
    s_mul_i32 s46, s43, 12
    s_sub_u32 s{sKT}, 8, s47
    s_mul_i32 s{sKT}, s{sKT}, s44
    s_add_u32 s46, s46, s{sKT}
    s_add_u32 s46, s46, s45
    s_sub_u32 s46, s46, s47
    s_mul_i32 s{sU1}, s46, 52
    s_lshr_b32 s{sU1}, s{sU1}, 8
    s_mul_i32 s{sKT}, s{sU1}, 5
    s_sub_u32 s{sKT}, s46, s{sKT}
    s_lshl_b32 s{sKT}, s{sKT}, 2
    s_and_b32 s46, s{sW}, 3
    s_add_u32 s{sKT}, s{sKT}, s46
    s_mul_i32 s{sJL}, s46, 10240
    s_add_u32 s{sJL}, s{sJL}, {RPK - 10240}
    s_cmp_eq_u32 s46, 0
    s_cselect_b32 s{sJL}, 71680, s{sJL}
    s_lshl_b32 s46, s42, 3
    s_add_u32 s{sU1}, s{sU1}, s46
    """)
    if optval("wg", 0): lds_wait(optval("wg", 0))
    job_wdma()
    reset(A)
    A(f"s_cmp_eq_u32 s{sW}, 4\ns_cbranch_scc1 A_DH\ns_cmp_ge_u32 s{sE}, 216\ns_cbranch_scc1 A_DW")
    signal2(f"s_and_b32 s46, s{sE}, 7\ns_add_u32 s46, s46, {L_W}", 26, 1 << 16, 8)
    T.at(A, "mD", 4)
    A("s_branch A_DW\nA_DH0:\ns_waitcnt lgkmcnt(0)")
    srd(A, rF, sWS, FLG_SZ, FLG_OFF)
    srd(A, rX, sX, 2048*1280)
    A(f"""
    s_and_b32 s46, s{sW}, 1
    s_xor_b32 s46, s46, 1
    s_mul_i32 s46, s46, 11
    s_add_u32 s36, s46, s{sJ}
    s_cmp_ge_u32 s45, s47
    s_cselect_b32 s36, 99, s36
    s_cmp_ge_u32 s36, 16
    s_cbranch_scc1 A_DH
    s_and_b32 s46, s36, 3
    s_lshl_b32 s46, s46, 9
    s_lshr_b32 s52, s36, 2
    s_add_u32 s46, s46, s52
    s_lshl_b32 s52, s{sR}, 2
    s_add_u32 s46, s46, s52
    s_mul_i32 s46, s46, 1280
    v_lshrrev_b32 v4, 3, v0
    v_mul_u32_u24 v4, 81920, v4
    v_and_b32 v5, 7, v0
    v_lshl_add_u32 v4, v5, 4, v4
    """)
    for c in range(10): A(f"buffer_load_dwordx4 {v(212+4*c,4)}, v4, s[{rX}:{rX+3}], s46 offen offset:{128*c}")
    reset(A)
    A("A_DH:")
    job_consts()
    A(f"s_cmp_lt_u32 s45, s47\ns_cbranch_scc1 A_MH\ns_cmp_gt_u32 s{sW}, 4\ns_cbranch_scc1 A_DH1")
    A("A_DW:\ns_mov_b32 s38, 0")
    A("A_JOB:\ns_setprio 3")
    T.at(A, "mJ", 0)
    rV, rU = rC, rB
    srd(A, rV, sWS, V_SZ, V_OFF); srd(A, rU, sWS, U_SZ, U_OFF)
    for i in range(32): A(f"v_mov_b32 v{WR+i}, 0")
    A(f"""
    v_lshrrev_b32 v5, 2, v1
    v_lshl_add_u32 v5, v2, 2, v5
    v_lshlrev_b32 v5, 6, v5
    v_and_b32 v6, 3, v1
    v_lshl_add_u32 v5, v6, 4, v5
    v_add_u32 v5, s{sJL}, v5
    v_lshlrev_b32 v6, 8, v2
    v_lshl_add_u32 v6, v1, 2, v6
    v_add_u32 v6, s{sPAR}, v6
    s_mov_b32 s65, 0x80008000
    s_mul_i32 s50, s{sU1}, 20
    s_add_u32 s50, s50, s{sKT}
    s_lshl_b32 s50, s50, 12
    s_lshl_b32 s51, s{sKT}, 8
    s_mov_b32 m0, s{sJL}
    s_waitcnt vmcnt(0)
    """)
    for mt in range(4):
        for r in range(4):
            for ar in range(2): A(f"ds_read_u16_d16_hi v{(WR,WI)[ar]+4*mt+r}, v6 offset:{4096*ar+(16*mt+r)*64}")
    A("s_cmp_lt_u32 s45, s47\ns_cbranch_scc1 A_J1")
    lds_wait(12, (10, 11))
    if optval("vd", 0): A(f"s_sleep {optval('vd', 0)}")
    A("s_branch A_J1b\nA_J1:")
    if optval("vm", 0): A(f"s_sleep {optval('vm', 0)}")
    A("A_J1b:")
    T.at(A, "mJ", 1)
    poll(51, 16, ps=optval('pv', 2))
    T.at(A, "mJ", 2)
    for i in range(4): A(f"buffer_load_dwordx4 v3, s[{rV}:{rV+3}], s50 offen offset:{1024*i} sc1 lds")
    A(f"""
    v_lshrrev_b32 v9, 1, v1
    v_and_b32 v9, 3, v9
    v_xor_b32 v9, v9, v2
    v_lshlrev_b32 v9, 4, v9
    v_lshl_add_u32 v9, v1, 6, v9
    v_add_u32 v9, s{sJL}, v9
    v_lshrrev_b32 v6, 3, v0
    v_and_b32 v7, 3, v6
    v_lshlrev_b32 v7, 4, v7
    v_xor_b32 v7, v7, v3
    v_add_u32 v7, s{sJL}, v7
    v_mul_u32_u24 v6, 81920, v6
    v_and_b32 v8, 7, v0
    v_lshl_add_u32 v6, v8, 4, v6
    s_lshl_b32 s50, s{sKT}, 12
    s_lshl_b32 s46, s{sU1}, 7
    s_add_u32 s50, s50, s46
    s_cmp_eq_u32 s{sKT}, 19
    s_cselect_b32 s46, 0.5, 1.0
    v_cmp_eq_u32 vcc, 3, v2
    v_mov_b32 v8, s46
    v_cndmask_b32 v8, 1.0, v8, vcc
    s_waitcnt vmcnt(0)
    """)
    lds_wait("s38", (10, 11))
    T.at(A, "mJ", 3)
    for t in range(2):
        for rho in range(2):
            for jh in range(2): A(f"ds_read_b64_tr_b16 {v(VF+12*t+4*rho+2*jh,2)}, v5 offset:{2048*t+1024*jh+8*rho}")
    for t in range(2):
        for p in range(4): A(f"v_xor_b32 v{VF+12*t+8+p}, s65, v{VF+12*t+p}")
    def fwd(mt):
        m = []
        for t in range(2):
            re, im = XA+8*mt, XA+8*mt+4
            C, S = CF+(mt*2+t)*4, SF+(mt*2+t)*4
            m += [mfma(re, C, VF+12*t, None if t else 0), mfma(im, C, VF+12*t+4, None if t else 0), mfma(re, S, VF+12*t+4), mfma(im, S, VF+12*t+8)]
        return m
    def filt(mt):
        f = []
        tb = TA + 8*(mt & 1)
        for r in range(4):
            xr, xi, w_r, w_i = XA+8*mt+r, XA+8*mt+4+r, WR+4*mt+r, WI+4*mt+r
            f += [f"v_mul_f32 v{tb+r}, v{xi}, v{w_i}", f"v_mul_f32 v{tb+4+r}, v{xr}, v{w_i}", f"v_fma_f32 v{tb+r}, v{xr}, v{w_r}, -v{tb+r}", f"v_fmac_f32 v{tb+4+r}, v{xi}, v{w_r}"]
        t, jh = mt >> 1, mt & 1
        for p in range(2):
            f += [f"v_cvt_pk_bf16_f32 v{YF+12*t+2*jh+p}, v{tb+2*p}, v{tb+2*p+1}", f"v_cvt_pk_bf16_f32 v{YF+12*t+4+2*jh+p}, v{tb+4+2*p}, v{tb+4+2*p+1}",
                  f"v_xor_b32 v{YF+12*t+8+2*jh+p}, s65, v{YF+12*t+4+2*jh+p}"]
        return f
    def inv(t):
        m = []
        for nt in range(4):
            re, im = UA+8*nt, UA+8*nt+4
            C, S = CF+(nt*2+t)*4, SF+(nt*2+t)*4
            m += [mfma(re, YF+12*t, C, None if t else 0), mfma(im, YF+12*t+4, C, None if t else 0), mfma(re, YF+12*t+8, S), mfma(im, YF+12*t, S)]
        return m
    for x in fwd(0) + fwd(1)[:4]: A(x)
    weave(A, fwd(1)[4:] + fwd(2) + fwd(3), filt(0) + filt(1))
    weave(A, inv(0), filt(2) + filt(3))
    def outp(nt):
        d = UA+8*nt
        return [f"v_mul_f32 v{d+3}, v{d+3}, v8", f"v_mul_f32 v{d+7}, v{d+7}, v8"] + [f"v_cvt_pk_bf16_f32 v{TA+4*nt+p}, v{d+2*p}, v{d+2*p+1}" for p in range(4)] + [f"ds_write_b128 v9, {v(TA+4*nt,4)} offset:{1024*nt}"]
    i1 = inv(1)
    for x in i1[:9]: A(x)
    weave(A, i1[9:], outp(0) + outp(1))
    for x in outp(2) + outp(3): A(x)
    A("s_waitcnt lgkmcnt(0)")
    for q in range(4): A(f"ds_read_b128 {v(VF+4*q,4)}, v7 offset:{1024*q}")
    for q in range(4):
        A(f"buffer_store_dwordx4 {v(VF+4*q,4)}, v6, s[{rU}:{rU+3}], s50 offen sc1\ns_add_u32 s50, s50, {8*81920}")
    T.at(A, "mJ", 4)
    A(f"s_mov_b32 s55, 0\ns_cmp_lt_u32 s{sW}, {6 if 'bfirst' in OPT else 9}\ns_cbranch_scc1 A_J2")
    A(f"v_mov_b32 v4, {CW}\nds_read_b32 v5, v4\ns_waitcnt lgkmcnt(0)\nv_readfirstlane_b32 s55, v5\ns_bfe_u32 s55, s55, {8 | (8 << 16)}\ns_cmp_eq_u32 s55, 0\ns_cbranch_scc1 A_J2")
    A("s_barrier\ns_barrier\ns_barrier\nA_J2:")
    A(f"s_add_u32 s46, s{sKT}, {L_U}\ns_lshl_b32 s46, s46, 8\ns_mov_b32 s66, 1\ns_waitcnt vmcnt(0)")
    A.raw(f"s_atomic_add s66, s[{rF}:{rF+1}], s46 glc")
    A("s_cmp_eq_u32 s55, 0\ns_cbranch_scc1 A_J3\ns_barrier\ns_barrier\nA_J3:")
    A(f"v_lshlrev_b32 v4, 8, v0\nv_mov_b32 v5, 256\ns_movk_i32 s46, {L_R*256}\ns_waitcnt lgkmcnt(0)\ns_cmp_lg_u32 s66, 31\ns_cbranch_scc1 A_J4")
    A(f"buffer_atomic_add v5, v4, s[{rF}:{rF+3}], s46 offen sc1\nA_J4:")
    reset(A)
    A(f"s_cmp_eq_u32 s{sW}, 4\ns_cbranch_scc1 B_LH\ns_cmp_eq_u32 s{sW}, 5\ns_cbranch_scc1 B_LW")
    T.end(A, sW, sWS)
    A("s_endpgm")

    reset(A); A.prot = set(PTRS)
    A(f"A_COMPUTE:\ns_lshl_b32 s{sS2}, s{sR}, 2\ns_add_u32 s{sS2}, s{sS2}, s{sW}")
    xfrag_addr(8)
    A(f"s_mov_b32 s{sSl}, 0\ns_waitcnt lgkmcnt(0)\ns_cmp_ge_u32 s45, s47\ns_cbranch_scc1 A_DFT")
    rH = rA
    srd(A, rH, sWS, H_SZ, H_OFF)
    ACC = 20; AF = 100; XF = 180; AUG = 196; ST4 = 236; KC = 244
    vXA0, vXA1, vWE, vWO, vXB, vWB, vG32 = 10, 11, 12, 13, 14, 15, 16
    wfrag_addr(vWB, vG32, 18)
    A(f"""
    s_lshl_b32 s46, s{sW}, 12
    v_add_u32 v{vXB}, s46, v8
    v_lshlrev_b32 v18, 3, v1
    v_add_u32 v18, {CX}, v18
    s_lshl_b32 s46, s{sW}, 9
    s_add_u32 s46, s46, {STAT}
    v_lshl_add_u32 v9, v1, 4, s46
    s_lshr_b32 s38, s{sS2}, 1
    s_mul_i32 s46, s38, 54
    s_lshr_b32 s52, s{sCol}, 5
    s_add_u32 s46, s46, s52
    s_lshl_b32 s46, s46, 2
    s_and_b32 s52, s{sS2}, 1
    s_lshl_b32 s52, s52, 1
    s_add_u32 s46, s46, s52
    s_lshl_b32 s57, s46, 10
    s_cmp_eq_u32 s{sJ}, 10
    s_cselect_b32 s58, 0x40000000, s57
    s_add_u32 s38, s38, {L_R}
    v_cmp_eq_u32 s[64:65], 0, v2
    s_mov_b32 s{sIt}, 10
    """)
    for i in range(4): A(f"v_mov_b32 v{4+i}, 0")
    for r in [ACC+16*i for i in range(5)] + [AUG, AUG+16, AUG+32]: A(f"v_mfma_f32_32x32x16_bf16 {v(r,16)}, v[4:7], v[4:7], 0")
    addr_upd = [f"v_add_u32 v{vXA0}, s{sSl}, v{vXB}", f"v_add_u32 v{vWO}, s{sSl}, v{vWB}", f"v_add_u32 v{vWE}, v{vWO}, v{vG32}", f"v_sub_u32 v{vWO}, v{vWO}, v{vG32}", f"v_xor_b32 v{vXA1}, 64, v{vXA0}"]
    def reads(t):
        r = [f"ds_read_b128 {v(XF+8*t+4*mt,4)}, v{vXA0+t} offset:{2048*mt}" for mt in range(2)]
        for ft in range(10):
            for jh in range(2): r.append(f"ds_read_b64_tr_b16 {v(AF+40*t+4*ft+2*jh,2)}, v{vWE if ft%2==0 else vWO} offset:{t*10240+jh*1280+ft*32}")
        return r
    allm = [mfma(ACC+(ft*2+mt)*4, AF+40*t+4*ft, XF+8*t+4*mt) for t in range(2) for ft in range(10) for mt in range(2)]
    for x in addr_upd: A(x)
    T.at(A, "mA", 0)
    A("s_barrier")
    T.at(A, "mA", 1)
    for x in reads(0): A(x)
    st0 = A.state()
    A("A_ML:")
    slotadv = [f"s_add_u32 s{sSl}, s{sSl}, {SLOT}", f"s_cmp_eq_u32 s{sSl}, {3*SLOT}", f"s_cselect_b32 s{sSl}, 0, s{sSl}", f"s_sub_u32 s{sIt}, s{sIt}, 1"]
    R1 = optval("r1", 15); R0 = optval("r0", 36)
    weave(A, allm[:R1], reads(1)); weave(A, allm[R1:20], slotadv + addr_upd)
    A("s_waitcnt lgkmcnt(0)\ns_barrier")
    weave(A, allm[20:R0], reads(0) + [f"s_cmp_lg_u32 s{sIt}, 0"])
    for x in allm[R0:]: A(x)
    assert A.state()[0] == st0[0]
    A("s_cbranch_scc1 A_ML\nA_MLE:\ns_waitcnt vmcnt(0)")
    T.at(A, "mA", 2)
    for mt in range(2): A(f"ds_read_b128 {v(ST4+4*mt,4)}, v9 offset:{256*mt}")
    for ft in range(10): A(f"ds_read_b64 {v(AUG+4*ft,2)}, v18 offset:{128*ft}")
    BA = (4, 10)
    A("v_mov_b32 v12, 0\nv_mov_b32 v13, 0")
    for mt in range(2):
        b = BA[mt]
        A(f"v_lshrrev_b32 v{b+1}, 16, v{ST4+4*mt+3}\nv_cndmask_b32 v{b}, 0, v{ST4+4*mt}, s[64:65]\nv_cndmask_b32 v{b+1}, 0, v{b+1}, s[64:65]")
    dup = [f"v_mov_b32 v{KC+4*k+2*mt+h}, v{ST4+4*mt+1+k}" for mt in range(2) for k in range(3) for h in range(2)]
    weave(A, [mfma(ACC+(ft*2+mt)*4, AUG+4*ft, BA[mt]) for ft in range(10) for mt in range(2)], dup, per=1)
    T.at(A, "mA", 3)
    TMP = AF
    def grp(n):
        q, mt = n >> 1, n & 1
        tm = TMP + 8*(n % 3); o = TMP + 24 + 4*(n % 4)
        prs = [ACC + ((2*q+h)*2+mt)*4 + 2*p for h in range(2) for p in range(2)]
        s1 = [f"v_pk_mul_f32 {v(tm+2*i,2)}, {v(c,2)}, {v(c,2)}" for i, c in enumerate(prs)]
        s1 += [f"v_pk_fma_f32 {v(tm+2*i,2)}, {v(tm+2*i,2)}, {v(KC+2*mt,2)}, {v(KC+4+2*mt,2)}" for i in range(4)]
        s1 += [f"v_pk_mul_f32 {v(tm+2*i,2)}, {v(tm+2*i,2)}, {v(c,2)}" for i, c in enumerate(prs)]
        e = [f"v_exp_f32 v{tm+i}, v{tm+i}" for i in range(8)]
        s2 = [f"v_pk_fma_f32 {v(tm+2*i,2)}, {v(tm+2*i,2)}, {v(KC+8+2*mt,2)}, {v(KC+8+2*mt,2)}" for i in range(4)]
        r = [f"v_rcp_f32 v{tm+i}, v{tm+i}" for i in range(8)]
        s3 = [f"v_pk_mul_f32 {v(tm+2*i,2)}, {v(tm+2*i,2)}, {v(c,2)}" for i, c in enumerate(prs)]
        s3 += [f"v_cvt_pk_bf16_f32 v{o+i}, v{tm+2*i}, v{tm+2*i+1}" for i in range(4)]
        s3 += [f"buffer_store_dwordx4 {v(o,4)}, v3, s[{rH}:{rH+3}], s{57 if q else 58} offen offset:{1024*mt} sc1" + ("\ns_add_u32 s57, s57, 4096" if mt else "")]
        return s1, e, s2, r, s3
    G = [grp(n) for n in range(10)]
    for x in G[0][0]: A(x)
    for n in range(10):
        weave(A, G[n][1], G[n-1][4] if n else [])
        for x in G[n][2]: A(x)
        weave(A, G[n][3], G[n+1][0] if n < 9 else [])
    for x in G[9][4]: A(x)
    T.at(A, "mA", 4)
    lds_add()
    A("s_branch B_COMPUTE")

    reset(A); A.prot = set(PTRS)
    A("A_DFT:")
    rV = rC
    srd(A, rV, sWS, V_SZ, V_OFF); srd(A, rF, sWS, FLG_SZ, FLG_OFF)
    sK = 39
    ACC = 28; XF = 156; BF = 188; SQ = 204; TA = 220
    vSIG, vTQ = 252, 4
    vXA = 10; vXB = 18
    A(f"""
    s_lshl_b32 s{sK}, s{sJ}, 2
    s_add_u32 s{sK}, s{sK}, s{sW}
    s_lshl_b32 s64, s{sK}, 8
    s_bitcmp1_b32 s{sK}, 0
    s_cselect_b32 s46, 1.0, -1.0
    v_mov_b32 v{vSIG}, s46
    v_mov_b32 v{vSIG+1}, s46
    """)
    A(f"""
    s_lshr_b32 s46, s{sK}, 1
    s_lshl_b32 s46, s46, 5
    s_and_b32 s52, s{sK}, 1
    s_add_u32 s46, s46, s52
    s_add_u32 s46, s46, 1
    v_lshl_add_u32 v5, v1, 1, s46
    v_mul_u32_u24 v6, s{sC0}, v5
    v_mul_u32_u24 v7, 6554, v6
    v_lshrrev_b32 v7, 16, v7
    v_mul_u32_u24 v7, 10, v7
    v_sub_u32 v6, v6, v7
    v_cvt_f32_u32 v6, v6
    v_mul_f32 v6, {fbits(-0.1)}, v6
    v_cvt_f32_u32 v5, v5
    v_mul_f32 v5, {fbits(-1/640)}, v5
    v_lshlrev_b32 v7, 3, v2
    v_cvt_f32_u32 v7, v7
    v_add_f32 v7, 0.5, v7
    v_fma_f32 v{SQ}, v5, v7, v6
    v_mul_f32 v7, {fbits(32.0)}, v5
    v_cos_f32 v{vTQ}, v7
    """)
    for j in range(1, 8): A(f"v_add_f32 v{SQ+j}, v5, v{SQ+j-1}")
    for j in range(8): A(f"v_sub_f32 v{SQ+16+j}, v{SQ+j}, v7")
    A(f"v_add_f32 v{vTQ}, v{vTQ}, v{vTQ}")
    for sd in range(2):
        for j in range(8): A(f"v_sin_f32 v{SQ+16*sd+8+j}, v{SQ+16*sd+j}\nv_cos_f32 v{SQ+16*sd+j}, v{SQ+16*sd+j}")
    def bcv(t): return [f"v_cvt_pk_bf16_f32 v{BF+8*t+p}, v{SQ+16*t+2*p}, v{SQ+16*t+2*p+1}" for p in range(8)]
    def bstep(t): return [f"v_fma_f32 v{SQ+16*t+j}, v{vTQ}, v{SQ+16*(t^1)+j}, -v{SQ+16*t+j}" for j in range(16)] + bcv(t)
    for x in bcv(0): A(x)
    for i in range(4): A(f"v_mov_b32 v{BF+8+i}, 0")
    for r in [ACC+16*i for i in range(8)]: A(f"v_mfma_f32_32x32x16_bf16 {v(r,16)}, {v(BF+8,4)}, {v(BF+8,4)}, 0")
    dupd = [f"v_add_u32 v{vXA}, s{sSl}, v8", f"v_xor_b32 v{vXA+1}, 64, v{vXA}"]
    frs = [(h, t, m) for t in range(2) for h in range(2) for m in range(8)]
    def rd(i):
        h, t, m = frs[i % 32]
        return f"ds_read_b128 {v(XF+4*(i%8),4)}, v{vXA+t} offset:{h*16384+2048*m}"
    AH = 6
    A(f"s_mov_b32 s{sIt}, 5")
    for x in dupd: A(x)
    A(f"""
    v_add_u32 v13, {FX}, v3
    s_lshl_b32 s46, s{sW}, 13
    v_and_b32 v5, 7, v1
    v_xor_b32 v5, v5, v2
    v_lshlrev_b32 v5, 4, v5
    v_lshl_add_u32 v5, v1, 8, v5
    v_add_u32 v14, s46, v5
    v_xor_b32 v15, 64, v14
    v_xor_b32 v18, v1, v2
    v_lshlrev_b32 v18, 4, v18
    v_lshl_add_u32 v18, v2, 8, v18
    v_add_u32 v18, s46, v18
    v_xor_b32 v19, 64, v18
    v_mul_u32_u24 v20, {20*4096}, v2
    v_lshl_add_u32 v20, v1, 4, v20
    s_lshl_b32 s65, s{sK}, 12
    s_lshl_b32 s52, s{sR}, 8
    s_add_u32 s65, s65, s52
    s_mov_b32 s70, 0x80008000
    v_mov_b32 v16, {CW}
    v_mov_b32 v17, 0
    ds_write_b32 v16, v17
    v_mov_b32 v21, 1
    s_waitcnt lgkmcnt(0)
    """)
    T.at(A, "mA", 0)
    A("s_barrier")
    T.at(A, "mA", 1)
    for i in range(AH): A(rd(i))
    st0 = A.state()
    A("A_DL:")
    pr, pv = [], []
    for i, (h, t, m) in enumerate(frs):
        x = XF + 4*(i % 8)
        ms = [mfma(ACC+((h*8+m)*2+rho)*4, x, BF+8*t+4*rho) for rho in range(2)]
        if i == 0: pv += bstep(1) + [f"s_add_u32 s{sSl}, s{sSl}, {PS}", f"s_cmp_eq_u32 s{sSl}, {3*PS}", f"s_cselect_b32 s{sSl}, 0, s{sSl}", f"s_sub_u32 s{sIt}, s{sIt}, 1"]
        if i == 16:
            assert not pv
            pv += bstep(0)
        if i % 2 == 0 and i + AH < 32: pr += [rd(i + AH), rd(i + AH + 1)]
        if i == 26: pv = dupd + pv
        if i == 28:
            A(f"s_cmp_lt_u32 s{sIt}, 2\ns_waitcnt lgkmcnt(0)\ns_cbranch_scc1 A_DL1\ns_barrier\nA_DL1:")
            pr += [rd(32+k) for k in range(4)]
        if i == 30: pr += [rd(36), rd(37)]; pv += [f"s_cmp_lg_u32 s{sIt}, 0"]
        for mm in ms:
            A(mm)
            n = 2
            if pr: A(pr.pop(0)); n -= 1
            if mm is ms[-1] and i < 27: n -= 1
            while n > 0 and pv: A(pv.pop(0)); n -= 1
    assert not pr and not pv
    assert A.state()[0] == st0[0]
    A("s_cbranch_scc1 A_DL\nA_DLE:")
    T.at(A, "mA", 2)
    RR = TA; TF = ACC + 64
    def tcv(gq):
        f = []
        for rho in range(2):
            for jh in range(2):
                c = ACC + ((2*gq+jh)*2+rho)*4
                for p in range(2): f.append(f"v_cvt_pk_bf16_f32 v{TF+12*gq+4*rho+2*jh+p}, v{c+2*p}, v{c+2*p+1}")
        f += [f"v_xor_b32 v{TF+12*gq+8+p}, s70, v{TF+12*gq+p}" for p in range(4)]
        return f
    def sta(gq):
        m = []
        for ut in range(2):
            Cf, Sf = XF+16*gq+8*ut, XF+16*gq+8*ut+4
            re, im, nre = TF+12*gq, TF+12*gq+4, TF+12*gq+8
            dre, dim = ACC+(gq*2+ut)*8, ACC+(gq*2+ut)*8+4
            m += [mfma(dre, re, Cf, 0), mfma(dim, im, Cf, 0), mfma(dre, im, Sf), mfma(dim, nre, Sf)]
        return m
    def outv(gq):
        f = []
        for ut in range(2):
            d = ACC+(gq*2+ut)*8; o = TA + 4*(gq*2+ut)
            f += [f"v_cvt_pk_bf16_f32 v{o+p}, v{d+2*p}, v{d+2*p+1}" for p in range(4)] + [f"ds_write_b128 v{14+(gq&1)}, {v(o,4)} offset:{4096*ut+128*(gq>>1)}"]
        return f
    A("s_mov_b64 exec, 1\nds_add_u32 v16, v21\ns_mov_b64 exec, -1")
    for i in range(32): A(f"v_pk_fma_f32 {v(ACC+2*i,2)}, {v(ACC+64+2*i,2)}, {v(vSIG,2)}, {v(ACC+2*i,2)}")
    A.lg = []
    A("s_mov_b32 s61, 4000000\nA_DS:\nds_read_b32 v17, v16")
    for q in range(16): A(f"ds_read_b128 {v(XF+4*q,4)}, v13 offset:{1024*q}")
    for x in tcv(0) + tcv(1): A(x)
    A("s_waitcnt lgkmcnt(15)\nv_readfirstlane_b32 s60, v17\ns_and_b32 s60, s60, 255\ns_cmp_ge_u32 s60, 8\ns_cbranch_scc1 A_DS1\ns_sub_u32 s61, s61, 1\ns_cmp_lg_u32 s61, 0\ns_waitcnt lgkmcnt(0)\ns_sleep 2\ns_cbranch_scc1 A_DS\nA_DS1:")
    A.lg = [regs_of(v(XF+4*q,4)) for q in range(16)]
    weave(A, sta(0), tcv(2)); weave(A, sta(1), tcv(3)); weave(A, sta(2), outv(0) + outv(1)[:5]); weave(A, sta(3), outv(1)[5:] + outv(2))
    for x in outv(3): A(x)
    A("s_waitcnt lgkmcnt(0)")
    for n in range(8): A(f"ds_read_b128 {v(XF+4*n,4)}, v{18 + (n&1)} offset:{1024*n}")
    for n in range(8):
        A(f"buffer_store_dwordx4 {v(XF+4*n,4)}, v20, s[{rV}:{rV+3}], s65 offen sc1\ns_add_u32 s65, s65, {4*20*4096}")
    T.at(A, "mA", 3)
    A("s_mov_b64 exec, 1\nds_add_u32 v16, v21\ns_mov_b64 exec, -1\ns_mov_b32 s38, 0")
    arrive(64)
    T.at(A, "mA", 4)

    sRB, sCB = 33, 34
    WP = 20480; HB = 4*WP; HP = 24576
    XT0 = HB + 16384; XT3 = GAP + 1280; BO = XT0 + 7680
    PTRB = {0, 1, 2, 4, 5, 14, 15, 32, 40, 41}
    def brole():
        A.prot = set(PTRB)
        A(f"s_lshr_b32 s42, s41, 3\ns_lshl_b32 s{sRB}, s40, 2\ns_add_u32 s{sRB}, s{sRB}, s42\ns_and_b32 s{sCB}, s41, 7\nv_lshlrev_b32 v3, 4, v0")
        A.prot |= {sRB, sCB}
    def itemoff(OF):
        A(f"s_mov_b32 s52, {(1<<32)//10+1}")
        for q in range(3):
            A(f"""
            v_add_u32 v9, {64*q}, v0
            v_mul_hi_u32 v10, v9, s52
            v_mul_u32_u24 v11, 10, v10
            v_sub_u32 v11, v9, v11
            v_cmp_le_u32 vcc, 5, v11
            v_add_u32 v9, 35, v11
            v_cndmask_b32 v11, v11, v9, vcc
            v_mul_u32_u24 v10, 81920, v10
            v_lshl_add_u32 v{OF+q}, v11, 4, v10
            """)
    rH, rW, rU, rXb = 16, 28, 24, 28
    sO, sO2, sM = 62, 63, 64
    def bsrd(d, mul, sreg, off):
        A.prot -= set(range(d, d+4))
        A(f"s_mul_i32 s50, s{sreg}, {mul}\ns_add_u32 s50, s50, {off}\ns_add_u32 s{d}, s{sWS}, s50\ns_addc_u32 s{d+1}, s{sWS+1}, 0\ns_mov_b32 s{d+2}, {mul}\ns_mov_b32 s{d+3}, 0x20000")
        A.prot |= set(range(d, d+4))
    def ld(srdr, so, step, groups, base, o):
        for k, (vr, n, lo) in enumerate(groups):
            A(f"s_mov_b32 m0, {o+lo}" if base is None else f"s_add_u32 m0, s{base}, {o+lo}")
            for i in range(n): A(f"buffer_load_dwordx4 v{vr}, s[{srdr}:{srdr+3}], s{so} offen offset:{1024*i} sc1 lds")
        A(f"s_add_u32 s{so}, s{so}, {step}")
        if srdr != rU: A(f"s_cmp_eq_u32 s{so}, {27*step}\ns_cselect_b32 s{so}, 0, s{so}")
    def kstart(step, skip):
        A(f"s_and_b32 s{sO}, s{sRB}, 3\ns_mul_i32 s{sO}, s{sO}, {optval('kr', 0)}\ns_add_u32 s{sO}, s{sO}, {skip}\ns_cmp_ge_u32 s{sO}, 27\ns_cselect_b32 s50, 27, 0\ns_sub_u32 s{sO}, s{sO}, s50\ns_mul_i32 s{sO}, s{sO}, {step}")
    def ldW(base, o, so): ld(rW, so, 10240, [(3, 4, 0), (4, 4, 4096), (5, 2, 8192)], base, o)
    def ldH(base, o): ld(rH, sO, 8192, [(3, 4, 0), (4, 4, 4096)], base, o)
    def ldU(base, o): ld(rU, sO2, 8192, [(6, 4, 0), (7, 4, 4096)], base, o)
    def hstart(OFr, gate):
        A(f"s_load_dwordx2 s[10:11], s[0:1], 56\ns_mul_i32 s54, s{sCB}, 80\ns_mul_i32 s63, s{sRB}, 2560\ns_add_u32 s63, s63, s54\ns_add_u32 s65, s{sRB}, {L_R}\ns_lshl_b32 s65, s65, 8\ns_waitcnt lgkmcnt(0)")
        srd(A, rXb, sX, 2048*1280); srd(A, rU, 10, 1280)
        for w in range(4):
            A(f"s_add_u32 s64, s63, {((w & 1) + 1024*(w >> 1))*1280}")
            for q in range(3):
                A(f"s_mov_b32 m0, {(XT0+2560*w if w < 3 else XT3)+1024*q}" + ("\ns_mov_b32 exec_hi, 0" if q == 2 else "") + f"\nbuffer_load_dwordx4 v{OFr+q}, s[{rXb}:{rXb+3}], s64 offen lds")
            A("s_mov_b64 exec, -1")
        A(f"s_mov_b32 m0, {BO}\ns_mov_b64 exec, 0x3ff\nbuffer_load_dwordx4 v{OFr}, s[{rU}:{rU+3}], s54 offen lds\ns_mov_b64 exec, -1")
        bsrd(rH, 54*4096, sRB, H_OFF)
        if gate: lds_wait(4)
        A(f"v_add_u32 v4, 4096, v3")
        kstart(8192, 0)
        T.at(A, "mB", 2)
        poll(65, 22, 0)
        T.at(A, "mB", 3)
        ldH(None, HB); ldH(None, HB + 8192); ldH(None, HB + HP); ldH(None, HB + HP + 8192)
        lds_add(256, (5, 6))
        reset(A)
    def preload(lab, gate=False):
        A(f"v_add_u32 v4, 4096, v3\nv_add_u32 v5, 8192, v3\ns_mov_b32 s{sM}, 0\ns_add_u32 s65, s{sRB}, {L_R}\ns_lshl_b32 s65, s65, 8")
        kstart(10240, 0)
        bsrd(rW, 54*5120, sCB, W2P_OFF)
        poll(65, 8, 16, ps=6)
        if gate and "pearly" not in OPT: lds_wait(optval("mg", 4), (6, 7))
        A(f"{lab}G:")
        T.at(A, "mB", 1)
        A(f"{lab}:")
        ldW(sM, 0, sO)
        A(f"s_add_u32 s{sM}, s{sM}, 10240\ns_cmp_lt_u32 s{sM}, {7*10240}\ns_waitcnt vmcnt({optval('thr', 60)})\ns_cbranch_scc1 {lab}")
        NT = optval("nt", 0)
        if NT:
            A(f"v_lshlrev_b32 v6, 3, v3\ns_and_b32 s50, s{sRB}, 3\ns_lshl_b32 s50, s50, 13\ns_add_u32 s50, s50, {7*10240}")
            for i in range(NT): A(f"buffer_load_dword v255, v6, s[{rW}:{rW+3}], s50 offen sc1\ns_add_u32 s50, s50, 32768"); A.vm = []
        reset(A)
    reset(A)
    A(f"B_COMPUTE:\ns_cmp_ge_u32 s45, s47\ns_cselect_b32 s53, 1, 9")
    T.at(A, "mB", 0)
    brole()
    sP, sKP, sUW, sUH, sIt = 44, 45, 46, 47, 48
    FP = 12; ACC = 28; HF = 68; UF = 124; ZA = 136; FI = 152; SQ = 164; ZC = 212; TQ = 244; OF = 249; TC = 228
    TO = (0, 32, 64, 80, 112)
    vH, vW, vT, vWB, vTB, vHB = 4, 5, 6, 7, 8, 252
    rO = 20
    A(f"""
    s_load_dwordx2 s[8:9], s[0:1], 64
    s_add_u32 s56, s{sWS}, {FLG_OFF}
    s_addc_u32 s57, s{sWS+1}, 0
    s_lshl_b32 s38, s38, 8
    s_and_b32 s{sP}, s{sW}, 1
    s_lshr_b32 s{sKP}, s{sW}, 1
    s_lshl_b32 s55, s{sRB}, 1
    s_add_u32 s55, s55, s{sP}
    s_lshl_b32 s49, s{sKP}, 10
    s_add_u32 s49, s55, s49
    s_brev_b32 s67, 1
    """)
    A(f"v_lshlrev_b32 v9, 3, v2\nv_cvt_f32_u32 v9, v9\nv_lshl_add_u32 v10, v1, 6, s49\nv_cvt_f32_u32 v10, v10\nv_mul_f32 v10, {fbits(1/2048)}, v10\nv_mul_f32 v{TC}, v10, v9")
    for j in range(1, 8): A(f"v_add_f32 v{TC+j}, v10, v{TC+j-1}")
    for j in range(8): A(f"v_sin_f32 v{TC+8+j}, v{TC+j}\nv_cos_f32 v{TC+j}, v{TC+j}")
    for q in range(4): A(f"v_cvt_pk_bf16_f32 v{FP+q}, v{TC+2*q}, v{TC+2*q+1}\nv_cvt_pk_bf16_f32 v{FP+4+q}, v{TC+8+2*q}, v{TC+8+2*q+1}")
    for q in range(8): A(f"v_xor_b32 v{FP+8+q}, s67, v{FP+q}")
    itemoff(OF)
    A(f"""
    s_mul_i32 s50, s{sKP}, 5120
    v_add_u32 v{vWB}, s50, v3
    s_lshl_b32 s50, s{sKP}, 12
    s_lshl_b32 s51, s{sP}, 11
    s_add_u32 s51, s51, s50
    s_lshl_b32 s52, s{sKP}, 10
    s_add_u32 s51, s51, s52
    s_add_u32 s51, s51, {HB}
    v_add_u32 v{vHB}, s51, v3
    v_lshrrev_b32 v9, 2, v1
    v_lshl_add_u32 v9, v2, 3, v9
    v_lshlrev_b32 v9, 7, v9
    v_and_b32 v10, 3, v1
    v_lshl_add_u32 v9, v10, 4, v9
    s_lshl_b32 s51, s{sP}, 6
    v_add_u32 v9, s51, v9
    v_and_b32 v10, 8, v1
    v_lshlrev_b32 v10, 3, v10
    v_xor_b32 v9, v9, v10
    s_add_u32 s50, s50, {HB + 16384}
    v_add_u32 v{vTB}, s50, v9
    s_mul_i32 s54, s{sCB}, 80
    s_mul_i32 s59, s49, 1280
    s_add_u32 s59, s59, s54
    s_mul_i32 s58, s{sW}, 2560
    s_add_u32 s58, s58, {XT0}
    s_cmp_eq_u32 s{sW}, 3
    s_cselect_b32 s58, {XT3}, s58
    s_mov_b32 s70, 0x80008000
    s_mov_b32 s69, 0xffff0000
    s_mov_b32 s66, 1
    s_waitcnt vmcnt(0) lgkmcnt(0)
    """)
    A("s_cmp_eq_u32 s38, 0\ns_cbranch_scc1 B_NA")
    A.raw("s_atomic_add s66, s[56:57], s38")
    A("B_NA:")
    T.at(A, "mB", 1)
    srd(A, rO, 8, 2048*1280)
    A(f"""
    s_mul_i32 s50, s{sCB}, 40
    v_lshl_add_u32 v{HF}, v2, 3, s{sKP}
    v_cvt_f32_u32 v{HF}, v{HF}
    v_add_u32 v{HF+1}, s50, v1
    v_cvt_f32_u32 v{HF+1}, v{HF+1}
    v_and_b32 v9, 8, v1
    v_cvt_f32_u32 v9, v9
    v_fmamk_f32 v{HF+2}, v9, {fbits(-41.0)}, v{HF+1}
    """)
    for e in range(3):
        A(f"v_add_f32 v9, {fbits(16.0*e + 0.5)}, v{HF+1+(e == 2)}\nv_mul_f32 v9, {fbits(-1/640)}, v9\nv_mul_f32 v10, v{HF}, v9\nv_mul_f32 v{TQ+e}, {fbits(32.0)}, v9\nv_cos_f32 v{TQ+e}, v{TQ+e}")
        for sd in range(2):
            for r in range(4): A(f"v_fmamk_f32 v{SQ+16*e+8*sd+r}, v9, {fbits(2.0*r + 1.0 - 32.0*(sd+1))}, v10")
        A(f"v_add_f32 v{TQ+e}, v{TQ+e}, v{TQ+e}")
        for sd in range(2):
            o = SQ + 16*e + 8*sd
            for r in range(4): A(f"v_sin_f32 v{o+4+r}, v{o+r}\nv_cos_f32 v{o+r}, v{o+r}")
    for i in range(16): A(f"v_mov_b32 v{ZC+i}, 0")
    for nt in range(5):
        for i in range(4): A(f"v_mov_b32 v{ACC+(nt*2+1)*4+i}, 0")
    BT = ZA; XT = UF
    A(f"v_mul_u32_u24 v11, 160, v1\nv_lshl_add_u32 v11, v2, 3, v11\nv_add_u32 v253, s58, v11\nv_lshlrev_b32 v10, 3, v2\nv_add_u32 v10, {BO}, v10\nv_and_b32 v254, 2, v2\nv_lshlrev_b32 v254, 5, v254\nv_add_u32 v{FI}, v253, v254\nv_add_u32 v{FI+1}, v10, v254\ns_mov_b32 s{sUW}, 0\ns_mov_b32 s{sUH}, 0")
    adv = [f"s_add_u32 s{sUW}, s{sUW}, {WP}", f"s_cmp_eq_u32 s{sUW}, {4*WP}\ns_cselect_b32 s{sUW}, 0, s{sUW}", f"s_add_u32 s{sUH}, s{sUH}, {HP}", f"s_cmp_eq_u32 s{sUH}, {3*HP}\ns_cselect_b32 s{sUH}, 0, s{sUH}"]
    upd = [f"v_add_u32 v{vW}, s{sUW}, v{vWB}", f"v_add_u32 v{vH}, s{sUH}, v{vHB}", f"v_xor_b32 v9, 1024, v{vH}", f"v_add_u32 v{vT}, s{sUH}, v{vTB}"]
    def hrd(b): return [f"ds_read_b128 {v(HF+28*b,4)}, v{vH} offset:{8192*b}", f"ds_read_b128 {v(HF+28*b+8,4)}, v{vW} offset:{10240*b}", f"ds_read_b128 {v(HF+28*b+4,4)}, v9 offset:{8192*b}"] + \
                       [f"ds_read_b128 {v(HF+28*b+8+4*nt,4)}, v{vW} offset:{10240*b+1024*nt}" for nt in range(1, 5)]
    def hmm(b): return [mfma(ACC+(nt*2+l)*4, HF+28*b+8+4*nt, HF+28*b+4*l) for nt in range(5) for l in range(2)]
    trr = [f"ds_read_b64_tr_b16 {v(UF+4*rho+2*jh,2)}, v{vT} offset:{512*jh+8*rho}" for rho in (1, 0) for jh in range(2)]
    neg = [f"v_xor_b32 v{UF+8+q}, s70, v{UF+4+q}" for q in range(4)]
    sa = []
    for l in range(2):
        C, S = FP+8*l, FP+8*l+4; re, im = ZA+8*l, ZA+8*l+4
        sa += [mfma(re, UF, C, 0), mfma(im, UF+4, C, 0), mfma(im, UF, S), mfma(re, UF+8, S)]
    cv = [f"v_cvt_pk_bf16_f32 v{ZA+8*l+r}, v{ZA+8*l+r}, v{ZA+8*l+4+r}" for l in range(2) for r in range(4)]
    def fst(par): return [f"v_fma_f32 v{SQ+16*e+8*(par^1)+j}, v{TQ+e}, v{SQ+16*e+8*par+j}, -v{SQ+16*e+8*(par^1)+j}" for e in range(3) for j in range(8)]
    def fcv(par, e): return [f"v_cvt_pk_bf16_f32 v{FI+4*(e%3)+r}, v{SQ+16*e+8*(par^1)+r}, v{SQ+16*e+8*(par^1)+4+r}" for r in range(4)]
    def zmm(e): return [mfma((ZC if e < 2 else ACC)+(e*2+l)*4, FI+4*e, ZA+8*l) for l in range(2)]
    def mix(main, reads, valu):
        reads, valu = list(reads), list(valu); n = len(main)
        for i, mm in enumerate(main):
            A(mm)
            left = n - i
            nr = max(-(-len(reads) // left), 1) if reads else 0
            for _ in range(nr): A(reads.pop(0))
            nv = max(-(-len(valu) // left), min(len(valu), 2 - nr))
            for _ in range(nv): A(valu.pop(0))
    A(f"s_cmp_gt_u32 s{sW}, 1\ns_cbranch_scc1 B_NP\ns_cmp_lg_u32 s53, 1\ns_cbranch_scc1 B_NP")
    lds_wait(12)
    A(f"s_cmp_eq_u32 s{sW}, 0\ns_cbranch_scc1 B_P0")
    on = T.on; T.on = False
    preload("B_PWD")
    A("s_branch B_P1\nB_P0:")
    hstart(OF, False)
    T.on = on
    A("B_P1:\ns_waitcnt vmcnt(0) lgkmcnt(0)\nB_NP:")
    for x in upd: A(x)
    T.at(A, "mB", 2)
    A("s_barrier")
    T.at(A, "mB", 3)
    for nt in range(5): A(f"ds_read_b64 {v(XT+2*nt,2)}, v{FI if nt == 2 else 253} offset:{TO[nt]}\nds_read_b64 {v(BT+2*nt,2)}, v{FI+1 if nt == 2 else 10} offset:{TO[nt]}")
    for x in hrd(0): A(x)
    for nt in range(5):
        for h in range(2):
            c = ACC + nt*8 + 2*h
            A(f"v_lshlrev_b32 v{c}, 16, v{XT+2*nt+h}\nv_lshlrev_b32 v10, 16, v{BT+2*nt+h}\nv_and_b32 v{c+1}, s69, v{XT+2*nt+h}\nv_and_b32 v{FI}, s69, v{BT+2*nt+h}")
            A(f"v_add_f32 v{c}, v{c}, v10\nv_add_f32 v{c+1}, v{c+1}, v{FI}")
    A(f"s_mov_b32 s{sIt}, 3\nB_C0:\ns_waitcnt lgkmcnt(0)\ns_barrier")
    m = hmm(0); mix(m[:7], hrd(1), adv); mix(m[7:], [], upd + [f"s_sub_u32 s{sIt}, s{sIt}, 1"])
    A(f"s_waitcnt lgkmcnt(0)\ns_barrier\ns_cmp_lg_u32 s{sIt}, 0")
    mix(hmm(1), hrd(0), [])
    A("s_cbranch_scc1 B_C0")
    for x in adv + upd: A(x)
    for x in hmm(0): A(x)
    A(f"s_mov_b32 s{sIt}, 5\ns_waitcnt lgkmcnt(0)\ns_barrier")
    for x in trr + hrd(0) + fst(0)[:12] + neg: A(x)
    def half2(par):
        f = fst(par)
        A("s_waitcnt lgkmcnt(0)\ns_barrier")
        mix(sa, hrd(1), f[12:20])
        mix(hmm(0), [], f[20:] + adv + upd + cv)
    def half1(par, nxt, extra):
        if nxt: A("s_waitcnt lgkmcnt(0)\ns_barrier")
        mix(hmm(1), (trr + hrd(0)) if nxt else [], fcv(par, 0) + fcv(par, 1))
        f = fst(par ^ 1)[:12] if nxt else []
        mix(zmm(0), [], fcv(par, 2)); mix(zmm(1) + zmm(2), [], f + (neg if nxt else []) + extra)
    A("B_CL:")
    half2(0); half1(0, True, [])
    half2(1)
    A(f"s_sub_u32 s{sIt}, s{sIt}, 1\ns_cmp_eq_u32 s{sIt}, 0\ns_cbranch_scc1 B_CE")
    stE = A.state()
    half1(1, True, [])
    A("s_branch B_CL\nB_CE:")
    A.lg = [set(x) for x in stE[0]]
    EX = 2*WP; RL = 3*WP
    half1(1, False, [f"s_xor_b32 s50, s{sW}, 2", "s_mul_i32 s50, s50, 5120", "v_add_u32 v9, s50, v3", f"s_mul_i32 s50, s{sW}, 5120", "v_add_u32 v10, s50, v3", "v_add_u32 v11, s50, v11"])
    T.at(A, "mB", 4)
    A(f"s_cmp_eq_u32 s{sKP}, 0\ns_cselect_b32 s50, -1.0, 1.0\nv_mov_b32 v{FI}, s50\nv_mov_b32 v{FI+1}, s50\nv_add_u32 v{FI+2}, v11, v254")
    def unfold(l):
        for e in range(2):
            z = ZC + (e*2+l)*4
            for h in range(2):
                A(f"v_pk_add_f32 {v(ACC+(e*2+l)*4+2*h,2)}, {v(ACC+(e*2+l)*4+2*h,2)}, {v(z+2*h,2)}")
                A(f"v_pk_fma_f32 {v(ACC+((e+3)*2+l)*4+2*h,2)}, {v(z+2*h,2)}, {v(FI,2)}, {v(ACC+((e+3)*2+l)*4+2*h,2)}")
    unfold(1)
    for nt in (0, 3, 1, 4, 2): A(f"ds_write_b128 v9, {v(ACC+(nt*2+1)*4,4)} offset:{EX+1024*nt}")
    unfold(0)
    A("s_waitcnt lgkmcnt(0)\ns_barrier")
    P = HF
    for nt in range(5): A(f"ds_read_b128 {v(P+4*nt,4)}, v10 offset:{EX+1024*nt}")
    for nt in range(5):
        c = ACC + nt*8
        A(f"v_pk_add_f32 {v(c,2)}, {v(c,2)}, {v(P+4*nt,2)}\nv_pk_add_f32 {v(c+2,2)}, {v(c+2,2)}, {v(P+4*nt+2,2)}")
        A(f"v_cvt_pk_bf16_f32 v{c+4}, v{c}, v{c+1}\nv_cvt_pk_bf16_f32 v{c+5}, v{c+2}, v{c+3}\nds_write_b64 v{FI+2 if nt == 2 else 11}, {v(c+4,2)} offset:{RL+TO[nt]}")
    A("s_waitcnt lgkmcnt(0)")
    for q in range(3): A(f"ds_read_b128 {v(P+20+4*q,4)}, v10 offset:{RL+1024*q}")
    for q in range(3):
        if q == 2: A("s_mov_b32 exec_hi, 0")
        A(f"buffer_store_dwordx4 {v(P+20+4*q,4)}, v{OF+q}, s[{rO}:{rO+3}], s59 offen {'sc1' if 'osc1' in OPT else ''}")
    T.end(A, sW, sWS)
    A("s_endpgm")

    sIt = 48
    reset(A)
    A("B_LH:\ns_setprio 0\ns_cmp_ge_u32 s45, s47\ns_cselect_b32 s53, 1, 0")
    T.at(A, "mB", 0)
    brole()
    A(f"s_add_u32 s56, s{sWS}, {FLG_OFF}\ns_addc_u32 s57, s{sWS+1}, 0\ns_cmp_eq_u32 s53, 1\ns_cbranch_scc1 B_LH1")
    A.prot |= {56, 57}
    itemoff(12)
    hstart(12, True)
    A(f"""
    B_LH1:
    s_add_u32 s65, s{sRB}, {L_R}
    s_lshl_b32 s65, s65, 8
    v_add_u32 v4, 4096, v3
    v_and_b32 v6, 16, v0
    v_lshlrev_b32 v6, 2, v6
    v_xor_b32 v6, v6, v3
    v_add_u32 v7, 4096, v6
    s_mov_b32 s{sO2}, 0
    """)
    kstart(8192, 4)
    bsrd(rH, 54*4096, sRB, H_OFF); bsrd(rU, 20*4096, sRB, U_OFF)
    A("s_waitcnt vmcnt(24)\ns_barrier\ns_setprio 3")
    ldH(None, HB + 2*HP); A("s_waitcnt vmcnt(24)\ns_barrier")
    ldH(None, HB + 2*HP + 8192); A("s_waitcnt vmcnt(24)\ns_barrier")
    ldH(None, HB); A("s_waitcnt vmcnt(24)\ns_barrier")
    ldH(None, HB + HP); A("s_waitcnt vmcnt(24)\ns_barrier")
    ldH(None, HB + HP + 8192); A("s_waitcnt vmcnt(24)\ns_barrier")
    poll(65, 20, 8)
    T.at(A, "mB", 4)
    ldU(None, HB + HP + 16384)
    ldH(None, HB + 2*HP); ldU(None, HB + 2*HP + 16384)
    A("s_waitcnt vmcnt(40)\ns_barrier")
    A(f"s_mov_b32 s{sM}, {HB + 2*HP}\ns_mov_b32 s{sIt}, 9\nB_LL:")
    ldH(sM, 8192)
    A(f"s_add_u32 s{sM}, s{sM}, {HP}\ns_cmp_eq_u32 s{sM}, {HB + 3*HP}\ns_cselect_b32 s{sM}, {HB}, s{sM}\ns_sub_u32 s{sIt}, s{sIt}, 1\ns_cmp_eq_u32 s{sIt}, 0\ns_waitcnt vmcnt(24)\ns_barrier\ns_cbranch_scc1 B_LE")
    ldH(sM, 0); ldU(sM, 16384)
    A("s_waitcnt vmcnt(40)\ns_barrier\ns_branch B_LL\nB_LE:")
    A("s_barrier\ns_waitcnt vmcnt(8)\ns_barrier\ns_waitcnt vmcnt(0)\ns_barrier")
    T.end(A, sW, sWS)
    A("s_endpgm")
    reset(A)
    A("B_LW:\ns_setprio 0\ns_cmp_ge_u32 s45, s47\ns_cselect_b32 s53, 1, 0")
    T.at(A, "mB", 0)
    brole()
    A(f"s_add_u32 s56, s{sWS}, {FLG_OFF}\ns_addc_u32 s57, s{sWS+1}, 0\ns_cmp_eq_u32 s53, 1\ns_cbranch_scc1 B_LW1")
    A.prot |= {56, 57}
    preload("B_PW", True)
    A("B_LW1:")
    bsrd(rW, 54*5120, sCB, W2P_OFF)
    A(f"v_add_u32 v4, 4096, v3\nv_add_u32 v5, 8192, v3\ns_mov_b32 s{sM}, 0\ns_mov_b32 s{sIt}, 20")
    kstart(10240, 7)
    T.at(A, "mB", 2)
    WL = optval("wl", 3)
    for k in range(WL): A(f"s_waitcnt vmcnt({min(63, 60-10*k+optval('nt', 0))})\ns_barrier")
    A("s_setprio 3\nB_LWL:")
    ldW(sM, 0, sO)
    A(f"s_add_u32 s{sM}, s{sM}, 10240\ns_cmp_eq_u32 s{sM}, {4*WP}\ns_cselect_b32 s{sM}, 0, s{sM}\ns_sub_u32 s{sIt}, s{sIt}, 1\ns_cmp_lg_u32 s{sIt}, 0\ns_waitcnt vmcnt({10*(7-WL)})\ns_barrier\ns_cbranch_scc1 B_LWL")
    for k in range(7 - WL): A(f"s_waitcnt vmcnt({10*(6-WL-k)})\ns_barrier")
    T.end(A, sW, sWS)
    A(f"{END}:\nCODE_END:")
    return dict(label=NAME + "_kernel", body=A.text(), vgpr=256, grid=256, block=512, lds=160*1024)

KOFK = [32*(t >> 1) + 2*n + (t & 1) for t in range(20) for n in range(16)]
COLS = [[40*cb + (16*nt + n if nt < 2 or (nt == 2 and n < 8) else 344 + n if nt == 2 else 320 + 16*(nt-3) + n) for n in range(16)] for cb in range(8) for nt in range(5)]

def groups(i, shape):
    import numpy as np
    w = np.arange(shape[1])
    b = np.arange(256); i8 = (b >> 3) & 7; ch = b & 1
    mlp = i8 < 5 + ch
    return [("mlp", np.ix_(mlp, w < 4)), ("mlp-ld", np.ix_(mlp, w == 4)), ("mlp-l5", np.ix_(mlp, w == 5)), ("mlp-h6", np.ix_(mlp, w == 6)), ("mlp-h7", np.ix_(mlp, w == 7)), ("dft", np.ix_(~mlp, w < 4)), ("dft-ld", np.ix_(~mlp, w == 4)), ("dft-l5", np.ix_(~mlp, w == 5)), ("dft-6", np.ix_(~mlp, w == 6)), ("dft-7", np.ix_(~mlp, w == 7))]

if __name__ == "__main__":
    st = "stamps" in sys.argv
    OPT.update(sys.argv[2:])
    ks = [gen_all(st)]
    for x in sys.argv:
        if x.startswith("abl:"):
            _, ki, l0, l1, pre = x.split(":")
            out = []; on = False
            for l in ks[int(ki)]["body"].split("\n"):
                t = l.strip()
                if t == l0 + ":": on = True
                if t == l1 + ":": on = False
                if on and any(t.startswith(p) for p in pre.split(",")): continue
                out.append(l)
            ks[int(ki)]["body"] = "\n".join(out)
    for x in sys.argv:
        if x.startswith("diag:"):
            import diag
            p = x.split(":")[1:]
            ks.append(diag.gen_diag(tuple([p[0]] + [int(y) for y in p[1:]]), STAMP_OFF))
    txt = file_text(ks)
    if len(ks) == 1 and "aslist" not in OPT: txt = txt.replace(f"; @launch kernel={NAME}_kernel grid", "; @launch grid")
    open(sys.argv[1], "w").write(txt)
```

```python
import struct, math, sys
from asmlib import *

def fbits(x): return "0x%08x" % struct.unpack("<I", struct.pack("<f", x))[0]

H_OFF = 0;            H_SZ = 32*54*4096
W2P_OFF = 8 << 20;    W2P_SZ = 8*54*5120
V_OFF = 12 << 20;     V_SZ = 32*20*64*64
U_OFF = 16 << 20;     U_SZ = V_SZ
FLG_OFF = 20 << 20
L_V, L_U, L_W, L_S, L_C, L_R = 0, 20, 40, 48, 64, 80
FLG_SZ = 112*256
SP_OFF = 21 << 20;    SP_SZ = 16*1024
CP_OFF = 22 << 20;    CP_SZ = 11*10*640
STAMP_OFF = 64 << 20
OPT = set()
K0 = -2.0*math.sqrt(2.0/math.pi)*math.log2(math.e)
MF = "v_mfma_f32_16x16x32_bf16"

def optval(name, default):
    for x in OPT:
        if x.startswith(name + "="): return int(x[len(name)+1:])
    return default
def mfma(d, x, y, c=None): return f"{MF} {v(d,4)}, {v(x,4)}, {v(y,4)}, {v(d,4) if c is None else c}"
def srd(A, d, lo, nbytes, add=0):
    A.prot -= set(range(d, d+4))
    if add: A(f"s_add_u32 s{d}, s{lo}, {add}\ns_addc_u32 s{d+1}, s{lo+1}, 0")
    else: A(f"s_mov_b64 s[{d}:{d+1}], s[{lo}:{lo+1}]")
    A(f"s_mov_b32 s{d+2}, {nbytes}\ns_mov_b32 s{d+3}, 0x20000")
    A.prot |= set(range(d, d+4))
def bf16_round(A, dst, src): A(f"v_cvt_pk_bf16_f32 v{dst}, v{src}, v{src}\nv_lshlrev_b32 v{dst}, 16, v{dst}")
def weave(A, main, fill, per=None, start=0):
    fill = list(fill); n = len(main) - start; done = 0
    for i, m in enumerate(main):
        A(m)
        if i < start: continue
        want = min(len(fill), int(math.ceil((i - start + 1) * per))) if per else (len(fill) * (i - start + 1) + n - 1) // n
        while done < want: A(fill[done]); done += 1
    while done < len(fill): A(fill[done]); done += 1
def reset(A): A.lg = []; A.vm = []

class Stamp:
    def __init__(self, on): self.on = on
    def start(self, A):
        if self.on: A("s_memtime s[90:91]\ns_memrealtime s[92:93]\ns_mov_b32 s80, 0\ns_mov_b32 s82, 0\ns_mov_b32 s84, 0\ns_mov_b32 s86, 0\ns_mov_b32 s88, 0")
    def at(self, A, mode, i):
        if self.on and (mode in OPT or (mode == "mB" and not OPT & {"mA", "mJ", "mD", "mE"})):
            A(f"s_memtime s[{80+2*i}:{81+2*i}]"); A.lg.pop()
    def end(self, A, wave_s, ws_lo):
        if not self.on: return
        A("s_waitcnt vmcnt(0)\ns_memtime s[94:95]\ns_memrealtime s[96:97]\ns_waitcnt lgkmcnt(0)\ns_sub_u32 s94, s94, s90")
        for i in range(5): A(f"s_sub_u32 s{80+2*i}, s{80+2*i}, s90")
        A("s_mov_b64 exec, 1\nv_mov_b32 v0, s94\nv_mov_b32 v1, s92\nv_mov_b32 v2, s96\nv_mov_b32 v3, s80\nv_mov_b32 v4, s82\nv_mov_b32 v5, s84\nv_mov_b32 v6, s86\nv_mov_b32 v7, s88")
        srd(A, 76, ws_lo, 0x10000000)
        A(f"s_lshl_b32 s98, s2, 3\ns_add_u32 s98, s98, s{wave_s}\ns_lshl_b32 s98, s98, 5\ns_add_u32 s98, s98, {STAMP_OFF}\nv_mov_b32 v8, 0")
        A("buffer_store_dwordx4 v[0:3], v8, s[76:79], s98 offen\nbuffer_store_dwordx4 v[4:7], v8, s[76:79], s98 offen offset:16")

def gen_all(stamps=False):
    A = Asm(); T = Stamp(stamps)
    END = "A_END"
    OPT.add("rg")
    sX, sWR, sW1, sB1, sW2, sWS, sDBG, sWI = 4, 6, 8, 10, 12, 14, 72, 74
    rX, rA, rB, rC, rF = 16, 20, 24, 28, 56
    sW, sR, sJ, sC0, sS2, sCol = 32, 33, 34, 35, 36, 37
    PTRS = set(range(4, 16)) | {0, 1, 2, 72, 73, 74, 75, 32, 33, 34, 35, 37, 40, 41, 42, 43, 44, 45, 47}
    SLOT = 36864; PS = 32768; FX = 3*PS
    GAP = 122880; CX = GAP; STAT = 126976; RPK = 129024; CW = 159744
    def poll(line_sreg, want, shift=0, first_issued=False, ps=None):
        L, G, M = A.label(), A.label(), A.label()
        A("s_mov_b32 s61, 100000")
        if first_issued: A(f"s_branch {M}")
        A(f"{L}:\ns_mov_b32 s60, 0")
        A.raw(f"s_atomic_add s60, s[{rF}:{rF+1}], s{line_sreg} glc")
        A(f"{M}:\ns_waitcnt lgkmcnt(0)\ns_bfe_u32 s60, s60, {shift | (8 << 16)}\ns_cmp_eq_u32 s60, {want}\ns_cbranch_scc1 {G}")
        A(f"s_sub_u32 s61, s61, 1\ns_cmp_eq_u32 s61, 0\ns_cbranch_scc1 {G}\ns_sleep {ps or optval('ps', 2)}\ns_branch {L}\n{G}:")
        A.lg = []
    def poll_issue(line_sreg):
        A("s_mov_b32 s60, 0"); A.raw(f"s_atomic_add s60, s[{rF}:{rF+1}], s{line_sreg} glc")
    def arrive(line_sreg, n=0):
        A(f"s_mov_b32 s66, 1\ns_waitcnt vmcnt({n})"); A.raw(f"s_atomic_add s66, s[{rF}:{rF+1}], s{line_sreg}")
    def signal2(line_expr, last, inc):
        L = A.label()
        A(f"{line_expr}\ns_lshl_b32 s46, s46, 8\ns_mov_b32 s66, 1\ns_waitcnt vmcnt(0)")
        A.raw(f"s_atomic_add s66, s[{rF}:{rF+1}], s46 glc")
        A(f"v_lshlrev_b32 v4, 8, v0\nv_mov_b32 v5, {inc}\ns_movk_i32 s46, {L_R*256}\ns_waitcnt lgkmcnt(0)\ns_cmp_lg_u32 s66, {last}\ns_cbranch_scc1 {L}")
        A(f"buffer_atomic_add v5, v4, s[{rF}:{rF+3}], s46 offen sc1\n{L}:")
        reset(A)
    def init_issue(): A.raw(f"s_load_dword s69, s[{sDBG}:{sDBG+1}], 0")
    def initcheck():
        L, G = A.label(), A.label()
        A(f"s_waitcnt lgkmcnt(0)\ns_cmp_lg_u32 s69, 0\ns_cbranch_scc1 {G}\ns_mov_b32 s61, 50000\nv_mov_b32 v252, 0\n{L}:\ns_sleep 8")
        A(f"global_load_dword v253, v252, s[{sDBG}:{sDBG+1}] sc1\ns_waitcnt vmcnt(0)\nv_readfirstlane_b32 s69, v253\ns_cmp_lg_u32 s69, 0\ns_cbranch_scc1 {G}")
        A(f"s_sub_u32 s61, s61, 1\ns_cmp_lg_u32 s61, 0\ns_cbranch_scc1 {L}\n{G}:")
        reset(A)
    def div20(dst, i, stride, swz, t=(14, 15, 8), seg=False):
        A(f"v_add_u32 v{t[0]}, {64*i}, v0\nv_mul_hi_u32 v{t[1]}, v{t[0]}, s52\nv_mul_u32_u24 v{t[2]}, 20, v{t[1]}\nv_sub_u32 v{t[2]}, v{t[0]}, v{t[2]}")
        if swz: A(f"v_lshrrev_b32 v{t[0]}, 2, v{t[1]}\nv_and_b32 v{t[0]}, 2, v{t[0]}\nv_xor_b32 v{t[2]}, v{t[2]}, v{t[0]}")
        if seg: A(f"v_cmp_le_u32 vcc, 10, v{t[2]}\nv_add_u32 v{t[0]}, 30, v{t[2]}\nv_cndmask_b32 v{t[2]}, v{t[2]}, v{t[0]}, vcc")
        A(f"v_mul_u32_u24 v{t[1]}, {stride}, v{t[1]}\nv_lshl_add_u32 v{dst}, v{t[2]}, 4, v{t[1]}")
        if 0 < i < 4: A(f"v_subrev_u32 v{dst}, {1024*i}, v{dst}")
    def xfrag_addr(d):
        A(f"v_lshrrev_b32 v{d}, 1, v1\nv_xor_b32 v{d}, v{d}, v2\nv_lshlrev_b32 v{d}, 4, v{d}\nv_lshl_add_u32 v{d}, v1, 7, v{d}")
    def wfrag_addr(d, g32, t):
        A(f"v_lshrrev_b32 v{d}, 2, v1\nv_lshl_add_u32 v{d}, v2, 3, v{d}\nv_mul_u32_u24 v{d}, 320, v{d}\nv_and_b32 v{t}, 3, v1\nv_lshl_add_u32 v{d}, v{t}, 3, v{d}\nv_add_u32 v{d}, 16384, v{d}")
        A(f"v_and_b32 v{g32}, 1, v2\nv_lshlrev_b32 v{g32}, 5, v{g32}")
    def stats_fetch():
        srd(A, rC, sWS, SP_SZ, SP_OFF)
        A(f"s_lshl_b32 s46, s{sR}, 10\nbuffer_load_dwordx4 v[224:227], v3, s[{rC}:{rC+3}], s46 offen sc1")

    sKT, sU1, sJL, sPAR = 39, 71, 70, 68
    CF, SF = 16, 48; WR, WI = 80, 96; XA = 112; VF = 144; TA = 168; YF = 184; UA = 208
    rWR, rWI = rX, rA
    def job_wdma():
        A(f"""
        v_lshrrev_b32 v4, 2, v0
        v_mul_u32_u24 v4, 20544, v4
        v_and_b32 v5, 3, v0
        v_lshl_add_u32 v4, v5, 4, v4
        s_mul_i32 s62, s{sU1}, 321
        s_lshr_b32 s63, s{sKT}, 1
        s_lshl_b32 s63, s63, 5
        s_add_u32 s62, s62, s63
        s_and_b32 s63, s{sKT}, 1
        s_add_u32 s62, s62, s63
        s_add_u32 s62, s62, 1
        s_lshl_b32 s62, s62, 1
        s_and_b32 s63, s62, 2
        s_sub_u32 s62, s62, s63
        s_add_u32 s{sPAR}, s63, s{sJL}
        """)
        srd(A, rWR, sWR, 2048*642); srd(A, rWI, sWI, 2048*642)
        for q in range(4):
            A(f"s_add_u32 m0, s{sJL}, {1024*q}\nbuffer_load_dwordx4 v4, s[{rWR}:{rWR+3}], s62 offen lds")
            A(f"s_add_u32 m0, s{sJL}, {4096+1024*q}\nbuffer_load_dwordx4 v4, s[{rWI}:{rWI+3}], s62 offen lds")
            if q < 3: A(f"s_add_u32 s62, s62, {16*20544}")
    def lds_add(n=1, t=(4, 5)):
        A(f"v_mov_b32 v{t[0]}, {CW}\nv_mov_b32 v{t[1]}, {n}\ns_waitcnt lgkmcnt(0)\ns_mov_b64 exec, 1\nds_add_u32 v{t[0]}, v{t[1]}\ns_mov_b64 exec, -1")
    def lds_wait(n, t=(4, 5), sh=0):
        L, G = A.label(), A.label()
        A(f"v_mov_b32 v{t[0]}, {CW}\ns_mov_b32 s61, 4000000\n{L}:\nds_read_b32 v{t[1]}, v{t[0]}\ns_waitcnt lgkmcnt(0)\nv_readfirstlane_b32 s60, v{t[1]}\ns_bfe_u32 s60, s60, {sh | (8 << 16)}\ns_cmp_ge_u32 s60, {n}\ns_cbranch_scc1 {G}")
        A(f"s_sub_u32 s61, s61, 1\ns_cmp_lg_u32 s61, 0\ns_sleep 1\ns_cbranch_scc1 {L}\n{G}:")
    FQ = 84
    def fprime_pre():
        A(f"s_and_b32 s54, s{sW}, 3\ns_lshl_b32 s46, s{sR}, 2\ns_add_u32 s46, s46, s54\nv_lshlrev_b32 v14, 8, v2\nv_add_u32 v14, s46, v14\nv_cvt_f32_u32 v14, v14")
        for ut in range(2):
            A(f"v_add_u32 v15, {16*ut}, v1\nv_cvt_f32_u32 v15, v15\nv_mul_f32 v15, {fbits(1/2048)}, v15\nv_mul_f32 v{FQ+8*ut}, v15, v14\nv_mul_f32 v15, {fbits(64.0)}, v15")
            for j in range(1, 4): A(f"v_add_f32 v{FQ+8*ut+j}, v15, v{FQ+8*ut+j-1}")
            for j in range(4): A(f"v_sin_f32 v{FQ+8*ut+4+j}, v{FQ+8*ut+j}\nv_cos_f32 v{FQ+8*ut+j}, v{FQ+8*ut+j}")
    def job_consts():
        A(f"v_lshlrev_b32 v5, 2, v2\nv_cvt_f32_u32 v5, v5\nv_cvt_f32_u32 v6, v1\nv_mul_f32 v6, {fbits(1/64)}, v6\nv_mul_f32 v7, v6, v5")
        TB = 192
        for j in range(8): A(f"v_fmamk_f32 v{TB+j}, v6, {fbits(16.0*(j>>2) + (j&3))}, v7")
        for j in range(8): A(f"v_sin_f32 v{TB+8+j}, v{TB+j}\nv_cos_f32 v{TB+j}, v{TB+j}")
        cf = lambda mt, t, p: CF+(mt*2+t)*4+p
        sf = lambda mt, t, p: SF+(mt*2+t)*4+p
        A("s_brev_b32 s67, 1")
        for p in range(4):
            c0, c1, s0, s1 = TB+2*p, TB+2*p+1, TB+8+2*p, TB+8+2*p+1
            A(f"v_cvt_pk_bf16_f32 v{cf(0,0,p)}, v{c0}, v{c1}\nv_cvt_pk_bf16_f32 v{sf(0,0,p)}, v{s0}, v{s1}")
            if p % 2 == 0: A(f"v_cvt_pk_bf16_f32 v{cf(1,0,p)}, v{c0}, -v{s1}\nv_cvt_pk_bf16_f32 v{sf(1,0,p)}, v{s0}, v{c1}")
            else: A(f"v_cvt_pk_bf16_f32 v{cf(1,0,p)}, -v{c0}, v{s1}\nv_cvt_pk_bf16_f32 v{sf(1,0,p)}, -v{s0}, -v{c1}")
        A("v_and_b32 v5, 1, v1\nv_mul_u32_u24 v5, 0x8000, v5\nv_lshl_or_b32 v5, v5, 16, v5")
        for f in (cf, sf):
            for mt in (2, 3):
                for p in range(4): A(f"v_xor_b32 v{f(mt,0,p)}, s67, v{f(mt-2,0,p)}")
            for mt in range(4):
                for p in range(4): A(f"v_xor_b32 v{f(mt,1,p)}, v5, v{f(mt,0,p)}")
        reset(A)

    A(f"s_cmp_ge_u32 s2, 256\ns_cbranch_scc1 {END}")
    T.start(A)
    A(f"""
    s_getpc_b64 s[70:71]
    A_PC:
    v_readfirstlane_b32 s{sW}, v0
    s_lshr_b32 s41, s2, 3
    v_lshlrev_b32 v10, 2, v0
    s_lshl_b32 s46, s41, 11
    v_add_u32 v10, s46, v10
    v_min_u32 v10, CODE_END-A_PC-4, v10
    v_mov_b32 v11, s71
    v_add_co_u32 v10, vcc, s70, v10
    s_lshr_b32 s{sW}, s{sW}, 6
    s_lshl_b32 s48, s2, 3
    v_addc_co_u32 v11, vcc, 0, v11, vcc
    s_add_u32 s48, s48, s{sW}
    s_cmp_eq_u32 s48, 14
    s_cbranch_scc1 A_NT
    global_load_dword v255, v[10:11], off
    A_NT:
    s_load_dwordx2 s[{sWS}:{sWS+1}], s[0:1], 80
    s_load_dwordx4 s[{sX}:{sX+3}], s[0:1], 0
    s_load_dwordx4 s[{sW1}:{sW1+3}], s[0:1], 32
    s_load_dwordx2 s[{sDBG}:{sDBG+1}], s[0:1], 72
    s_load_dwordx2 s[{sW2}:{sW2+1}], s[0:1], 48
    s_load_dwordx2 s[{sWI}:{sWI+1}], s[0:1], 16
    v_and_b32 v0, 63, v0
    s_cbranch_scc0 A_NI
    v_lshlrev_b32 v4, 8, v0
    v_mov_b32 v5, 0
    s_movk_i32 s46, 16384
    s_mov_b32 s66, 1
    s_waitcnt lgkmcnt(0)
    """)
    reset(A)
    srd(A, rF, sWS, FLG_SZ, FLG_OFF)
    A(f"buffer_store_dword v5, v4, s[{rF}:{rF+3}], 0 offen sc1\nbuffer_store_dword v5, v4, s[{rF}:{rF+3}], s46 offen sc1\ns_waitcnt vmcnt(0)")
    A.raw(f"s_atomic_or s66, s[{sDBG}:{sDBG+1}], 0")
    T.at(A, "mA", 4)
    A("global_load_dword v255, v[10:11], off")
    reset(A)
    A(f"""
    A_NI:
    s_and_b32 s40, s2, 7
    s_lshr_b32 s42, s40, 1
    s_and_b32 s43, s40, 1
    s_lshr_b32 s44, s41, 3
    s_and_b32 s45, s41, 7
    s_lshl_b32 s{sR}, s42, 2
    s_add_u32 s{sR}, s{sR}, s44
    s_mul_i32 s{sJ}, s43, 5
    s_add_u32 s{sJ}, s{sJ}, s45
    s_add_u32 s46, s44, s45
    s_and_b32 s46, s46, 3
    s_mul_i32 s46, s46, 5
    s_add_u32 s46, s46, 1
    s_lshr_b32 s46, s46, 1
    s_add_u32 s{sC0}, s46, s42
    s_cmp_ge_u32 s{sC0}, 10
    s_cselect_b32 s46, 10, 0
    s_sub_u32 s{sC0}, s{sC0}, s46
    s_mul_i32 s{sCol}, s{sJ}, 160
    s_min_u32 s{sCol}, s{sCol}, 1568
    s_lshl_b32 s46, s43, 1
    s_add_u32 s46, s46, s45
    s_sub_u32 s46, s46, 5
    {"s_mov_b32 s48, s42" if optval("dm", 0) == 8 else "s_and_b32 s48, s46, %d" % optval("dm", 0)}
    s_add_u32 s47, s43, 5
    s_cmp_ge_u32 s45, s47
    s_cselect_b32 s{sJ}, s46, s{sJ}
    s_cselect_b32 s{sC0}, s48, s{sC0}
    v_and_b32 v1, 15, v0
    v_lshrrev_b32 v2, 4, v0
    v_lshlrev_b32 v3, 4, v0
    s_cmp_lg_u32 s{sW}, 4
    s_cbranch_scc1 A_NOTLD
    """)
    A.prot = set(PTRS)
    sCh, sSl, sXo, sWo, sIt = 49, 50, 51, 53, 54
    A(f"""
    s_setprio 3
    v_lshrrev_b32 v8, 3, v0
    v_mul_u32_u24 v8, 81920, v8
    v_and_b32 v4, 7, v0
    v_xor_b32 v4, v4, v2
    v_lshl_add_u32 v4, v4, 4, v8
    v_xor_b32 v5, 64, v4
    v_add_u32 v5, {655360-1024}, v5
    v_add_u32 v6, {2*(655360-1024)}, v4
    v_add_u32 v7, {2*(655360-1024)}, v5
    s_mul_i32 s52, s{sR}, 5120
    s_sub_u32 s52, s52, 1280
    s_mov_b32 s{sSl}, 0
    s_mov_b32 s{sIt}, 0
    s_mov_b32 s{sCh}, s{sC0}
    s_mov_b32 s{rX+2}, {2048*1280}
    s_mov_b32 s{rX+3}, 0x20000
    s_cmp_ge_u32 s45, s47
    s_waitcnt lgkmcnt(0)
    s_mov_b64 s[{rX}:{rX+1}], s[{sX}:{sX+1}]
    s_cbranch_scc1 A_LDD
    """)
    A.prot |= set(range(rX, rX+4))
    def xblock(base):
        for w in range(4):
            A(f"s_add_u32 m0, s{sSl}, {base+4096*w}\ns_add_u32 s{sXo}, s{sXo}, 1280")
            for i in range(4): A(f"buffer_load_dwordx4 v{4+i}, s[{rX}:{rX+3}], s{sXo} offen offset:{1024*i} lds")
    def ring_tail(lab, n, slot, nld, first=None):
        A(f"""
        s_add_u32 s{sCh}, s{sCh}, 1
        s_cmp_eq_u32 s{sCh}, 10
        s_cselect_b32 s{sCh}, 0, s{sCh}
        s_add_u32 s{sSl}, s{sSl}, {slot}
        s_cmp_eq_u32 s{sSl}, {3*slot}
        s_cselect_b32 s{sSl}, 0, s{sSl}
        s_add_u32 s{sIt}, s{sIt}, 1
        s_cmp_eq_u32 s{sIt}, 1
        s_cbranch_scc1 {first or lab}
        s_cmp_lt_u32 s{sIt}, {n}
        s_waitcnt vmcnt({nld})
        s_barrier
        s_cbranch_scc1 {lab}
        """)
        reset(A)
    A(f"A_LDMP:\ns_waitcnt vmcnt({optval('pace', 15)})\nA_LDM:\ns_lshl_b32 s{sXo}, s{sCh}, 7\ns_add_u32 s{sXo}, s{sXo}, s52")
    xblock(0)
    ring_tail("A_LDM", 10, SLOT, 16, "A_LDMP")
    A("s_waitcnt vmcnt(0)\ns_barrier\ns_barrier\ns_branch B_LH")
    A(f"A_LDD:\ns_lshl_b32 s{sXo}, s{sCh}, 7\ns_add_u32 s{sXo}, s{sXo}, s52")
    xblock(0)
    A(f"s_cmp_ge_u32 s{sCh}, 5\ns_cselect_b32 s58, 1280, 0\ns_sub_u32 s{sXo}, s{sXo}, s58\ns_sub_u32 s{sXo}, s{sXo}, {4*1280-640}")
    xblock(16384)
    A(f"s_cmp_lg_u32 s{sIt}, 0\ns_cbranch_scc1 A_LDD0")
    fprime_pre()
    A(f"s_mov_b32 s{sIt}, 0\nA_LDD0:")
    A(f"s_cmp_lg_u32 s{sIt}, 4\ns_cbranch_scc1 A_LDD1\ns_waitcnt vmcnt(0)\nA_LDD1:")
    ring_tail("A_LDD", 5, PS, 32)
    A("s_setprio 0")
    srd(A, rF, sWS, FLG_SZ, FLG_OFF)
    srd(A, rA, sW2, 1728*1280)
    for i in range(5): A(f"v_mov_b32 v{9+i}, v3")
    A("s_branch A_D3w")

    reset(A); A.prot = set(PTRS)
    A(f"A_NOTLD:\ns_cmp_lt_u32 s{sW}, 4\ns_cbranch_scc1 A_COMPUTE\ns_cmp_ge_u32 s45, s47\ns_cbranch_scc1 A_DH0")
    A(f"s_cmp_lg_u32 s{sW}, 5\ns_cbranch_scc1 A_DH0\ns_setprio 3\ns_mov_b32 s52, {(1<<32)//20+1}")
    for i in range(5): div20(9+i, i, 3456, True)
    A(f"s_mov_b32 s{sCh}, s{sC0}\ns_lshl_b32 s52, s{sCol}, 1\ns_sub_u32 s52, s52, {16*3456}\ns_mov_b32 s{sSl}, 0\ns_mov_b32 s{sIt}, 0\ns_waitcnt lgkmcnt(0)")
    srd(A, rA, sW1, 640*3456)
    A(f"A_LDW:\ns_mul_i32 s{sWo}, s{sCh}, {64*3456}\ns_add_u32 s{sWo}, s{sWo}, s52")
    for q in range(4):
        A(f"s_add_u32 m0, s{sSl}, {16384+5120*q}\ns_add_u32 s{sWo}, s{sWo}, {16*3456}")
        for i in range(4): A(f"buffer_load_dwordx4 v{9+i}, s[{rA}:{rA+3}], s{sWo} offen offset:{1024*i} lds")
        A(f"s_add_u32 m0, s{sSl}, {16384+5120*q+4096}")
        A(f"buffer_load_dwordx4 v13, s[{rA}:{rA+3}], s{sWo} offen lds")
    ring_tail("A_LDW", 10, SLOT, 20)
    A("s_waitcnt vmcnt(0)\ns_barrier\ns_barrier\ns_branch B_LW")

    reset(A); A.prot = set(PTRS)
    A("A_MH:")
    A.prot |= set(range(rF, rF+4))
    A(f"""
    s_mul_i32 s46, s43, 20
    s_mul_i32 s{sKT}, s44, s47
    s_add_u32 s46, s46, s{sKT}
    s_add_u32 s55, s46, s45
    s_mul_i32 s{sU1}, s55, 26
    s_lshr_b32 s{sU1}, s{sU1}, 8
    s_mul_i32 s46, s{sU1}, 10
    s_sub_u32 s{sKT}, s55, s46
    s_lshl_b32 s{sKT}, s{sKT}, 1
    s_and_b32 s46, s{sW}, 1
    s_add_u32 s{sKT}, s{sKT}, s46
    s_lshl_b32 s{sJL}, s46, 13
    s_add_u32 s{sJL}, s{sJL}, {RPK}
    s_lshl_b32 s46, s42, 3
    s_add_u32 s{sU1}, s{sU1}, s46
    s_add_u32 s{sU1}, s{sU1}, 4
    v_mov_b32 v4, {CW}
    v_mov_b32 v5, 0
    ds_write_b32 v4, v5
    """)
    srd(A, rC, sB1, 1728*2)
    A(f"v_lshlrev_b32 v4, 3, v0\ns_lshl_b32 s46, s{sCol}, 1\nbuffer_load_dwordx2 v[160:161], v4, s[{rC}:{rC+3}], s46 offen")
    reset(A)
    wfrag_addr(4, 5, 6)
    srd(A, rB, sWS, CP_SZ, CP_OFF)
    A(f"""
    s_and_b32 s48, s{sW}, 1
    s_mul_i32 s46, s48, 160
    v_add_u32 v4, s46, v4
    s_lshl_b32 s46, s48, 1
    s_sub_u32 s46, 1, s46
    v_mul_i32_i24 v5, s46, v5
    v_add_u32 v6, v4, v5
    v_sub_u32 v7, v4, v5
    v_lshlrev_b32 v8, 2, v1
    v_lshl_add_u32 v8, v2, 28, v8
    s_mul_i32 s49, s{sJ}, 6400
    s_mul_i32 s46, s{sC0}, 640
    s_add_u32 s50, s49, s46
    s_mul_i32 s46, s48, 320
    s_add_u32 s50, s50, s46
    s_add_u32 s51, s{sJ}, {L_C}
    s_lshl_b32 s51, s51, 8
    s_add_u32 s53, s{sR}, {L_S}
    s_lshl_b32 s53, s53, 8
    s_cmp_eq_u32 s48, 0
    s_mov_b32 s52, s53
    s_cselect_b32 s53, s53, s51
    s_cselect_b32 s54, 16, 32
    """)
    srd(A, rA, sWS, SP_SZ, SP_OFF)
    for i in range(4): A(f"v_mov_b32 v{12+i}, 0x3f803f80")
    A("s_waitcnt lgkmcnt(0)")
    def rowstats():
        L = A.label()
        A(f"s_cmp_ge_u32 s36, 16\ns_cbranch_scc1 {L}\nv_mov_b32 v164, 0\nv_mov_b32 v165, 0\nv_mov_b32 v166, 0\nv_mov_b32 v167, 0\ns_waitcnt vmcnt(1)")
        init_issue()
        for i in range(40): A(f"v_dot2c_f32_bf16 v{164+2*(i&1)}, v{212+i}, v12\nv_dot2c_f32_bf16 v{165+2*(i&1)}, v{212+i}, v{212+i}")
        A("v_add_f32 v164, v164, v166\nv_add_f32 v165, v165, v167")
        for dp in ("quad_perm:[1,0,3,2]", "quad_perm:[2,3,0,1]", "row_half_mirror"):
            for r in (164, 165): A(f"v_add_f32_dpp v{r}, v{r}, v{r} {dp} row_mask:0xf bank_mask:0xf")
        A(f"v_mul_f32 v164, {fbits(1/640)}, v164\nv_mul_f32 v165, {fbits(1/640)}, v165\nv_fma_f32 v165, -v164, v164, v165\nv_max_f32 v165, 0, v165")
        bf16_round(A, 165, 165); A(f"v_add_f32 v165, {fbits(1e-5)}, v165"); bf16_round(A, 165, 165); A("v_sqrt_f32 v165, v165"); bf16_round(A, 165, 165)
        A(f"v_and_b32 v9, 7, v0\nv_lshl_add_u32 v9, v9, 28, v0\ns_lshl_b32 s46, s{sR}, 4\ns_add_u32 s46, s46, s36\ns_lshl_b32 s46, s46, 6")
        A(f"buffer_store_dwordx2 v[164:165], v9, s[{rA}:{rA+3}], s46 offen sc1\n{L}:")
        reset(A)
    rowstats()
    T.at(A, "mD", 3)
    A("s_barrier\ns_cmp_lt_u32 s36, 16\ns_cbranch_scc1 A_MH1")
    init_issue()
    A("A_MH1:")
    for t in range(2):
        for q in range(5):
            for jh in range(2): A(f"ds_read_b64_tr_b16 {v(80+20*t+4*q+2*jh,2)}, v{6 if q%2==0 else 7} offset:{t*10240+jh*1280+q*32}")
    for t in range(2):
        for q in range(5): A(mfma(124+4*q, 12, 80+20*t+4*q, None if t else 0))
    initcheck()
    A("s_cmp_ge_u32 s36, 16\ns_cbranch_scc1 A_MH2")
    arrive(52)
    T.at(A, "mD", 2)
    A("A_MH2:")
    for q in range(5): A(f"buffer_store_dword v{124+4*q}, v8, s[{rB}:{rB+3}], s50 offen offset:{64*q} sc1")
    A("s_barrier")
    A("s_barrier\ns_barrier")
    arrive(51)
    for _ in range(4, 8): A("s_barrier")
    A("s_waitcnt lgkmcnt(0)")
    poll_issue(53)
    A("s_barrier")
    poll(53, "s54", 0, True)
    T.at(A, "mD", 0)
    A("s_cmp_eq_u32 s48, 0\ns_cbranch_scc0 A_MH7")
    stats_fetch()
    A("s_sleep 2\ns_branch A_MH7b")
    A("A_MH7:\ns_mov_b32 exec_hi, 0xff\ns_add_u32 s50, s49, 3200")
    for c in range(10): A(f"buffer_load_dwordx4 {v(80+4*c,4)}, v3, s[{rB}:{rB+3}], s{49 if c < 5 else 50} offen offset:{640*(c%5)} sc1")
    A("s_mov_b64 exec, -1\nA_MH7b:")
    reset(A)
    job_wdma()
    A("s_barrier\ns_waitcnt vmcnt(8)\ns_cmp_eq_u32 s48, 0\ns_cbranch_scc0 A_MH7c")
    reset(A)
    for m, o in ((224, 232), (226, 236)):
        A(f"v_rcp_f32 v5, v{m+1}\nv_cvt_pk_bf16_f32 v{o}, -v{m}, -v{m}\nv_mov_b32 v{o+3}, v{m+1}\nv_mul_f32 v{o+2}, {fbits(K0)}, v5\nv_mul_f32 v5, v5, v5\nv_mul_f32 v5, v5, v{o+2}\nv_mul_f32 v{o+1}, {fbits(0.044715)}, v5")
    A(f"v_lshlrev_b32 v4, 5, v0\nv_add_u32 v4, {STAT}, v4\nds_write_b128 v4, v[232:235]\nds_write_b128 v4, v[236:239] offset:16\ns_branch A_MH8")
    A("A_MH7c:\ns_mov_b32 s69, 0xffff0000")
    for c in range(1, 10):
        for i in range(4): A(f"v_add_f32 v{80+i}, v{80+i}, v{80+4*c+i}")
    for i in range(4):
        A(f"v_and_b32 v5, s69, v{80+i}\nv_sub_f32 v5, v{80+i}, v5\nv_cvt_pk_bf16_f32 v5, v5, v5\nv_alignbit_b32 v{124+2*i}, v5, v{80+i}, 16")
        A(f"v_lshrrev_b32 v{125+2*i}, 16, v{160+i//2}" if i % 2 else f"v_and_b32 v{125+2*i}, 0xffff, v{160+i//2}")
    A(f"v_lshlrev_b32 v4, 5, v0\nv_add_u32 v4, {CX}, v4\ns_mov_b32 exec_hi, 0xff\nds_write_b128 v4, v[124:127]\nds_write_b128 v4, v[128:131] offset:16\ns_mov_b64 exec, -1")
    A("A_MH8:\ns_waitcnt lgkmcnt(0)")
    T.at(A, "mD", 1)
    A(f"s_barrier\ns_mov_b32 s38, {optval('gate', 0)}\ns_cmp_lt_u32 s55, 40\ns_cbranch_scc1 A_JOB\ns_waitcnt vmcnt(0)")
    T.end(A, sW, sWS)
    A("s_endpgm")

    reset(A); A.prot = set(PTRS)
    sH = 36
    A(f"A_DH1:\ns_sub_u32 s{sH}, s{sW}, 5\ns_add_u32 s53, s{sR}, {L_S}\ns_lshl_b32 s53, s53, 8")
    A.prot |= set(range(rF, rF+4))
    sE, sL = 55, 38
    A(f"""
    s_mul_i32 s{sE}, s{sR}, 5
    s_add_u32 s{sE}, s{sE}, s{sJ}
    s_mul_i32 s{sE}, s{sE}, 3
    s_add_u32 s{sE}, s{sE}, s{sH}
    s_mul_i32 s{sL}, s{sH}, 10240
    s_add_u32 s{sL}, s{sL}, {RPK}
    s_lshr_b32 s67, s{sE}, 2
    s_mul_i32 s67, s67, 40960
    s_and_b32 s52, s{sE}, 3
    s_mul_i32 s52, s52, 160
    s_add_u32 s67, s67, s52
    s_mov_b32 s52, {(1<<32)//20+1}
    """)
    for i in range(5): div20(9+i, i, 1280, False, seg=True)
    srd(A, rA, sW2, 1728*1280)
    def rp_load():
        for q in range(2):
            A(f"s_add_u32 m0, s{sL}, {5120*q}")
            for i in range(4): A(f"buffer_load_dwordx4 v{9+i}, s[{rA}:{rA+3}], s67 offen offset:{1024*i} lds")
            A(f"s_add_u32 m0, s{sL}, {5120*q+4096}\nbuffer_load_dwordx4 v13, s[{rA}:{rA+3}], s67 offen lds")
            if q == 0: A(f"s_add_u32 s67, s67, {16*1280}")
    fprime_pre()
    A(f"s_barrier\ns_cmp_lg_u32 s{sW}, 7\ns_cbranch_scc1 A_D0")
    init_issue()
    A(f"A_D0:\ns_barrier\ns_cmp_lg_u32 s{sW}, 7\ns_cbranch_scc1 A_D1")
    initcheck()
    A(f"s_sleep {optval('sd', 6)}")
    poll_issue(53)
    A(f"A_D1:\ns_barrier\ns_cmp_lg_u32 s{sW}, 7\ns_cbranch_scc1 A_D2")
    T.at(A, "mD", 0)
    poll(53, 16, 0, True)
    stats_fetch()
    A(f"v_rcp_f32 v224, v225\nv_rcp_f32 v225, v227\nv_lshlrev_b32 v4, 3, v0\nv_add_u32 v4, {STAT}, v4\nv_mul_f32 v224, {fbits(2.0/(2048*640))}, v224\nv_mul_f32 v225, {fbits(2.0/(2048*640))}, v225\nds_write_b64 v4, v[224:225]")
    A("s_waitcnt lgkmcnt(0)")
    T.at(A, "mD", 1)
    A(f"""
    A_D2:
    s_barrier
    A_D3w:
    s_and_b32 s54, s{sW}, 3
    s_lshl_b32 s46, s54, 7
    s_add_u32 s46, s46, {STAT}
    v_lshl_add_u32 v7, v2, 4, s46
    s_lshl_b32 s46, s54, 12
    s_add_u32 s46, s46, {FX}
    v_add_u32 v6, s46, v3
    v_and_b32 v8, 1, v1
    v_lshlrev_b32 v8, 31, v8
    """)
    T.at(A, "mD", 2)
    A("ds_read_b128 v[228:231], v7\nds_read_b128 v[232:235], v7 offset:64")
    A(f"s_cmp_eq_u32 s{sW}, 4\ns_cbranch_scc1 A_D2a")
    rp_load()
    A("A_D2a:")
    A.vm = []
    for j in range(4): A(f"v_xor_b32 v{232+j}, v8, v{232+j}")
    for ut in range(2):
        for cs in range(2):
            o = 104 + 4*(2*ut+cs); src = FQ+8*ut+4*cs
            for jh in range(2):
                for j in range(4): A(f"v_mul_f32 v{236+4*jh+j}, v{src+j}, v{228+4*jh+j}")
            for p in range(4): A(f"v_cvt_pk_bf16_f32 v{o+p}, v{236+2*p}, v{236+2*p+1}")
            A(f"ds_write_b128 v6, {v(o,4)} offset:{1024*(2*ut+cs)}")
    lds_add()
    T.at(A, "mD", 3)
    A(f"s_cmp_eq_u32 s{sW}, 4\ns_cbranch_scc1 A_D3")
    A(f"s_cmp_ge_u32 s{sE}, 216\ns_cbranch_scc1 A_D3")
    reset(A)
    srd(A, rB, sWS, W2P_SZ, W2P_OFF)
    A(f"""
    v_lshrrev_b32 v5, 2, v1
    v_lshl_add_u32 v5, v2, 2, v5
    v_mul_u32_u24 v5, 320, v5
    v_and_b32 v6, 3, v1
    v_lshl_add_u32 v5, v6, 3, v5
    v_add_u32 v5, s{sL}, v5
    v_and_b32 v6, 2, v1
    v_mul_u32_u24 v6, 72, v6
    v_add_u32 v7, v5, v6
    v_add_u32 v6, 4096, v3
    s_and_b32 s46, s{sE}, 3
    s_mul_i32 s46, s46, 108
    s_lshr_b32 s52, s{sE}, 2
    s_add_u32 s46, s46, s52
    s_mul_i32 s46, s46, 5120
    s_waitcnt vmcnt(0)
    """)
    for nt in range(10):
        for jh in range(2): A(f"ds_read_b64_tr_b16 {v(YF+4*nt+2*jh,2)}, v{7 if nt % 5 == 2 else 5} offset:{jh*5120 + (nt//5)*80 + (0, 32, 64, 160, 192)[nt % 5]}")
    for nt in range(10):
        q = nt % 5
        if q < 4: A(f"buffer_store_dwordx4 {v(YF+4*nt,4)}, v3, s[{rB}:{rB+3}], s46 offen offset:{1024*q} sc1")
        else: A(f"buffer_store_dwordx4 {v(YF+4*nt,4)}, v6, s[{rB}:{rB+3}], s46 offen sc1\ns_add_u32 s46, s46, {54*5120}")
    A("A_D3:")
    A(f"""
    s_mul_i32 s46, s43, 12
    s_sub_u32 s{sKT}, 8, s47
    s_mul_i32 s{sKT}, s{sKT}, s44
    s_add_u32 s46, s46, s{sKT}
    s_add_u32 s46, s46, s45
    s_sub_u32 s46, s46, s47
    s_mul_i32 s{sU1}, s46, 52
    s_lshr_b32 s{sU1}, s{sU1}, 8
    s_mul_i32 s{sKT}, s{sU1}, 5
    s_sub_u32 s{sKT}, s46, s{sKT}
    s_lshl_b32 s{sKT}, s{sKT}, 2
    s_and_b32 s46, s{sW}, 3
    s_add_u32 s{sKT}, s{sKT}, s46
    s_mul_i32 s{sJL}, s46, 10240
    s_add_u32 s{sJL}, s{sJL}, {RPK - 10240}
    s_cmp_eq_u32 s46, 0
    s_cselect_b32 s{sJL}, 71680, s{sJL}
    s_lshl_b32 s46, s42, 3
    s_add_u32 s{sU1}, s{sU1}, s46
    """)
    if optval("wg", 0): lds_wait(optval("wg", 0))
    job_wdma()
    reset(A)
    A(f"s_cmp_eq_u32 s{sW}, 4\ns_cbranch_scc1 A_DH\ns_cmp_ge_u32 s{sE}, 216\ns_cbranch_scc1 A_DW")
    signal2(f"s_and_b32 s46, s{sE}, 7\ns_add_u32 s46, s46, {L_W}", 26, 1 << 16)
    T.at(A, "mD", 4)
    A("s_branch A_DW\nA_DH0:\ns_waitcnt lgkmcnt(0)")
    srd(A, rF, sWS, FLG_SZ, FLG_OFF)
    srd(A, rX, sX, 2048*1280)
    A(f"""
    s_and_b32 s46, s{sW}, 1
    s_xor_b32 s46, s46, 1
    s_mul_i32 s46, s46, 11
    s_add_u32 s36, s46, s{sJ}
    s_cmp_ge_u32 s45, s47
    s_cselect_b32 s36, 99, s36
    s_cmp_ge_u32 s36, 16
    s_cbranch_scc1 A_DH
    s_and_b32 s46, s36, 3
    s_lshl_b32 s46, s46, 9
    s_lshr_b32 s52, s36, 2
    s_add_u32 s46, s46, s52
    s_lshl_b32 s52, s{sR}, 2
    s_add_u32 s46, s46, s52
    s_mul_i32 s46, s46, 1280
    v_lshrrev_b32 v4, 3, v0
    v_mul_u32_u24 v4, 81920, v4
    v_and_b32 v5, 7, v0
    v_lshl_add_u32 v4, v5, 4, v4
    """)
    for c in range(10): A(f"buffer_load_dwordx4 {v(212+4*c,4)}, v4, s[{rX}:{rX+3}], s46 offen offset:{128*c}")
    reset(A)
    A("A_DH:")
    job_consts()
    A(f"s_cmp_lt_u32 s45, s47\ns_cbranch_scc1 A_MH\ns_cmp_gt_u32 s{sW}, 4\ns_cbranch_scc1 A_DH1")
    A("A_DW:\ns_mov_b32 s38, 0")
    A("A_JOB:\ns_setprio 3")
    T.at(A, "mJ", 0)
    rV, rU = rC, rB
    srd(A, rV, sWS, V_SZ, V_OFF); srd(A, rU, sWS, U_SZ, U_OFF)
    for i in range(32): A(f"v_mov_b32 v{WR+i}, 0")
    A(f"""
    v_lshrrev_b32 v5, 2, v1
    v_lshl_add_u32 v5, v2, 2, v5
    v_lshlrev_b32 v5, 6, v5
    v_and_b32 v6, 3, v1
    v_lshl_add_u32 v5, v6, 4, v5
    v_add_u32 v5, s{sJL}, v5
    v_lshlrev_b32 v6, 8, v2
    v_lshl_add_u32 v6, v1, 2, v6
    v_add_u32 v6, s{sPAR}, v6
    s_mov_b32 s65, 0x80008000
    s_mul_i32 s50, s{sU1}, 20
    s_add_u32 s50, s50, s{sKT}
    s_lshl_b32 s50, s50, 12
    s_lshl_b32 s51, s{sKT}, 8
    s_mov_b32 m0, s{sJL}
    s_waitcnt vmcnt(0)
    """)
    for mt in range(4):
        for r in range(4):
            for ar in range(2): A(f"ds_read_u16_d16_hi v{(WR,WI)[ar]+4*mt+r}, v6 offset:{4096*ar+(16*mt+r)*64}")
    A("s_cmp_lt_u32 s45, s47\ns_cbranch_scc1 A_J1")
    lds_wait(12, (10, 11))
    if optval("vd", 0): A(f"s_sleep {optval('vd', 0)}")
    A("s_branch A_J1b\nA_J1:")
    if optval("vm", 0): A(f"s_sleep {optval('vm', 0)}")
    A("A_J1b:")
    T.at(A, "mJ", 1)
    poll(51, 16, ps=optval('pv', 2))
    T.at(A, "mJ", 2)
    for i in range(4): A(f"buffer_load_dwordx4 v3, s[{rV}:{rV+3}], s50 offen offset:{1024*i} sc1 lds")
    A(f"""
    v_lshrrev_b32 v9, 1, v1
    v_and_b32 v9, 3, v9
    v_xor_b32 v9, v9, v2
    v_lshlrev_b32 v9, 4, v9
    v_lshl_add_u32 v9, v1, 6, v9
    v_add_u32 v9, s{sJL}, v9
    v_lshrrev_b32 v6, 3, v0
    v_and_b32 v7, 3, v6
    v_lshlrev_b32 v7, 4, v7
    v_xor_b32 v7, v7, v3
    v_add_u32 v7, s{sJL}, v7
    v_mul_u32_u24 v6, 81920, v6
    v_and_b32 v8, 7, v0
    v_lshl_add_u32 v6, v8, 4, v6
    s_lshl_b32 s50, s{sKT}, 12
    s_lshl_b32 s46, s{sU1}, 7
    s_add_u32 s50, s50, s46
    s_cmp_eq_u32 s{sKT}, 19
    s_cselect_b32 s46, 0.5, 1.0
    v_cmp_eq_u32 vcc, 3, v2
    v_mov_b32 v8, s46
    v_cndmask_b32 v8, 1.0, v8, vcc
    s_waitcnt vmcnt(0)
    """)
    lds_wait("s38", (10, 11))
    T.at(A, "mJ", 3)
    for t in range(2):
        for rho in range(2):
            for jh in range(2): A(f"ds_read_b64_tr_b16 {v(VF+12*t+4*rho+2*jh,2)}, v5 offset:{2048*t+1024*jh+8*rho}")
    for t in range(2):
        for p in range(4): A(f"v_xor_b32 v{VF+12*t+8+p}, s65, v{VF+12*t+p}")
    def fwd(mt):
        m = []
        for t in range(2):
            re, im = XA+8*mt, XA+8*mt+4
            C, S = CF+(mt*2+t)*4, SF+(mt*2+t)*4
            m += [mfma(re, C, VF+12*t, None if t else 0), mfma(im, C, VF+12*t+4, None if t else 0), mfma(re, S, VF+12*t+4), mfma(im, S, VF+12*t+8)]
        return m
    def filt(mt):
        f = []
        tb = TA + 8*(mt & 1)
        for r in range(4):
            xr, xi, w_r, w_i = XA+8*mt+r, XA+8*mt+4+r, WR+4*mt+r, WI+4*mt+r
            f += [f"v_mul_f32 v{tb+r}, v{xi}, v{w_i}", f"v_mul_f32 v{tb+4+r}, v{xr}, v{w_i}", f"v_fma_f32 v{tb+r}, v{xr}, v{w_r}, -v{tb+r}", f"v_fmac_f32 v{tb+4+r}, v{xi}, v{w_r}"]
        t, jh = mt >> 1, mt & 1
        for p in range(2):
            f += [f"v_cvt_pk_bf16_f32 v{YF+12*t+2*jh+p}, v{tb+2*p}, v{tb+2*p+1}", f"v_cvt_pk_bf16_f32 v{YF+12*t+4+2*jh+p}, v{tb+4+2*p}, v{tb+4+2*p+1}",
                  f"v_xor_b32 v{YF+12*t+8+2*jh+p}, s65, v{YF+12*t+4+2*jh+p}"]
        return f
    def inv(t):
        m = []
        for nt in range(4):
            re, im = UA+8*nt, UA+8*nt+4
            C, S = CF+(nt*2+t)*4, SF+(nt*2+t)*4
            m += [mfma(re, YF+12*t, C, None if t else 0), mfma(im, YF+12*t+4, C, None if t else 0), mfma(re, YF+12*t+8, S), mfma(im, YF+12*t, S)]
        return m
    for x in fwd(0) + fwd(1)[:4]: A(x)
    weave(A, fwd(1)[4:] + fwd(2) + fwd(3), filt(0) + filt(1))
    weave(A, inv(0), filt(2) + filt(3))
    def outp(nt):
        d = UA+8*nt
        return [f"v_mul_f32 v{d+3}, v{d+3}, v8", f"v_mul_f32 v{d+7}, v{d+7}, v8"] + [f"v_cvt_pk_bf16_f32 v{TA+4*nt+p}, v{d+2*p}, v{d+2*p+1}" for p in range(4)] + [f"ds_write_b128 v9, {v(TA+4*nt,4)} offset:{1024*nt}"]
    i1 = inv(1)
    for x in i1[:9]: A(x)
    weave(A, i1[9:], outp(0) + outp(1))
    for x in outp(2) + outp(3): A(x)
    A("s_waitcnt lgkmcnt(0)")
    for q in range(4): A(f"ds_read_b128 {v(VF+4*q,4)}, v7 offset:{1024*q}")
    for q in range(4):
        A(f"buffer_store_dwordx4 {v(VF+4*q,4)}, v6, s[{rU}:{rU+3}], s50 offen sc1\ns_add_u32 s50, s50, {8*81920}")
    T.at(A, "mJ", 4)
    A(f"s_mov_b32 s55, 0\ns_cmp_lt_u32 s{sW}, {6 if 'bfirst' in OPT else 9}\ns_cbranch_scc1 A_J2")
    A(f"v_mov_b32 v4, {CW}\nds_read_b32 v5, v4\ns_waitcnt lgkmcnt(0)\nv_readfirstlane_b32 s55, v5\ns_bfe_u32 s55, s55, {8 | (8 << 16)}\ns_cmp_eq_u32 s55, 0\ns_cbranch_scc1 A_J2")
    A("s_barrier\ns_barrier\ns_barrier\nA_J2:")
    A(f"s_add_u32 s46, s{sKT}, {L_U}\ns_lshl_b32 s46, s46, 8\ns_mov_b32 s66, 1\ns_waitcnt vmcnt(0)")
    A.raw(f"s_atomic_add s66, s[{rF}:{rF+1}], s46 glc")
    A("s_cmp_eq_u32 s55, 0\ns_cbranch_scc1 A_J3\ns_barrier\ns_barrier\nA_J3:")
    A(f"v_lshlrev_b32 v4, 8, v0\nv_mov_b32 v5, 256\ns_movk_i32 s46, {L_R*256}\ns_waitcnt lgkmcnt(0)\ns_cmp_lg_u32 s66, 31\ns_cbranch_scc1 A_J4")
    A(f"buffer_atomic_add v5, v4, s[{rF}:{rF+3}], s46 offen sc1\nA_J4:")
    reset(A)
    A(f"s_cmp_eq_u32 s{sW}, 4\ns_cbranch_scc1 B_LH\ns_cmp_eq_u32 s{sW}, 5\ns_cbranch_scc1 B_LW")
    T.end(A, sW, sWS)
    A("s_endpgm")

    reset(A); A.prot = set(PTRS)
    A(f"A_COMPUTE:\ns_lshl_b32 s{sS2}, s{sR}, 2\ns_add_u32 s{sS2}, s{sS2}, s{sW}")
    xfrag_addr(8)
    A(f"s_mov_b32 s{sSl}, 0\ns_waitcnt lgkmcnt(0)\ns_cmp_ge_u32 s45, s47\ns_cbranch_scc1 A_DFT")
    rH = rA
    srd(A, rH, sWS, H_SZ, H_OFF)
    ACC = 20; AF = 100; XF = 180; AUG = 196; ST4 = 236; KC = 244
    vXA0, vXA1, vWE, vWO, vXB, vWB, vG32 = 10, 11, 12, 13, 14, 15, 16
    wfrag_addr(vWB, vG32, 18)
    A(f"""
    s_lshl_b32 s46, s{sW}, 12
    v_add_u32 v{vXB}, s46, v8
    v_lshlrev_b32 v18, 3, v1
    v_add_u32 v18, {CX}, v18
    s_lshl_b32 s46, s{sW}, 9
    s_add_u32 s46, s46, {STAT}
    v_lshl_add_u32 v9, v1, 4, s46
    s_lshr_b32 s38, s{sS2}, 1
    s_mul_i32 s46, s38, 54
    s_lshr_b32 s52, s{sCol}, 5
    s_add_u32 s46, s46, s52
    s_lshl_b32 s46, s46, 2
    s_and_b32 s52, s{sS2}, 1
    s_lshl_b32 s52, s52, 1
    s_add_u32 s46, s46, s52
    s_lshl_b32 s57, s46, 10
    s_cmp_eq_u32 s{sJ}, 10
    s_cselect_b32 s58, 0x40000000, s57
    s_add_u32 s38, s38, {L_R}
    v_cmp_eq_u32 s[64:65], 0, v2
    s_mov_b32 s{sIt}, 10
    """)
    for i in range(4): A(f"v_mov_b32 v{4+i}, 0")
    for r in [ACC+16*i for i in range(5)] + [AUG, AUG+16, AUG+32]: A(f"v_mfma_f32_32x32x16_bf16 {v(r,16)}, v[4:7], v[4:7], 0")
    addr_upd = [f"v_add_u32 v{vXA0}, s{sSl}, v{vXB}", f"v_add_u32 v{vWO}, s{sSl}, v{vWB}", f"v_add_u32 v{vWE}, v{vWO}, v{vG32}", f"v_sub_u32 v{vWO}, v{vWO}, v{vG32}", f"v_xor_b32 v{vXA1}, 64, v{vXA0}"]
    def reads(t):
        r = [f"ds_read_b128 {v(XF+8*t+4*mt,4)}, v{vXA0+t} offset:{2048*mt}" for mt in range(2)]
        for ft in range(10):
            for jh in range(2): r.append(f"ds_read_b64_tr_b16 {v(AF+40*t+4*ft+2*jh,2)}, v{vWE if ft%2==0 else vWO} offset:{t*10240+jh*1280+ft*32}")
        return r
    allm = [mfma(ACC+(ft*2+mt)*4, AF+40*t+4*ft, XF+8*t+4*mt) for t in range(2) for ft in range(10) for mt in range(2)]
    for x in addr_upd: A(x)
    T.at(A, "mA", 0)
    A("s_barrier")
    T.at(A, "mA", 1)
    for x in reads(0): A(x)
    st0 = A.state()
    A("A_ML:")
    slotadv = [f"s_add_u32 s{sSl}, s{sSl}, {SLOT}", f"s_cmp_eq_u32 s{sSl}, {3*SLOT}", f"s_cselect_b32 s{sSl}, 0, s{sSl}", f"s_sub_u32 s{sIt}, s{sIt}, 1"]
    R1 = optval("r1", 15); R0 = optval("r0", 36)
    weave(A, allm[:R1], reads(1)); weave(A, allm[R1:20], slotadv + addr_upd)
    A("s_waitcnt lgkmcnt(0)\ns_barrier")
    weave(A, allm[20:R0], reads(0) + [f"s_cmp_lg_u32 s{sIt}, 0"])
    for x in allm[R0:]: A(x)
    assert A.state()[0] == st0[0]
    A("s_cbranch_scc1 A_ML\nA_MLE:\ns_waitcnt vmcnt(0)")
    T.at(A, "mA", 2)
    for mt in range(2): A(f"ds_read_b128 {v(ST4+4*mt,4)}, v9 offset:{256*mt}")
    for ft in range(10): A(f"ds_read_b64 {v(AUG+4*ft,2)}, v18 offset:{128*ft}")
    BA = (4, 10)
    A("v_mov_b32 v12, 0\nv_mov_b32 v13, 0")
    for mt in range(2):
        b = BA[mt]
        A(f"v_lshrrev_b32 v{b+1}, 16, v{ST4+4*mt+3}\nv_cndmask_b32 v{b}, 0, v{ST4+4*mt}, s[64:65]\nv_cndmask_b32 v{b+1}, 0, v{b+1}, s[64:65]")
    dup = [f"v_mov_b32 v{KC+4*k+2*mt+h}, v{ST4+4*mt+1+k}" for mt in range(2) for k in range(3) for h in range(2)]
    weave(A, [mfma(ACC+(ft*2+mt)*4, AUG+4*ft, BA[mt]) for ft in range(10) for mt in range(2)], dup, per=1)
    T.at(A, "mA", 3)
    TMP = AF
    def grp(n):
        q, mt = n >> 1, n & 1
        tm = TMP + 8*(n % 3); o = TMP + 24 + 4*(n % 4)
        prs = [ACC + ((2*q+h)*2+mt)*4 + 2*p for h in range(2) for p in range(2)]
        s1 = [f"v_pk_mul_f32 {v(tm+2*i,2)}, {v(c,2)}, {v(c,2)}" for i, c in enumerate(prs)]
        s1 += [f"v_pk_fma_f32 {v(tm+2*i,2)}, {v(tm+2*i,2)}, {v(KC+2*mt,2)}, {v(KC+4+2*mt,2)}" for i in range(4)]
        s1 += [f"v_pk_mul_f32 {v(tm+2*i,2)}, {v(tm+2*i,2)}, {v(c,2)}" for i, c in enumerate(prs)]
        e = [f"v_exp_f32 v{tm+i}, v{tm+i}" for i in range(8)]
        s2 = [f"v_pk_fma_f32 {v(tm+2*i,2)}, {v(tm+2*i,2)}, {v(KC+8+2*mt,2)}, {v(KC+8+2*mt,2)}" for i in range(4)]
        r = [f"v_rcp_f32 v{tm+i}, v{tm+i}" for i in range(8)]
        s3 = [f"v_pk_mul_f32 {v(tm+2*i,2)}, {v(tm+2*i,2)}, {v(c,2)}" for i, c in enumerate(prs)]
        s3 += [f"v_cvt_pk_bf16_f32 v{o+i}, v{tm+2*i}, v{tm+2*i+1}" for i in range(4)]
        s3 += [f"buffer_store_dwordx4 {v(o,4)}, v3, s[{rH}:{rH+3}], s{57 if q else 58} offen offset:{1024*mt} sc1" + ("\ns_add_u32 s57, s57, 4096" if mt else "")]
        return s1, e, s2, r, s3
    G = [grp(n) for n in range(10)]
    for x in G[0][0]: A(x)
    for n in range(10):
        weave(A, G[n][1], G[n-1][4] if n else [])
        for x in G[n][2]: A(x)
        weave(A, G[n][3], G[n+1][0] if n < 9 else [])
    for x in G[9][4]: A(x)
    T.at(A, "mA", 4)
    lds_add()
    A("s_branch B_COMPUTE")

    reset(A); A.prot = set(PTRS)
    A("A_DFT:")
    rV = rC
    srd(A, rV, sWS, V_SZ, V_OFF); srd(A, rF, sWS, FLG_SZ, FLG_OFF)
    sK = 39
    ACC = 28; XF = 156; BF = 188; SQ = 204; TA = 220
    vSIG, vTQ = 252, 4
    vXA = 10; vXB = 18
    A(f"""
    s_lshl_b32 s{sK}, s{sJ}, 2
    s_add_u32 s{sK}, s{sK}, s{sW}
    s_lshl_b32 s64, s{sK}, 8
    s_bitcmp1_b32 s{sK}, 0
    s_cselect_b32 s46, 1.0, -1.0
    v_mov_b32 v{vSIG}, s46
    v_mov_b32 v{vSIG+1}, s46
    """)
    A(f"""
    s_lshr_b32 s46, s{sK}, 1
    s_lshl_b32 s46, s46, 5
    s_and_b32 s52, s{sK}, 1
    s_add_u32 s46, s46, s52
    s_add_u32 s46, s46, 1
    v_lshl_add_u32 v5, v1, 1, s46
    v_mul_u32_u24 v6, s{sC0}, v5
    v_mul_u32_u24 v7, 6554, v6
    v_lshrrev_b32 v7, 16, v7
    v_mul_u32_u24 v7, 10, v7
    v_sub_u32 v6, v6, v7
    v_cvt_f32_u32 v6, v6
    v_mul_f32 v6, {fbits(-0.1)}, v6
    v_cvt_f32_u32 v5, v5
    v_mul_f32 v5, {fbits(-1/640)}, v5
    v_lshlrev_b32 v7, 3, v2
    v_cvt_f32_u32 v7, v7
    v_add_f32 v7, 0.5, v7
    v_fma_f32 v{SQ}, v5, v7, v6
    v_mul_f32 v7, {fbits(32.0)}, v5
    v_cos_f32 v{vTQ}, v7
    """)
    for j in range(1, 8): A(f"v_add_f32 v{SQ+j}, v5, v{SQ+j-1}")
    for j in range(8): A(f"v_sub_f32 v{SQ+16+j}, v{SQ+j}, v7")
    A(f"v_add_f32 v{vTQ}, v{vTQ}, v{vTQ}")
    for sd in range(2):
        for j in range(8): A(f"v_sin_f32 v{SQ+16*sd+8+j}, v{SQ+16*sd+j}\nv_cos_f32 v{SQ+16*sd+j}, v{SQ+16*sd+j}")
    def bcv(t): return [f"v_cvt_pk_bf16_f32 v{BF+8*t+p}, v{SQ+16*t+2*p}, v{SQ+16*t+2*p+1}" for p in range(8)]
    def bstep(t): return [f"v_fma_f32 v{SQ+16*t+j}, v{vTQ}, v{SQ+16*(t^1)+j}, -v{SQ+16*t+j}" for j in range(16)] + bcv(t)
    for x in bcv(0): A(x)
    for i in range(4): A(f"v_mov_b32 v{BF+8+i}, 0")
    for r in [ACC+16*i for i in range(8)]: A(f"v_mfma_f32_32x32x16_bf16 {v(r,16)}, {v(BF+8,4)}, {v(BF+8,4)}, 0")
    dupd = [f"v_add_u32 v{vXA}, s{sSl}, v8", f"v_xor_b32 v{vXA+1}, 64, v{vXA}"]
    frs = [(h, t, m) for t in range(2) for h in range(2) for m in range(8)]
    def rd(i):
        h, t, m = frs[i % 32]
        return f"ds_read_b128 {v(XF+4*(i%8),4)}, v{vXA+t} offset:{h*16384+2048*m}"
    AH = 6
    A(f"s_mov_b32 s{sIt}, 5")
    for x in dupd: A(x)
    A(f"""
    v_add_u32 v13, {FX}, v3
    s_lshl_b32 s46, s{sW}, 13
    v_and_b32 v5, 7, v1
    v_xor_b32 v5, v5, v2
    v_lshlrev_b32 v5, 4, v5
    v_lshl_add_u32 v5, v1, 8, v5
    v_add_u32 v14, s46, v5
    v_xor_b32 v15, 64, v14
    v_xor_b32 v18, v1, v2
    v_lshlrev_b32 v18, 4, v18
    v_lshl_add_u32 v18, v2, 8, v18
    v_add_u32 v18, s46, v18
    v_xor_b32 v19, 64, v18
    v_mul_u32_u24 v20, {20*4096}, v2
    v_lshl_add_u32 v20, v1, 4, v20
    s_lshl_b32 s65, s{sK}, 12
    s_lshl_b32 s52, s{sR}, 8
    s_add_u32 s65, s65, s52
    s_mov_b32 s70, 0x80008000
    v_mov_b32 v16, {CW}
    v_mov_b32 v17, 0
    ds_write_b32 v16, v17
    v_mov_b32 v21, 1
    s_waitcnt lgkmcnt(0)
    """)
    T.at(A, "mA", 0)
    A("s_barrier")
    T.at(A, "mA", 1)
    for i in range(AH): A(rd(i))
    st0 = A.state()
    A("A_DL:")
    pr, pv = [], []
    for i, (h, t, m) in enumerate(frs):
        x = XF + 4*(i % 8)
        ms = [mfma(ACC+((h*8+m)*2+rho)*4, x, BF+8*t+4*rho) for rho in range(2)]
        if i == 0: pv += bstep(1) + [f"s_add_u32 s{sSl}, s{sSl}, {PS}", f"s_cmp_eq_u32 s{sSl}, {3*PS}", f"s_cselect_b32 s{sSl}, 0, s{sSl}", f"s_sub_u32 s{sIt}, s{sIt}, 1"]
        if i == 16:
            assert not pv
            pv += bstep(0)
        if i % 2 == 0 and i + AH < 32: pr += [rd(i + AH), rd(i + AH + 1)]
        if i == 26: pv = dupd + pv
        if i == 28:
            A(f"s_cmp_lt_u32 s{sIt}, 2\ns_waitcnt lgkmcnt(0)\ns_cbranch_scc1 A_DL1\ns_barrier\nA_DL1:")
            pr += [rd(32+k) for k in range(4)]
        if i == 30: pr += [rd(36), rd(37)]; pv += [f"s_cmp_lg_u32 s{sIt}, 0"]
        for mm in ms:
            A(mm)
            n = 2
            if pr: A(pr.pop(0)); n -= 1
            if mm is ms[-1] and i < 27: n -= 1
            while n > 0 and pv: A(pv.pop(0)); n -= 1
    assert not pr and not pv
    assert A.state()[0] == st0[0]
    A("s_cbranch_scc1 A_DL\nA_DLE:")
    T.at(A, "mA", 2)
    RR = TA; TF = ACC + 64
    def tcv(gq):
        f = []
        for rho in range(2):
            for jh in range(2):
                c = ACC + ((2*gq+jh)*2+rho)*4
                for p in range(2): f.append(f"v_cvt_pk_bf16_f32 v{TF+12*gq+4*rho+2*jh+p}, v{c+2*p}, v{c+2*p+1}")
        f += [f"v_xor_b32 v{TF+12*gq+8+p}, s70, v{TF+12*gq+p}" for p in range(4)]
        return f
    def sta(gq):
        m = []
        for ut in range(2):
            Cf, Sf = XF+16*gq+8*ut, XF+16*gq+8*ut+4
            re, im, nre = TF+12*gq, TF+12*gq+4, TF+12*gq+8
            dre, dim = ACC+(gq*2+ut)*8, ACC+(gq*2+ut)*8+4
            m += [mfma(dre, re, Cf, 0), mfma(dim, im, Cf, 0), mfma(dre, im, Sf), mfma(dim, nre, Sf)]
        return m
    def outv(gq):
        f = []
        for ut in range(2):
            d = ACC+(gq*2+ut)*8; o = TA + 4*(gq*2+ut)
            f += [f"v_cvt_pk_bf16_f32 v{o+p}, v{d+2*p}, v{d+2*p+1}" for p in range(4)] + [f"ds_write_b128 v{14+(gq&1)}, {v(o,4)} offset:{4096*ut+128*(gq>>1)}"]
        return f
    A("s_mov_b64 exec, 1\nds_add_u32 v16, v21\ns_mov_b64 exec, -1")
    for i in range(32): A(f"v_pk_fma_f32 {v(ACC+2*i,2)}, {v(ACC+64+2*i,2)}, {v(vSIG,2)}, {v(ACC+2*i,2)}")
    A.lg = []
    A("s_mov_b32 s61, 4000000\nA_DS:\nds_read_b32 v17, v16")
    for q in range(16): A(f"ds_read_b128 {v(XF+4*q,4)}, v13 offset:{1024*q}")
    for x in tcv(0) + tcv(1): A(x)
    A("s_waitcnt lgkmcnt(15)\nv_readfirstlane_b32 s60, v17\ns_and_b32 s60, s60, 255\ns_cmp_ge_u32 s60, 8\ns_cbranch_scc1 A_DS1\ns_sub_u32 s61, s61, 1\ns_cmp_lg_u32 s61, 0\ns_waitcnt lgkmcnt(0)\ns_sleep 2\ns_cbranch_scc1 A_DS\nA_DS1:")
    A.lg = [regs_of(v(XF+4*q,4)) for q in range(16)]
    weave(A, sta(0), tcv(2)); weave(A, sta(1), tcv(3)); weave(A, sta(2), outv(0) + outv(1)[:5]); weave(A, sta(3), outv(1)[5:] + outv(2))
    for x in outv(3): A(x)
    A("s_waitcnt lgkmcnt(0)")
    for n in range(8): A(f"ds_read_b128 {v(XF+4*n,4)}, v{18 + (n&1)} offset:{1024*n}")
    for n in range(8):
        A(f"buffer_store_dwordx4 {v(XF+4*n,4)}, v20, s[{rV}:{rV+3}], s65 offen sc1\ns_add_u32 s65, s65, {4*20*4096}")
    T.at(A, "mA", 3)
    A("s_mov_b64 exec, 1\nds_add_u32 v16, v21\ns_mov_b64 exec, -1\ns_mov_b32 s38, 0")
    arrive(64)
    T.at(A, "mA", 4)

    sRB, sCB = 33, 34
    WP = 20480; HB = 4*WP; HP = 24576
    XT0 = HB + 16384; XT3 = GAP + 1280; BO = XT0 + 7680
    PTRB = {0, 1, 2, 4, 5, 14, 15, 32, 40, 41}
    def brole():
        A.prot = set(PTRB)
        A(f"s_lshr_b32 s42, s41, 3\ns_lshl_b32 s{sRB}, s40, 2\ns_add_u32 s{sRB}, s{sRB}, s42\ns_and_b32 s{sCB}, s41, 7\nv_lshlrev_b32 v3, 4, v0")
        A.prot |= {sRB, sCB}
    def itemoff(OF):
        A(f"s_mov_b32 s52, {(1<<32)//10+1}")
        for q in range(3):
            A(f"""
            v_add_u32 v9, {64*q}, v0
            v_mul_hi_u32 v10, v9, s52
            v_mul_u32_u24 v11, 10, v10
            v_sub_u32 v11, v9, v11
            v_cmp_le_u32 vcc, 5, v11
            v_add_u32 v9, 35, v11
            v_cndmask_b32 v11, v11, v9, vcc
            v_mul_u32_u24 v10, 81920, v10
            v_lshl_add_u32 v{OF+q}, v11, 4, v10
            """)
    rH, rW, rU, rXb = 16, 28, 24, 28
    sO, sO2, sM = 62, 63, 64
    def bsrd(d, mul, sreg, off):
        A.prot -= set(range(d, d+4))
        A(f"s_mul_i32 s50, s{sreg}, {mul}\ns_add_u32 s50, s50, {off}\ns_add_u32 s{d}, s{sWS}, s50\ns_addc_u32 s{d+1}, s{sWS+1}, 0\ns_mov_b32 s{d+2}, {mul}\ns_mov_b32 s{d+3}, 0x20000")
        A.prot |= set(range(d, d+4))
    def ld(srdr, so, step, groups, base, o):
        for k, (vr, n, lo) in enumerate(groups):
            A(f"s_mov_b32 m0, {o+lo}" if base is None else f"s_add_u32 m0, s{base}, {o+lo}")
            for i in range(n): A(f"buffer_load_dwordx4 v{vr}, s[{srdr}:{srdr+3}], s{so} offen offset:{1024*i} sc1 lds")
        A(f"s_add_u32 s{so}, s{so}, {step}")
    def ldW(base, o, so): ld(rW, so, 10240, [(3, 4, 0), (4, 4, 4096), (5, 2, 8192)], base, o)
    def ldH(base, o): ld(rH, sO, 8192, [(3, 4, 0), (4, 4, 4096)], base, o)
    def ldU(base, o): ld(rU, sO2, 8192, [(6, 4, 0), (7, 4, 4096)], base, o)
    def hstart(OFr, gate):
        A(f"s_load_dwordx2 s[10:11], s[0:1], 56\ns_mul_i32 s54, s{sCB}, 80\ns_mul_i32 s63, s{sRB}, 2560\ns_add_u32 s63, s63, s54\ns_add_u32 s65, s{sRB}, {L_R}\ns_lshl_b32 s65, s65, 8\ns_waitcnt lgkmcnt(0)")
        srd(A, rXb, sX, 2048*1280); srd(A, rU, 10, 1280)
        for w in range(4):
            A(f"s_add_u32 s64, s63, {((w & 1) + 1024*(w >> 1))*1280}")
            for q in range(3):
                A(f"s_mov_b32 m0, {(XT0+2560*w if w < 3 else XT3)+1024*q}" + ("\ns_mov_b32 exec_hi, 0" if q == 2 else "") + f"\nbuffer_load_dwordx4 v{OFr+q}, s[{rXb}:{rXb+3}], s64 offen lds")
            A("s_mov_b64 exec, -1")
        A(f"s_mov_b32 m0, {BO}\ns_mov_b64 exec, 0x3ff\nbuffer_load_dwordx4 v{OFr}, s[{rU}:{rU+3}], s54 offen lds\ns_mov_b64 exec, -1")
        bsrd(rH, 54*4096, sRB, H_OFF)
        if gate: lds_wait(4)
        A(f"v_add_u32 v4, 4096, v3\ns_mov_b32 s{sO}, 0")
        T.at(A, "mB", 2)
        poll(65, 22, 0)
        T.at(A, "mB", 3)
        ldH(None, HB); ldH(None, HB + 8192); ldH(None, HB + HP); ldH(None, HB + HP + 8192)
        lds_add(256, (5, 6))
        reset(A)
    def preload(lab, gate=False):
        A(f"v_add_u32 v4, 4096, v3\nv_add_u32 v5, 8192, v3\ns_mov_b32 s{sO}, 0\ns_mov_b32 s{sM}, 0\ns_add_u32 s65, s{sRB}, {L_R}\ns_lshl_b32 s65, s65, 8")
        bsrd(rW, 54*5120, sCB, W2P_OFF)
        if gate:
            poll_issue(65)
            A(f"s_waitcnt lgkmcnt(0)\ns_bfe_u32 s60, s60, {16 | (8 << 16)}\ns_cmp_eq_u32 s60, {8 if 'pearly' in OPT else 99}\ns_cbranch_scc1 {lab}G")
            lds_wait(4, (6, 7))
        poll(65, 8, 16)
        A(f"{lab}G:")
        T.at(A, "mB", 1)
        A(f"{lab}:")
        ldW(sM, 0, sO)
        A(f"s_add_u32 s{sM}, s{sM}, 10240\ns_cmp_lt_u32 s{sM}, {7*10240}\ns_waitcnt vmcnt({optval('thr', 60)})\ns_cbranch_scc1 {lab}")
        NT = optval("nt", 0)
        if NT:
            A(f"v_lshlrev_b32 v6, 3, v3\ns_and_b32 s50, s{sRB}, 3\ns_lshl_b32 s50, s50, 13\ns_add_u32 s50, s50, {7*10240}")
            for i in range(NT): A(f"buffer_load_dword v255, v6, s[{rW}:{rW+3}], s50 offen sc1\ns_add_u32 s50, s50, 32768"); A.vm = []
        reset(A)
    reset(A)
    A(f"B_COMPUTE:\ns_cmp_ge_u32 s45, s47\ns_cselect_b32 s53, 1, 9")
    T.at(A, "mB", 0)
    brole()
    sP, sKP, sUW, sUH, sIt = 44, 45, 46, 47, 48
    FP = 12; ACC = 28; HF = 68; UF = 124; ZA = 136; FI = 152; SQ = 164; ZC = 212; TQ = 244; OF = 249; TC = 228
    TO = (0, 32, 64, 80, 112)
    vH, vW, vT, vWB, vTB, vHB = 4, 5, 6, 7, 8, 252
    rO = 20
    A(f"""
    s_load_dwordx2 s[8:9], s[0:1], 64
    s_add_u32 s56, s{sWS}, {FLG_OFF}
    s_addc_u32 s57, s{sWS+1}, 0
    s_lshl_b32 s38, s38, 8
    s_and_b32 s{sP}, s{sW}, 1
    s_lshr_b32 s{sKP}, s{sW}, 1
    s_lshl_b32 s55, s{sRB}, 1
    s_add_u32 s55, s55, s{sP}
    s_lshl_b32 s49, s{sKP}, 10
    s_add_u32 s49, s55, s49
    s_brev_b32 s67, 1
    """)
    A(f"v_lshlrev_b32 v9, 3, v2\nv_cvt_f32_u32 v9, v9\nv_lshl_add_u32 v10, v1, 6, s49\nv_cvt_f32_u32 v10, v10\nv_mul_f32 v10, {fbits(1/2048)}, v10\nv_mul_f32 v{TC}, v10, v9")
    for j in range(1, 8): A(f"v_add_f32 v{TC+j}, v10, v{TC+j-1}")
    for j in range(8): A(f"v_sin_f32 v{TC+8+j}, v{TC+j}\nv_cos_f32 v{TC+j}, v{TC+j}")
    for q in range(4): A(f"v_cvt_pk_bf16_f32 v{FP+q}, v{TC+2*q}, v{TC+2*q+1}\nv_cvt_pk_bf16_f32 v{FP+4+q}, v{TC+8+2*q}, v{TC+8+2*q+1}")
    for q in range(8): A(f"v_xor_b32 v{FP+8+q}, s67, v{FP+q}")
    itemoff(OF)
    A(f"""
    s_mul_i32 s50, s{sKP}, 5120
    v_add_u32 v{vWB}, s50, v3
    s_lshl_b32 s50, s{sKP}, 12
    s_lshl_b32 s51, s{sP}, 11
    s_add_u32 s51, s51, s50
    s_lshl_b32 s52, s{sKP}, 10
    s_add_u32 s51, s51, s52
    s_add_u32 s51, s51, {HB}
    v_add_u32 v{vHB}, s51, v3
    v_lshrrev_b32 v9, 2, v1
    v_lshl_add_u32 v9, v2, 3, v9
    v_lshlrev_b32 v9, 7, v9
    v_and_b32 v10, 3, v1
    v_lshl_add_u32 v9, v10, 4, v9
    s_lshl_b32 s51, s{sP}, 6
    v_add_u32 v9, s51, v9
    v_and_b32 v10, 8, v1
    v_lshlrev_b32 v10, 3, v10
    v_xor_b32 v9, v9, v10
    s_add_u32 s50, s50, {HB + 16384}
    v_add_u32 v{vTB}, s50, v9
    s_mul_i32 s54, s{sCB}, 80
    s_mul_i32 s59, s49, 1280
    s_add_u32 s59, s59, s54
    s_mul_i32 s58, s{sW}, 2560
    s_add_u32 s58, s58, {XT0}
    s_cmp_eq_u32 s{sW}, 3
    s_cselect_b32 s58, {XT3}, s58
    s_mov_b32 s70, 0x80008000
    s_mov_b32 s69, 0xffff0000
    s_mov_b32 s66, 1
    s_waitcnt vmcnt(0) lgkmcnt(0)
    """)
    A("s_cmp_eq_u32 s38, 0\ns_cbranch_scc1 B_NA")
    A.raw("s_atomic_add s66, s[56:57], s38")
    A("B_NA:")
    T.at(A, "mB", 1)
    srd(A, rO, 8, 2048*1280)
    A(f"""
    s_mul_i32 s50, s{sCB}, 40
    v_lshl_add_u32 v{HF}, v2, 3, s{sKP}
    v_cvt_f32_u32 v{HF}, v{HF}
    v_add_u32 v{HF+1}, s50, v1
    v_cvt_f32_u32 v{HF+1}, v{HF+1}
    v_and_b32 v9, 8, v1
    v_cvt_f32_u32 v9, v9
    v_fmamk_f32 v{HF+2}, v9, {fbits(-41.0)}, v{HF+1}
    """)
    for e in range(3):
        A(f"v_add_f32 v9, {fbits(16.0*e + 0.5)}, v{HF+1+(e == 2)}\nv_mul_f32 v9, {fbits(-1/640)}, v9\nv_mul_f32 v10, v{HF}, v9\nv_mul_f32 v{TQ+e}, {fbits(32.0)}, v9\nv_cos_f32 v{TQ+e}, v{TQ+e}")
        for sd in range(2):
            for r in range(4): A(f"v_fmamk_f32 v{SQ+16*e+8*sd+r}, v9, {fbits(2.0*r + 1.0 - 32.0*(sd+1))}, v10")
        A(f"v_add_f32 v{TQ+e}, v{TQ+e}, v{TQ+e}")
        for sd in range(2):
            o = SQ + 16*e + 8*sd
            for r in range(4): A(f"v_sin_f32 v{o+4+r}, v{o+r}\nv_cos_f32 v{o+r}, v{o+r}")
    for i in range(16): A(f"v_mov_b32 v{ZC+i}, 0")
    for nt in range(5):
        for i in range(4): A(f"v_mov_b32 v{ACC+(nt*2+1)*4+i}, 0")
    BT = ZA; XT = UF
    A(f"v_mul_u32_u24 v11, 160, v1\nv_lshl_add_u32 v11, v2, 3, v11\nv_add_u32 v253, s58, v11\nv_lshlrev_b32 v10, 3, v2\nv_add_u32 v10, {BO}, v10\nv_and_b32 v254, 2, v2\nv_lshlrev_b32 v254, 5, v254\nv_add_u32 v{FI}, v253, v254\nv_add_u32 v{FI+1}, v10, v254\ns_mov_b32 s{sUW}, 0\ns_mov_b32 s{sUH}, 0")
    adv = [f"s_add_u32 s{sUW}, s{sUW}, {WP}", f"s_cmp_eq_u32 s{sUW}, {4*WP}\ns_cselect_b32 s{sUW}, 0, s{sUW}", f"s_add_u32 s{sUH}, s{sUH}, {HP}", f"s_cmp_eq_u32 s{sUH}, {3*HP}\ns_cselect_b32 s{sUH}, 0, s{sUH}"]
    upd = [f"v_add_u32 v{vW}, s{sUW}, v{vWB}", f"v_add_u32 v{vH}, s{sUH}, v{vHB}", f"v_xor_b32 v9, 1024, v{vH}", f"v_add_u32 v{vT}, s{sUH}, v{vTB}"]
    def hrd(b): return [f"ds_read_b128 {v(HF+28*b,4)}, v{vH} offset:{8192*b}", f"ds_read_b128 {v(HF+28*b+8,4)}, v{vW} offset:{10240*b}", f"ds_read_b128 {v(HF+28*b+4,4)}, v9 offset:{8192*b}"] + \
                       [f"ds_read_b128 {v(HF+28*b+8+4*nt,4)}, v{vW} offset:{10240*b+1024*nt}" for nt in range(1, 5)]
    def hmm(b): return [mfma(ACC+(nt*2+l)*4, HF+28*b+8+4*nt, HF+28*b+4*l) for nt in range(5) for l in range(2)]
    trr = [f"ds_read_b64_tr_b16 {v(UF+4*rho+2*jh,2)}, v{vT} offset:{512*jh+8*rho}" for rho in (1, 0) for jh in range(2)]
    neg = [f"v_xor_b32 v{UF+8+q}, s70, v{UF+4+q}" for q in range(4)]
    sa = []
    for l in range(2):
        C, S = FP+8*l, FP+8*l+4; re, im = ZA+8*l, ZA+8*l+4
        sa += [mfma(re, UF, C, 0), mfma(im, UF+4, C, 0), mfma(im, UF, S), mfma(re, UF+8, S)]
    cv = [f"v_cvt_pk_bf16_f32 v{ZA+8*l+r}, v{ZA+8*l+r}, v{ZA+8*l+4+r}" for l in range(2) for r in range(4)]
    def fst(par): return [f"v_fma_f32 v{SQ+16*e+8*(par^1)+j}, v{TQ+e}, v{SQ+16*e+8*par+j}, -v{SQ+16*e+8*(par^1)+j}" for e in range(3) for j in range(8)]
    def fcv(par, e): return [f"v_cvt_pk_bf16_f32 v{FI+4*(e%3)+r}, v{SQ+16*e+8*(par^1)+r}, v{SQ+16*e+8*(par^1)+4+r}" for r in range(4)]
    def zmm(e): return [mfma((ZC if e < 2 else ACC)+(e*2+l)*4, FI+4*e, ZA+8*l) for l in range(2)]
    def mix(main, reads, valu):
        reads, valu = list(reads), list(valu); n = len(main)
        for i, mm in enumerate(main):
            A(mm)
            left = n - i
            nr = max(-(-len(reads) // left), 1) if reads else 0
            for _ in range(nr): A(reads.pop(0))
            nv = max(-(-len(valu) // left), min(len(valu), 2 - nr))
            for _ in range(nv): A(valu.pop(0))
    A(f"s_cmp_gt_u32 s{sW}, 1\ns_cbranch_scc1 B_NP\ns_cmp_lg_u32 s53, 1\ns_cbranch_scc1 B_NP")
    lds_wait(12)
    A(f"s_cmp_eq_u32 s{sW}, 0\ns_cbranch_scc1 B_P0")
    on = T.on; T.on = False
    preload("B_PWD")
    A("s_branch B_P1\nB_P0:")
    hstart(OF, False)
    T.on = on
    A("B_P1:\ns_waitcnt vmcnt(0) lgkmcnt(0)\nB_NP:")
    for x in upd: A(x)
    T.at(A, "mB", 2)
    A("s_barrier")
    T.at(A, "mB", 3)
    for nt in range(5): A(f"ds_read_b64 {v(XT+2*nt,2)}, v{FI if nt == 2 else 253} offset:{TO[nt]}\nds_read_b64 {v(BT+2*nt,2)}, v{FI+1 if nt == 2 else 10} offset:{TO[nt]}")
    for x in hrd(0): A(x)
    for nt in range(5):
        for h in range(2):
            c = ACC + nt*8 + 2*h
            A(f"v_lshlrev_b32 v{c}, 16, v{XT+2*nt+h}\nv_lshlrev_b32 v10, 16, v{BT+2*nt+h}\nv_and_b32 v{c+1}, s69, v{XT+2*nt+h}\nv_and_b32 v{FI}, s69, v{BT+2*nt+h}")
            A(f"v_add_f32 v{c}, v{c}, v10\nv_add_f32 v{c+1}, v{c+1}, v{FI}")
    A(f"s_mov_b32 s{sIt}, 3\nB_C0:\ns_waitcnt lgkmcnt(0)\ns_barrier")
    m = hmm(0); mix(m[:7], hrd(1), adv); mix(m[7:], [], upd + [f"s_sub_u32 s{sIt}, s{sIt}, 1"])
    A(f"s_waitcnt lgkmcnt(0)\ns_barrier\ns_cmp_lg_u32 s{sIt}, 0")
    mix(hmm(1), hrd(0), [])
    A("s_cbranch_scc1 B_C0")
    for x in adv + upd: A(x)
    for x in hmm(0): A(x)
    A(f"s_mov_b32 s{sIt}, 5\ns_waitcnt lgkmcnt(0)\ns_barrier")
    for x in trr + hrd(0) + fst(0)[:12] + neg: A(x)
    def half2(par):
        f = fst(par)
        A("s_waitcnt lgkmcnt(0)\ns_barrier")
        mix(sa, hrd(1), f[12:20])
        mix(hmm(0), [], f[20:] + adv + upd + cv)
    def half1(par, nxt, extra):
        if nxt: A("s_waitcnt lgkmcnt(0)\ns_barrier")
        mix(hmm(1), (trr + hrd(0)) if nxt else [], fcv(par, 0) + fcv(par, 1))
        f = fst(par ^ 1)[:12] if nxt else []
        mix(zmm(0), [], fcv(par, 2)); mix(zmm(1) + zmm(2), [], f + (neg if nxt else []) + extra)
    A("B_CL:")
    half2(0); half1(0, True, [])
    half2(1)
    A(f"s_sub_u32 s{sIt}, s{sIt}, 1\ns_cmp_eq_u32 s{sIt}, 0\ns_cbranch_scc1 B_CE")
    stE = A.state()
    half1(1, True, [])
    A("s_branch B_CL\nB_CE:")
    A.lg = [set(x) for x in stE[0]]
    EX = 2*WP; RL = 3*WP
    half1(1, False, [f"s_xor_b32 s50, s{sW}, 2", "s_mul_i32 s50, s50, 5120", "v_add_u32 v9, s50, v3", f"s_mul_i32 s50, s{sW}, 5120", "v_add_u32 v10, s50, v3", "v_add_u32 v11, s50, v11"])
    T.at(A, "mB", 4)
    A(f"s_cmp_eq_u32 s{sKP}, 0\ns_cselect_b32 s50, -1.0, 1.0\nv_mov_b32 v{FI}, s50\nv_mov_b32 v{FI+1}, s50\nv_add_u32 v{FI+2}, v11, v254")
    def unfold(l):
        for e in range(2):
            z = ZC + (e*2+l)*4
            for h in range(2):
                A(f"v_pk_add_f32 {v(ACC+(e*2+l)*4+2*h,2)}, {v(ACC+(e*2+l)*4+2*h,2)}, {v(z+2*h,2)}")
                A(f"v_pk_fma_f32 {v(ACC+((e+3)*2+l)*4+2*h,2)}, {v(z+2*h,2)}, {v(FI,2)}, {v(ACC+((e+3)*2+l)*4+2*h,2)}")
    unfold(1)
    for nt in (0, 3, 1, 4, 2): A(f"ds_write_b128 v9, {v(ACC+(nt*2+1)*4,4)} offset:{EX+1024*nt}")
    unfold(0)
    A("s_waitcnt lgkmcnt(0)\ns_barrier")
    P = HF
    for nt in range(5): A(f"ds_read_b128 {v(P+4*nt,4)}, v10 offset:{EX+1024*nt}")
    for nt in range(5):
        c = ACC + nt*8
        A(f"v_pk_add_f32 {v(c,2)}, {v(c,2)}, {v(P+4*nt,2)}\nv_pk_add_f32 {v(c+2,2)}, {v(c+2,2)}, {v(P+4*nt+2,2)}")
        A(f"v_cvt_pk_bf16_f32 v{c+4}, v{c}, v{c+1}\nv_cvt_pk_bf16_f32 v{c+5}, v{c+2}, v{c+3}\nds_write_b64 v{FI+2 if nt == 2 else 11}, {v(c+4,2)} offset:{RL+TO[nt]}")
    A("s_waitcnt lgkmcnt(0)")
    for q in range(3): A(f"ds_read_b128 {v(P+20+4*q,4)}, v10 offset:{RL+1024*q}")
    for q in range(3):
        if q == 2: A("s_mov_b32 exec_hi, 0")
        A(f"buffer_store_dwordx4 {v(P+20+4*q,4)}, v{OF+q}, s[{rO}:{rO+3}], s59 offen {'sc1' if 'osc1' in OPT else ''}")
    T.end(A, sW, sWS)
    A("s_endpgm")

    sIt = 48
    reset(A)
    A("B_LH:\ns_setprio 0\ns_cmp_ge_u32 s45, s47\ns_cselect_b32 s53, 1, 0")
    T.at(A, "mB", 0)
    brole()
    A(f"s_add_u32 s56, s{sWS}, {FLG_OFF}\ns_addc_u32 s57, s{sWS+1}, 0\ns_cmp_eq_u32 s53, 1\ns_cbranch_scc1 B_LH1")
    A.prot |= {56, 57}
    itemoff(12)
    hstart(12, True)
    A(f"""
    B_LH1:
    s_add_u32 s65, s{sRB}, {L_R}
    s_lshl_b32 s65, s65, 8
    v_add_u32 v4, 4096, v3
    v_and_b32 v6, 16, v0
    v_lshlrev_b32 v6, 2, v6
    v_xor_b32 v6, v6, v3
    v_add_u32 v7, 4096, v6
    s_mov_b32 s{sO}, {4*8192}
    s_mov_b32 s{sO2}, 0
    """)
    bsrd(rH, 54*4096, sRB, H_OFF); bsrd(rU, 20*4096, sRB, U_OFF)
    A("s_waitcnt vmcnt(24)\ns_barrier\ns_setprio 3")
    ldH(None, HB + 2*HP); A("s_waitcnt vmcnt(24)\ns_barrier")
    ldH(None, HB + 2*HP + 8192); A("s_waitcnt vmcnt(24)\ns_barrier")
    ldH(None, HB); A("s_waitcnt vmcnt(24)\ns_barrier")
    ldH(None, HB + HP); A("s_waitcnt vmcnt(24)\ns_barrier")
    ldH(None, HB + HP + 8192); A("s_waitcnt vmcnt(24)\ns_barrier")
    poll(65, 20, 8)
    T.at(A, "mB", 4)
    ldU(None, HB + HP + 16384)
    ldH(None, HB + 2*HP); ldU(None, HB + 2*HP + 16384)
    A("s_waitcnt vmcnt(40)\ns_barrier")
    A(f"s_mov_b32 s{sM}, {HB + 2*HP}\ns_mov_b32 s{sIt}, 9\nB_LL:")
    ldH(sM, 8192)
    A(f"s_add_u32 s{sM}, s{sM}, {HP}\ns_cmp_eq_u32 s{sM}, {HB + 3*HP}\ns_cselect_b32 s{sM}, {HB}, s{sM}\ns_sub_u32 s{sIt}, s{sIt}, 1\ns_cmp_eq_u32 s{sIt}, 0\ns_waitcnt vmcnt(24)\ns_barrier\ns_cbranch_scc1 B_LE")
    ldH(sM, 0); ldU(sM, 16384)
    A("s_waitcnt vmcnt(40)\ns_barrier\ns_branch B_LL\nB_LE:")
    A("s_barrier\ns_waitcnt vmcnt(8)\ns_barrier\ns_waitcnt vmcnt(0)\ns_barrier")
    T.end(A, sW, sWS)
    A("s_endpgm")
    reset(A)
    A("B_LW:\ns_setprio 0\ns_cmp_ge_u32 s45, s47\ns_cselect_b32 s53, 1, 0")
    T.at(A, "mB", 0)
    brole()
    A(f"s_add_u32 s56, s{sWS}, {FLG_OFF}\ns_addc_u32 s57, s{sWS+1}, 0\ns_cmp_eq_u32 s53, 1\ns_cbranch_scc1 B_LW1")
    A.prot |= {56, 57}
    preload("B_PW", True)
    A("B_LW1:")
    bsrd(rW, 54*5120, sCB, W2P_OFF)
    A(f"v_add_u32 v4, 4096, v3\nv_add_u32 v5, 8192, v3\ns_mov_b32 s{sO}, {7*10240}\ns_mov_b32 s{sM}, 0\ns_mov_b32 s{sIt}, 20")
    T.at(A, "mB", 2)
    WL = optval("wl", 3)
    for k in range(WL): A(f"s_waitcnt vmcnt({min(63, 60-10*k+optval('nt', 0))})\ns_barrier")
    A("s_setprio 3\nB_LWL:")
    ldW(sM, 0, sO)
    A(f"s_add_u32 s{sM}, s{sM}, 10240\ns_cmp_eq_u32 s{sM}, {4*WP}\ns_cselect_b32 s{sM}, 0, s{sM}\ns_sub_u32 s{sIt}, s{sIt}, 1\ns_cmp_lg_u32 s{sIt}, 0\ns_waitcnt vmcnt({10*(7-WL)})\ns_barrier\ns_cbranch_scc1 B_LWL")
    for k in range(7 - WL): A(f"s_waitcnt vmcnt({10*(6-WL-k)})\ns_barrier")
    T.end(A, sW, sWS)
    A(f"{END}:\nCODE_END:")
    return dict(label=NAME + "_kernel", body=A.text(), vgpr=256, grid=256, block=512, lds=160*1024)

KOFK = [32*(t >> 1) + 2*n + (t & 1) for t in range(20) for n in range(16)]
COLS = [[40*cb + (16*nt + n if nt < 2 or (nt == 2 and n < 8) else 344 + n if nt == 2 else 320 + 16*(nt-3) + n) for n in range(16)] for cb in range(8) for nt in range(5)]

def groups(i, shape):
    import numpy as np
    w = np.arange(shape[1])
    b = np.arange(256); i8 = (b >> 3) & 7; ch = b & 1
    mlp = i8 < 5 + ch
    return [("mlp", np.ix_(mlp, w < 4)), ("mlp-ld", np.ix_(mlp, w == 4)), ("mlp-l5", np.ix_(mlp, w == 5)), ("mlp-h6", np.ix_(mlp, w == 6)), ("mlp-h7", np.ix_(mlp, w == 7)), ("dft", np.ix_(~mlp, w < 4)), ("dft-ld", np.ix_(~mlp, w == 4)), ("dft-l5", np.ix_(~mlp, w == 5)), ("dft-6", np.ix_(~mlp, w == 6)), ("dft-7", np.ix_(~mlp, w == 7))]

if __name__ == "__main__":
    st = "stamps" in sys.argv
    OPT.update(sys.argv[2:])
    ks = [gen_all(st)]
    for x in sys.argv:
        if x.startswith("abl:"):
            _, ki, l0, l1, pre = x.split(":")
            out = []; on = False
            for l in ks[int(ki)]["body"].split("\n"):
                t = l.strip()
                if t == l0 + ":": on = True
                if t == l1 + ":": on = False
                if on and any(t.startswith(p) for p in pre.split(",")): continue
                out.append(l)
            ks[int(ki)]["body"] = "\n".join(out)
    for x in sys.argv:
        if x.startswith("diag:"):
            import diag
            p = x.split(":")[1:]
            ks.append(diag.gen_diag(tuple([p[0]] + [int(y) for y in p[1:]]), STAMP_OFF))
    txt = file_text(ks)
    if len(ks) == 1 and "aslist" not in OPT: txt = txt.replace(f"; @launch kernel={NAME}_kernel grid", "; @launch grid")
    open(sys.argv[1], "w").write(txt)
```
